```python
import torch

def _softmax(x, axis=-1):
    return torch.softmax(x, dim=axis)
def _gelu(x):
    return torch.nn.functional.gelu(x, approximate="tanh")
def _silu(x):
    return torch.nn.functional.silu(x)
def _sigmoid(x):
    return torch.sigmoid(x)
def _layernorm(x, axis=-1, eps=1e-5):
    m = x.mean(dim=axis, keepdim=True)
    v = x.var(dim=axis, keepdim=True, unbiased=False)
    return (x - m) / torch.sqrt(v + eps)
def _scatter_add(tgt, idx, src, axis=0):
    return tgt.clone().index_add_(axis, idx, src)
def _segment_sum(src, seg, n):
    out = torch.zeros((n,) + src.shape[1:], dtype=src.dtype)
    return out.index_add_(0, seg, src)
def _pad(x, pw):
    flat = tuple(v for pair in reversed(pw) for v in pair)
    return torch.nn.functional.pad(x, flat)

kernel_name = 'gated_mix__ssm_conv_s5__glu_gated_glu__prompt'

def setup_inputs():

    _w = (lambda a: (lambda t: t.to(torch.bfloat16) if t.is_floating_point() else t)(torch.as_tensor(a)))
    def _A_setup():
        B, S, D = 1, 2048, 512
        P = D
        Lambda_re = -0.5 * (lambda _x: torch.exp(torch.as_tensor(_x)))((lambda *s: torch.randn(*s, dtype=torch.bfloat16) * 0.4)(P))
        Lambda_im = (lambda *s: torch.randn(*s, dtype=torch.bfloat16) * 0.8)(P) * 1.0
        B_re = (lambda *s: torch.randn(*s, dtype=torch.bfloat16) * 0.8)(P, D) * (D ** -0.5)
        B_im = (lambda *s: torch.randn(*s, dtype=torch.bfloat16) * 0.8)(P, D) * (D ** -0.5)
        C_re = (lambda *s: torch.randn(*s, dtype=torch.bfloat16) * 0.8)(D, P) * (P ** -0.5)
        C_im = (lambda *s: torch.randn(*s, dtype=torch.bfloat16) * 0.8)(D, P) * (P ** -0.5)
        log_dt = (lambda *s: torch.randn(*s, dtype=torch.bfloat16) * 0.4)(P) * 0.3 - 2.0
        Dskip = (lambda *s: torch.randn(*s, dtype=torch.bfloat16) * 0.1)(D)
        return {
            "x": _w((lambda *s: torch.randn(*s, dtype=torch.bfloat16) * 0.05)(B, S, D)),
            "Lambda_re": _w(Lambda_re),
            "Lambda_im": _w(Lambda_im),
            "B_re": _w(B_re),
            "B_im": _w(B_im),
            "C_re": _w(C_re),
            "C_im": _w(C_im),
            "log_dt": _w(log_dt),
            "Dskip": _w(Dskip),
        }
    _A_in = _A_setup()

    def _B_setup():
        B, S, D, F = 1, 2048, 512, 1792
        return {
            "x": _w((lambda *s: torch.randn(*s, dtype=torch.bfloat16) * 0.05)(B, S, D)),
            "w_gate": _w((lambda *s: torch.randn(*s, dtype=torch.bfloat16) * 0.4)(D, F)),
            "w_up": _w((lambda *s: torch.randn(*s, dtype=torch.bfloat16) * 0.05)(D, F)),
            "w_down": _w((lambda *s: torch.randn(*s, dtype=torch.bfloat16) * 0.05)(F, D)),
        }
    _B_in = _B_setup()

    return {
        "A_x": _A_in["x"],
        "A_Lambda_re": _A_in["Lambda_re"],
        "A_Lambda_im": _A_in["Lambda_im"],
        "A_B_re": _A_in["B_re"],
        "A_B_im": _A_in["B_im"],
        "A_C_re": _A_in["C_re"],
        "A_C_im": _A_in["C_im"],
        "A_log_dt": _A_in["log_dt"],
        "A_Dskip": _A_in["Dskip"],
        "B_x": _B_in["x"],
        "B_w_gate": _B_in["w_gate"],
        "B_w_up": _B_in["w_up"],
        "B_w_down": _B_in["w_down"],
        "gate_w": _w((lambda *s: torch.randn(*s, dtype=torch.bfloat16) * 0.05)(512) * 16.0),
    }

def reference(A_x, A_Lambda_re, A_Lambda_im, A_B_re, A_B_im, A_C_re, A_C_im, A_log_dt, A_Dskip, B_x, B_w_gate, B_w_up, B_w_down, gate_w):
    def _A_ref(x, Lambda_re, Lambda_im, B_re, B_im, C_re, C_im, log_dt, Dskip):
        Bsz, L, H = x.shape
        Lam = Lambda_re + 1j * Lambda_im
        Bmat = B_re + 1j * B_im
        Cmat = C_re + 1j * C_im
        dt = torch.exp(log_dt)
        Lam_bar = torch.exp(dt * Lam)
        B_bar = ((Lam_bar - 1.0) / Lam)[:, None] * Bmat
        Bu = torch.einsum("bld,pd->blp", x + 0j, B_bar)
        h = torch.zeros_like(Bu[:, 0, :])
        hs = []
        for t in range(L):
            h = Lam_bar[None, :] * h + Bu[:, t, :]
            hs.append(h)
        hseq = torch.stack(hs, 1)
        y = 2.0 * torch.einsum("blp,dp->bld", hseq, Cmat).real + x * Dskip[None, None, :]
        return y

    def _B_ref(x, w_gate, w_up, w_down):
        g = torch.einsum("bsd,df->bsf", x, w_gate)
        u = torch.einsum("bsd,df->bsf", x, w_up)
        h = _sigmoid(g) * u
        return torch.einsum("bsf,fd->bsd", h, w_down)

    x = A_x
    g = _sigmoid((x * gate_w).sum(-1, keepdims=True))
    a = _A_ref(x, A_Lambda_re, A_Lambda_im, A_B_re, A_B_im, A_C_re, A_C_im, A_log_dt, A_Dskip)
    b = _B_ref(x, B_w_gate, B_w_up, B_w_down)
    return g * a + (1 - g) * b
```

```python
import sys

NAME = "gated_mix__ssm_conv_s5__glu_gated_glu__prompt"
HDR = open("cdna_kernels/%s.s.ref" % NAME).read().split("; Override launch")[0]

A2_OFF = 0
A2_SZ = 64 * 176 * 1024
G_OFF = 0xB00000
AGG_OFF = 0xB10000
AGG_SZ = 16 * 512 * 16
WS_USED = 0xB40000
NPF = 6
LOG2E = 0x3fb8aa3b
NLOG2E = 0xbfb8aa3b
INV2PI = 0x3e22f983

class Asm:
    def __init__(s): s.l = []; s.uid = 0
    def __call__(s, t):
        for x in t.strip("\n").split("\n"): s.l.append("    " + x.strip() if not x.strip().endswith(":") else x.strip())
    def label(s, n): s.l.append(n + ":")
    def lab(s, p="L"):
        s.uid += 1; return f"{p}_{s.uid}"
    def text(s): return "\n".join(s.l) + "\n"

def vr(b, n): return f"v[{b}:{b+n-1}]" if n > 1 else f"v{b}"
def sr(b, n): return f"s[{b}:{b+n-1}]" if n > 1 else f"s{b}"

def srd(a, d, lo, size):
    a(f"s_mov_b32 s{d}, s{lo}\ns_mov_b32 s{d+1}, s{lo+1}\ns_mov_b32 s{d+2}, {size}\ns_mov_b32 s{d+3}, 0x20000")

sX, sLre, sLim, sBre, sBim, sCre, sCim, sLdt = 16, 18, 20, 22, 24, 26, 28, 30
sDsk, sBx, sWg, sWu, sWd, sGw, sOut, sDbg, sWs = 32, 34, 36, 38, 40, 42, 44, 46, 48

def load_kernargs(a):
    a("s_load_dwordx16 s[16:31], s[0:1], 0\ns_load_dwordx16 s[32:47], s[0:1], 64\ns_load_dwordx2 s[48:49], s[0:1], 128")

def bf16_round(a, d, s, t):
    a(f"v_cvt_pk_bf16_f32 v{t}, v{s}, v{s}\nv_lshlrev_b32 v{d}, 16, v{t}")

PARAM = 0; NONCE = 2048; XR = 4096; BLK = XR + 49152; EXT = XR + 147456
AGE_RE = XR; AGE_IM = XR + 1024; AGM_RE = XR + 2048; AGM_IM = XR + 4096
LDS1 = 163840

vXa = 16
vWa = 20
vXe = 24
vEa = 28
ACC = 32
ACE = 160
FR = [176, 200]
FE = 224
TMP = 240

def acc(w, m): return ACC + (w * 2 + m) * 16
def ace(comp, m): return ACE + (comp * 2 + m) * 4

def reads_main(kind, slot, kk, st):
    r = []
    b = FR[st]
    xs = 4096 if kind == 'G' else 1024
    def xr(m): return f"ds_read_b128 {vr(b+4*m,4)}, v{vXa+kk} offset:{XR + slot*16384 + m*xs}"
    def wr(w):
        d = b + 8 + 4*w
        if kind == 'G':
            off = (w >> 1)*24576 + slot*8192 + kk*2048
            return [f"ds_read_b64_tr_b16 {vr(d,2)}, v{vWa+(w&1)} offset:{off}",
                    f"ds_read_b64_tr_b16 {vr(d+2,2)}, v{vWa+(w&1)} offset:{off+512}"]
        off = (w >> 1)*24576 + slot*8192 + (w & 1)*4096
        return [f"ds_read_b128 {vr(d,4)}, v{vWa+kk} offset:{off}"]
    r.append(xr(0)); r += wr(0); r.append(xr(1)); r += wr(1) + wr(2) + wr(3)
    return r

def reads_ext(slot, k32):
    r = []
    for m in range(2): r.append(f"ds_read_b128 {vr(FE+4*m,4)}, v{vXe+2*m+k32} offset:{XR + slot*16384}")
    for cp in range(2): r.append(f"ds_read_b128 {vr(FE+8+4*cp,4)}, v{vEa+k32} offset:{slot*4096+cp*2048}")
    return r

def mfma_main(kind, st, first):
    r = []
    b = FR[st]
    for w in range(4):
        for m in range(2):
            d = vr(acc(w, m), 16); X = vr(b+4*m, 4); W = vr(b+8+4*w, 4)
            c = "0" if first else d
            if kind == 'G': r.append(f"v_mfma_f32_32x32x16_bf16 {d}, {W}, {X}, {c}")
            else: r.append(f"v_mfma_f32_32x32x16_bf16 {d}, {X}, {W}, {c}")
    return r

def mfma_ext(first):
    r = []
    for cp in range(2):
        for m in range(2):
            d = vr(ace(cp, m), 4)
            r.append(f"v_mfma_f32_16x16x32_bf16 {d}, {vr(FE+4*m,4)}, {vr(FE+8+4*cp,4)}, {'0' if first else d}")
    return r

def interleave(a, mf, rd, per=2):
    rd = list(rd)
    for i, m in enumerate(mf):
        a(m)
        for _ in range(per):
            if rd: a(rd.pop(0))
    for x in rd: a(x)

def k1_consumer_loop(a, kind):
    a("s_barrier")
    for x in reads_main(kind, 0, 0, 0): a(x)
    for s in range(8):
        slot = s % 3
        for kk in range(4):
            st = kk & 1
            a("s_waitcnt lgkmcnt(0)")
            rd = []
            if kk == 3:
                if s < 7:
                    a("s_barrier")
                    rd = reads_main(kind, (s+1) % 3, 0, 0)
            else:
                rd = reads_main(kind, slot, kk+1, st ^ 1)
            if kk in (0, 2): rd = rd + reads_ext(slot, kk >> 1)
            mf = mfma_main(kind, st, s == 0 and kk == 0)
            if kk in (1, 3):
                me = mfma_ext(s == 0 and kk == 1)
                mf = mf[:4] + me + mf[4:]
            interleave(a, mf, rd)

def cmul_pk(a, R, I, C, t1, t2):
    a(f"v_pk_mul_f32 {vr(t1,2)}, {vr(R,2)}, {vr(C,2)} op_sel:[0,0] op_sel_hi:[1,0]")
    a(f"v_pk_mul_f32 {vr(t2,2)}, {vr(R,2)}, {vr(C,2)} op_sel:[0,1] op_sel_hi:[1,1] neg_lo:[0,1] neg_hi:[0,1]")
    a(f"v_pk_fma_f32 {vr(R,2)}, {vr(I,2)}, {vr(C,2)}, {vr(t1,2)} op_sel:[0,1,0] op_sel_hi:[1,1,1] neg_lo:[0,1,0] neg_hi:[0,1,0]")
    a(f"v_pk_fma_f32 {vr(I,2)}, {vr(I,2)}, {vr(C,2)}, {vr(t2,2)} op_sel:[0,0,0] op_sel_hi:[1,0,1] neg_lo:[0,1,0] neg_hi:[0,1,0]")

def cmul_s(a, R, I, cr, ci, t1, t2):
    a(f"v_mul_f32 v{t1}, v{R}, v{cr}\nv_mul_f32 v{t2}, v{R}, v{ci}")
    a(f"v_fma_f32 v{R}, -v{I}, v{ci}, v{t1}\nv_fma_f32 v{I}, -v{I}, v{cr}, -v{t2}")

def k1_epilogue(a, kind):
    PE = 176
    PM = [180, 184]
    a(f"v_and_b32 v1, 15, v0\nv_lshlrev_b32 v1, 4, v1\nds_read_b128 {vr(PE,4)}, v1 offset:{PARAM}")
    if kind == 'S':
        a(f"v_and_b32 v2, 31, v0\nv_lshlrev_b32 v2, 4, v2")
        for cg in range(2): a(f"ds_read_b128 {vr(PM[cg],4)}, v2 offset:{PARAM + 256 + cg*512}")
    a("s_nop 7\ns_nop 3")
    a("s_waitcnt lgkmcnt(0)")
    if kind == 'S':
        S = [[188, 190], [192, 194]]; T = [[196, 198], [200, 202]]
        for pos in range(1, 16):
            for cg in range(2):
                L = vr(PM[cg], 2)
                m, rr = pos >> 3, (pos & 7) * 2
                R = vr(acc(cg, m) + rr, 2); I = vr(acc(2+cg, m) + rr, 2)
                if pos == 1: pr, pi = vr(acc(cg, 0), 2), vr(acc(2+cg, 0), 2)
                else:
                    src = S if (pos & 1) else T
                    pr, pi = vr(src[cg][0], 2), vr(src[cg][1], 2)
                dst = T if (pos & 1) else S
                dr, di = vr(dst[cg][0], 2), vr(dst[cg][1], 2)
                a(f"v_pk_fma_f32 {dr}, {pr}, {L}, {R} op_sel:[0,0,0] op_sel_hi:[1,0,1]")
                a(f"v_pk_fma_f32 {di}, {pi}, {L}, {I} op_sel:[0,0,0] op_sel_hi:[1,0,1]")
                a(f"v_pk_fma_f32 {dr}, {pi}, {L}, {dr} op_sel:[0,1,0] op_sel_hi:[1,1,1] neg_lo:[0,1,0] neg_hi:[0,1,0]")
                a(f"v_pk_fma_f32 {di}, {pr}, {L}, {di} op_sel:[0,1,0] op_sel_hi:[1,1,1]")
        a(f"v_lshrrev_b32 v3, 5, v0\nv_lshlrev_b32 v3, 9, v3\nv_lshrrev_b32 v4, 2, v2\nv_add_u32 v3, v3, v4")
        a(f"s_lshr_b32 s4, s3, 1\ns_lshl_b32 s4, s4, 10\nv_add_u32 v3, s4, v3")
        for cg in range(2):
            for par in range(2):
                a(f"ds_write_b32 v3, v{T[cg][0]+par} offset:{AGM_RE + par*256 + cg*128}")
                a(f"ds_write_b32 v3, v{T[cg][1]+par} offset:{AGM_IM + par*256 + cg*128}")
    lr, li = PE, PE+1
    S = [204, 205]; T = [206, 207]
    for pos in range(1, 8):
        R = ace(0, pos >> 2) + (pos & 3); I = ace(1, pos >> 2) + (pos & 3)
        if pos == 1: pr, pi = ace(0, 0), ace(1, 0)
        else: pr, pi = (S if (pos & 1) else T)
        dr, di = (T if (pos & 1) else S)
        a(f"v_fma_f32 v{dr}, v{pr}, v{lr}, v{R}\nv_fma_f32 v{di}, v{pi}, v{lr}, v{I}")
        a(f"v_fma_f32 v{dr}, -v{pi}, v{li}, v{dr}\nv_fma_f32 v{di}, v{pr}, v{li}, v{di}")
    a(f"s_lshl_b32 s4, s3, 8\nv_lshlrev_b32 v5, 2, v0\nv_add_u32 v5, s4, v5")
    a(f"ds_write_b32 v5, v{T[0]} offset:{AGE_RE}\nds_write_b32 v5, v{T[1]} offset:{AGE_IM}")
    a("s_waitcnt lgkmcnt(0)\ns_barrier")
    a("v_lshlrev_b32 v6, 4, v0")
    if kind == 'G':
        a("s_lshr_b32 s4, s3, 1\ns_lshl_b32 s4, s4, 1\ns_lshl_b32 s5, s6, 2\ns_add_u32 s4, s4, s5\ns_mul_i32 s4, s4, 176")
        a("s_and_b32 s5, s3, 1\ns_lshl_b32 s5, s5, 2\ns_add_u32 s4, s4, s5\ns_lshr_b32 s5, s9, 4\ns_add_u32 s4, s4, s5\ns_lshl_b32 s14, s4, 10")
        a(f"s_mov_b32 s50, {NLOG2E}\ns_mov_b32 s51, {NLOG2E}")
        k = 0
        for fh in range(2):
            for m in range(2):
                g, u = acc(fh, m), acc(2+fh, m)
                for half in range(2):
                    E = 208 + (k & 1) * 8
                    P = 224 + (k & 3) * 4
                    k += 1
                    gb, ub = g + 8*half, u + 8*half
                    for i in range(0, 8, 2): a(f"v_pk_mul_f32 {vr(E+i,2)}, {vr(gb+i,2)}, s[50:51]")
                    for i in range(8): a(f"v_exp_f32 v{E+i}, v{E+i}")
                    for i in range(0, 8, 2): a(f"v_pk_add_f32 {vr(E+i,2)}, {vr(E+i,2)}, 1.0 op_sel_hi:[1,0]")
                    for i in range(8): a(f"v_rcp_f32 v{E+i}, v{E+i}")
                    for i in range(0, 8, 2): a(f"v_pk_mul_f32 {vr(E+i,2)}, {vr(E+i,2)}, {vr(ub+i,2)}")
                    for i in range(0, 8, 2): a(f"v_cvt_pk_bf16_f32 v{P+i//2}, v{E+i}, v{E+i+1}")
                    off = (m*176 + 2*fh + half) * 1024
                    a(f"s_add_u32 s5, s14, {off}")
                    a(f"buffer_store_dwordx4 {vr(P,4)}, v6, s[64:67], s5 offen")
    else:
        for cg in range(2):
            for m in range(2):
                for rr in range(0, 16, 2):
                    t = 208 + ((rr >> 1) & 3) * 4
                    cmul_pk(a, acc(cg, m)+rr, acc(2+cg, m)+rr, PM[cg]+2, t, t+2)
    for m in range(2):
        for i in range(4):
            cmul_s(a, ace(0, m)+i, ace(1, m)+i, PE+2, PE+3, 240 + (i & 1)*2, 241 + (i & 1)*2)
    a(f"s_mul_i32 s4, s3, 24576\ns_add_u32 s4, s4, {BLK}")
    a("v_and_b32 v7, 15, v0\nv_lshlrev_b32 v7, 6, v7\nv_lshrrev_b32 v8, 4, v0\nv_lshl_add_u32 v7, v8, 4, v7\nv_add_u32 v7, s4, v7")
    a("v_lshrrev_b32 v9, 5, v0\nv_lshlrev_b32 v9, 3, v9\nv_bfe_u32 v10, v0, 2, 2\nv_add_u32 v9, v9, v10")
    a("v_bfe_u32 v10, v0, 4, 1\nv_lshlrev_b32 v10, 5, v10\nv_and_b32 v11, 3, v0\nv_lshl_add_u32 v10, v11, 3, v10")
    a("v_lshl_add_u32 v8, v9, 6, v10\nv_add_u32 v8, s4, v8")
    if kind == 'S':
        a("v_and_b32 v11, 1, v0\nv_bfe_u32 v12, v0, 2, 1\nv_lshl_or_b32 v11, v12, 1, v11\nv_bfe_u32 v12, v0, 1, 1\nv_lshl_or_b32 v11, v12, 2, v11")
        a("v_lshrrev_b32 v12, 5, v0\nv_lshlrev_b32 v12, 2, v12\nv_xor_b32 v11, v11, v12\nv_lshlrev_b32 v11, 4, v11")
        a("v_and_b32 v12, 31, v0\nv_lshl_add_u32 v16, v12, 7, v11\nv_add_u32 v16, s4, v16")
        for i in range(1, 4): a(f"v_xor_b32 v{16+i}, {i*16}, v16")
        a("v_bfe_u32 v11, v0, 2, 1\nv_bfe_u32 v12, v0, 3, 1\nv_lshl_or_b32 v11, v12, 2, v11\nv_lshlrev_b32 v11, 4, v11\nv_xor_b32 v11, v11, v10")
        a("v_lshl_add_u32 v20, v9, 7, v11\nv_add_u32 v20, s4, v20")
        a("v_xor_b32 v21, 32, v20\nv_add_u32 v21, 512, v21")
        a("v_xor_b32 v22, 64, v20\nv_xor_b32 v23, 64, v21")
    a("s_barrier")
    IE = 208
    a(f"ds_read_b32 v{IE}, v5 offset:{AGE_RE}\nds_read_b32 v{IE+1}, v5 offset:{AGE_IM}")
    IM = [[212, 214], [216, 218]]
    if kind == 'S':
        for cg in range(2):
            for par in range(2):
                a(f"ds_read_b32 v{IM[cg][0]+par}, v3 offset:{AGM_RE + par*256 + cg*128}")
                a(f"ds_read_b32 v{IM[cg][1]+par}, v3 offset:{AGM_IM + par*256 + cg*128}")
    a("s_waitcnt lgkmcnt(0)")
    cmul_s(a, IE, IE+1, PE+2, PE+3, 240, 241)
    if kind == 'S':
        for cg in range(2): cmul_pk(a, IM[cg][0], IM[cg][1], PM[cg]+2, 220, 222)
        for pos in range(16):
            for cg in range(2):
                L = vr(PM[cg], 2)
                m, rr = pos >> 3, (pos & 7) * 2
                R = vr(acc(cg, m) + rr, 2); I = vr(acc(2+cg, m) + rr, 2)
                if pos == 0: pr, pi = vr(IM[cg][0], 2), vr(IM[cg][1], 2)
                else:
                    pm, prr = (pos-1) >> 3, ((pos-1) & 7) * 2
                    pr, pi = vr(acc(cg, pm)+prr, 2), vr(acc(2+cg, pm)+prr, 2)
                a(f"v_pk_fma_f32 {R}, {pr}, {L}, {R} op_sel:[0,0,0] op_sel_hi:[1,0,1]")
                a(f"v_pk_fma_f32 {I}, {pi}, {L}, {I} op_sel:[0,0,0] op_sel_hi:[1,0,1]")
                a(f"v_pk_fma_f32 {R}, {pi}, {L}, {R} op_sel:[0,1,0] op_sel_hi:[1,1,1]")
                a(f"v_pk_fma_f32 {I}, {pr}, {L}, {I} op_sel:[0,1,0] op_sel_hi:[1,1,1] neg_lo:[0,1,0] neg_hi:[0,1,0]")
    for pos in range(8):
        R = ace(0, pos >> 2) + (pos & 3); I = ace(1, pos >> 2) + (pos & 3)
        if pos == 0: pr, pi = IE, IE+1
        else: pr, pi = ace(0, (pos-1) >> 2) + ((pos-1) & 3), ace(1, (pos-1) >> 2) + ((pos-1) & 3)
        a(f"v_fma_f32 v{R}, v{pr}, v{lr}, v{R}\nv_fma_f32 v{I}, v{pi}, v{lr}, v{I}")
        a(f"v_fma_f32 v{R}, v{pi}, v{li}, v{R}\nv_fma_f32 v{I}, -v{pr}, v{li}, v{I}")
    for cp in range(2):
        P = 224 + 4*cp
        for d in range(4):
            b = ace(cp, d >> 1) + (d & 1)*2
            a(f"v_cvt_pk_bf16_f32 v{P+d}, v{b}, v{b+1}")
        a(f"ds_write_b128 v7, {vr(P,4)} offset:{16384 + cp*1024}")
    if kind == 'S':
        k = 0
        for comp in range(2):
            for cg in range(2):
                for par in range(2):
                    for m in range(2):
                        P = 232 + (k & 1) * 4 + 8 * ((k >> 1) & 1) if False else 232 + (k % 4) * 4
                        k += 1
                        b = acc(2*comp + cg, m)
                        for aa in range(4): a(f"v_cvt_pk_bf16_f32 v{P+aa}, v{b+4*aa+par}, v{b+4*aa+2+par}")
                        a(f"ds_write_b128 v{16+2*par+m}, {vr(P,4)} offset:{comp*8192 + cg*4096}")
    a("s_waitcnt lgkmcnt(0)")
    for cp in range(2):
        a(f"ds_read_b64_tr_b16 {vr(176+4*cp,2)}, v8 offset:{16384 + cp*1024}")
        a(f"ds_read_b64_tr_b16 {vr(178+4*cp,2)}, v8 offset:{16384 + cp*1024 + 256}")
    a("s_lshl_b32 s4, s6, 2\ns_add_u32 s4, s4, s3\ns_mul_i32 s4, s4, 176\ns_lshl_b32 s5, s8, 4\ns_add_u32 s4, s4, s5\ns_add_u32 s4, s4, s7\ns_add_u32 s4, s4, 112\ns_lshl_b32 s4, s4, 10")
    a("s_add_u32 s5, s4, 4096")
    if kind == 'S':
        fr = []
        for mt in range(2):
            for comp in range(2):
                for u in range(4):
                    d = ACC + 4*len(fr)
                    off = comp*8192 + u*2048
                    a(f"ds_read_b64_tr_b16 {vr(d,2)}, v{20+2*mt} offset:{off}")
                    a(f"ds_read_b64_tr_b16 {vr(d+2,2)}, v{21+2*mt} offset:{off}")
                    fr.append((d, mt, comp, u))
                    if len(fr) == 5: a("s_waitcnt lgkmcnt(10)")if False else None
    a("s_waitcnt lgkmcnt(0)")
    a(f"buffer_store_dwordx4 {vr(176,4)}, v6, s[64:67], s4 offen")
    a(f"buffer_store_dwordx4 {vr(180,4)}, v6, s[64:67], s5 offen")
    if kind == 'S':
        a("s_lshr_b32 s4, s3, 1\ns_lshl_b32 s4, s4, 1\ns_lshl_b32 s5, s6, 2\ns_add_u32 s4, s4, s5\ns_mul_i32 s4, s4, 176")
        a("s_lshl_b32 s5, s8, 4\ns_add_u32 s4, s4, s5\ns_add_u32 s4, s4, 120\ns_lshl_b32 s14, s4, 10")
        for (d, mt, comp, u) in fr:
            a(f"s_add_u32 s5, s14, {(mt*176 + 4*comp + u)*1024}")
            a(f"buffer_store_dwordx4 {vr(d,4)}, v6, s[64:67], s5 offen")
    a("s_endpgm")

def k1_consumer_prologue(a, code_bytes_label):
    srd(a, 64, sWs, WS_USED)
    srd(a, 52, sX, 2097152)
    l_np = a.lab(); l_nn = a.lab(); l_nq = a.lab()
    a(f"s_cmp_lg_u32 s3, 3\ns_cbranch_scc1 {l_np}")
    a(f"s_mov_b32 s4, {code_bytes_label} - {NAME}_kernel - 8\nv_lshlrev_b32 v1, 7, v0")
    for k in range(NPF):
        a(f"v_add_u32 v2, {k*8192}, v1\nv_min_u32 v2, s4, v2\nglobal_load_dword v3, v2, s[90:91]")
    a.label(l_np)
    srd(a, 56, sGw, 1024)
    a("s_lshl_b32 s4, s6, 7\ns_lshl_b32 s5, s13, 3\ns_add_u32 s4, s4, s5\ns_lshl_b32 s5, s3, 1\ns_add_u32 s15, s4, s5\ns_lshl_b32 s4, s15, 10")
    a("v_lshlrev_b32 v1, 4, v0")
    a("buffer_load_dwordx4 v[32:35], v1, s[52:55], s4 offen\nbuffer_load_dwordx4 v[36:39], v1, s[52:55], s4 offen offset:1024\nbuffer_load_dwordx4 v[40:43], v1, s[56:59], 0 offen")
    a(f"s_cmp_ge_u32 s3, 2\ns_cbranch_scc1 {l_nq}")
    srd(a, 56+4, sLre, 1024); srd(a, 68, sLim, 1024); srd(a, 72, sLdt, 1024)
    a("s_lshl_b32 s4, s3, 6\nv_add_u32 v2, s4, v0\nv_add_u32 v3, s10, v2\ns_sub_u32 s5, s11, 16\nv_add_u32 v4, s5, v2")
    a("v_cmp_gt_u32 vcc, 16, v2\ns_nop 1\nv_cndmask_b32 v3, v4, v3, vcc\nv_lshlrev_b32 v3, 1, v3")
    a("buffer_load_ushort v44, v3, s[60:63], 0 offen\nbuffer_load_ushort v45, v3, s[68:71], 0 offen\nbuffer_load_ushort v46, v3, s[72:75], 0 offen")
    a("s_waitcnt vmcnt(0)")
    a("v_lshlrev_b32 v44, 16, v44\nv_lshlrev_b32 v45, 16, v45\nv_lshlrev_b32 v46, 16, v46")
    a(f"v_mul_f32 v46, {LOG2E}, v46\nv_exp_f32 v46, v46\ns_nop 0")
    bf16_round(a, 46, 46, 47)
    a(f"v_mul_f32 v47, v46, v44\nv_mul_f32 v48, v46, v45")
    a(f"v_mul_f32 v47, {LOG2E}, v47\nv_exp_f32 v47, v47\nv_mul_f32 v48, {INV2PI}, v48\nv_rndne_f32 v49, v48\nv_sub_f32 v48, v48, v49")
    a("v_cos_f32 v49, v48\nv_sin_f32 v50, v48\ns_nop 0\nv_mul_f32 v52, v47, v49\nv_mul_f32 v53, v47, v50")
    a("v_mul_f32 v49, v44, v44\nv_fma_f32 v49, v45, v45, v49\nv_rcp_f32 v49, v49\nv_add_f32 v50, -1.0, v52")
    a("v_mul_f32 v54, v50, v44\nv_fma_f32 v54, v53, v45, v54\nv_mul_f32 v55, v53, v44\nv_fma_f32 v55, -v50, v45, v55")
    a("v_add_f32 v49, v49, v49\nv_mul_f32 v54, v54, v49\nv_mul_f32 v55, v55, v49")
    a("v_lshlrev_b32 v2, 4, v2\nv_cmp_gt_u32 vcc, 1280, v2\ns_and_saveexec_b64 s[78:79], vcc")
    a(f"ds_write_b128 v2, v[52:55] offset:{PARAM}")
    a("s_mov_b64 exec, s[78:79]")
    a.label(l_nq)
    a(f"s_cmp_lg_u32 s3, 2\ns_cbranch_scc1 {l_nn}")
    srd(a, 60, sDbg, 256)
    a("s_memrealtime s[76:77]\ns_waitcnt lgkmcnt(0)\ns_or_b32 s76, s76, 1")
    a("v_mov_b32 v44, s76\nv_mov_b32 v45, 0\nv_mov_b32 v46, 0\ns_mov_b64 exec, 1")
    a("buffer_atomic_cmpswap v[44:45], v46, s[60:63], 0 offen sc0\ns_waitcnt vmcnt(0)")
    a("v_mov_b32 v45, s76\nv_cmp_eq_u32 vcc, 0, v44\ns_nop 1\nv_cndmask_b32 v44, v44, v45, vcc")
    a(f"ds_write_b32 v46, v44 offset:{NONCE}\ns_mov_b64 exec, -1")
    a.label(l_nn)
    a("s_waitcnt vmcnt(0)")
    a("v_mov_b32 v4, 0\nv_mov_b32 v5, 0\ns_mov_b32 s4, 0xffff0000")
    for i in range(4):
        a(f"v_lshlrev_b32 v6, 16, v{40+i}\nv_and_b32 v7, s4, v{40+i}")
        for r in range(2):
            x = 32 + 4*r + i
            a(f"v_lshlrev_b32 v8, 16, v{x}\nv_and_b32 v9, s4, v{x}\nv_mul_f32 v8, v8, v6\nv_mul_f32 v9, v9, v7")
            a(f"v_cvt_pk_bf16_f32 v8, v8, v9\nv_lshlrev_b32 v9, 16, v8\nv_and_b32 v8, s4, v8\nv_add_f32 v{4+r}, v{4+r}, v9\nv_add_f32 v{4+r}, v{4+r}, v8")
    for off in [0x041F, 0x081F, 0x101F, 0x201F, 0x401F]:
        a(f"ds_swizzle_b32 v6, v4 offset:{off}\nds_swizzle_b32 v7, v5 offset:{off}\ns_waitcnt lgkmcnt(0)\nv_add_f32 v4, v4, v6\nv_add_f32 v5, v5, v7")
    a("s_nop 0\nv_readlane_b32 s4, v4, 32\nv_readlane_b32 s5, v5, 32\ns_nop 1\nv_add_f32 v4, s4, v4\nv_add_f32 v5, s5, v5")
    a("v_cmp_eq_u32 vcc, 1, v0\ns_nop 1\nv_cndmask_b32 v4, v4, v5, vcc")
    bf16_round(a, 4, 4, 5)
    a(f"v_mul_f32 v4, {NLOG2E}, v4\nv_exp_f32 v4, v4\ns_nop 0\nv_add_f32 v4, 1.0, v4\nv_rcp_f32 v4, v4\ns_nop 0")
    bf16_round(a, 4, 4, 5)
    a(f"s_lshl_b32 s4, s15, 2\ns_add_u32 s4, s4, {G_OFF}\nv_lshlrev_b32 v5, 2, v0\ns_mov_b64 exec, 3")
    a("buffer_store_dword v4, v5, s[64:67], s4 offen\ns_mov_b64 exec, -1")
    a("v_bfe_u32 v1, v0, 2, 2\nv_and_b32 v2, 3, v0\nv_lshl_add_u32 v3, v1, 3, v2")
    a("v_and_b32 v4, 2, v0\nv_bfe_u32 v5, v0, 3, 1\nv_lshl_or_b32 v4, v5, 2, v4\nv_lshrrev_b32 v5, 4, v0\nv_xor_b32 v4, v4, v5")
    a(f"v_lshlrev_b32 v4, 4, v4\nv_lshl_add_u32 v{vXe}, v3, 7, v4\ns_lshl_b32 s4, s3, 12\nv_add_u32 v{vXe}, s4, v{vXe}")
    a(f"v_xor_b32 v{vXe+1}, 64, v{vXe}\nv_xor_b32 v{vXe+2}, 16, v{vXe}\nv_add_u32 v{vXe+2}, 512, v{vXe+2}\nv_xor_b32 v{vXe+3}, 64, v{vXe+2}")
    a("v_and_b32 v3, 15, v0\nv_lshrrev_b32 v4, 1, v3\nv_xor_b32 v4, v4, v5\nv_lshlrev_b32 v4, 4, v4")
    a(f"v_lshl_add_u32 v{vEa}, v3, 7, v4\nv_add_u32 v{vEa}, {EXT}, v{vEa}\nv_xor_b32 v{vEa+1}, 64, v{vEa}")

def k1_addr_main(a, kind):
    a(f"s_lshr_b32 s4, s3, 1\ns_lshl_b32 s4, s4, 13\ns_and_b32 s5, s3, 1\ns_mul_i32 s5, s5, 49152\ns_add_u32 s5, s5, {BLK}")
    if kind == 'G':
        a("v_and_b32 v1, 31, v0")
    else:
        a("v_bfe_u32 v1, v0, 2, 1\nv_lshlrev_b32 v1, 5, v1\nv_and_b32 v2, 1, v0\nv_lshl_or_b32 v1, v2, 4, v1")
        a("v_bfe_u32 v2, v0, 3, 2\nv_lshl_or_b32 v1, v2, 1, v1\nv_bfe_u32 v2, v0, 1, 1\nv_or_b32 v1, v1, v2")
    a("v_bfe_u32 v2, v1, 2, 1\nv_and_b32 v3, 2, v1\nv_or_b32 v2, v2, v3\nv_bfe_u32 v3, v1, 4, 1\nv_lshl_or_b32 v2, v3, 2, v2")
    a(f"v_lshrrev_b32 v3, 5, v0\nv_xor_b32 v2, v2, v3\nv_lshlrev_b32 v2, 4, v2\nv_lshl_add_u32 v{vXa}, v1, 7, v2\nv_add_u32 v{vXa}, s4, v{vXa}")
    for kk in range(1, 4): a(f"v_xor_b32 v{vXa+kk}, {kk*32}, v{vXa}")
    if kind == 'G':
        a("v_lshrrev_b32 v1, 5, v0\nv_lshlrev_b32 v1, 3, v1\nv_bfe_u32 v2, v0, 2, 2\nv_add_u32 v1, v1, v2")
        a("v_bfe_u32 v2, v0, 4, 1\nv_lshlrev_b32 v2, 5, v2\nv_and_b32 v3, 3, v0\nv_lshl_add_u32 v2, v3, 3, v2")
        a("v_bfe_u32 v3, v0, 3, 1\nv_lshlrev_b32 v3, 6, v3\nv_xor_b32 v2, v2, v3")
        a(f"v_lshl_add_u32 v{vWa}, v1, 7, v2\nv_add_u32 v{vWa}, s5, v{vWa}\nv_xor_b32 v{vWa+1}, 64, v{vWa}")
    else:
        a("v_and_b32 v1, 31, v0\nv_bfe_u32 v2, v0, 1, 3\nv_lshrrev_b32 v3, 5, v0\nv_xor_b32 v2, v2, v3\nv_lshlrev_b32 v2, 4, v2")
        a(f"v_lshl_add_u32 v{vWa}, v1, 7, v2\nv_add_u32 v{vWa}, s5, v{vWa}")
        for kk in range(1, 4): a(f"v_xor_b32 v{vWa+kk}, {kk*32}, v{vWa}")

def k1_loader(a):
    a("s_sub_u32 s3, s3, 4")
    srd(a, 52, sX, 2097152)
    a("s_cmp_lt_u32 s3, 2\ns_cselect_b32 s70, 1, 0\ns_xor_b32 s71, s12, 1\ns_or_b32 s70, s70, s71")
    a("s_bitcmp1_b32 s3, 0\ns_cselect_b64 s[72:73], s[38:39], s[36:37]\ns_cselect_b64 s[74:75], s[24:25], s[22:23]")
    a("s_cmp_eq_u32 s70, 1\ns_cselect_b64 s[56:57], s[72:73], s[74:75]")
    a("s_mov_b32 s4, 524288\ns_cselect_b32 s58, 1835008, s4\ns_mov_b32 s59, 0x20000")
    a("s_lshr_b32 s4, s3, 1\ns_lshl_b32 s4, s4, 6\ns_add_u32 s4, s4, s9\ns_lshl_b32 s4, s4, 1\ns_lshl_b32 s5, s11, 10")
    a("s_cmp_eq_u32 s70, 1\ns_cselect_b32 s80, s4, s5\ns_movk_i32 s81, 128\ns_movk_i32 s82, 8192\ns_movk_i32 s83, 1024\ns_cselect_b32 s81, 229376, s81\ns_cselect_b32 s82, 28672, s82\ns_cselect_b32 s83, 3584, s83\ns_cselect_b32 s84, 0, 64")
    a("s_cmp_lt_u32 s3, 2\ns_cselect_b64 s[60:61], s[22:23], s[24:25]\ns_mov_b32 s62, 524288\ns_mov_b32 s63, 0x20000")
    a("s_and_b32 s4, s3, 1\ns_lshl_b32 s4, s4, 3\ns_add_u32 s4, s4, s10\ns_lshl_b32 s85, s4, 10")
    a("s_lshl_b32 s4, s6, 7\ns_lshl_b32 s5, s3, 5\ns_add_u32 s4, s4, s5\ns_lshl_b32 s86, s4, 10")
    a(f"s_lshl_b32 s87, s3, 12\ns_mul_i32 s88, s3, 24576\ns_add_u32 s88, s88, {BLK}\ns_lshl_b32 s89, s3, 10\ns_add_u32 s89, s89, {EXT}")
    a("v_lshrrev_b32 v1, 3, v0\nv_and_b32 v2, 7, v0")
    a("v_lshrrev_b32 v3, 5, v0\nv_and_b32 v4, 2, v1\nv_or_b32 v3, v3, v4\nv_xor_b32 v3, v3, v2\nv_lshlrev_b32 v3, 4, v3\nv_lshl_add_u32 v10, v1, 10, v3\nv_xor_b32 v11, 64, v10")
    a("v_bfe_u32 v3, v0, 4, 1\nv_lshlrev_b32 v3, 2, v3\nv_lshrrev_b32 v4, 4, v0\ns_cmp_eq_u32 s70, 1\ns_cselect_b64 vcc, -1, 0\nv_cndmask_b32 v3, v4, v3, vcc")
    a("v_xor_b32 v3, v3, v2\nv_lshlrev_b32 v3, 4, v3\nv_mad_u32_u24 v12, v1, s83, v3\nv_xor_b32 v13, s84, v12")
    a("s_and_b32 s4, s3, 1\ns_lshl_b32 s4, s4, 2\nv_or_b32 v4, s4, v4\nv_xor_b32 v4, v4, v2\nv_lshlrev_b32 v4, 4, v4\nv_lshl_add_u32 v14, v1, 10, v4")
    def issue(s):
        slot = s % 3
        for i in range(4):
            a(f"s_add_u32 m0, s87, {XR + slot*16384 + i*1024}\ns_add_u32 s4, s86, {i*8192 + s*128}")
            a(f"buffer_load_dwordx4 v{10 + (i >> 1)}, s[52:55], s4 offen lds")
        a("s_mov_b32 s4, s80")
        for i in range(8):
            a(f"s_add_u32 m0, s88, {slot*8192 + i*1024}")
            if i: a("s_add_u32 s4, s4, s82")
            else: a("s_nop 0")
            a(f"buffer_load_dwordx4 v{12 + (i & 1)}, s[56:59], s4 offen lds")
        a("s_add_u32 s80, s80, s81")
        a(f"s_add_u32 m0, s89, {slot*4096}\ns_add_u32 s4, s85, {s*128}")
        a("buffer_load_dwordx4 v14, s[60:63], s4 offen lds")
    for s in range(3): issue(s)
    a("s_waitcnt vmcnt(26)\ns_barrier")
    for s in range(7):
        a(f"s_waitcnt vmcnt({13 if s + 2 <= 7 else 0})\ns_barrier")
        if s + 3 <= 7: issue(s + 3)
    l_e = a.lab(); l_m = a.lab(); l_idle = a.lab()
    a(f"s_cmp_eq_u32 s3, 0\ns_cbranch_scc1 {l_e}")
    a(f"s_cmp_eq_u32 s3, 1\ns_cselect_b32 s4, s12, 0\ns_cmp_eq_u32 s4, 1\ns_cbranch_scc1 {l_m}")
    a.label(l_idle)
    a("s_barrier\ns_barrier\ns_endpgm")
    a.label(l_e); combine(a, 16, 16, 3, AGE_RE, AGE_IM, 10, PARAM)
    a.label(l_m); combine(a, 8, 64, 4, AGM_RE, AGM_IM, 11, PARAM + 256)

def combine(a, nseg, nch, lg, are, aim, sch, pofs):
    a(f"s_add_u32 s68, s48, {AGG_OFF}\ns_addc_u32 s69, s49, 0\ns_mov_b32 s70, {AGG_SZ}\ns_mov_b32 s71, 0x20000")
    if nch < 64: a(f"s_mov_b64 exec, {(1 << nch) - 1}")
    a(f"v_lshlrev_b32 v1, 4, v0\nds_read_b64 v[2:3], v1 offset:{pofs}\nv_mov_b32 v4, 0\nds_read_b32 v5, v4 offset:{NONCE}\ns_waitcnt lgkmcnt(0)")
    a("v_readfirstlane_b32 s72, v5")
    for i in range(7):
        a("v_mul_f32 v8, v3, v3\nv_mul_f32 v9, v2, v3\nv_fma_f32 v2, v2, v2, -v8\nv_add_f32 v3, v9, v9")
        if i == lg - 1: a("v_mov_b32 v6, v2\nv_mov_b32 v7, v3")
    a(f"s_lshl_b32 s4, s6, 9\ns_add_u32 s4, s4, s{sch}\ns_lshl_b32 s4, s4, 4\nv_add_u32 v20, s4, v1")
    for d in range(1, 16): a(f"v_subrev_u32 v{20+d}, {d*8192}, v20")
    for d in range(1, 16): a(f"s_cmp_ge_u32 s6, {d}\ns_cselect_b32 s{72+d}, s72, 0")
    a("v_lshlrev_b32 v1, 2, v0")
    a("s_barrier")
    AR, AI = 40, 56
    for sg in range(nseg):
        a(f"ds_read_b32 v{AR+sg}, v1 offset:{are + sg*nch*4}\nds_read_b32 v{AI+sg}, v1 offset:{aim + sg*nch*4}")
        if sg == 6: a("s_waitcnt lgkmcnt(8)")
        if sg == 12: a("s_waitcnt lgkmcnt(8)")
    a("s_waitcnt lgkmcnt(0)")
    a(f"v_mov_b32 v10, v{AR}\nv_mov_b32 v12, v{AI}")
    for sg in range(1, nseg):
        a(f"v_fma_f32 v8, v10, v6, v{AR+sg}\nv_fma_f32 v9, v12, v6, v{AI+sg}\nv_fma_f32 v8, -v12, v7, v8\nv_fma_f32 v12, v10, v7, v9\nv_mov_b32 v10, v8")
    a("v_mov_b32 v11, s72\nv_mov_b32 v13, s72")
    a("buffer_store_dwordx4 v[10:13], v20, s[68:71], 0 offen sc1")
    lp = a.lab(); ld = a.lab()
    a("s_mov_b32 s88, 0x40000")
    a.label(lp)
    E = 80
    for d in range(1, 16): a(f"buffer_load_dwordx4 {vr(E+4*d,4)}, v{20+d}, s[68:71], 0 offen sc1")
    a("s_mov_b64 s[4:5], 0\ns_waitcnt vmcnt(0)")
    for d in range(1, 16):
        a(f"v_cmp_ne_u32 vcc, s{72+d}, v{E+4*d+1}\ns_or_b64 s[4:5], s[4:5], vcc\nv_cmp_ne_u32 vcc, s{72+d}, v{E+4*d+3}\ns_or_b64 s[4:5], s[4:5], vcc")
    a(f"s_cmp_eq_u64 s[4:5], 0\ns_cbranch_scc1 {ld}")
    a(f"s_sub_u32 s88, s88, 1\ns_cmp_lg_u32 s88, 0\ns_cbranch_scc1 {lp}")
    a.label(ld)
    a(f"v_mov_b32 v10, v{E+60}\nv_mov_b32 v12, v{E+62}")
    for d in range(14, 0, -1):
        a(f"v_fma_f32 v8, v10, v2, v{E+4*d}\nv_fma_f32 v9, v12, v2, v{E+4*d+2}\nv_fma_f32 v8, -v12, v3, v8\nv_fma_f32 v12, v10, v3, v9\nv_mov_b32 v10, v8")
    for sg in range(nseg):
        a(f"ds_write_b32 v1, v10 offset:{are + sg*nch*4}\nds_write_b32 v1, v12 offset:{aim + sg*nch*4}")
        if sg < nseg - 1:
            a(f"v_fma_f32 v8, v10, v6, v{AR+sg}\nv_fma_f32 v9, v12, v6, v{AI+sg}\nv_fma_f32 v8, -v12, v7, v8\nv_fma_f32 v12, v10, v7, v9\nv_mov_b32 v10, v8")
    a("s_waitcnt lgkmcnt(0)\ns_barrier\ns_endpgm")

def k1(a, name, endlabel):
    a(f".p2align 8\n.globl {name}\n.type {name},@function")
    a.label(name)
    l_end = a.lab()
    a("s_getpc_b64 s[90:91]")
    a(f"s_cmp_ge_u32 s2, 256\ns_cbranch_scc1 {l_end}")
    load_kernargs(a)
    a("v_lshrrev_b32 v1, 6, v0\nv_and_b32 v0, 63, v0\nv_readfirstlane_b32 s3, v1")
    a("s_and_b32 s4, s2, 7\ns_lshr_b32 s5, s2, 3")
    a("s_and_b32 s6, s4, 1\ns_lshl_b32 s6, s6, 3\ns_lshr_b32 s7, s5, 2\ns_add_u32 s6, s6, s7")
    a("s_and_b32 s7, s5, 3\ns_lshr_b32 s8, s4, 1")
    a("s_mul_i32 s9, s8, 448\ns_lshl_b32 s4, s7, 7\ns_add_u32 s9, s9, s4")
    a("s_lshl_b32 s11, s8, 7\ns_lshl_b32 s4, s7, 4\ns_add_u32 s10, s11, s4\ns_add_u32 s11, s11, 64")
    a("s_cmp_eq_u32 s7, 3\ns_cselect_b32 s12, 1, 0\ns_lshl_b32 s13, s8, 2\ns_add_u32 s13, s13, s7")
    a("s_waitcnt lgkmcnt(0)")
    l_ld = a.lab(); l_s = a.lab()
    a(f"s_cmp_ge_u32 s3, 4\ns_cbranch_scc1 {l_ld}")
    k1_consumer_prologue(a, endlabel)
    a(f"s_and_b32 s4, s3, s12\ns_cmp_eq_u32 s4, 1\ns_cbranch_scc1 {l_s}")
    k1_addr_main(a, 'G'); a("s_waitcnt lgkmcnt(0)"); k1_consumer_loop(a, 'G'); k1_epilogue(a, 'G')
    a.label(l_s)
    k1_addr_main(a, 'S'); a("s_waitcnt lgkmcnt(0)"); k1_consumer_loop(a, 'S'); k1_epilogue(a, 'S')
    a.label(l_ld)
    k1_loader(a)
    a.label(l_end)
    a("s_endpgm")

NS2 = 9
LDS2 = NS2 * 16384
def k2(a, name):
    a(f".p2align 8\n.globl {name}\n.type {name},@function")
    a.label(name)
    l_end = a.lab(); l_ld = a.lab()
    a(f"s_cmp_ge_u32 s2, 256\ns_cbranch_scc1 {l_end}")
    load_kernargs(a)
    a("v_lshrrev_b32 v1, 6, v0\nv_and_b32 v0, 63, v0\nv_readfirstlane_b32 s3, v1")
    a("s_and_b32 s4, s2, 7\ns_lshr_b32 s5, s2, 3\ns_lshl_b32 s6, s4, 2\ns_lshr_b32 s4, s5, 3\ns_add_u32 s6, s6, s4\ns_and_b32 s7, s5, 7")
    a("s_waitcnt lgkmcnt(0)")
    srd(a, 64, sWs, WS_USED)
    a(f"s_cmp_ge_u32 s3, 4\ns_cbranch_scc1 {l_ld}")
    a("s_and_b32 s8, s3, 1\ns_lshr_b32 s9, s3, 1")
    srd(a, 52, sX, 2097152); srd(a, 56, sDsk, 1024); srd(a, 60, sOut, 4194304)
    XV = 160; GV = 176; DV = 192
    a("s_lshl_b32 s10, s6, 6\ns_lshl_b32 s4, s9, 5\ns_add_u32 s10, s10, s4")
    a("s_lshl_b32 s11, s7, 6\ns_lshl_b32 s4, s8, 5\ns_add_u32 s11, s11, s4")
    a("v_and_b32 v1, 31, v0\nv_add_u32 v1, s11, v1\nv_lshrrev_b32 v2, 5, v0\nv_lshlrev_b32 v2, 2, v2\nv_add_u32 v2, s10, v2")
    a("v_lshlrev_b32 v3, 1, v1\nv_lshl_add_u32 v4, v2, 10, v3")
    a("v_lshlrev_b32 v5, 2, v1\nv_lshl_add_u32 v5, v2, 11, v5")
    a(f"v_lshlrev_b32 v6, 2, v2\nv_add_u32 v6, {G_OFF}, v6")
    for i in range(16):
        row = 8*(i >> 2) + (i & 3)
        a(f"s_mov_b32 s4, {row*1024}\nbuffer_load_ushort v{XV+i}, v4, s[52:55], s4 offen")
    for q in range(4): a(f"buffer_load_dwordx4 {vr(GV+4*q,4)}, v6, s[64:67], 0 offen offset:{q*32}")
    a(f"buffer_load_ushort v{DV}, v3, s[56:59], 0 offen")
    vA, vBw, vBc = 16, 19, 25
    a("s_lshl_b32 s4, s9, 12\ns_lshl_b32 s5, s8, 11\ns_add_u32 s4, s4, s5")
    a(f"v_lshlrev_b32 v7, 4, v0\nv_add_u32 v{vA}, s4, v7")
    a("v_lshrrev_b32 v7, 5, v0\nv_lshlrev_b32 v7, 2, v7\nv_bfe_u32 v8, v0, 2, 2\nv_add_u32 v7, v7, v8")
    a("v_bfe_u32 v8, v0, 4, 1\nv_lshlrev_b32 v8, 5, v8\nv_and_b32 v9, 3, v0\nv_lshl_add_u32 v8, v9, 3, v8\nv_bfe_u32 v9, v0, 3, 1\nv_lshlrev_b32 v9, 6, v9\nv_xor_b32 v8, v8, v9")
    a(f"s_lshl_b32 s4, s8, 12\ns_add_u32 s4, s4, 8192\nv_lshl_add_u32 v{vBw}, v7, 7, v8\nv_add_u32 v{vBw}, s4, v{vBw}\nv_xor_b32 v{vBw+1}, 64, v{vBw}")
    a("v_and_b32 v7, 31, v0\nv_bfe_u32 v8, v0, 1, 3\nv_lshrrev_b32 v9, 5, v0\nv_xor_b32 v8, v8, v9\ns_lshl_b32 s4, s8, 2\nv_xor_b32 v8, s4, v8\nv_lshlrev_b32 v8, 4, v8")
    a(f"v_lshl_add_u32 v{vBc}, v7, 7, v8\nv_add_u32 v{vBc}, 8192, v{vBc}\nv_xor_b32 v{vBc+1}, 32, v{vBc}")
    for t in range(1, 3):
        a(f"v_add_u32 v{vA+t}, {t*49152}, v{vA}")
        for e in range(2):
            a(f"v_add_u32 v{vBw+2*t+e}, {t*49152}, v{vBw+e}\nv_add_u32 v{vBc+2*t+e}, {t*49152}, v{vBc+e}")
    AB, AY = 32, 64
    F = [96, 120]
    def reads(s):
        st = s & 1; slot = s % NS2; t = slot // 3; so = (slot % 3) * 16384
        r = []
        for e in range(2):
            r.append(f"ds_read_b128 {vr(F[st]+4*e,4)}, v{vA+t} offset:{so + e*1024}")
            for nt in range(2):
                d = F[st] + 8 + (e*2+nt)*4
                if s < 28:
                    r.append(f"ds_read_b64_tr_b16 {vr(d,2)}, v{vBw+2*t+nt} offset:{so + e*2048}")
                    r.append(f"ds_read_b64_tr_b16 {vr(d+2,2)}, v{vBw+2*t+nt} offset:{so + e*2048 + 1024}")
                else:
                    r.append(f"ds_read_b128 {vr(d,4)}, v{vBc+2*t+e} offset:{so + nt*4096}")
        return r
    def mf(s):
        st = s & 1; r = []
        for e in range(2):
            for nt in range(2):
                d = vr((AB if s < 28 else AY) + 16*nt, 16)
                c = "0" if (s in (0, 28) and e == 0) else d
                r.append(f"v_mfma_f32_32x32x16_bf16 {d}, {vr(F[st]+4*e,4)}, {vr(F[st]+8+(e*2+nt)*4,4)}, {c}")
        return r
    for s in range(45):
        if s < 44: a("s_barrier")
        rd = reads(s) if s < 44 else []
        m = mf(s-1) if s >= 1 else []
        if m: interleave(a, m, rd, per=3)
        else:
            for x in rd: a(x)
        a("s_waitcnt lgkmcnt(0)")
    a("s_barrier")
    a("s_lshl_b32 s4, s3, 13\nv_lshlrev_b32 v7, 4, v0\nv_add_u32 v8, s4, v7\ns_xor_b32 s4, s4, 8192\nv_add_u32 v9, s4, v7")
    lk1 = a.lab(); lj = a.lab()
    a(f"s_nop 7\ns_cmp_eq_u32 s8, 1\ns_cbranch_scc1 {lk1}")
    RB, RY = 96, 112
    for kh in range(2):
        if kh == 1: a.label(lk1)
        sn = kh ^ 1
        for q in range(4):
            a(f"ds_write_b128 v8, {vr(AB+16*sn+4*q,4)} offset:{q*1024}\nds_write_b128 v8, {vr(AY+16*sn+4*q,4)} offset:{4096+q*1024}")
        a("s_waitcnt lgkmcnt(0)\ns_barrier")
        for q in range(4):
            a(f"ds_read_b128 {vr(RB+4*q,4)}, v9 offset:{q*1024}\nds_read_b128 {vr(RY+4*q,4)}, v9 offset:{4096+q*1024}")
        a("s_waitcnt lgkmcnt(0)")
        for i in range(0, 16, 2):
            a(f"v_pk_add_f32 {vr(RB+i,2)}, {vr(RB+i,2)}, {vr(AB+16*kh+i,2)}\nv_pk_add_f32 {vr(RY+i,2)}, {vr(RY+i,2)}, {vr(AY+16*kh+i,2)}")
        if kh == 0: a(f"s_branch {lj}")
    a.label(lj)
    a(f"s_waitcnt vmcnt(0)\nv_lshlrev_b32 v{DV}, 16, v{DV}\ns_mov_b32 s12, 0xffff0000")
    for i in range(0, 16, 2):
        T = 128 + (i & 2) * 4
        for e in range(2):
            a(f"v_lshlrev_b32 v{XV+i+e}, 16, v{XV+i+e}\nv_mul_f32 v{XV+i+e}, v{XV+i+e}, v{DV}\nv_sub_f32 v{T+e}, 1.0, v{GV+i+e}")
        a(f"v_cvt_pk_bf16_f32 v{T+2}, v{XV+i}, v{XV+i+1}\nv_cvt_pk_bf16_f32 v{T+3}, v{RB+i}, v{RB+i+1}\nv_cvt_pk_bf16_f32 v{T+4}, v{T}, v{T+1}")
        a(f"v_lshlrev_b32 v{XV+i}, 16, v{T+2}\nv_and_b32 v{XV+i+1}, s12, v{T+2}")
        a(f"v_lshlrev_b32 v{RB+i}, 16, v{T+3}\nv_and_b32 v{RB+i+1}, s12, v{T+3}")
        a(f"v_lshlrev_b32 v{T}, 16, v{T+4}\nv_and_b32 v{T+1}, s12, v{T+4}")
        a(f"v_mul_f32 v{T}, v{T}, v{RB+i}\nv_mul_f32 v{T+1}, v{T+1}, v{RB+i+1}\nv_cvt_pk_bf16_f32 v{T+4}, v{T}, v{T+1}")
        a(f"v_lshlrev_b32 v{T}, 16, v{T+4}\nv_and_b32 v{T+1}, s12, v{T+4}")
        for e in range(2):
            a(f"v_add_f32 v{RY+i+e}, v{RY+i+e}, v{XV+i+e}\nv_mul_f32 v{RY+i+e}, v{RY+i+e}, v{GV+i+e}\nv_add_f32 v{RY+i+e}, v{RY+i+e}, v{T+e}")
            row = 8*((i+e) >> 2) + ((i+e) & 3)
            a(f"s_mov_b32 s4, {row*2048}\nbuffer_store_dword v{RY+i+e}, v5, s[60:63], s4 offen")
    a("s_endpgm")
    a.label(l_ld)
    a("s_sub_u32 s3, s3, 4")
    srd(a, 52, sWd, 1835008); srd(a, 56, sCre, 524288); srd(a, 60, sCim, 524288)
    a("s_lshl_b32 s4, s6, 1\ns_lshr_b32 s5, s3, 1\ns_add_u32 s4, s4, s5\ns_mul_i32 s4, s4, 176\ns_and_b32 s5, s3, 1\ns_lshl_b32 s5, s5, 1\ns_add_u32 s4, s4, s5\ns_lshl_b32 s80, s4, 10")
    a("s_lshl_b32 s81, s3, 11")
    a("s_lshl_b32 s4, s3, 14\ns_lshl_b32 s5, s7, 7\ns_add_u32 s82, s4, s5\ns_lshl_b32 s5, s7, 16\ns_add_u32 s83, s4, s5")
    a("v_lshlrev_b32 v10, 4, v0\nv_lshrrev_b32 v1, 3, v0\nv_and_b32 v2, 7, v0")
    a("v_bfe_u32 v3, v0, 4, 1\nv_lshlrev_b32 v3, 2, v3\nv_xor_b32 v3, v3, v2\nv_lshlrev_b32 v3, 4, v3\nv_lshl_add_u32 v11, v1, 10, v3")
    a("v_lshrrev_b32 v3, 4, v0\nv_xor_b32 v3, v3, v2\nv_lshlrev_b32 v3, 4, v3\nv_lshl_add_u32 v12, v1, 10, v3\nv_xor_b32 v13, 64, v12")
    def issue(s):
        base = (s % NS2) * 16384
        for i in range(2):
            a(f"s_add_u32 m0, s81, {base + 8192 + i*1024}")
            if s < 28:
                a(f"s_add_u32 s4, s82, {s*65536 + i*8192}\nbuffer_load_dwordx4 v11, s[52:55], s4 offen lds")
            else:
                t = s - 28
                a(f"s_add_u32 s4, s83, {(t >> 1)*128 + i*8192}\nbuffer_load_dwordx4 v{12+i}, s[{56 + 4*(t & 1)}:{59 + 4*(t & 1)}], s4 offen lds")
        for i in range(2):
            a(f"s_add_u32 m0, s81, {base + i*1024}\ns_add_u32 s4, s80, {s*4096 + i*1024}\nbuffer_load_dwordx4 v10, s[64:67], s4 offen lds")
    for s in range(NS2): issue(s)
    issued = NS2 - 1
    for s in range(44):
        a(f"s_waitcnt vmcnt({(issued - s)*4})\ns_barrier")
        if s >= 1 and s + NS2 - 1 <= 43:
            issue(s + NS2 - 1); issued = s + NS2 - 1
    a("s_barrier\ns_barrier")
    a.label(l_end)
    a("s_endpgm")

def desc(name, nv=256):
    return f""".p2align 6
.amdhsa_kernel {name}
  .amdhsa_next_free_vgpr {nv}
  .amdhsa_next_free_sgpr 102
  .amdhsa_accum_offset {nv}
  .amdhsa_group_segment_fixed_size 0
  .amdhsa_kernarg_size 136
  .amdhsa_user_sgpr_count 2
  .amdhsa_user_sgpr_kernarg_segment_ptr 1
  .amdhsa_system_sgpr_workgroup_id_x 1
.end_amdhsa_kernel
"""

def main(out):
    a = Asm()
    n1 = NAME + "_kernel"; n2 = "phase2_kernel"
    k1(a, n1, "L_code_end")
    k2(a, n2)
    a.label("L_code_end")
    a("s_endpgm")
    txt = HDR
    txt += f"; @launch kernel={n1} grid=(256,1,1) block=(512,1,1) lds={LDS1}\n"
    txt += f"; @launch kernel={n2} grid=(256,1,1) block=(512,1,1) lds={LDS2}\n"
    txt += '.amdgcn_target "amdgcn-amd-amdhsa--gfx950"\n.text\n' + a.text()
    txt += '.section .rodata,"a"\n' + desc(n1) + desc(n2)
    open(out, "w").write(txt)

if __name__ == "__main__":
    main(sys.argv[1] if len(sys.argv) > 1 else f"cdna_kernels/{NAME}.s")
```

```python
import sys

NAME = "gated_mix__ssm_conv_s5__glu_gated_glu__prompt"
HDR = open("cdna_kernels/%s.s.ref" % NAME).read().split("; Override launch")[0]

G_OFF = 0xB00000
AGG_OFF = 0xB10000
AGG_SZ = 16 * 512 * 16
FLG_OFF = 0xB30000
WS_USED = 0xB40000
NPF = 6
LOG2E = 0x3fb8aa3b
NLOG2E = 0xbfb8aa3b
INV2PI = 0x3e22f983
OPT = dict(sc1_a=1, touch1=1, touch2=1, cpf=1)

class Asm:
    def __init__(s): s.l = []; s.uid = 0
    def __call__(s, t):
        for x in t.strip("\n").split("\n"): s.l.append("    " + x.strip())
    def label(s, n): s.l.append(n + ":")
    def lab(s, p="L"):
        s.uid += 1; return f"{p}_{s.uid}"
    def text(s): return "\n".join(s.l) + "\n"

def vr(b, n): return f"v[{b}:{b+n-1}]" if n > 1 else f"v{b}"

def srd(a, d, lo, size):
    a(f"s_mov_b32 s{d}, s{lo}\ns_mov_b32 s{d+1}, s{lo+1}\ns_mov_b32 s{d+2}, {size}\ns_mov_b32 s{d+3}, 0x20000")

sX, sLre, sLim, sBre, sBim, sCre, sCim, sLdt = 16, 18, 20, 22, 24, 26, 28, 30
sDsk, sBx, sWg, sWu, sWd, sGw, sOut, sDbg, sWs = 32, 34, 36, 38, 40, 42, 44, 46, 48

STAMP = False
TS_OFF = 0xB40000
NST = 14
def stamp(a, idx):
    if not STAMP: return
    a(f"s_memrealtime s[100:101]\ns_waitcnt lgkmcnt(0)\nv_mov_b32 v{240+idx}, s100")
def stamp_flush(a, wave_sgpr_add=0):
    if not STAMP: return
    srd(a, 96, sWs, 0xC00000)
    a(f"s_lshl_b32 s94, s2, 3\ns_add_u32 s94, s94, s95\ns_lshl_b32 s94, s94, 6\ns_add_u32 s94, s94, {TS_OFF}")
    a("v_mov_b32 v255, 0\ns_mov_b64 exec, 1")
    for idx in range(0, 16, 4):
        a(f"buffer_store_dwordx4 {vr(240+idx,4)}, v255, s[96:99], s94 offen offset:{idx*4}")

def bf16_round(a, d, s, t):
    a(f"v_cvt_pk_bf16_f32 v{t}, v{s}, v{s}\nv_lshlrev_b32 v{d}, 16, v{t}")

class Sched:
    def __init__(s, a): s.a = a; s.n = 0; s.prod = {}; s.done = -1
    def read(s, ins, regs):
        s.a(ins)
        for r in regs: s.prod[r] = s.n
        s.n += 1
    def need(s, regs):
        k = max([s.prod.get(r, -1) for r in regs] + [-1])
        if k > s.done:
            s.a(f"s_waitcnt lgkmcnt({min(s.n - 1 - k, 15)})")
            s.done = k if s.n - 1 - k <= 15 else s.n - 16
    def all(s):
        if s.done < s.n - 1: s.a("s_waitcnt lgkmcnt(0)")
        s.done = s.n - 1

PARAM = 0; NONCE = 2048; XR = 4096; BLK = XR + 49152; EXT = XR + 147456
AGE_RE = EXT; AGE_IM = EXT + 1024; AGM_RE = EXT + 2048; AGM_IM = EXT + 8192; TSE = EXT + 4096
LDS1 = 163840
def page(p): return XR + p*8192 if p < 6 else BLK + ((p-6)//3)*24576 + ((p-6) % 3)*8192
BPAGES = [4, 5, 8, 11, 14, 17, 0, 1, 6, 9, 12]; APAGES = [2, 3, 7, 10, 13, 16]; SPAGE = 15
NB2 = len(BPAGES); NA2 = len(APAGES)

vXa = 16; vWa = 20; vXe = 24; vEa = 28
ACC = 32; ACE = 160; FR = [176, 200]; FE = 224
def acc(w, m): return ACC + (w * 2 + m) * 16
def ace(comp, m): return ACE + (comp * 2 + m) * 4
def R(b, n): return list(range(b, b+n))

def reads_main(kind, slot, kk, st):
    b = FR[st]; xs = 4096 if kind == 'G' else 1024
    def xr(m): return [(f"ds_read_b128 {vr(b+4*m,4)}, v{vXa+kk} offset:{XR + slot*16384 + m*xs}", R(b+4*m, 4))]
    def wr(w):
        d = b + 8 + 4*w
        if kind == 'G':
            off = (w >> 1)*24576 + slot*8192 + kk*2048
            return [(f"ds_read_b64_tr_b16 {vr(d,2)}, v{vWa+(w&1)} offset:{off}", R(d, 2)),
                    (f"ds_read_b64_tr_b16 {vr(d+2,2)}, v{vWa+(w&1)} offset:{off+512}", R(d+2, 2))]
        off = (w >> 1)*24576 + slot*8192 + (w & 1)*4096
        return [(f"ds_read_b128 {vr(d,4)}, v{vWa+kk} offset:{off}", R(d, 4))]
    return xr(0) + wr(0) + xr(1) + wr(1) + wr(2) + wr(3)

def reads_ext(slot, k32):
    r = []
    for m in range(2): r.append((f"ds_read_b128 {vr(FE+4*m,4)}, v{vXe+2*m+k32} offset:{XR + slot*16384}", R(FE+4*m, 4)))
    for cp in range(2): r.append((f"ds_read_b128 {vr(FE+8+4*cp,4)}, v{vEa+k32} offset:{slot*4096+cp*2048}", R(FE+8+4*cp, 4)))
    return r

def mfma_main(kind, st, first):
    r = []; b = FR[st]
    for w in range(4):
        for m in range(2):
            d = vr(acc(w, m), 16); X = vr(b+4*m, 4); W = vr(b+8+4*w, 4)
            c = "0" if first else d
            ins = f"v_mfma_f32_32x32x16_bf16 {d}, {W}, {X}, {c}" if kind == 'G' else f"v_mfma_f32_32x32x16_bf16 {d}, {X}, {W}, {c}"
            r.append((ins, R(b+4*m, 4) + R(b+8+4*w, 4)))
    return r

def mfma_ext(first):
    r = []
    for cp in range(2):
        for m in range(2):
            d = vr(ace(cp, m), 4)
            r.append((f"v_mfma_f32_16x16x32_bf16 {d}, {vr(FE+4*m,4)}, {vr(FE+8+4*cp,4)}, {'0' if first else d}", R(FE+4*m, 4) + R(FE+8+4*cp, 4)))
    return r

def interleave(a, S, mf, rd, per=3, extra=None):
    rd = list(rd); extra = list(extra or [])
    for (ins, regs) in mf:
        S.need(regs); a(ins)
        for _ in range(per):
            if rd: S.read(*rd.pop(0))
        if not rd and extra: a(extra.pop(0))
    for x in rd: S.read(*x)
    for x in extra: a(x)

def p1_consumer_loop(a, kind):
    S = Sched(a)
    stamp(a, 1)
    a("s_barrier")
    stamp(a, 2)
    for x in reads_main(kind, 0, 0, 0): S.read(*x)
    for s in range(8):
        slot = s % 3
        for kk in range(4):
            st = kk & 1
            rd = []
            if kk == 3:
                if s < 7:
                    S.all(); a("s_barrier")
                    rd = reads_main(kind, (s+1) % 3, 0, 0)
            else:
                rd = reads_main(kind, slot, kk+1, st ^ 1)
            if kk in (0, 2): rd = rd + reads_ext(slot, kk >> 1)
            mf = mfma_main(kind, st, s == 0 and kk == 0)
            if kk in (1, 3):
                mf = mf[:4] + mfma_ext(s == 0 and kk == 1) + mf[4:]
            extra = []
            if OPT['touch2'] and s in (1, 2, 3) and kk == 1: extra = touch2(s - 1)
            interleave(a, S, mf, rd, extra=extra)
        if s == 3: stamp(a, 3)
    stamp(a, 4)

def touch2(i):
    if i == 0: return [f"buffer_load_dword v15, v14, s[68:71], 0 offen", f"buffer_load_dword v15, v14, s[68:71], s80 offen"]
    if i == 1: return [f"buffer_load_dword v15, v13, s[72:75], 0 offen"]
    return [f"buffer_load_dword v15, v13, s[76:79], 0 offen"]

def cmul_pk(a, Rr, I, C, t1, t2):
    a(f"v_pk_mul_f32 {vr(t1,2)}, {vr(Rr,2)}, {vr(C,2)} op_sel:[0,0] op_sel_hi:[1,0]")
    a(f"v_pk_mul_f32 {vr(t2,2)}, {vr(Rr,2)}, {vr(C,2)} op_sel:[0,1] op_sel_hi:[1,1] neg_lo:[0,1] neg_hi:[0,1]")
    a(f"v_pk_fma_f32 {vr(Rr,2)}, {vr(I,2)}, {vr(C,2)}, {vr(t1,2)} op_sel:[0,1,0] op_sel_hi:[1,1,1] neg_lo:[0,1,0] neg_hi:[0,1,0]")
    a(f"v_pk_fma_f32 {vr(I,2)}, {vr(I,2)}, {vr(C,2)}, {vr(t2,2)} op_sel:[0,0,0] op_sel_hi:[1,0,1] neg_lo:[0,1,0] neg_hi:[0,1,0]")

def cmul_s(a, Rr, I, cr, ci, t1, t2):
    a(f"v_mul_f32 v{t1}, v{Rr}, v{cr}\nv_mul_f32 v{t2}, v{Rr}, v{ci}")
    a(f"v_fma_f32 v{Rr}, -v{I}, v{ci}, v{t1}\nv_fma_f32 v{I}, -v{I}, v{cr}, -v{t2}")

def flag_store(a, which):
    a(f"v_mov_b32 v1, s15\nv_mov_b32 v2, 0\ns_mov_b64 exec, 1\nbuffer_store_dword v1, v2, s[64:67], s81 offen offset:{which*256} sc1\ns_mov_b64 exec, -1")

def p1_epilogue(a, kind):
    PE = 176; PM = [180, 184]
    a(f"v_and_b32 v1, 15, v0\nv_lshlrev_b32 v1, 4, v1\nds_read_b128 {vr(PE,4)}, v1 offset:{PARAM}")
    if kind == 'S':
        a(f"v_and_b32 v2, 31, v0\nv_lshlrev_b32 v2, 4, v2")
        for cg in range(2): a(f"ds_read_b128 {vr(PM[cg],4)}, v2 offset:{PARAM + 256 + cg*512}")
    else:
        l = a.lab()
        a(f"s_cmp_lg_u32 s3, 0\ns_cbranch_scc1 {l}")
        a("s_waitcnt vmcnt(0)\nv_mov_b32 v13, s14\nv_cmp_eq_u32 vcc, 0, v10\ns_mov_b64 exec, 1\nv_mov_b32 v2, 0\nv_cndmask_b32 v10, v10, v13, vcc")
        a(f"ds_write_b32 v2, v10 offset:{NONCE}\ns_mov_b64 exec, -1")
        a.label(l)
    a(f"s_lshl_b32 s4, s3, 8\ns_add_u32 s4, s4, {EXT}\nv_lshlrev_b32 v5, 2, v0\nv_add_u32 v5, s4, v5\ns_nop 7")
    a("s_waitcnt lgkmcnt(0)")
    if kind == 'S':
        S = [[188, 190], [192, 194]]; T = [[196, 198], [200, 202]]
        for pos in range(1, 16):
            for cg in range(2):
                L = vr(PM[cg], 2)
                m, rr = pos >> 3, (pos & 7) * 2
                Rr = vr(acc(cg, m) + rr, 2); I = vr(acc(2+cg, m) + rr, 2)
                if pos == 1: pr, pi = vr(acc(cg, 0), 2), vr(acc(2+cg, 0), 2)
                else:
                    src = S if (pos & 1) else T
                    pr, pi = vr(src[cg][0], 2), vr(src[cg][1], 2)
                dst = T if (pos & 1) else S
                dr, di = vr(dst[cg][0], 2), vr(dst[cg][1], 2)
                a(f"v_pk_fma_f32 {dr}, {pr}, {L}, {Rr} op_sel:[0,0,0] op_sel_hi:[1,0,1]")
                a(f"v_pk_fma_f32 {di}, {pi}, {L}, {I} op_sel:[0,0,0] op_sel_hi:[1,0,1]")
                a(f"v_pk_fma_f32 {dr}, {pi}, {L}, {dr} op_sel:[0,1,0] op_sel_hi:[1,1,1] neg_lo:[0,1,0] neg_hi:[0,1,0]")
                a(f"v_pk_fma_f32 {di}, {pr}, {L}, {di} op_sel:[0,1,0] op_sel_hi:[1,1,1]")
        a(f"v_lshrrev_b32 v3, 5, v0\nv_lshlrev_b32 v3, 9, v3\nv_lshrrev_b32 v4, 2, v2\nv_add_u32 v3, v3, v4")
        a(f"s_lshr_b32 s4, s3, 1\ns_lshl_b32 s4, s4, 10\ns_add_u32 s4, s4, {EXT}\nv_add_u32 v3, s4, v3")
        for cg in range(2):
            for par in range(2):
                a(f"ds_write_b32 v3, v{T[cg][0]+par} offset:{AGM_RE - EXT + par*256 + cg*128}")
                a(f"ds_write_b32 v3, v{T[cg][1]+par} offset:{AGM_IM - EXT + par*256 + cg*128}")
    lr, li = PE, PE+1
    S = [204, 205]; T = [206, 207]
    for pos in range(1, 8):
        Rr = ace(0, pos >> 2) + (pos & 3); I = ace(1, pos >> 2) + (pos & 3)
        if pos == 1: pr, pi = ace(0, 0), ace(1, 0)
        else: pr, pi = (S if (pos & 1) else T)
        dr, di = (T if (pos & 1) else S)
        a(f"v_fma_f32 v{dr}, v{pr}, v{lr}, v{Rr}\nv_fma_f32 v{di}, v{pi}, v{lr}, v{I}")
        a(f"v_fma_f32 v{dr}, -v{pi}, v{li}, v{dr}\nv_fma_f32 v{di}, v{pr}, v{li}, v{di}")
    a(f"ds_write_b32 v5, v{T[0]} offset:{AGE_RE - EXT}\nds_write_b32 v5, v{T[1]} offset:{AGE_IM - EXT}")
    a("s_waitcnt lgkmcnt(0)")
    stamp(a, 5)
    a("s_barrier")
    a(f"v_mov_b32 v1, 0\nds_read_b32 v1, v1 offset:{NONCE}\nv_lshlrev_b32 v6, 4, v0")
    a(f"s_lshl_b32 s81, s6, 9\ns_lshl_b32 s4, s13, 4\ns_add_u32 s81, s81, s4\ns_lshl_b32 s4, s3, 2\ns_add_u32 s81, s81, s4\ns_add_u32 s81, s81, {FLG_OFF}")
    if kind == 'G':
        a("s_lshr_b32 s4, s3, 1\ns_lshl_b32 s4, s4, 1\ns_lshl_b32 s5, s6, 2\ns_add_u32 s4, s4, s5\ns_mul_i32 s4, s4, 176")
        a("s_and_b32 s5, s3, 1\ns_lshl_b32 s5, s5, 2\ns_add_u32 s4, s4, s5\ns_lshr_b32 s5, s9, 4\ns_add_u32 s4, s4, s5\ns_lshl_b32 s14, s4, 10")
        a(f"s_mov_b32 s50, {NLOG2E}\ns_mov_b32 s51, {NLOG2E}")
        k = 0
        for fh in range(2):
            for m in range(2):
                g, u = acc(fh, m), acc(2+fh, m)
                for half in range(2):
                    E = 208 + (k & 1) * 8; P = 224 + (k & 3) * 4
                    k += 1
                    gb, ub = g + 8*half, u + 8*half
                    for i in range(0, 8, 2): a(f"v_pk_mul_f32 {vr(E+i,2)}, {vr(gb+i,2)}, s[50:51]")
                    for i in range(8): a(f"v_exp_f32 v{E+i}, v{E+i}")
                    for i in range(0, 8, 2): a(f"v_pk_add_f32 {vr(E+i,2)}, {vr(E+i,2)}, 1.0 op_sel_hi:[1,0]")
                    for i in range(8): a(f"v_rcp_f32 v{E+i}, v{E+i}")
                    for i in range(0, 8, 2): a(f"v_pk_mul_f32 {vr(E+i,2)}, {vr(E+i,2)}, {vr(ub+i,2)}")
                    for i in range(0, 8, 2): a(f"v_cvt_pk_bf16_f32 v{P+i//2}, v{E+i}, v{E+i+1}")
                    off = (m*176 + 2*fh + half) * 1024
                    a(f"s_add_u32 s5, s14, {off}")
                    a(f"buffer_store_dwordx4 {vr(P,4)}, v6, s[64:67], s5 offen sc1")
        a("s_waitcnt lgkmcnt(0)\nv_readfirstlane_b32 s15, v1")
    else:
        a("s_waitcnt lgkmcnt(0)\nv_readfirstlane_b32 s15, v1\ns_nop 1")
        flag_store(a, 0)
        for cg in range(2):
            for m in range(2):
                for rr in range(0, 16, 2):
                    t = 208 + ((rr >> 1) & 3) * 4
                    cmul_pk(a, acc(cg, m)+rr, acc(2+cg, m)+rr, PM[cg]+2, t, t+2)
    for m in range(2):
        for i in range(4):
            cmul_s(a, ace(0, m)+i, ace(1, m)+i, PE+2, PE+3, 8 + (i & 1)*2, 9 + (i & 1)*2)
    a(f"s_lshl_b32 s4, s3, 10\ns_add_u32 s4, s4, {TSE}")
    a("v_and_b32 v7, 15, v0\nv_lshlrev_b32 v7, 6, v7\nv_lshrrev_b32 v8, 4, v0\nv_lshl_add_u32 v7, v8, 4, v7\nv_add_u32 v7, s4, v7")
    a("v_lshrrev_b32 v9, 5, v0\nv_lshlrev_b32 v9, 3, v9\nv_bfe_u32 v10, v0, 2, 2\nv_add_u32 v9, v9, v10")
    a("v_bfe_u32 v10, v0, 4, 1\nv_lshlrev_b32 v10, 5, v10\nv_and_b32 v11, 3, v0\nv_lshl_add_u32 v10, v11, 3, v10")
    a("v_lshl_add_u32 v8, v9, 6, v10\nv_add_u32 v8, s4, v8")
    if kind == 'S':
        a(f"s_lshr_b32 s4, s3, 1\ns_lshl_b32 s4, s4, 12\ns_add_u32 s4, s4, {page(SPAGE)}")
        a("v_and_b32 v11, 1, v0\nv_bfe_u32 v12, v0, 2, 1\nv_lshl_or_b32 v11, v12, 1, v11\nv_bfe_u32 v12, v0, 1, 1\nv_lshl_or_b32 v11, v12, 2, v11")
        a("v_lshrrev_b32 v12, 5, v0\nv_lshlrev_b32 v12, 2, v12\nv_xor_b32 v11, v11, v12\nv_lshlrev_b32 v11, 4, v11")
        a("v_and_b32 v12, 31, v0\nv_lshl_add_u32 v16, v12, 7, v11\nv_add_u32 v16, s4, v16")
        for i in range(1, 4): a(f"v_xor_b32 v{16+i}, {i*16}, v16")
        a("v_bfe_u32 v11, v0, 2, 1\nv_bfe_u32 v12, v0, 3, 1\nv_lshl_or_b32 v11, v12, 2, v11\nv_lshlrev_b32 v11, 4, v11\nv_xor_b32 v11, v11, v10")
        a("v_lshl_add_u32 v20, v9, 7, v11\nv_add_u32 v20, s4, v20")
        a("v_xor_b32 v21, 32, v20\nv_add_u32 v21, 512, v21")
        a("v_xor_b32 v22, 64, v20\nv_xor_b32 v23, 64, v21")
    else:
        a("s_waitcnt vmcnt(0)")
        flag_store(a, 0)
    stamp(a, 6)
    a("s_barrier")
    stamp(a, 7)
    IE = 208
    a(f"ds_read_b32 v{IE}, v5 offset:{AGE_RE - EXT}\nds_read_b32 v{IE+1}, v5 offset:{AGE_IM - EXT}")
    IM = [[212, 214], [216, 218]]
    if kind == 'S':
        for cg in range(2):
            for par in range(2):
                a(f"ds_read_b32 v{IM[cg][0]+par}, v3 offset:{AGM_RE - EXT + par*256 + cg*128}")
                a(f"ds_read_b32 v{IM[cg][1]+par}, v3 offset:{AGM_IM - EXT + par*256 + cg*128}")
    a("s_lshl_b32 s4, s6, 2\ns_add_u32 s4, s4, s3\ns_mul_i32 s4, s4, 176\ns_lshl_b32 s5, s8, 4\ns_add_u32 s4, s4, s5\ns_add_u32 s4, s4, s7\ns_add_u32 s4, s4, 112\ns_lshl_b32 s82, s4, 10")
    a("s_add_u32 s83, s82, 4096")
    a("s_waitcnt lgkmcnt(0)")
    cmul_s(a, IE, IE+1, PE+2, PE+3, 220, 221)
    for pos in range(8):
        Rr = ace(0, pos >> 2) + (pos & 3); I = ace(1, pos >> 2) + (pos & 3)
        if pos == 0: pr, pi = IE, IE+1
        else: pr, pi = ace(0, (pos-1) >> 2) + ((pos-1) & 3), ace(1, (pos-1) >> 2) + ((pos-1) & 3)
        a(f"v_fma_f32 v{Rr}, v{pr}, v{lr}, v{Rr}\nv_fma_f32 v{I}, v{pi}, v{lr}, v{I}")
        a(f"v_fma_f32 v{Rr}, v{pi}, v{li}, v{Rr}\nv_fma_f32 v{I}, -v{pr}, v{li}, v{I}")
    for cp in range(2):
        P = 224 + 4*cp
        for d in range(4):
            b = ace(cp, d >> 1) + (d & 1)*2
            a(f"v_cvt_pk_bf16_f32 v{P+d}, v{b}, v{b+1}")
    for cp in range(2):
        a(f"ds_write_b128 v7, {vr(224+4*cp,4)}")
        a(f"ds_read_b64_tr_b16 {vr(232+4*cp,2)}, v8\nds_read_b64_tr_b16 {vr(234+4*cp,2)}, v8 offset:256")
    if kind == 'S':
        for cg in range(2): cmul_pk(a, IM[cg][0], IM[cg][1], PM[cg]+2, 220, 222)
    a("s_waitcnt lgkmcnt(0)")
    a(f"buffer_store_dwordx4 {vr(232,4)}, v6, s[64:67], s82 offen sc1")
    a(f"buffer_store_dwordx4 {vr(236,4)}, v6, s[64:67], s83 offen sc1")
    if kind == 'S':
        for pos in range(16):
            for cg in range(2):
                L = vr(PM[cg], 2)
                m, rr = pos >> 3, (pos & 7) * 2
                Rr = vr(acc(cg, m) + rr, 2); I = vr(acc(2+cg, m) + rr, 2)
                if pos == 0: pr, pi = vr(IM[cg][0], 2), vr(IM[cg][1], 2)
                else:
                    pm, prr = (pos-1) >> 3, ((pos-1) & 7) * 2
                    pr, pi = vr(acc(cg, pm)+prr, 2), vr(acc(2+cg, pm)+prr, 2)
                a(f"v_pk_fma_f32 {Rr}, {pr}, {L}, {Rr} op_sel:[0,0,0] op_sel_hi:[1,0,1]")
                a(f"v_pk_fma_f32 {I}, {pi}, {L}, {I} op_sel:[0,0,0] op_sel_hi:[1,0,1]")
                a(f"v_pk_fma_f32 {Rr}, {pi}, {L}, {Rr} op_sel:[0,1,0] op_sel_hi:[1,1,1]")
                a(f"v_pk_fma_f32 {I}, {pr}, {L}, {I} op_sel:[0,1,0] op_sel_hi:[1,1,1] neg_lo:[0,1,0] neg_hi:[0,1,0]")
        a("s_lshr_b32 s4, s3, 1\ns_lshl_b32 s4, s4, 1\ns_lshl_b32 s5, s6, 2\ns_add_u32 s4, s4, s5\ns_mul_i32 s4, s4, 176")
        a("s_lshl_b32 s5, s8, 4\ns_add_u32 s4, s4, s5\ns_add_u32 s4, s4, 120\ns_lshl_b32 s14, s4, 10")
        rnd = 0
        for comp in range(2):
            for cg in range(2):
                PB = 176 + (rnd & 1) * 16
                FB = 208 + (rnd & 1) * 16
                k = 0
                for par in range(2):
                    for m in range(2):
                        b = acc(2*comp + cg, m); P = PB + 4*k
                        for aa in range(4): a(f"v_cvt_pk_bf16_f32 v{P+aa}, v{b+4*aa+par}, v{b+4*aa+2+par}")
                        a(f"ds_write_b128 v{16+2*par+m}, {vr(P,4)}")
                        k += 1
                k = 0
                for mt in range(2):
                    for u in range(2):
                        d = FB + 4*k
                        a(f"ds_read_b64_tr_b16 {vr(d,2)}, v{20+2*mt} offset:{u*2048}")
                        a(f"ds_read_b64_tr_b16 {vr(d+2,2)}, v{21+2*mt} offset:{u*2048}")
                        k += 1
                a("s_waitcnt lgkmcnt(0)")
                k = 0
                for mt in range(2):
                    for u in range(2):
                        a(f"s_add_u32 s5, s14, {(mt*176 + 4*comp + 2*cg + u)*1024}")
                        a(f"buffer_store_dwordx4 {vr(FB+4*k,4)}, v6, s[64:67], s5 offen sc1")
                        k += 1
                rnd += 1
    stamp(a, 8)

def p1_consumer_prologue(a, code_end):
    srd(a, 64, sWs, WS_USED)
    l_np = a.lab(); l_nn = a.lab()
    a(f"s_cmp_lg_u32 s3, {3 if OPT['cpf'] else 77}\ns_cbranch_scc1 {l_np}")
    a(f"s_mov_b32 s4, {code_end} - {NAME}_kernel - 8\nv_lshlrev_b32 v1, 7, v0")
    for k in range(NPF):
        a(f"v_add_u32 v2, {k*8192}, v1\nv_min_u32 v2, s4, v2\nglobal_load_dword v15, v2, s[90:91]")
    a.label(l_np)
    a(f"s_cmp_lg_u32 s3, 0\ns_cbranch_scc1 {l_nn}")
    srd(a, 60, sDbg, 256)
    a("s_memrealtime s[14:15]\nv_mov_b32 v9, 0\nv_mov_b32 v11, 0\ns_waitcnt lgkmcnt(0)\ns_or_b32 s14, s14, 1")
    a("v_mov_b32 v10, s14\ns_mov_b64 exec, 1")
    a("buffer_atomic_cmpswap v[10:11], v9, s[60:63], 0 offen sc0\ns_mov_b64 exec, -1")
    a.label(l_nn)
    if OPT['touch1']:
        srd(a, 52, sX, 2097152)
        a("s_lshl_b32 s4, s6, 7\ns_lshl_b32 s5, s7, 5\ns_add_u32 s4, s4, s5\ns_lshl_b32 s4, s4, 10\ns_lshl_b32 s5, s3, 8\ns_add_u32 s4, s4, s5\ns_add_u32 s4, s4, 384")
        a("v_and_b32 v1, 31, v0\nv_lshrrev_b32 v2, 5, v0\nv_lshlrev_b32 v2, 7, v2\nv_lshl_add_u32 v1, v1, 10, v2")
        l = a.lab()
        a(f"s_cmp_ge_u32 s3, 3\ns_cbranch_scc1 {l}\nbuffer_load_dword v15, v1, s[52:55], s4 offen")
        a.label(l)
        a("s_bitcmp1_b32 s3, 0\ns_cselect_b64 s[56:57], s[38:39], s[36:37]\ns_mov_b32 s58, 1835008\ns_mov_b32 s59, 0x20000")
        a("s_and_b32 s4, s6, 7\ns_mul_i32 s4, s4, 40\ns_add_u32 s4, s4, 192\ns_mul_i32 s4, s4, 3584\ns_lshr_b32 s5, s3, 1\ns_andn2_b32 s5, s5, s12\ns_lshl_b32 s5, s5, 6\ns_add_u32 s5, s5, s9\ns_lshl_b32 s5, s5, 1\ns_add_u32 s4, s4, s5")
        a("v_min_u32 v1, 39, v0\ns_movk_i32 s5, 3584\nv_mul_lo_u32 v1, v1, s5\nbuffer_load_dword v15, v1, s[56:59], s4 offen")
    if OPT['touch2']:
        srd(a, 68, sWd, 1835008); srd(a, 72, sCre, 524288); srd(a, 76, sCim, 524288)
        a("s_lshr_b32 s4, s2, 3\ns_lshl_b32 s4, s4, 2\ns_add_u32 s4, s4, s3\ns_lshl_b32 s5, s4, 13\nv_lshlrev_b32 v14, 7, v0\nv_add_u32 v14, s5, v14\ns_mov_b32 s80, 0x100000")
        a("s_lshl_b32 s5, s4, 12\nv_and_b32 v13, 31, v0\nv_lshlrev_b32 v13, 7, v13\nv_add_u32 v13, s5, v13")
    a("v_bfe_u32 v1, v0, 2, 2\nv_and_b32 v2, 3, v0\nv_lshl_add_u32 v3, v1, 3, v2")
    a("v_and_b32 v4, 2, v0\nv_bfe_u32 v5, v0, 3, 1\nv_lshl_or_b32 v4, v5, 2, v4\nv_lshrrev_b32 v5, 4, v0\nv_xor_b32 v4, v4, v5")
    a(f"v_lshlrev_b32 v4, 4, v4\nv_lshl_add_u32 v{vXe}, v3, 7, v4\ns_lshl_b32 s4, s3, 12\nv_add_u32 v{vXe}, s4, v{vXe}")
    a(f"v_xor_b32 v{vXe+1}, 64, v{vXe}\nv_xor_b32 v{vXe+2}, 16, v{vXe}\nv_add_u32 v{vXe+2}, 512, v{vXe+2}\nv_xor_b32 v{vXe+3}, 64, v{vXe+2}")
    a("v_and_b32 v3, 15, v0\nv_lshrrev_b32 v4, 1, v3\nv_xor_b32 v4, v4, v5\nv_lshlrev_b32 v4, 4, v4")
    a(f"v_lshl_add_u32 v{vEa}, v3, 7, v4\nv_add_u32 v{vEa}, {EXT}, v{vEa}\nv_xor_b32 v{vEa+1}, 64, v{vEa}")

def p1_addr_main(a, kind):
    a(f"s_lshr_b32 s4, s3, 1\ns_lshl_b32 s4, s4, 13\ns_and_b32 s5, s3, 1\ns_mul_i32 s5, s5, 49152\ns_add_u32 s5, s5, {BLK}")
    if kind == 'G':
        a("v_and_b32 v1, 31, v0")
    else:
        a("v_bfe_u32 v1, v0, 2, 1\nv_lshlrev_b32 v1, 5, v1\nv_and_b32 v2, 1, v0\nv_lshl_or_b32 v1, v2, 4, v1")
        a("v_bfe_u32 v2, v0, 3, 2\nv_lshl_or_b32 v1, v2, 1, v1\nv_bfe_u32 v2, v0, 1, 1\nv_or_b32 v1, v1, v2")
    a("v_bfe_u32 v2, v1, 2, 1\nv_and_b32 v3, 2, v1\nv_or_b32 v2, v2, v3\nv_bfe_u32 v3, v1, 4, 1\nv_lshl_or_b32 v2, v3, 2, v2")
    a(f"v_lshrrev_b32 v3, 5, v0\nv_xor_b32 v2, v2, v3\nv_lshlrev_b32 v2, 4, v2\nv_lshl_add_u32 v{vXa}, v1, 7, v2\nv_add_u32 v{vXa}, s4, v{vXa}")
    for kk in range(1, 4): a(f"v_xor_b32 v{vXa+kk}, {kk*32}, v{vXa}")
    if kind == 'G':
        a("v_lshrrev_b32 v1, 5, v0\nv_lshlrev_b32 v1, 3, v1\nv_bfe_u32 v2, v0, 2, 2\nv_add_u32 v1, v1, v2")
        a("v_bfe_u32 v2, v0, 4, 1\nv_lshlrev_b32 v2, 5, v2\nv_and_b32 v3, 3, v0\nv_lshl_add_u32 v2, v3, 3, v2")
        a("v_bfe_u32 v3, v0, 3, 1\nv_lshlrev_b32 v3, 6, v3\nv_xor_b32 v2, v2, v3")
        a(f"v_lshl_add_u32 v{vWa}, v1, 7, v2\nv_add_u32 v{vWa}, s5, v{vWa}\nv_xor_b32 v{vWa+1}, 64, v{vWa}")
    else:
        a("v_and_b32 v1, 31, v0\nv_bfe_u32 v2, v0, 1, 3\nv_lshrrev_b32 v3, 5, v0\nv_xor_b32 v2, v2, v3\nv_lshlrev_b32 v2, 4, v2")
        a(f"v_lshl_add_u32 v{vWa}, v1, 7, v2\nv_add_u32 v{vWa}, s5, v{vWa}")
        for kk in range(1, 4): a(f"v_xor_b32 v{vWa+kk}, {kk*32}, v{vWa}")

def p2_ids(a):
    a("s_and_b32 s4, s2, 7\ns_lshr_b32 s5, s2, 3\ns_lshl_b32 s84, s4, 2\ns_lshr_b32 s4, s5, 3\ns_add_u32 s84, s84, s4\ns_and_b32 s85, s5, 7")

def p2_consumer(a):
    SC = " sc1"
    p2_ids(a)
    a("s_and_b32 s8, s3, 1\ns_lshr_b32 s9, s3, 1")
    srd(a, 52, sX, 2097152); srd(a, 56, sDsk, 1024); srd(a, 60, sOut, 4194304)
    XV = 160; GV = 176; DV = 192
    a("s_lshl_b32 s10, s84, 6\ns_lshl_b32 s4, s9, 5\ns_add_u32 s10, s10, s4")
    a("s_lshl_b32 s11, s85, 6\ns_lshl_b32 s4, s8, 5\ns_add_u32 s11, s11, s4")
    a("v_and_b32 v1, 31, v0\nv_add_u32 v1, s11, v1\nv_lshrrev_b32 v2, 5, v0\nv_lshlrev_b32 v2, 2, v2\nv_add_u32 v2, s10, v2")
    a("v_lshlrev_b32 v3, 1, v1\nv_lshl_add_u32 v4, v2, 10, v3")
    a("v_lshlrev_b32 v5, 2, v1\nv_lshl_add_u32 v5, v2, 11, v5")
    a(f"v_lshlrev_b32 v6, 2, v2\nv_add_u32 v6, {G_OFF}, v6")
    ld = []
    for i in range(16):
        row = 8*(i >> 2) + (i & 3)
        ld.append(f"s_mov_b32 s4, {row*1024}\nbuffer_load_ushort v{XV+i}, v4, s[52:55], s4 offen")
    for q in range(4): ld.append(f"buffer_load_dwordx4 {vr(GV+4*q,4)}, v6, s[64:67], 0 offen offset:{q*32} sc1")
    ld.append(f"buffer_load_ushort v{DV}, v3, s[56:59], 0 offen")
    vA, vBw, vBc = 16, 19, 25
    a("s_lshl_b32 s4, s9, 12\ns_lshl_b32 s5, s8, 11\ns_add_u32 s4, s4, s5")
    a(f"v_lshlrev_b32 v7, 4, v0\nv_add_u32 v{vA}, s4, v7")
    a("v_lshrrev_b32 v7, 5, v0\nv_lshlrev_b32 v7, 2, v7\nv_bfe_u32 v8, v0, 2, 2\nv_add_u32 v7, v7, v8")
    a("v_bfe_u32 v8, v0, 4, 1\nv_lshlrev_b32 v8, 5, v8\nv_and_b32 v9, 3, v0\nv_lshl_add_u32 v8, v9, 3, v8\nv_bfe_u32 v9, v0, 3, 1\nv_lshlrev_b32 v9, 6, v9\nv_xor_b32 v8, v8, v9")
    a(f"s_lshl_b32 s4, s8, 12\nv_lshl_add_u32 v{vBw}, v7, 7, v8\nv_add_u32 v{vBw}, s4, v{vBw}\nv_xor_b32 v{vBw+1}, 64, v{vBw}")
    a("v_and_b32 v7, 31, v0\nv_bfe_u32 v8, v0, 1, 3\nv_lshrrev_b32 v9, 5, v0\nv_xor_b32 v8, v8, v9\ns_lshl_b32 s4, s8, 2\nv_xor_b32 v8, s4, v8\nv_lshlrev_b32 v8, 4, v8")
    a(f"v_lshl_add_u32 v{vBc}, v7, 7, v8\nv_xor_b32 v{vBc+1}, 32, v{vBc}")
    W = 57344
    for t in range(1, 3):
        a(f"v_add_u32 v{vA+t}, {t*W}, v{vA}")
        for e in range(2):
            a(f"v_add_u32 v{vBw+2*t+e}, {t*W}, v{vBw+e}\nv_add_u32 v{vBc+2*t+e}, {t*W}, v{vBc+e}")
    AB, AY = 32, 64
    F = [96, 120]
    def win(addr): t = min((addr - XR) // W, 2); return t, addr - t*W
    def reads(s):
        st = s & 1
        ta, oa = win(page(APAGES[s % NA2])); tb, ob = win(page(BPAGES[s % NB2]))
        r = []
        for e in range(2):
            r.append((f"ds_read_b128 {vr(F[st]+4*e,4)}, v{vA+ta} offset:{oa + e*1024}", R(F[st]+4*e, 4)))
            for nt in range(2):
                d = F[st] + 8 + (e*2+nt)*4
                if s < 28:
                    r.append((f"ds_read_b64_tr_b16 {vr(d,2)}, v{vBw+2*tb+nt} offset:{ob + e*2048}", R(d, 2)))
                    r.append((f"ds_read_b64_tr_b16 {vr(d+2,2)}, v{vBw+2*tb+nt} offset:{ob + e*2048 + 1024}", R(d+2, 2)))
                else:
                    r.append((f"ds_read_b128 {vr(d,4)}, v{vBc+2*tb+e} offset:{ob + nt*4096}", R(d, 4)))
        return r
    def mf(s):
        st = s & 1; r = []
        for e in range(2):
            for nt in range(2):
                d = vr((AB if s < 28 else AY) + 16*nt, 16)
                c = "0" if (s in (0, 28) and e == 0) else d
                r.append((f"v_mfma_f32_32x32x16_bf16 {d}, {vr(F[st]+4*e,4)}, {vr(F[st]+8+(e*2+nt)*4,4)}, {c}", []))
        return r
    S = Sched(a)
    for s in range(45):
        if s < 44: a("s_barrier")
        if s == 0: stamp(a, 9)
        if s == 28: stamp(a, 10)
        rd = reads(s) if s < 44 else []
        m = mf(s-1) if s >= 1 else []
        if m: interleave(a, S, m, rd, per=3)
        else:
            for x in rd: S.read(*x)
        if s == 3:
            a("s_waitcnt vmcnt(0)"); flag_store(a, 1)
        if 4 <= s < 4 + 7:
            for x in ld[(s-4)*3:(s-4)*3+3]: a(x)
        S.all()
    stamp(a, 11)
    xp = [page(BPAGES[s % NB2]) for s in (38, 39, 40, 41)]
    a(f"s_mov_b32 s66, {xp[0]}") if False else None
    l = [a.lab() for _ in range(4)]
    a(f"s_mov_b32 s4, {xp[0]}\ns_mov_b32 s5, {xp[1]}\ns_cmp_eq_u32 s9, 1\ns_cselect_b32 s4, {xp[2]}, s4\ns_cselect_b32 s5, {xp[3]}, s5")
    a("s_cmp_eq_u32 s8, 1\ns_cselect_b32 s12, s5, s4\ns_cselect_b32 s13, s4, s5")
    a("v_lshlrev_b32 v7, 4, v0\nv_add_u32 v8, s12, v7\nv_add_u32 v9, s13, v7")
    lk1 = a.lab(); lj = a.lab()
    a(f"s_nop 4\ns_cbranch_scc1 {lk1}")
    RB, RY = 96, 112
    for kh in range(2):
        if kh == 1: a.label(lk1)
        sn = kh ^ 1
        for q in range(4):
            a(f"ds_write_b128 v8, {vr(AB+16*sn+4*q,4)} offset:{q*1024}\nds_write_b128 v8, {vr(AY+16*sn+4*q,4)} offset:{4096+q*1024}")
        a("s_waitcnt lgkmcnt(0)\ns_barrier")
        for q in range(4):
            a(f"ds_read_b128 {vr(RB+4*q,4)}, v9 offset:{q*1024}\nds_read_b128 {vr(RY+4*q,4)}, v9 offset:{4096+q*1024}")
        a("s_waitcnt lgkmcnt(0)")
        for i in range(0, 16, 2):
            a(f"v_pk_add_f32 {vr(RB+i,2)}, {vr(RB+i,2)}, {vr(AB+16*kh+i,2)}\nv_pk_add_f32 {vr(RY+i,2)}, {vr(RY+i,2)}, {vr(AY+16*kh+i,2)}")
        if kh == 0: a(f"s_branch {lj}")
    a.label(lj)
    a(f"s_waitcnt vmcnt(0)\nv_lshlrev_b32 v{DV}, 16, v{DV}\ns_mov_b32 s12, 0xffff0000")
    for i in range(0, 16, 2):
        T = 128 + (i & 2) * 4
        for e in range(2):
            a(f"v_lshlrev_b32 v{XV+i+e}, 16, v{XV+i+e}\nv_mul_f32 v{XV+i+e}, v{XV+i+e}, v{DV}\nv_sub_f32 v{T+e}, 1.0, v{GV+i+e}")
        a(f"v_cvt_pk_bf16_f32 v{T+2}, v{XV+i}, v{XV+i+1}\nv_cvt_pk_bf16_f32 v{T+3}, v{RB+i}, v{RB+i+1}\nv_cvt_pk_bf16_f32 v{T+4}, v{T}, v{T+1}")
        a(f"v_lshlrev_b32 v{XV+i}, 16, v{T+2}\nv_and_b32 v{XV+i+1}, s12, v{T+2}")
        a(f"v_lshlrev_b32 v{RB+i}, 16, v{T+3}\nv_and_b32 v{RB+i+1}, s12, v{T+3}")
        a(f"v_lshlrev_b32 v{T}, 16, v{T+4}\nv_and_b32 v{T+1}, s12, v{T+4}")
        a(f"v_mul_f32 v{T}, v{T}, v{RB+i}\nv_mul_f32 v{T+1}, v{T+1}, v{RB+i+1}\nv_cvt_pk_bf16_f32 v{T+4}, v{T}, v{T+1}")
        a(f"v_lshlrev_b32 v{T}, 16, v{T+4}\nv_and_b32 v{T+1}, s12, v{T+4}")
        for e in range(2):
            a(f"v_add_f32 v{RY+i+e}, v{RY+i+e}, v{XV+i+e}\nv_mul_f32 v{RY+i+e}, v{RY+i+e}, v{GV+i+e}\nv_add_f32 v{RY+i+e}, v{RY+i+e}, v{T+e}")
            row = 8*((i+e) >> 2) + ((i+e) & 3)
            a(f"s_mov_b32 s4, {row*2048}\nbuffer_store_dword v{RY+i+e}, v5, s[60:63], s4 offen")
    stamp(a, 12)
    if STAMP: a("s_waitcnt vmcnt(0)")
    stamp(a, 13)
    stamp_flush(a)
    a("s_endpgm")

def loader_pre(a):
    a("v_lshrrev_b32 v1, 3, v0\nv_and_b32 v2, 7, v0")
    a("v_lshrrev_b32 v3, 5, v0\nv_and_b32 v4, 2, v1\nv_or_b32 v3, v3, v4\nv_xor_b32 v3, v3, v2\nv_lshlrev_b32 v3, 4, v3\nv_lshl_add_u32 v10, v1, 10, v3\nv_xor_b32 v11, 64, v10")
    a("s_cmp_lt_u32 s3, 2\ns_cselect_b32 s70, 1, 0\ns_xor_b32 s71, s12, 1\ns_or_b32 s70, s70, s71")
    a("s_lshr_b32 s4, s3, 1\ns_lshl_b32 s4, s4, 6\ns_add_u32 s4, s4, s9\ns_lshl_b32 s4, s4, 1\ns_lshl_b32 s5, s11, 10")
    a("s_cmp_eq_u32 s70, 1\ns_cselect_b32 s80, s4, s5\ns_movk_i32 s81, 128\ns_movk_i32 s82, 8192\ns_movk_i32 s83, 1024\ns_cselect_b32 s81, 229376, s81\ns_cselect_b32 s82, 28672, s82\ns_cselect_b32 s83, 3584, s83\ns_cselect_b32 s84, 0, 64")
    a("s_mov_b32 s4, 524288\ns_cselect_b32 s58, 1835008, s4\ns_mov_b32 s59, 0x20000\ns_cselect_b64 vcc, -1, 0")
    a("v_bfe_u32 v3, v0, 4, 1\nv_lshlrev_b32 v3, 2, v3\nv_lshrrev_b32 v4, 4, v0\nv_cndmask_b32 v3, v4, v3, vcc")
    a("v_xor_b32 v3, v3, v2\nv_lshlrev_b32 v3, 4, v3\nv_mad_u32_u24 v12, v1, s83, v3\nv_xor_b32 v13, s84, v12")
    a("s_and_b32 s4, s3, 1\ns_lshl_b32 s4, s4, 2\nv_or_b32 v4, s4, v4\nv_xor_b32 v4, v4, v2\nv_lshlrev_b32 v4, 4, v4\nv_lshl_add_u32 v14, v1, 10, v4")
    a("s_and_b32 s4, s3, 1\ns_lshl_b32 s4, s4, 3\ns_add_u32 s4, s4, s10\ns_lshl_b32 s85, s4, 10")
    a("s_lshl_b32 s4, s6, 7\ns_lshl_b32 s5, s3, 5\ns_add_u32 s4, s4, s5\ns_lshl_b32 s86, s4, 10")
    a(f"s_lshl_b32 s87, s3, 12\ns_mul_i32 s88, s3, 24576\ns_add_u32 s88, s88, {BLK}\ns_lshl_b32 s89, s3, 10\ns_add_u32 s89, s89, {EXT}")
    a("s_mov_b32 s54, 2097152\ns_mov_b32 s55, 0x20000\ns_mov_b32 s62, 524288\ns_mov_b32 s63, 0x20000")

def loader(a):
    a("s_waitcnt lgkmcnt(0)")
    a("s_mov_b64 s[52:53], s[16:17]")
    a("s_bitcmp1_b32 s3, 0\ns_cselect_b64 s[72:73], s[38:39], s[36:37]\ns_cselect_b64 s[74:75], s[24:25], s[22:23]")
    a("s_cmp_eq_u32 s70, 1\ns_cselect_b64 s[56:57], s[72:73], s[74:75]")
    a("s_cmp_lt_u32 s3, 2\ns_cselect_b64 s[60:61], s[22:23], s[24:25]")
    def issue(s):
        slot = s % 3
        for i in range(4):
            a(f"s_add_u32 m0, s87, {XR + slot*16384 + i*1024}\ns_add_u32 s4, s86, {i*8192 + s*128}")
            a(f"buffer_load_dwordx4 v{10 + (i >> 1)}, s[52:55], s4 offen lds")
        a("s_mov_b32 s4, s80")
        for i in range(8):
            a(f"s_add_u32 m0, s88, {slot*8192 + i*1024}")
            if i: a("s_add_u32 s4, s4, s82")
            else: a("s_nop 0")
            a(f"buffer_load_dwordx4 v{12 + (i & 1)}, s[56:59], s4 offen lds")
        a("s_add_u32 s80, s80, s81")
        a(f"s_add_u32 m0, s89, {slot*4096}\ns_add_u32 s4, s85, {s*128}")
        a("buffer_load_dwordx4 v14, s[60:63], s4 offen lds")
    for s in range(3):
        issue(s)
        if s == 0: stamp(a, 14)
    stamp(a, 1)
    srd(a, 64, sWs, WS_USED)
    srd(a, 68, sGw, 1024); srd(a, 72, sLre, 1024); srd(a, 76, sLim, 1024); srd(a, 96, sLdt, 1024)
    a("s_lshl_b32 s4, s6, 7\ns_lshl_b32 s5, s13, 3\ns_add_u32 s4, s4, s5\ns_lshl_b32 s5, s3, 1\ns_add_u32 s15, s4, s5\ns_lshl_b32 s4, s15, 10")
    a("v_lshlrev_b32 v1, 4, v0")
    a("buffer_load_dwordx4 v[32:35], v1, s[52:55], s4 offen\nbuffer_load_dwordx4 v[36:39], v1, s[52:55], s4 offen offset:1024\nbuffer_load_dwordx4 v[40:43], v1, s[68:71], 0 offen")
    a("s_and_b32 s4, s3, 1\ns_lshl_b32 s4, s4, 6\nv_add_u32 v2, s4, v0\nv_add_u32 v3, s10, v2\ns_sub_u32 s5, s11, 16\nv_add_u32 v4, s5, v2")
    a("v_cmp_gt_u32 vcc, 16, v2\ns_nop 1\nv_cndmask_b32 v3, v4, v3, vcc\nv_lshlrev_b32 v3, 1, v3")
    a("buffer_load_ushort v44, v3, s[72:75], 0 offen\nbuffer_load_ushort v45, v3, s[76:79], 0 offen\nbuffer_load_ushort v46, v3, s[96:99], 0 offen")
    a("s_waitcnt vmcnt(32)")
    stamp(a, 2)
    a("s_barrier")
    a("s_waitcnt vmcnt(19)"); stamp(a, 9); a("s_barrier"); issue(3)
    a("s_waitcnt vmcnt(19)"); stamp(a, 10); a("s_barrier"); issue(4)
    a("s_waitcnt vmcnt(13)"); stamp(a, 11); a("s_barrier"); issue(5)
    a("v_lshlrev_b32 v44, 16, v44\nv_lshlrev_b32 v45, 16, v45\nv_lshlrev_b32 v46, 16, v46")
    a(f"v_mul_f32 v46, {LOG2E}, v46\nv_exp_f32 v46, v46\ns_nop 0")
    bf16_round(a, 46, 46, 47)
    a(f"v_mul_f32 v47, v46, v44\nv_mul_f32 v48, v46, v45")
    a(f"v_mul_f32 v47, {LOG2E}, v47\nv_exp_f32 v47, v47\nv_mul_f32 v48, {INV2PI}, v48\nv_rndne_f32 v49, v48\nv_sub_f32 v48, v48, v49")
    a("v_cos_f32 v49, v48\nv_sin_f32 v50, v48\ns_nop 0\nv_mul_f32 v52, v47, v49\nv_mul_f32 v53, v47, v50")
    a("v_mul_f32 v49, v44, v44\nv_fma_f32 v49, v45, v45, v49\nv_rcp_f32 v49, v49\nv_add_f32 v50, -1.0, v52")
    a("v_mul_f32 v54, v50, v44\nv_fma_f32 v54, v53, v45, v54\nv_mul_f32 v55, v53, v44\nv_fma_f32 v55, -v50, v45, v55")
    a("v_add_f32 v49, v49, v49\nv_mul_f32 v54, v54, v49\nv_mul_f32 v55, v55, v49")
    a("v_lshlrev_b32 v2, 4, v2\nv_cmp_gt_u32 vcc, 1280, v2\ns_and_saveexec_b64 s[78:79], vcc")
    a(f"ds_write_b128 v2, v[52:55] offset:{PARAM}")
    a("s_mov_b64 exec, s[78:79]")
    a("s_waitcnt vmcnt(13) lgkmcnt(0)"); stamp(a, 12); a("s_barrier"); issue(6)
    a("v_mov_b32 v4, 0\nv_mov_b32 v5, 0\ns_mov_b32 s4, 0xffff0000")
    for i in range(4):
        a(f"v_lshlrev_b32 v6, 16, v{40+i}\nv_and_b32 v7, s4, v{40+i}")
        for r in range(2):
            x = 32 + 4*r + i
            a(f"v_lshlrev_b32 v8, 16, v{x}\nv_and_b32 v9, s4, v{x}\nv_mul_f32 v8, v8, v6\nv_mul_f32 v9, v9, v7")
            a(f"v_cvt_pk_bf16_f32 v8, v8, v9\nv_lshlrev_b32 v9, 16, v8\nv_and_b32 v8, s4, v8\nv_add_f32 v{4+r}, v{4+r}, v9\nv_add_f32 v{4+r}, v{4+r}, v8")
    for off in [0x041F, 0x081F, 0x101F, 0x201F, 0x401F]:
        a(f"ds_swizzle_b32 v6, v4 offset:{off}\nds_swizzle_b32 v7, v5 offset:{off}\ns_waitcnt lgkmcnt(0)\nv_add_f32 v4, v4, v6\nv_add_f32 v5, v5, v7")
    a("s_nop 0\nv_readlane_b32 s4, v4, 32\nv_readlane_b32 s5, v5, 32\ns_nop 1\nv_add_f32 v4, s4, v4\nv_add_f32 v5, s5, v5")
    a("v_cmp_eq_u32 vcc, 1, v0\ns_nop 1\nv_cndmask_b32 v4, v4, v5, vcc")
    bf16_round(a, 4, 4, 5)
    a(f"v_mul_f32 v4, {NLOG2E}, v4\nv_exp_f32 v4, v4\ns_nop 0\nv_add_f32 v4, 1.0, v4\nv_rcp_f32 v4, v4\ns_nop 0")
    bf16_round(a, 4, 4, 5)
    a(f"s_lshl_b32 s4, s15, 2\ns_add_u32 s4, s4, {G_OFF}\nv_lshlrev_b32 v5, 2, v0\ns_mov_b64 exec, 3")
    a("buffer_store_dword v4, v5, s[64:67], s4 offen sc1\ns_mov_b64 exec, -1")
    a("s_waitcnt vmcnt(14)"); stamp(a, 13); a("s_barrier"); issue(7)
    p2_ids(a)
    l_a = a.lab()
    a(f"s_cmp_ge_u32 s3, 2\ns_cbranch_scc1 {l_a}")
    srd(a, 52, sWd, 1835008); srd(a, 56, sCre, 524288); srd(a, 60, sCim, 524288)
    a("s_lshl_b32 s81, s3, 12")
    a("s_lshl_b32 s4, s3, 15\ns_lshl_b32 s5, s85, 7\ns_add_u32 s82, s4, s5\ns_lshl_b32 s5, s85, 16\ns_add_u32 s83, s4, s5")
    a("v_lshrrev_b32 v1, 3, v0\nv_and_b32 v2, 7, v0")
    a("v_bfe_u32 v3, v0, 4, 1\nv_lshlrev_b32 v3, 2, v3\nv_xor_b32 v3, v3, v2\nv_lshlrev_b32 v3, 4, v3\nv_lshl_add_u32 v11, v1, 10, v3")
    a("v_lshrrev_b32 v3, 4, v0\nv_xor_b32 v3, v3, v2\nv_lshlrev_b32 v3, 4, v3\nv_lshl_add_u32 v12, v1, 10, v3\nv_xor_b32 v13, 64, v12")
    def issueB(s):
        base = page(BPAGES[s % NB2])
        for i in range(4):
            a(f"s_add_u32 m0, s81, {base + i*1024}")
            if s < 28:
                a(f"s_add_u32 s4, s82, {s*65536 + i*8192}\nbuffer_load_dwordx4 v11, s[52:55], s4 offen lds")
            else:
                t = s - 28
                a(f"s_add_u32 s4, s83, {(t >> 1)*128 + i*8192}\nbuffer_load_dwordx4 v{12+(i&1)}, s[{56 + 4*(t & 1)}:{59 + 4*(t & 1)}], s4 offen lds")
    a("s_waitcnt vmcnt(13)\ns_barrier")
    for s in range(6): issueB(s)
    a("s_waitcnt vmcnt(24)\ns_barrier")
    for s in range(6, NB2): issueB(s)
    a("s_barrier\ns_barrier")
    issued = NB2 - 1
    for s in range(44):
        a(f"s_waitcnt vmcnt({(issued - s)*4})\ns_barrier")
        if s >= 1 and s + NB2 - 1 <= 43:
            issueB(s + NB2 - 1); issued = s + NB2 - 1
    a("s_barrier")
    stamp_flush(a)
    a("s_endpgm")
    a.label(l_a)
    l_e = a.lab(); l_m = a.lab(); l_j = a.lab()
    a(f"s_cmp_eq_u32 s3, 2\ns_cbranch_scc1 {l_e}")
    a(f"s_cmp_eq_u32 s12, 1\ns_cbranch_scc1 {l_m}")
    a("s_waitcnt vmcnt(13)\ns_barrier\ns_waitcnt vmcnt(0)\ns_barrier\ns_barrier")
    a(f"v_mov_b32 v4, 0\nds_read_b32 v5, v4 offset:{NONCE}\ns_waitcnt lgkmcnt(0)\nv_readfirstlane_b32 s72, v5")
    a(f"s_branch {l_j}")
    a.label(l_e); combine(a, 16, 16, 3, AGE_RE, AGE_IM, 10, PARAM); a(f"s_branch {l_j}")
    a.label(l_m); combine(a, 8, 64, 4, AGM_RE, AGM_IM, 11, PARAM + 256)
    a.label(l_j)
    stamp(a, 6)
    a("s_barrier")
    a(f"s_lshr_b32 s4, s84, 1\ns_lshl_b32 s4, s4, 9\ns_add_u32 s86, s4, {FLG_OFF}\nv_lshlrev_b32 v9, 2, v0\nv_lshlrev_b32 v10, 4, v0")
    a("s_lshl_b32 s4, s84, 1\ns_add_u32 s4, s4, s3\ns_sub_u32 s4, s4, 2\ns_mul_i32 s4, s4, 176\ns_lshl_b32 s80, s4, 10")
    a("s_sub_u32 s4, s3, 2\ns_lshl_b32 s81, s4, 12")
    def poll(which, pre_issued=False):
        lp = a.lab(); ld = a.lab(); lc = a.lab()
        a("s_mov_b32 s88, 0x8000")
        if pre_issued: a(f"s_branch {lc}")
        a.label(lp)
        a(f"buffer_load_dword v8, v9, s[64:67], s86 offen offset:{which*256} sc1\ns_waitcnt vmcnt(0)")
        a.label(lc)
        a(f"v_cmp_ne_u32 vcc, s72, v8\ns_cmp_eq_u64 vcc, 0\ns_cbranch_scc1 {ld}")
        a(f"s_sub_u32 s88, s88, 1\ns_cmp_lg_u32 s88, 0\ns_cbranch_scc1 {lp}")
        a.label(ld)
    poll(0)
    stamp(a, 7)
    SC = " sc1" if OPT['sc1_a'] else ""
    def issueA(s):
        base = page(APAGES[s % NA2])
        for i in range(4):
            a(f"s_add_u32 m0, s81, {base + i*1024}\ns_add_u32 s4, s80, {s*4096 + i*1024}\nbuffer_load_dwordx4 v10, s[64:67], s4 offen{SC} lds")
    for s in range(NA2): issueA(s)
    ops = [('A', s) for s in range(NA2) for _ in range(4)]
    PS = 22
    for s in range(44):
        last = max(i for i, o in enumerate(ops) if o == ('A', s))
        a(f"s_waitcnt vmcnt({len(ops) - 1 - last})")
        if s == 0: stamp(a, 8)
        a("s_barrier")
        n = s + NA2 - 1
        if s >= 1 and n <= 43:
            if n == PS:
                a(f"buffer_load_dword v8, v9, s[64:67], s86 offen offset:256 sc1"); ops.append(('P', 0))
            if n == 28:
                assert s >= PS
                poll(1, pre_issued=True)
            issueA(n); ops += [('A', n)] * 4
    a("s_barrier")
    stamp_flush(a)
    a("s_endpgm")

def combine(a, nseg, nch, lg, are, aim, sch, pofs):
    a(f"s_add_u32 s68, s48, {AGG_OFF}\ns_addc_u32 s69, s49, 0\ns_mov_b32 s70, {AGG_SZ}\ns_mov_b32 s71, 0x20000")
    if nch < 64: a(f"s_mov_b64 exec, {(1 << nch) - 1}")
    a(f"v_lshlrev_b32 v1, 4, v0\nds_read_b64 v[2:3], v1 offset:{pofs}\ns_waitcnt lgkmcnt(0)")
    for i in range(7):
        a("v_mul_f32 v8, v3, v3\nv_mul_f32 v9, v2, v3\nv_fma_f32 v2, v2, v2, -v8\nv_add_f32 v3, v9, v9")
        if i == lg - 1: a("v_mov_b32 v6, v2\nv_mov_b32 v7, v3")
    a(f"s_lshl_b32 s4, s6, 9\ns_add_u32 s4, s4, s{sch}\ns_lshl_b32 s4, s4, 4\nv_add_u32 v20, s4, v1")
    for d in range(1, 16): a(f"v_subrev_u32 v{20+d}, {d*8192}, v20")
    a(f"v_lshlrev_b32 v1, 2, v0\nv_add_u32 v1, {EXT}, v1\nv_mov_b32 v4, 0")
    a("s_waitcnt vmcnt(13)\ns_barrier\ns_waitcnt vmcnt(0)\ns_barrier")
    a("s_barrier")
    stamp(a, 3)
    AR, AI = 40, 56
    a(f"ds_read_b32 v5, v4 offset:{NONCE}")
    for sg in range(nseg):
        a(f"ds_read_b32 v{AR+sg}, v1 offset:{are - EXT + sg*nch*4}\nds_read_b32 v{AI+sg}, v1 offset:{aim - EXT + sg*nch*4}")
    a("s_waitcnt lgkmcnt(0)\nv_mov_b32 v11, v5\nv_mov_b32 v13, v5\nv_readfirstlane_b32 s72, v5")
    a(f"v_mov_b32 v10, v{AR}\nv_mov_b32 v12, v{AI}")
    for sg in range(1, nseg):
        a(f"v_fma_f32 v8, v10, v6, v{AR+sg}\nv_fma_f32 v9, v12, v6, v{AI+sg}\nv_fma_f32 v8, -v12, v7, v8\nv_fma_f32 v12, v10, v7, v9\nv_mov_b32 v10, v8")
    a("buffer_store_dwordx4 v[10:13], v20, s[68:71], 0 offen sc1")
    stamp(a, 4)
    for d in range(1, 16): a(f"s_cmp_ge_u32 s6, {d}\ns_cselect_b32 s{72+d}, s72, 0")
    lp = a.lab(); ld = a.lab()
    a("s_mov_b32 s88, 0x8000")
    a.label(lp)
    E = 80
    for d in range(1, 16): a(f"buffer_load_dwordx4 {vr(E+4*d,4)}, v{20+d}, s[68:71], 0 offen sc1")
    a("s_mov_b64 s[4:5], 0\ns_waitcnt vmcnt(0)")
    for d in range(1, 16):
        a(f"v_cmp_ne_u32 vcc, s{72+d}, v{E+4*d+1}\ns_or_b64 s[4:5], s[4:5], vcc\nv_cmp_ne_u32 vcc, s{72+d}, v{E+4*d+3}\ns_or_b64 s[4:5], s[4:5], vcc")
    a(f"s_cmp_eq_u64 s[4:5], 0\ns_cbranch_scc1 {ld}")
    a(f"s_sub_u32 s88, s88, 1\ns_cmp_lg_u32 s88, 0\ns_cbranch_scc1 {lp}")
    a.label(ld)
    stamp(a, 5)
    a(f"v_mov_b32 v10, v{E+60}\nv_mov_b32 v12, v{E+62}")
    for d in range(14, 0, -1):
        a(f"v_fma_f32 v8, v10, v2, v{E+4*d}\nv_fma_f32 v9, v12, v2, v{E+4*d+2}\nv_fma_f32 v8, -v12, v3, v8\nv_fma_f32 v12, v10, v3, v9\nv_mov_b32 v10, v8")
    for sg in range(nseg):
        a(f"ds_write_b32 v1, v10 offset:{are - EXT + sg*nch*4}\nds_write_b32 v1, v12 offset:{aim - EXT + sg*nch*4}")
        if sg < nseg - 1:
            a(f"v_fma_f32 v8, v10, v6, v{AR+sg}\nv_fma_f32 v9, v12, v6, v{AI+sg}\nv_fma_f32 v8, -v12, v7, v8\nv_fma_f32 v12, v10, v7, v9\nv_mov_b32 v10, v8")
    a("s_mov_b64 exec, -1\ns_waitcnt lgkmcnt(0)")
    p2_ids(a)

def kernel(a, name):
    a(f".p2align 8\n.globl {name}\n.type {name},@function")
    a.label(name)
    l_end = a.lab(); l_c = a.lab(); l_s = a.lab(); l_p2 = a.lab()
    a("s_getpc_b64 s[90:91]")
    a(f"s_cmp_ge_u32 s2, 256\ns_cbranch_scc1 {l_end}")
    a("s_load_dwordx16 s[16:31], s[0:1], 0\ns_load_dwordx16 s[32:47], s[0:1], 64\ns_load_dwordx2 s[48:49], s[0:1], 128")
    a("v_lshrrev_b32 v1, 6, v0\nv_and_b32 v0, 63, v0\nv_readfirstlane_b32 s3, v1")
    a("s_and_b32 s4, s2, 7\ns_lshr_b32 s5, s2, 3")
    a("s_and_b32 s6, s4, 1\ns_lshl_b32 s6, s6, 3\ns_lshr_b32 s7, s5, 2\ns_add_u32 s6, s6, s7")
    a("s_and_b32 s7, s5, 3\ns_lshr_b32 s8, s4, 1")
    a("s_mul_i32 s9, s8, 448\ns_lshl_b32 s4, s7, 7\ns_add_u32 s9, s9, s4")
    a("s_lshl_b32 s11, s8, 7\ns_lshl_b32 s4, s7, 4\ns_add_u32 s10, s11, s4\ns_add_u32 s11, s11, 64")
    a("s_cmp_eq_u32 s7, 3\ns_cselect_b32 s12, 1, 0\ns_lshl_b32 s13, s8, 2\ns_add_u32 s13, s13, s7")
    if STAMP: a("s_mov_b32 s95, s3")
    a(f"s_cmp_lt_u32 s3, 4\ns_cbranch_scc1 {l_c}")
    a("s_sub_u32 s3, s3, 4")
    loader_pre(a)
    if STAMP: a("s_waitcnt lgkmcnt(0)")
    stamp(a, 0)
    loader(a)
    a.label(l_c)
    a("s_waitcnt lgkmcnt(0)")
    stamp(a, 0)
    p1_consumer_prologue(a, "L_code_end")
    a(f"s_and_b32 s4, s3, s12\ns_cmp_eq_u32 s4, 1\ns_cbranch_scc1 {l_s}")
    p1_addr_main(a, 'G'); p1_consumer_loop(a, 'G'); p1_epilogue(a, 'G')
    a(f"s_branch {l_p2}")
    a.label(l_s)
    p1_addr_main(a, 'S'); p1_consumer_loop(a, 'S'); p1_epilogue(a, 'S')
    a.label(l_p2)
    p2_consumer(a)
    a.label(l_end)
    a("s_endpgm")
    a.label("L_code_end")
    a("s_endpgm")

def desc(name, nv=256):
    return f""".p2align 6
.amdhsa_kernel {name}
  .amdhsa_next_free_vgpr {nv}
  .amdhsa_next_free_sgpr 102
  .amdhsa_accum_offset {nv}
  .amdhsa_group_segment_fixed_size 0
  .amdhsa_kernarg_size 136
  .amdhsa_user_sgpr_count 2
  .amdhsa_user_sgpr_kernarg_segment_ptr 1
  .amdhsa_system_sgpr_workgroup_id_x 1
.end_amdhsa_kernel
"""

def main(out):
    a = Asm()
    n1 = NAME + "_kernel"
    kernel(a, n1)
    txt = HDR
    txt += f"; @launch grid=(256,1,1) block=(512,1,1) lds={LDS1}\n"
    txt += '.amdgcn_target "amdgcn-amd-amdhsa--gfx950"\n.text\n' + a.text()
    txt += '.section .rodata,"a"\n' + desc(n1)
    open(out, "w").write(txt)

if __name__ == "__main__":
    args = sys.argv[1:]
    if "-stamp" in args: STAMP = True; args.remove("-stamp")
    for x in list(args):
        if "=" in x:
            k, v = x.split("="); OPT[k] = int(v); args.remove(x)
    main(args[0] if args else f"cdna_kernels/{NAME}.s")
```

```python
import sys

NAME = "gated_mix__ssm_conv_s5__glu_gated_glu__prompt"
HDR = open("cdna_kernels/%s.s.ref" % NAME).read().split("; Override launch")[0]

G_OFF = 0xB00000
AGG_OFF = 0xB10000
AGG_SZ = 16 * 512 * 16
FLG_OFF = 0xB30000
WS_USED = 0xB40000
NPF = 6
LOG2E = 0x3fb8aa3b
NLOG2E = 0xbfb8aa3b
INV2PI = 0x3e22f983
OPT = dict(sc1_a=1, touch1=1, touch2=1, cpf=1, dbgts=0)

class Asm:
    def __init__(s): s.l = []; s.uid = 0
    def __call__(s, t):
        for x in t.strip("\n").split("\n"): s.l.append("    " + x.strip())
    def label(s, n): s.l.append(n + ":")
    def lab(s, p="L"):
        s.uid += 1; return f"{p}_{s.uid}"
    def text(s): return "\n".join(s.l) + "\n"

def vr(b, n): return f"v[{b}:{b+n-1}]" if n > 1 else f"v{b}"

def srd(a, d, lo, size):
    a(f"s_mov_b32 s{d}, s{lo}\ns_mov_b32 s{d+1}, s{lo+1}\ns_mov_b32 s{d+2}, {size}\ns_mov_b32 s{d+3}, 0x20000")

sX, sLre, sLim, sBre, sBim, sCre, sCim, sLdt = 16, 18, 20, 22, 24, 26, 28, 30
sDsk, sBx, sWg, sWu, sWd, sGw, sOut, sDbg, sWs = 32, 34, 36, 38, 40, 42, 44, 46, 48

STAMP = False
TS_OFF = 0xB40000
NST = 14
def stamp(a, idx):
    if not STAMP: return
    a(f"s_memrealtime s[100:101]\ns_waitcnt lgkmcnt(0)\nv_mov_b32 v{240+idx}, s100")
def stamp_flush(a, cons=False):
    if not STAMP: return
    if OPT['dbgts']:
        if not cons: return
        srd(a, 96, sDbg, 256)
        a("v_mov_b32 v255, 0\ns_mov_b64 exec, 1\nv_not_b32 v254, v240")
        a("buffer_atomic_umax v254, v255, s[96:99], 0 offen offset:4")
        for idx in range(14): a(f"buffer_atomic_umax v{240+idx}, v255, s[96:99], 0 offen offset:{8+idx*4}")
        return
    srd(a, 96, sWs, 0xC00000)
    a(f"s_lshl_b32 s94, s2, 3\ns_add_u32 s94, s94, s95\ns_lshl_b32 s94, s94, 6\ns_add_u32 s94, s94, {TS_OFF}")
    a("v_mov_b32 v255, 0\ns_mov_b64 exec, 1")
    for idx in range(0, 16, 4):
        a(f"buffer_store_dwordx4 {vr(240+idx,4)}, v255, s[96:99], s94 offen offset:{idx*4}")

def bf16_round(a, d, s, t):
    a(f"v_cvt_pk_bf16_f32 v{t}, v{s}, v{s}\nv_lshlrev_b32 v{d}, 16, v{t}")

class Sched:
    def __init__(s, a): s.a = a; s.n = 0; s.prod = {}; s.done = -1
    def read(s, ins, regs):
        s.a(ins)
        for r in regs: s.prod[r] = s.n
        s.n += 1
    def need(s, regs):
        k = max([s.prod.get(r, -1) for r in regs] + [-1])
        if k > s.done:
            s.a(f"s_waitcnt lgkmcnt({min(s.n - 1 - k, 15)})")
            s.done = k if s.n - 1 - k <= 15 else s.n - 16
    def all(s):
        if s.done < s.n - 1: s.a("s_waitcnt lgkmcnt(0)")
        s.done = s.n - 1

PARAM = 0; NONCE = 2048; XR = 4096; BLK = XR + 49152; EXT = XR + 147456
AGE_RE = EXT; AGE_IM = EXT + 1024; AGM_RE = EXT + 2048; AGM_IM = EXT + 8192; TSE = EXT + 4096
LDS1 = 163840
def page(p): return XR + p*8192 if p < 6 else BLK + ((p-6)//3)*24576 + ((p-6) % 3)*8192
BPAGES = [4, 5, 8, 11, 14, 17, 0, 1, 6, 9, 12]; APAGES = [2, 3, 7, 10, 13, 16]; SPAGE = 15
NB2 = len(BPAGES); NA2 = len(APAGES)

vXa = 16; vWa = 20; vXe = 24; vEa = 28
ACC = 32; ACE = 160; FR = [176, 200]; FE = 224
def acc(w, m): return ACC + (w * 2 + m) * 16
def ace(comp, m): return ACE + (comp * 2 + m) * 4
def R(b, n): return list(range(b, b+n))

def reads_main(kind, slot, kk, st):
    b = FR[st]; xs = 4096 if kind == 'G' else 1024
    def xr(m): return [(f"ds_read_b128 {vr(b+4*m,4)}, v{vXa+kk} offset:{XR + slot*16384 + m*xs}", R(b+4*m, 4))]
    def wr(w):
        d = b + 8 + 4*w
        if kind == 'G':
            off = (w >> 1)*24576 + slot*8192 + kk*2048
            return [(f"ds_read_b64_tr_b16 {vr(d,2)}, v{vWa+(w&1)} offset:{off}", R(d, 2)),
                    (f"ds_read_b64_tr_b16 {vr(d+2,2)}, v{vWa+(w&1)} offset:{off+512}", R(d+2, 2))]
        off = (w >> 1)*24576 + slot*8192 + (w & 1)*4096
        return [(f"ds_read_b128 {vr(d,4)}, v{vWa+kk} offset:{off}", R(d, 4))]
    return xr(0) + wr(0) + xr(1) + wr(1) + wr(2) + wr(3)

def reads_ext(slot, k32):
    r = []
    for m in range(2): r.append((f"ds_read_b128 {vr(FE+4*m,4)}, v{vXe+2*m+k32} offset:{XR + slot*16384}", R(FE+4*m, 4)))
    for cp in range(2): r.append((f"ds_read_b128 {vr(FE+8+4*cp,4)}, v{vEa+k32} offset:{slot*4096+cp*2048}", R(FE+8+4*cp, 4)))
    return r

def mfma_main(kind, st, first):
    r = []; b = FR[st]
    for w in range(4):
        for m in range(2):
            d = vr(acc(w, m), 16); X = vr(b+4*m, 4); W = vr(b+8+4*w, 4)
            c = "0" if first else d
            ins = f"v_mfma_f32_32x32x16_bf16 {d}, {W}, {X}, {c}" if kind == 'G' else f"v_mfma_f32_32x32x16_bf16 {d}, {X}, {W}, {c}"
            r.append((ins, R(b+4*m, 4) + R(b+8+4*w, 4)))
    return r

def mfma_ext(first):
    r = []
    for cp in range(2):
        for m in range(2):
            d = vr(ace(cp, m), 4)
            r.append((f"v_mfma_f32_16x16x32_bf16 {d}, {vr(FE+4*m,4)}, {vr(FE+8+4*cp,4)}, {'0' if first else d}", R(FE+4*m, 4) + R(FE+8+4*cp, 4)))
    return r

def interleave(a, S, mf, rd, per=3, extra=None):
    rd = list(rd); extra = list(extra or [])
    for (ins, regs) in mf:
        S.need(regs); a(ins)
        for _ in range(per):
            if rd: S.read(*rd.pop(0))
        if not rd and extra: a(extra.pop(0))
    for x in rd: S.read(*x)
    for x in extra: a(x)

def p1_consumer_loop(a, kind):
    S = Sched(a)
    stamp(a, 1)
    a("s_barrier")
    stamp(a, 2)
    for x in reads_main(kind, 0, 0, 0): S.read(*x)
    for s in range(8):
        slot = s % 3
        for kk in range(4):
            st = kk & 1
            rd = []
            if kk == 3:
                if s < 7:
                    S.all(); a("s_barrier")
                    rd = reads_main(kind, (s+1) % 3, 0, 0)
            else:
                rd = reads_main(kind, slot, kk+1, st ^ 1)
            if kk in (0, 2): rd = rd + reads_ext(slot, kk >> 1)
            mf = mfma_main(kind, st, s == 0 and kk == 0)
            if kk in (1, 3):
                mf = mf[:4] + mfma_ext(s == 0 and kk == 1) + mf[4:]
            extra = []
            if OPT['touch2'] and s in (1, 2, 3) and kk == 1: extra = touch2(s - 1)
            interleave(a, S, mf, rd, extra=extra)
        if s == 3: stamp(a, 3)
    stamp(a, 4)

def touch2(i):
    if i == 0: return [f"buffer_load_dword v15, v14, s[68:71], 0 offen", f"buffer_load_dword v15, v14, s[68:71], s80 offen"]
    if i == 1: return [f"buffer_load_dword v15, v13, s[72:75], 0 offen"]
    return [f"buffer_load_dword v15, v13, s[76:79], 0 offen"]

def cmul_pk(a, Rr, I, C, t1, t2):
    a(f"v_pk_mul_f32 {vr(t1,2)}, {vr(Rr,2)}, {vr(C,2)} op_sel:[0,0] op_sel_hi:[1,0]")
    a(f"v_pk_mul_f32 {vr(t2,2)}, {vr(Rr,2)}, {vr(C,2)} op_sel:[0,1] op_sel_hi:[1,1] neg_lo:[0,1] neg_hi:[0,1]")
    a(f"v_pk_fma_f32 {vr(Rr,2)}, {vr(I,2)}, {vr(C,2)}, {vr(t1,2)} op_sel:[0,1,0] op_sel_hi:[1,1,1] neg_lo:[0,1,0] neg_hi:[0,1,0]")
    a(f"v_pk_fma_f32 {vr(I,2)}, {vr(I,2)}, {vr(C,2)}, {vr(t2,2)} op_sel:[0,0,0] op_sel_hi:[1,0,1] neg_lo:[0,1,0] neg_hi:[0,1,0]")

def cmul_s(a, Rr, I, cr, ci, t1, t2):
    a(f"v_mul_f32 v{t1}, v{Rr}, v{cr}\nv_mul_f32 v{t2}, v{Rr}, v{ci}")
    a(f"v_fma_f32 v{Rr}, -v{I}, v{ci}, v{t1}\nv_fma_f32 v{I}, -v{I}, v{cr}, -v{t2}")

def flag_store(a, which):
    a(f"v_mov_b32 v1, s15\nv_mov_b32 v2, 0\ns_mov_b64 exec, 1\nbuffer_store_dword v1, v2, s[64:67], s81 offen offset:{which*256} sc1\ns_mov_b64 exec, -1")

def p1_epilogue(a, kind):
    PE = 176; PM = [180, 184]
    a(f"v_and_b32 v1, 15, v0\nv_lshlrev_b32 v1, 4, v1\nds_read_b128 {vr(PE,4)}, v1 offset:{PARAM}")
    if kind == 'S':
        a(f"v_and_b32 v2, 31, v0\nv_lshlrev_b32 v2, 4, v2")
        for cg in range(2): a(f"ds_read_b128 {vr(PM[cg],4)}, v2 offset:{PARAM + 256 + cg*512}")
    else:
        l = a.lab()
        a(f"s_cmp_lg_u32 s3, 0\ns_cbranch_scc1 {l}")
        a("s_waitcnt vmcnt(0)\nv_mov_b32 v13, s14\nv_cmp_eq_u32 vcc, 0, v10\ns_mov_b64 exec, 1\nv_mov_b32 v2, 0\nv_cndmask_b32 v10, v10, v13, vcc")
        a(f"ds_write_b32 v2, v10 offset:{NONCE}\ns_mov_b64 exec, -1")
        a.label(l)
    a(f"s_lshl_b32 s4, s3, 8\ns_add_u32 s4, s4, {EXT}\nv_lshlrev_b32 v5, 2, v0\nv_add_u32 v5, s4, v5\ns_nop 7")
    a("s_waitcnt lgkmcnt(0)")
    if kind == 'S':
        S = [[188, 190], [192, 194]]; T = [[196, 198], [200, 202]]
        for pos in range(1, 16):
            for cg in range(2):
                L = vr(PM[cg], 2)
                m, rr = pos >> 3, (pos & 7) * 2
                Rr = vr(acc(cg, m) + rr, 2); I = vr(acc(2+cg, m) + rr, 2)
                if pos == 1: pr, pi = vr(acc(cg, 0), 2), vr(acc(2+cg, 0), 2)
                else:
                    src = S if (pos & 1) else T
                    pr, pi = vr(src[cg][0], 2), vr(src[cg][1], 2)
                dst = T if (pos & 1) else S
                dr, di = vr(dst[cg][0], 2), vr(dst[cg][1], 2)
                a(f"v_pk_fma_f32 {dr}, {pr}, {L}, {Rr} op_sel:[0,0,0] op_sel_hi:[1,0,1]")
                a(f"v_pk_fma_f32 {di}, {pi}, {L}, {I} op_sel:[0,0,0] op_sel_hi:[1,0,1]")
                a(f"v_pk_fma_f32 {dr}, {pi}, {L}, {dr} op_sel:[0,1,0] op_sel_hi:[1,1,1] neg_lo:[0,1,0] neg_hi:[0,1,0]")
                a(f"v_pk_fma_f32 {di}, {pr}, {L}, {di} op_sel:[0,1,0] op_sel_hi:[1,1,1]")
        a(f"v_lshrrev_b32 v3, 5, v0\nv_lshlrev_b32 v3, 9, v3\nv_lshrrev_b32 v4, 2, v2\nv_add_u32 v3, v3, v4")
        a(f"s_lshr_b32 s4, s3, 1\ns_lshl_b32 s4, s4, 10\ns_add_u32 s4, s4, {EXT}\nv_add_u32 v3, s4, v3")
        for cg in range(2):
            for par in range(2):
                a(f"ds_write_b32 v3, v{T[cg][0]+par} offset:{AGM_RE - EXT + par*256 + cg*128}")
                a(f"ds_write_b32 v3, v{T[cg][1]+par} offset:{AGM_IM - EXT + par*256 + cg*128}")
    lr, li = PE, PE+1
    S = [204, 205]; T = [206, 207]
    for pos in range(1, 8):
        Rr = ace(0, pos >> 2) + (pos & 3); I = ace(1, pos >> 2) + (pos & 3)
        if pos == 1: pr, pi = ace(0, 0), ace(1, 0)
        else: pr, pi = (S if (pos & 1) else T)
        dr, di = (T if (pos & 1) else S)
        a(f"v_fma_f32 v{dr}, v{pr}, v{lr}, v{Rr}\nv_fma_f32 v{di}, v{pi}, v{lr}, v{I}")
        a(f"v_fma_f32 v{dr}, -v{pi}, v{li}, v{dr}\nv_fma_f32 v{di}, v{pr}, v{li}, v{di}")
    a(f"ds_write_b32 v5, v{T[0]} offset:{AGE_RE - EXT}\nds_write_b32 v5, v{T[1]} offset:{AGE_IM - EXT}")
    a("s_waitcnt lgkmcnt(0)")
    stamp(a, 5)
    a("s_barrier")
    a(f"v_mov_b32 v1, 0\nds_read_b32 v1, v1 offset:{NONCE}\nv_lshlrev_b32 v6, 4, v0")
    a(f"s_lshl_b32 s81, s6, 9\ns_lshl_b32 s4, s13, 4\ns_add_u32 s81, s81, s4\ns_lshl_b32 s4, s3, 2\ns_add_u32 s81, s81, s4\ns_add_u32 s81, s81, {FLG_OFF}")
    if kind == 'G':
        a("s_lshr_b32 s4, s3, 1\ns_lshl_b32 s4, s4, 1\ns_lshl_b32 s5, s6, 2\ns_add_u32 s4, s4, s5\ns_mul_i32 s4, s4, 176")
        a("s_and_b32 s5, s3, 1\ns_lshl_b32 s5, s5, 2\ns_add_u32 s4, s4, s5\ns_lshr_b32 s5, s9, 4\ns_add_u32 s4, s4, s5\ns_lshl_b32 s14, s4, 10")
        a(f"s_mov_b32 s50, {NLOG2E}\ns_mov_b32 s51, {NLOG2E}")
        k = 0
        for fh in range(2):
            for m in range(2):
                g, u = acc(fh, m), acc(2+fh, m)
                for half in range(2):
                    E = 208 + (k & 1) * 8; P = 224 + (k & 3) * 4
                    k += 1
                    gb, ub = g + 8*half, u + 8*half
                    for i in range(0, 8, 2): a(f"v_pk_mul_f32 {vr(E+i,2)}, {vr(gb+i,2)}, s[50:51]")
                    for i in range(8): a(f"v_exp_f32 v{E+i}, v{E+i}")
                    for i in range(0, 8, 2): a(f"v_pk_add_f32 {vr(E+i,2)}, {vr(E+i,2)}, 1.0 op_sel_hi:[1,0]")
                    for i in range(8): a(f"v_rcp_f32 v{E+i}, v{E+i}")
                    for i in range(0, 8, 2): a(f"v_pk_mul_f32 {vr(E+i,2)}, {vr(E+i,2)}, {vr(ub+i,2)}")
                    for i in range(0, 8, 2): a(f"v_cvt_pk_bf16_f32 v{P+i//2}, v{E+i}, v{E+i+1}")
                    off = (m*176 + 2*fh + half) * 1024
                    a(f"s_add_u32 s5, s14, {off}")
                    a(f"buffer_store_dwordx4 {vr(P,4)}, v6, s[64:67], s5 offen sc1")
        a("s_waitcnt lgkmcnt(0)\nv_readfirstlane_b32 s15, v1")
    else:
        a("s_waitcnt lgkmcnt(0)\nv_readfirstlane_b32 s15, v1\ns_nop 1")
        flag_store(a, 0)
        for cg in range(2):
            for m in range(2):
                for rr in range(0, 16, 2):
                    t = 208 + ((rr >> 1) & 3) * 4
                    cmul_pk(a, acc(cg, m)+rr, acc(2+cg, m)+rr, PM[cg]+2, t, t+2)
    for m in range(2):
        for i in range(4):
            cmul_s(a, ace(0, m)+i, ace(1, m)+i, PE+2, PE+3, 8 + (i & 1)*2, 9 + (i & 1)*2)
    a(f"s_lshl_b32 s4, s3, 10\ns_add_u32 s4, s4, {TSE}")
    a("v_and_b32 v7, 15, v0\nv_lshlrev_b32 v7, 6, v7\nv_lshrrev_b32 v8, 4, v0\nv_lshl_add_u32 v7, v8, 4, v7\nv_add_u32 v7, s4, v7")
    a("v_lshrrev_b32 v9, 5, v0\nv_lshlrev_b32 v9, 3, v9\nv_bfe_u32 v10, v0, 2, 2\nv_add_u32 v9, v9, v10")
    a("v_bfe_u32 v10, v0, 4, 1\nv_lshlrev_b32 v10, 5, v10\nv_and_b32 v11, 3, v0\nv_lshl_add_u32 v10, v11, 3, v10")
    a("v_lshl_add_u32 v8, v9, 6, v10\nv_add_u32 v8, s4, v8")
    if kind == 'S':
        a(f"s_lshr_b32 s4, s3, 1\ns_lshl_b32 s4, s4, 12\ns_add_u32 s4, s4, {page(SPAGE)}")
        a("v_and_b32 v11, 1, v0\nv_bfe_u32 v12, v0, 2, 1\nv_lshl_or_b32 v11, v12, 1, v11\nv_bfe_u32 v12, v0, 1, 1\nv_lshl_or_b32 v11, v12, 2, v11")
        a("v_lshrrev_b32 v12, 5, v0\nv_lshlrev_b32 v12, 2, v12\nv_xor_b32 v11, v11, v12\nv_lshlrev_b32 v11, 4, v11")
        a("v_and_b32 v12, 31, v0\nv_lshl_add_u32 v16, v12, 7, v11\nv_add_u32 v16, s4, v16")
        for i in range(1, 4): a(f"v_xor_b32 v{16+i}, {i*16}, v16")
        a("v_bfe_u32 v11, v0, 2, 1\nv_bfe_u32 v12, v0, 3, 1\nv_lshl_or_b32 v11, v12, 2, v11\nv_lshlrev_b32 v11, 4, v11\nv_xor_b32 v11, v11, v10")
        a("v_lshl_add_u32 v20, v9, 7, v11\nv_add_u32 v20, s4, v20")
        a("v_xor_b32 v21, 32, v20\nv_add_u32 v21, 512, v21")
        a("v_xor_b32 v22, 64, v20\nv_xor_b32 v23, 64, v21")
    else:
        a("s_waitcnt vmcnt(0)")
        flag_store(a, 0)
    stamp(a, 6)
    a("s_barrier")
    stamp(a, 7)
    IE = 208
    a(f"ds_read_b32 v{IE}, v5 offset:{AGE_RE - EXT}\nds_read_b32 v{IE+1}, v5 offset:{AGE_IM - EXT}")
    IM = [[212, 214], [216, 218]]
    if kind == 'S':
        for cg in range(2):
            for par in range(2):
                a(f"ds_read_b32 v{IM[cg][0]+par}, v3 offset:{AGM_RE - EXT + par*256 + cg*128}")
                a(f"ds_read_b32 v{IM[cg][1]+par}, v3 offset:{AGM_IM - EXT + par*256 + cg*128}")
    a("s_lshl_b32 s4, s6, 2\ns_add_u32 s4, s4, s3\ns_mul_i32 s4, s4, 176\ns_lshl_b32 s5, s8, 4\ns_add_u32 s4, s4, s5\ns_add_u32 s4, s4, s7\ns_add_u32 s4, s4, 112\ns_lshl_b32 s82, s4, 10")
    a("s_add_u32 s83, s82, 4096")
    a("s_waitcnt lgkmcnt(0)")
    cmul_s(a, IE, IE+1, PE+2, PE+3, 220, 221)
    for pos in range(8):
        Rr = ace(0, pos >> 2) + (pos & 3); I = ace(1, pos >> 2) + (pos & 3)
        if pos == 0: pr, pi = IE, IE+1
        else: pr, pi = ace(0, (pos-1) >> 2) + ((pos-1) & 3), ace(1, (pos-1) >> 2) + ((pos-1) & 3)
        a(f"v_fma_f32 v{Rr}, v{pr}, v{lr}, v{Rr}\nv_fma_f32 v{I}, v{pi}, v{lr}, v{I}")
        a(f"v_fma_f32 v{Rr}, v{pi}, v{li}, v{Rr}\nv_fma_f32 v{I}, -v{pr}, v{li}, v{I}")
    for cp in range(2):
        P = 224 + 4*cp
        for d in range(4):
            b = ace(cp, d >> 1) + (d & 1)*2
            a(f"v_cvt_pk_bf16_f32 v{P+d}, v{b}, v{b+1}")
    for cp in range(2):
        a(f"ds_write_b128 v7, {vr(224+4*cp,4)}")
        a(f"ds_read_b64_tr_b16 {vr(232+4*cp,2)}, v8\nds_read_b64_tr_b16 {vr(234+4*cp,2)}, v8 offset:256")
    if kind == 'S':
        for cg in range(2): cmul_pk(a, IM[cg][0], IM[cg][1], PM[cg]+2, 220, 222)
    a("s_waitcnt lgkmcnt(0)")
    a(f"buffer_store_dwordx4 {vr(232,4)}, v6, s[64:67], s82 offen sc1")
    a(f"buffer_store_dwordx4 {vr(236,4)}, v6, s[64:67], s83 offen sc1")
    if kind == 'S':
        for pos in range(16):
            for cg in range(2):
                L = vr(PM[cg], 2)
                m, rr = pos >> 3, (pos & 7) * 2
                Rr = vr(acc(cg, m) + rr, 2); I = vr(acc(2+cg, m) + rr, 2)
                if pos == 0: pr, pi = vr(IM[cg][0], 2), vr(IM[cg][1], 2)
                else:
                    pm, prr = (pos-1) >> 3, ((pos-1) & 7) * 2
                    pr, pi = vr(acc(cg, pm)+prr, 2), vr(acc(2+cg, pm)+prr, 2)
                a(f"v_pk_fma_f32 {Rr}, {pr}, {L}, {Rr} op_sel:[0,0,0] op_sel_hi:[1,0,1]")
                a(f"v_pk_fma_f32 {I}, {pi}, {L}, {I} op_sel:[0,0,0] op_sel_hi:[1,0,1]")
                a(f"v_pk_fma_f32 {Rr}, {pi}, {L}, {Rr} op_sel:[0,1,0] op_sel_hi:[1,1,1]")
                a(f"v_pk_fma_f32 {I}, {pr}, {L}, {I} op_sel:[0,1,0] op_sel_hi:[1,1,1] neg_lo:[0,1,0] neg_hi:[0,1,0]")
        a("s_lshr_b32 s4, s3, 1\ns_lshl_b32 s4, s4, 1\ns_lshl_b32 s5, s6, 2\ns_add_u32 s4, s4, s5\ns_mul_i32 s4, s4, 176")
        a("s_lshl_b32 s5, s8, 4\ns_add_u32 s4, s4, s5\ns_add_u32 s4, s4, 120\ns_lshl_b32 s14, s4, 10")
        rnd = 0
        for comp in range(2):
            for cg in range(2):
                PB = 176 + (rnd & 1) * 16
                FB = 208 + (rnd & 1) * 16
                k = 0
                for par in range(2):
                    for m in range(2):
                        b = acc(2*comp + cg, m); P = PB + 4*k
                        for aa in range(4): a(f"v_cvt_pk_bf16_f32 v{P+aa}, v{b+4*aa+par}, v{b+4*aa+2+par}")
                        a(f"ds_write_b128 v{16+2*par+m}, {vr(P,4)}")
                        k += 1
                k = 0
                for mt in range(2):
                    for u in range(2):
                        d = FB + 4*k
                        a(f"ds_read_b64_tr_b16 {vr(d,2)}, v{20+2*mt} offset:{u*2048}")
                        a(f"ds_read_b64_tr_b16 {vr(d+2,2)}, v{21+2*mt} offset:{u*2048}")
                        k += 1
                a("s_waitcnt lgkmcnt(0)")
                k = 0
                for mt in range(2):
                    for u in range(2):
                        a(f"s_add_u32 s5, s14, {(mt*176 + 4*comp + 2*cg + u)*1024}")
                        a(f"buffer_store_dwordx4 {vr(FB+4*k,4)}, v6, s[64:67], s5 offen sc1")
                        k += 1
                rnd += 1
    stamp(a, 8)

def p1_consumer_prologue(a, code_end):
    srd(a, 64, sWs, WS_USED)
    l_np = a.lab(); l_nn = a.lab()
    a(f"s_cmp_lg_u32 s3, {3 if OPT['cpf'] else 77}\ns_cbranch_scc1 {l_np}")
    a(f"s_mov_b32 s4, {code_end} - {NAME}_kernel - 8\nv_lshlrev_b32 v1, 7, v0")
    for k in range(NPF):
        a(f"v_add_u32 v2, {k*8192}, v1\nv_min_u32 v2, s4, v2\nglobal_load_dword v15, v2, s[90:91]")
    a.label(l_np)
    a(f"s_cmp_lg_u32 s3, 0\ns_cbranch_scc1 {l_nn}")
    srd(a, 60, sDbg, 256)
    a("s_memrealtime s[14:15]\nv_mov_b32 v9, 0\nv_mov_b32 v11, 0\ns_waitcnt lgkmcnt(0)\ns_or_b32 s14, s14, 1")
    a("v_mov_b32 v10, s14\ns_mov_b64 exec, 1")
    a("buffer_atomic_cmpswap v[10:11], v9, s[60:63], 0 offen sc0\ns_mov_b64 exec, -1")
    a.label(l_nn)
    if OPT['touch1']:
        srd(a, 52, sX, 2097152)
        a("s_lshl_b32 s4, s6, 7\ns_lshl_b32 s5, s7, 5\ns_add_u32 s4, s4, s5\ns_lshl_b32 s4, s4, 10\ns_lshl_b32 s5, s3, 8\ns_add_u32 s4, s4, s5\ns_add_u32 s4, s4, 384")
        a("v_and_b32 v1, 31, v0\nv_lshrrev_b32 v2, 5, v0\nv_lshlrev_b32 v2, 7, v2\nv_lshl_add_u32 v1, v1, 10, v2")
        l = a.lab()
        a(f"s_cmp_ge_u32 s3, 3\ns_cbranch_scc1 {l}\nbuffer_load_dword v15, v1, s[52:55], s4 offen")
        a.label(l)
        a("s_bitcmp1_b32 s3, 0\ns_cselect_b64 s[56:57], s[38:39], s[36:37]\ns_mov_b32 s58, 1835008\ns_mov_b32 s59, 0x20000")
        a("s_and_b32 s4, s6, 7\ns_mul_i32 s4, s4, 40\ns_add_u32 s4, s4, 192\ns_mul_i32 s4, s4, 3584\ns_lshr_b32 s5, s3, 1\ns_andn2_b32 s5, s5, s12\ns_lshl_b32 s5, s5, 6\ns_add_u32 s5, s5, s9\ns_lshl_b32 s5, s5, 1\ns_add_u32 s4, s4, s5")
        a("v_min_u32 v1, 39, v0\ns_movk_i32 s5, 3584\nv_mul_lo_u32 v1, v1, s5\nbuffer_load_dword v15, v1, s[56:59], s4 offen")
    if OPT['touch2']:
        srd(a, 68, sWd, 1835008); srd(a, 72, sCre, 524288); srd(a, 76, sCim, 524288)
        a("s_lshr_b32 s4, s2, 3\ns_lshl_b32 s4, s4, 2\ns_add_u32 s4, s4, s3\ns_lshl_b32 s5, s4, 13\nv_lshlrev_b32 v14, 7, v0\nv_add_u32 v14, s5, v14\ns_mov_b32 s80, 0x100000")
        a("s_lshl_b32 s5, s4, 12\nv_and_b32 v13, 31, v0\nv_lshlrev_b32 v13, 7, v13\nv_add_u32 v13, s5, v13")
    a("v_bfe_u32 v1, v0, 2, 2\nv_and_b32 v2, 3, v0\nv_lshl_add_u32 v3, v1, 3, v2")
    a("v_and_b32 v4, 2, v0\nv_bfe_u32 v5, v0, 3, 1\nv_lshl_or_b32 v4, v5, 2, v4\nv_lshrrev_b32 v5, 4, v0\nv_xor_b32 v4, v4, v5")
    a(f"v_lshlrev_b32 v4, 4, v4\nv_lshl_add_u32 v{vXe}, v3, 7, v4\ns_lshl_b32 s4, s3, 12\nv_add_u32 v{vXe}, s4, v{vXe}")
    a(f"v_xor_b32 v{vXe+1}, 64, v{vXe}\nv_xor_b32 v{vXe+2}, 16, v{vXe}\nv_add_u32 v{vXe+2}, 512, v{vXe+2}\nv_xor_b32 v{vXe+3}, 64, v{vXe+2}")
    a("v_and_b32 v3, 15, v0\nv_lshrrev_b32 v4, 1, v3\nv_xor_b32 v4, v4, v5\nv_lshlrev_b32 v4, 4, v4")
    a(f"v_lshl_add_u32 v{vEa}, v3, 7, v4\nv_add_u32 v{vEa}, {EXT}, v{vEa}\nv_xor_b32 v{vEa+1}, 64, v{vEa}")

def p1_addr_main(a, kind):
    a(f"s_lshr_b32 s4, s3, 1\ns_lshl_b32 s4, s4, 13\ns_and_b32 s5, s3, 1\ns_mul_i32 s5, s5, 49152\ns_add_u32 s5, s5, {BLK}")
    if kind == 'G':
        a("v_and_b32 v1, 31, v0")
    else:
        a("v_bfe_u32 v1, v0, 2, 1\nv_lshlrev_b32 v1, 5, v1\nv_and_b32 v2, 1, v0\nv_lshl_or_b32 v1, v2, 4, v1")
        a("v_bfe_u32 v2, v0, 3, 2\nv_lshl_or_b32 v1, v2, 1, v1\nv_bfe_u32 v2, v0, 1, 1\nv_or_b32 v1, v1, v2")
    a("v_bfe_u32 v2, v1, 2, 1\nv_and_b32 v3, 2, v1\nv_or_b32 v2, v2, v3\nv_bfe_u32 v3, v1, 4, 1\nv_lshl_or_b32 v2, v3, 2, v2")
    a(f"v_lshrrev_b32 v3, 5, v0\nv_xor_b32 v2, v2, v3\nv_lshlrev_b32 v2, 4, v2\nv_lshl_add_u32 v{vXa}, v1, 7, v2\nv_add_u32 v{vXa}, s4, v{vXa}")
    for kk in range(1, 4): a(f"v_xor_b32 v{vXa+kk}, {kk*32}, v{vXa}")
    if kind == 'G':
        a("v_lshrrev_b32 v1, 5, v0\nv_lshlrev_b32 v1, 3, v1\nv_bfe_u32 v2, v0, 2, 2\nv_add_u32 v1, v1, v2")
        a("v_bfe_u32 v2, v0, 4, 1\nv_lshlrev_b32 v2, 5, v2\nv_and_b32 v3, 3, v0\nv_lshl_add_u32 v2, v3, 3, v2")
        a("v_bfe_u32 v3, v0, 3, 1\nv_lshlrev_b32 v3, 6, v3\nv_xor_b32 v2, v2, v3")
        a(f"v_lshl_add_u32 v{vWa}, v1, 7, v2\nv_add_u32 v{vWa}, s5, v{vWa}\nv_xor_b32 v{vWa+1}, 64, v{vWa}")
    else:
        a("v_and_b32 v1, 31, v0\nv_bfe_u32 v2, v0, 1, 3\nv_lshrrev_b32 v3, 5, v0\nv_xor_b32 v2, v2, v3\nv_lshlrev_b32 v2, 4, v2")
        a(f"v_lshl_add_u32 v{vWa}, v1, 7, v2\nv_add_u32 v{vWa}, s5, v{vWa}")
        for kk in range(1, 4): a(f"v_xor_b32 v{vWa+kk}, {kk*32}, v{vWa}")

def p2_ids(a):
    a("s_and_b32 s4, s2, 7\ns_lshr_b32 s5, s2, 3\ns_lshl_b32 s84, s4, 2\ns_lshr_b32 s4, s5, 3\ns_add_u32 s84, s84, s4\ns_and_b32 s85, s5, 7")

def p2_consumer(a):
    SC = " sc1"
    p2_ids(a)
    a("s_and_b32 s8, s3, 1\ns_lshr_b32 s9, s3, 1")
    srd(a, 52, sX, 2097152); srd(a, 56, sDsk, 1024); srd(a, 60, sOut, 4194304)
    XV = 160; GV = 176; DV = 192
    a("s_lshl_b32 s10, s84, 6\ns_lshl_b32 s4, s9, 5\ns_add_u32 s10, s10, s4")
    a("s_lshl_b32 s11, s85, 6\ns_lshl_b32 s4, s8, 5\ns_add_u32 s11, s11, s4")
    a("v_and_b32 v1, 31, v0\nv_add_u32 v1, s11, v1\nv_lshrrev_b32 v2, 5, v0\nv_lshlrev_b32 v2, 2, v2\nv_add_u32 v2, s10, v2")
    a("v_lshlrev_b32 v3, 1, v1\nv_lshl_add_u32 v4, v2, 10, v3")
    a("v_lshlrev_b32 v5, 2, v1\nv_lshl_add_u32 v5, v2, 11, v5")
    a(f"v_lshlrev_b32 v6, 2, v2\nv_add_u32 v6, {G_OFF}, v6")
    ld = []
    for i in range(16):
        row = 8*(i >> 2) + (i & 3)
        ld.append(f"s_mov_b32 s4, {row*1024}\nbuffer_load_ushort v{XV+i}, v4, s[52:55], s4 offen")
    for q in range(4): ld.append(f"buffer_load_dwordx4 {vr(GV+4*q,4)}, v6, s[64:67], 0 offen offset:{q*32} sc1")
    ld.append(f"buffer_load_ushort v{DV}, v3, s[56:59], 0 offen")
    vA, vBw, vBc = 16, 19, 25
    a("s_lshl_b32 s4, s9, 12\ns_lshl_b32 s5, s8, 11\ns_add_u32 s4, s4, s5")
    a(f"v_lshlrev_b32 v7, 4, v0\nv_add_u32 v{vA}, s4, v7")
    a("v_lshrrev_b32 v7, 5, v0\nv_lshlrev_b32 v7, 2, v7\nv_bfe_u32 v8, v0, 2, 2\nv_add_u32 v7, v7, v8")
    a("v_bfe_u32 v8, v0, 4, 1\nv_lshlrev_b32 v8, 5, v8\nv_and_b32 v9, 3, v0\nv_lshl_add_u32 v8, v9, 3, v8\nv_bfe_u32 v9, v0, 3, 1\nv_lshlrev_b32 v9, 6, v9\nv_xor_b32 v8, v8, v9")
    a(f"s_lshl_b32 s4, s8, 12\nv_lshl_add_u32 v{vBw}, v7, 7, v8\nv_add_u32 v{vBw}, s4, v{vBw}\nv_xor_b32 v{vBw+1}, 64, v{vBw}")
    a("v_and_b32 v7, 31, v0\nv_bfe_u32 v8, v0, 1, 3\nv_lshrrev_b32 v9, 5, v0\nv_xor_b32 v8, v8, v9\ns_lshl_b32 s4, s8, 2\nv_xor_b32 v8, s4, v8\nv_lshlrev_b32 v8, 4, v8")
    a(f"v_lshl_add_u32 v{vBc}, v7, 7, v8\nv_xor_b32 v{vBc+1}, 32, v{vBc}")
    W = 57344
    for t in range(1, 3):
        a(f"v_add_u32 v{vA+t}, {t*W}, v{vA}")
        for e in range(2):
            a(f"v_add_u32 v{vBw+2*t+e}, {t*W}, v{vBw+e}\nv_add_u32 v{vBc+2*t+e}, {t*W}, v{vBc+e}")
    AB, AY = 32, 64
    F = [96, 120]
    def win(addr): t = min((addr - XR) // W, 2); return t, addr - t*W
    def reads(s):
        st = s & 1
        ta, oa = win(page(APAGES[s % NA2])); tb, ob = win(page(BPAGES[s % NB2]))
        r = []
        for e in range(2):
            r.append((f"ds_read_b128 {vr(F[st]+4*e,4)}, v{vA+ta} offset:{oa + e*1024}", R(F[st]+4*e, 4)))
            for nt in range(2):
                d = F[st] + 8 + (e*2+nt)*4
                if s < 28:
                    r.append((f"ds_read_b64_tr_b16 {vr(d,2)}, v{vBw+2*tb+nt} offset:{ob + e*2048}", R(d, 2)))
                    r.append((f"ds_read_b64_tr_b16 {vr(d+2,2)}, v{vBw+2*tb+nt} offset:{ob + e*2048 + 1024}", R(d+2, 2)))
                else:
                    r.append((f"ds_read_b128 {vr(d,4)}, v{vBc+2*tb+e} offset:{ob + nt*4096}", R(d, 4)))
        return r
    def mf(s):
        st = s & 1; r = []
        for e in range(2):
            for nt in range(2):
                d = vr((AB if s < 28 else AY) + 16*nt, 16)
                c = "0" if (s in (0, 28) and e == 0) else d
                r.append((f"v_mfma_f32_32x32x16_bf16 {d}, {vr(F[st]+4*e,4)}, {vr(F[st]+8+(e*2+nt)*4,4)}, {c}", []))
        return r
    S = Sched(a)
    for s in range(45):
        if s < 44: a("s_barrier")
        if s == 0: stamp(a, 9)
        if s == 28: stamp(a, 10)
        rd = reads(s) if s < 44 else []
        m = mf(s-1) if s >= 1 else []
        if m: interleave(a, S, m, rd, per=3)
        else:
            for x in rd: S.read(*x)
        if s == 3:
            a("s_waitcnt vmcnt(0)"); flag_store(a, 1)
        if 4 <= s < 4 + 7:
            for x in ld[(s-4)*3:(s-4)*3+3]: a(x)
        S.all()
    stamp(a, 11)
    xp = [page(BPAGES[s % NB2]) for s in (38, 39, 40, 41)]
    a(f"s_mov_b32 s66, {xp[0]}") if False else None
    l = [a.lab() for _ in range(4)]
    a(f"s_mov_b32 s4, {xp[0]}\ns_mov_b32 s5, {xp[1]}\ns_cmp_eq_u32 s9, 1\ns_cselect_b32 s4, {xp[2]}, s4\ns_cselect_b32 s5, {xp[3]}, s5")
    a("s_cmp_eq_u32 s8, 1\ns_cselect_b32 s12, s5, s4\ns_cselect_b32 s13, s4, s5")
    a("v_lshlrev_b32 v7, 4, v0\nv_add_u32 v8, s12, v7\nv_add_u32 v9, s13, v7")
    lk1 = a.lab(); lj = a.lab()
    a(f"s_nop 4\ns_cbranch_scc1 {lk1}")
    RB, RY = 96, 112
    for kh in range(2):
        if kh == 1: a.label(lk1)
        sn = kh ^ 1
        for q in range(4):
            a(f"ds_write_b128 v8, {vr(AB+16*sn+4*q,4)} offset:{q*1024}\nds_write_b128 v8, {vr(AY+16*sn+4*q,4)} offset:{4096+q*1024}")
        a("s_waitcnt lgkmcnt(0)\ns_barrier")
        for q in range(4):
            a(f"ds_read_b128 {vr(RB+4*q,4)}, v9 offset:{q*1024}\nds_read_b128 {vr(RY+4*q,4)}, v9 offset:{4096+q*1024}")
        a("s_waitcnt lgkmcnt(0)")
        for i in range(0, 16, 2):
            a(f"v_pk_add_f32 {vr(RB+i,2)}, {vr(RB+i,2)}, {vr(AB+16*kh+i,2)}\nv_pk_add_f32 {vr(RY+i,2)}, {vr(RY+i,2)}, {vr(AY+16*kh+i,2)}")
        if kh == 0: a(f"s_branch {lj}")
    a.label(lj)
    a(f"s_waitcnt vmcnt(0)\nv_lshlrev_b32 v{DV}, 16, v{DV}\ns_mov_b32 s12, 0xffff0000")
    for i in range(0, 16, 2):
        T = 128 + (i & 2) * 4
        for e in range(2):
            a(f"v_lshlrev_b32 v{XV+i+e}, 16, v{XV+i+e}\nv_mul_f32 v{XV+i+e}, v{XV+i+e}, v{DV}\nv_sub_f32 v{T+e}, 1.0, v{GV+i+e}")
        a(f"v_cvt_pk_bf16_f32 v{T+2}, v{XV+i}, v{XV+i+1}\nv_cvt_pk_bf16_f32 v{T+3}, v{RB+i}, v{RB+i+1}\nv_cvt_pk_bf16_f32 v{T+4}, v{T}, v{T+1}")
        a(f"v_lshlrev_b32 v{XV+i}, 16, v{T+2}\nv_and_b32 v{XV+i+1}, s12, v{T+2}")
        a(f"v_lshlrev_b32 v{RB+i}, 16, v{T+3}\nv_and_b32 v{RB+i+1}, s12, v{T+3}")
        a(f"v_lshlrev_b32 v{T}, 16, v{T+4}\nv_and_b32 v{T+1}, s12, v{T+4}")
        a(f"v_mul_f32 v{T}, v{T}, v{RB+i}\nv_mul_f32 v{T+1}, v{T+1}, v{RB+i+1}\nv_cvt_pk_bf16_f32 v{T+4}, v{T}, v{T+1}")
        a(f"v_lshlrev_b32 v{T}, 16, v{T+4}\nv_and_b32 v{T+1}, s12, v{T+4}")
        for e in range(2):
            a(f"v_add_f32 v{RY+i+e}, v{RY+i+e}, v{XV+i+e}\nv_mul_f32 v{RY+i+e}, v{RY+i+e}, v{GV+i+e}\nv_add_f32 v{RY+i+e}, v{RY+i+e}, v{T+e}")
            row = 8*((i+e) >> 2) + ((i+e) & 3)
            a(f"s_mov_b32 s4, {row*2048}\nbuffer_store_dword v{RY+i+e}, v5, s[60:63], s4 offen")
    stamp(a, 12)
    if STAMP: a("s_waitcnt vmcnt(0)")
    stamp(a, 13)
    stamp_flush(a, True)
    a("s_endpgm")

def loader_pre(a):
    a("v_lshrrev_b32 v1, 3, v0\nv_and_b32 v2, 7, v0")
    a("v_lshrrev_b32 v3, 5, v0\nv_and_b32 v4, 2, v1\nv_or_b32 v3, v3, v4\nv_xor_b32 v3, v3, v2\nv_lshlrev_b32 v3, 4, v3\nv_lshl_add_u32 v10, v1, 10, v3\nv_xor_b32 v11, 64, v10")
    a("s_cmp_lt_u32 s3, 2\ns_cselect_b32 s70, 1, 0\ns_xor_b32 s71, s12, 1\ns_or_b32 s70, s70, s71")
    a("s_lshr_b32 s4, s3, 1\ns_lshl_b32 s4, s4, 6\ns_add_u32 s4, s4, s9\ns_lshl_b32 s4, s4, 1\ns_lshl_b32 s5, s11, 10")
    a("s_cmp_eq_u32 s70, 1\ns_cselect_b32 s80, s4, s5\ns_movk_i32 s81, 128\ns_movk_i32 s82, 8192\ns_movk_i32 s83, 1024\ns_cselect_b32 s81, 229376, s81\ns_cselect_b32 s82, 28672, s82\ns_cselect_b32 s83, 3584, s83\ns_cselect_b32 s84, 0, 64")
    a("s_mov_b32 s4, 524288\ns_cselect_b32 s58, 1835008, s4\ns_mov_b32 s59, 0x20000\ns_cselect_b64 vcc, -1, 0")
    a("v_bfe_u32 v3, v0, 4, 1\nv_lshlrev_b32 v3, 2, v3\nv_lshrrev_b32 v4, 4, v0\nv_cndmask_b32 v3, v4, v3, vcc")
    a("v_xor_b32 v3, v3, v2\nv_lshlrev_b32 v3, 4, v3\nv_mad_u32_u24 v12, v1, s83, v3\nv_xor_b32 v13, s84, v12")
    a("s_and_b32 s4, s3, 1\ns_lshl_b32 s4, s4, 2\nv_or_b32 v4, s4, v4\nv_xor_b32 v4, v4, v2\nv_lshlrev_b32 v4, 4, v4\nv_lshl_add_u32 v14, v1, 10, v4")
    a("s_and_b32 s4, s3, 1\ns_lshl_b32 s4, s4, 3\ns_add_u32 s4, s4, s10\ns_lshl_b32 s85, s4, 10")
    a("s_lshl_b32 s4, s6, 7\ns_lshl_b32 s5, s3, 5\ns_add_u32 s4, s4, s5\ns_lshl_b32 s86, s4, 10")
    a(f"s_lshl_b32 s87, s3, 12\ns_mul_i32 s88, s3, 24576\ns_add_u32 s88, s88, {BLK}\ns_lshl_b32 s89, s3, 10\ns_add_u32 s89, s89, {EXT}")
    a("s_mov_b32 s54, 2097152\ns_mov_b32 s55, 0x20000\ns_mov_b32 s62, 524288\ns_mov_b32 s63, 0x20000")

def loader(a):
    a("s_waitcnt lgkmcnt(0)")
    a("s_mov_b64 s[52:53], s[16:17]")
    a("s_bitcmp1_b32 s3, 0\ns_cselect_b64 s[72:73], s[38:39], s[36:37]\ns_cselect_b64 s[74:75], s[24:25], s[22:23]")
    a("s_cmp_eq_u32 s70, 1\ns_cselect_b64 s[56:57], s[72:73], s[74:75]")
    a("s_cmp_lt_u32 s3, 2\ns_cselect_b64 s[60:61], s[22:23], s[24:25]")
    def issue(s):
        slot = s % 3
        for i in range(4):
            a(f"s_add_u32 m0, s87, {XR + slot*16384 + i*1024}\ns_add_u32 s4, s86, {i*8192 + s*128}")
            a(f"buffer_load_dwordx4 v{10 + (i >> 1)}, s[52:55], s4 offen lds")
        a("s_mov_b32 s4, s80")
        for i in range(8):
            a(f"s_add_u32 m0, s88, {slot*8192 + i*1024}")
            if i: a("s_add_u32 s4, s4, s82")
            else: a("s_nop 0")
            a(f"buffer_load_dwordx4 v{12 + (i & 1)}, s[56:59], s4 offen lds")
        a("s_add_u32 s80, s80, s81")
        a(f"s_add_u32 m0, s89, {slot*4096}\ns_add_u32 s4, s85, {s*128}")
        a("buffer_load_dwordx4 v14, s[60:63], s4 offen lds")
    for s in range(3):
        issue(s)
        if s == 0: stamp(a, 14)
    stamp(a, 1)
    srd(a, 64, sWs, WS_USED)
    srd(a, 68, sGw, 1024); srd(a, 72, sLre, 1024); srd(a, 76, sLim, 1024); srd(a, 96, sLdt, 1024)
    a("s_lshl_b32 s4, s6, 7\ns_lshl_b32 s5, s13, 3\ns_add_u32 s4, s4, s5\ns_lshl_b32 s5, s3, 1\ns_add_u32 s15, s4, s5\ns_lshl_b32 s4, s15, 10")
    a("v_lshlrev_b32 v1, 4, v0")
    a("buffer_load_dwordx4 v[32:35], v1, s[52:55], s4 offen\nbuffer_load_dwordx4 v[36:39], v1, s[52:55], s4 offen offset:1024\nbuffer_load_dwordx4 v[40:43], v1, s[68:71], 0 offen")
    a("s_and_b32 s4, s3, 1\ns_lshl_b32 s4, s4, 6\nv_add_u32 v2, s4, v0\nv_add_u32 v3, s10, v2\ns_sub_u32 s5, s11, 16\nv_add_u32 v4, s5, v2")
    a("v_cmp_gt_u32 vcc, 16, v2\ns_nop 1\nv_cndmask_b32 v3, v4, v3, vcc\nv_lshlrev_b32 v3, 1, v3")
    a("buffer_load_ushort v44, v3, s[72:75], 0 offen\nbuffer_load_ushort v45, v3, s[76:79], 0 offen\nbuffer_load_ushort v46, v3, s[96:99], 0 offen")
    a("s_waitcnt vmcnt(32)")
    stamp(a, 2)
    a("s_barrier")
    a("s_waitcnt vmcnt(19)"); stamp(a, 9); a("s_barrier"); issue(3)
    a("s_waitcnt vmcnt(19)"); stamp(a, 10); a("s_barrier"); issue(4)
    a("s_waitcnt vmcnt(13)"); stamp(a, 11); a("s_barrier"); issue(5)
    a("v_lshlrev_b32 v44, 16, v44\nv_lshlrev_b32 v45, 16, v45\nv_lshlrev_b32 v46, 16, v46")
    a(f"v_mul_f32 v46, {LOG2E}, v46\nv_exp_f32 v46, v46\ns_nop 0")
    bf16_round(a, 46, 46, 47)
    a(f"v_mul_f32 v47, v46, v44\nv_mul_f32 v48, v46, v45")
    a(f"v_mul_f32 v47, {LOG2E}, v47\nv_exp_f32 v47, v47\nv_mul_f32 v48, {INV2PI}, v48\nv_rndne_f32 v49, v48\nv_sub_f32 v48, v48, v49")
    a("v_cos_f32 v49, v48\nv_sin_f32 v50, v48\ns_nop 0\nv_mul_f32 v52, v47, v49\nv_mul_f32 v53, v47, v50")
    a("v_mul_f32 v49, v44, v44\nv_fma_f32 v49, v45, v45, v49\nv_rcp_f32 v49, v49\nv_add_f32 v50, -1.0, v52")
    a("v_mul_f32 v54, v50, v44\nv_fma_f32 v54, v53, v45, v54\nv_mul_f32 v55, v53, v44\nv_fma_f32 v55, -v50, v45, v55")
    a("v_add_f32 v49, v49, v49\nv_mul_f32 v54, v54, v49\nv_mul_f32 v55, v55, v49")
    a("v_lshlrev_b32 v2, 4, v2\nv_cmp_gt_u32 vcc, 1280, v2\ns_and_saveexec_b64 s[78:79], vcc")
    a(f"ds_write_b128 v2, v[52:55] offset:{PARAM}")
    a("s_mov_b64 exec, s[78:79]")
    a("s_waitcnt vmcnt(13) lgkmcnt(0)"); stamp(a, 12); a("s_barrier"); issue(6)
    a("v_mov_b32 v4, 0\nv_mov_b32 v5, 0\ns_mov_b32 s4, 0xffff0000")
    for i in range(4):
        a(f"v_lshlrev_b32 v6, 16, v{40+i}\nv_and_b32 v7, s4, v{40+i}")
        for r in range(2):
            x = 32 + 4*r + i
            a(f"v_lshlrev_b32 v8, 16, v{x}\nv_and_b32 v9, s4, v{x}\nv_mul_f32 v8, v8, v6\nv_mul_f32 v9, v9, v7")
            a(f"v_cvt_pk_bf16_f32 v8, v8, v9\nv_lshlrev_b32 v9, 16, v8\nv_and_b32 v8, s4, v8\nv_add_f32 v{4+r}, v{4+r}, v9\nv_add_f32 v{4+r}, v{4+r}, v8")
    for off in [0x041F, 0x081F, 0x101F, 0x201F, 0x401F]:
        a(f"ds_swizzle_b32 v6, v4 offset:{off}\nds_swizzle_b32 v7, v5 offset:{off}\ns_waitcnt lgkmcnt(0)\nv_add_f32 v4, v4, v6\nv_add_f32 v5, v5, v7")
    a("s_nop 0\nv_readlane_b32 s4, v4, 32\nv_readlane_b32 s5, v5, 32\ns_nop 1\nv_add_f32 v4, s4, v4\nv_add_f32 v5, s5, v5")
    a("v_cmp_eq_u32 vcc, 1, v0\ns_nop 1\nv_cndmask_b32 v4, v4, v5, vcc")
    bf16_round(a, 4, 4, 5)
    a(f"v_mul_f32 v4, {NLOG2E}, v4\nv_exp_f32 v4, v4\ns_nop 0\nv_add_f32 v4, 1.0, v4\nv_rcp_f32 v4, v4\ns_nop 0")
    bf16_round(a, 4, 4, 5)
    a(f"s_lshl_b32 s4, s15, 2\ns_add_u32 s4, s4, {G_OFF}\nv_lshlrev_b32 v5, 2, v0\ns_mov_b64 exec, 3")
    a("buffer_store_dword v4, v5, s[64:67], s4 offen sc1\ns_mov_b64 exec, -1")
    a("s_waitcnt vmcnt(14)"); stamp(a, 13); a("s_barrier"); issue(7)
    p2_ids(a)
    l_a = a.lab()
    a(f"s_cmp_ge_u32 s3, 2\ns_cbranch_scc1 {l_a}")
    srd(a, 52, sWd, 1835008); srd(a, 56, sCre, 524288); srd(a, 60, sCim, 524288)
    a("s_lshl_b32 s81, s3, 12")
    a("s_lshl_b32 s4, s3, 15\ns_lshl_b32 s5, s85, 7\ns_add_u32 s82, s4, s5\ns_lshl_b32 s5, s85, 16\ns_add_u32 s83, s4, s5")
    a("v_lshrrev_b32 v1, 3, v0\nv_and_b32 v2, 7, v0")
    a("v_bfe_u32 v3, v0, 4, 1\nv_lshlrev_b32 v3, 2, v3\nv_xor_b32 v3, v3, v2\nv_lshlrev_b32 v3, 4, v3\nv_lshl_add_u32 v11, v1, 10, v3")
    a("v_lshrrev_b32 v3, 4, v0\nv_xor_b32 v3, v3, v2\nv_lshlrev_b32 v3, 4, v3\nv_lshl_add_u32 v12, v1, 10, v3\nv_xor_b32 v13, 64, v12")
    def issueB(s):
        base = page(BPAGES[s % NB2])
        for i in range(4):
            a(f"s_add_u32 m0, s81, {base + i*1024}")
            if s < 28:
                a(f"s_add_u32 s4, s82, {s*65536 + i*8192}\nbuffer_load_dwordx4 v11, s[52:55], s4 offen lds")
            else:
                t = s - 28
                a(f"s_add_u32 s4, s83, {(t >> 1)*128 + i*8192}\nbuffer_load_dwordx4 v{12+(i&1)}, s[{56 + 4*(t & 1)}:{59 + 4*(t & 1)}], s4 offen lds")
    a("s_waitcnt vmcnt(13)\ns_barrier")
    for s in range(6): issueB(s)
    a("s_waitcnt vmcnt(24)\ns_barrier")
    for s in range(6, NB2): issueB(s)
    a("s_barrier\ns_barrier")
    issued = NB2 - 1
    for s in range(44):
        a(f"s_waitcnt vmcnt({(issued - s)*4})\ns_barrier")
        if s >= 1 and s + NB2 - 1 <= 43:
            issueB(s + NB2 - 1); issued = s + NB2 - 1
    a("s_barrier")
    stamp_flush(a)
    a("s_endpgm")
    a.label(l_a)
    l_e = a.lab(); l_m = a.lab(); l_j = a.lab()
    a(f"s_cmp_eq_u32 s3, 2\ns_cbranch_scc1 {l_e}")
    a(f"s_cmp_eq_u32 s12, 1\ns_cbranch_scc1 {l_m}")
    a("s_waitcnt vmcnt(13)\ns_barrier\ns_waitcnt vmcnt(0)\ns_barrier\ns_barrier")
    a(f"v_mov_b32 v4, 0\nds_read_b32 v5, v4 offset:{NONCE}\ns_waitcnt lgkmcnt(0)\nv_readfirstlane_b32 s72, v5")
    a(f"s_branch {l_j}")
    a.label(l_e); combine(a, 16, 16, 3, AGE_RE, AGE_IM, 10, PARAM); a(f"s_branch {l_j}")
    a.label(l_m); combine(a, 8, 64, 4, AGM_RE, AGM_IM, 11, PARAM + 256)
    a.label(l_j)
    stamp(a, 6)
    a("s_barrier")
    a(f"s_lshr_b32 s4, s84, 1\ns_lshl_b32 s4, s4, 9\ns_add_u32 s86, s4, {FLG_OFF}\nv_lshlrev_b32 v9, 2, v0\nv_lshlrev_b32 v10, 4, v0")
    a("s_lshl_b32 s4, s84, 1\ns_add_u32 s4, s4, s3\ns_sub_u32 s4, s4, 2\ns_mul_i32 s4, s4, 176\ns_lshl_b32 s80, s4, 10")
    a("s_sub_u32 s4, s3, 2\ns_lshl_b32 s81, s4, 12")
    def poll(which, pre_issued=False):
        lp = a.lab(); ld = a.lab(); lc = a.lab()
        a("s_mov_b32 s88, 0x8000")
        if pre_issued: a(f"s_branch {lc}")
        a.label(lp)
        a(f"buffer_load_dword v8, v9, s[64:67], s86 offen offset:{which*256} sc1\ns_waitcnt vmcnt(0)")
        a.label(lc)
        a(f"v_cmp_ne_u32 vcc, s72, v8\ns_cmp_eq_u64 vcc, 0\ns_cbranch_scc1 {ld}")
        a(f"s_sub_u32 s88, s88, 1\ns_cmp_lg_u32 s88, 0\ns_cbranch_scc1 {lp}")
        a.label(ld)
    poll(0)
    stamp(a, 7)
    SC = " sc1" if OPT['sc1_a'] else ""
    def issueA(s):
        base = page(APAGES[s % NA2])
        for i in range(4):
            a(f"s_add_u32 m0, s81, {base + i*1024}\ns_add_u32 s4, s80, {s*4096 + i*1024}\nbuffer_load_dwordx4 v10, s[64:67], s4 offen{SC} lds")
    for s in range(NA2): issueA(s)
    ops = [('A', s) for s in range(NA2) for _ in range(4)]
    PS = 22
    for s in range(44):
        last = max(i for i, o in enumerate(ops) if o == ('A', s))
        a(f"s_waitcnt vmcnt({len(ops) - 1 - last})")
        if s == 0: stamp(a, 8)
        a("s_barrier")
        n = s + NA2 - 1
        if s >= 1 and n <= 43:
            if n == PS:
                a(f"buffer_load_dword v8, v9, s[64:67], s86 offen offset:256 sc1"); ops.append(('P', 0))
            if n == 28:
                assert s >= PS
                poll(1, pre_issued=True)
            issueA(n); ops += [('A', n)] * 4
    a("s_barrier")
    stamp_flush(a)
    a("s_endpgm")

def combine(a, nseg, nch, lg, are, aim, sch, pofs):
    a(f"s_add_u32 s68, s48, {AGG_OFF}\ns_addc_u32 s69, s49, 0\ns_mov_b32 s70, {AGG_SZ}\ns_mov_b32 s71, 0x20000")
    if nch < 64: a(f"s_mov_b64 exec, {(1 << nch) - 1}")
    a(f"v_lshlrev_b32 v1, 4, v0\nds_read_b64 v[2:3], v1 offset:{pofs}\ns_waitcnt lgkmcnt(0)")
    for i in range(7):
        a("v_mul_f32 v8, v3, v3\nv_mul_f32 v9, v2, v3\nv_fma_f32 v2, v2, v2, -v8\nv_add_f32 v3, v9, v9")
        if i == lg - 1: a("v_mov_b32 v6, v2\nv_mov_b32 v7, v3")
    a(f"s_lshl_b32 s4, s6, 9\ns_add_u32 s4, s4, s{sch}\ns_lshl_b32 s4, s4, 4\nv_add_u32 v20, s4, v1")
    for d in range(1, 16): a(f"v_subrev_u32 v{20+d}, {d*8192}, v20")
    a(f"v_lshlrev_b32 v1, 2, v0\nv_add_u32 v1, {EXT}, v1\nv_mov_b32 v4, 0")
    a("s_waitcnt vmcnt(13)\ns_barrier\ns_waitcnt vmcnt(0)\ns_barrier")
    a("s_barrier")
    stamp(a, 3)
    AR, AI = 40, 56
    a(f"ds_read_b32 v5, v4 offset:{NONCE}")
    for sg in range(nseg):
        a(f"ds_read_b32 v{AR+sg}, v1 offset:{are - EXT + sg*nch*4}\nds_read_b32 v{AI+sg}, v1 offset:{aim - EXT + sg*nch*4}")
    a("s_waitcnt lgkmcnt(0)\nv_mov_b32 v11, v5\nv_mov_b32 v13, v5\nv_readfirstlane_b32 s72, v5")
    a(f"v_mov_b32 v10, v{AR}\nv_mov_b32 v12, v{AI}")
    for sg in range(1, nseg):
        a(f"v_fma_f32 v8, v10, v6, v{AR+sg}\nv_fma_f32 v9, v12, v6, v{AI+sg}\nv_fma_f32 v8, -v12, v7, v8\nv_fma_f32 v12, v10, v7, v9\nv_mov_b32 v10, v8")
    a("buffer_store_dwordx4 v[10:13], v20, s[68:71], 0 offen sc1")
    stamp(a, 4)
    for d in range(1, 16): a(f"s_cmp_ge_u32 s6, {d}\ns_cselect_b32 s{72+d}, s72, 0")
    lp = a.lab(); ld = a.lab()
    a("s_mov_b32 s88, 0x8000")
    a.label(lp)
    E = 80
    for d in range(1, 16): a(f"buffer_load_dwordx4 {vr(E+4*d,4)}, v{20+d}, s[68:71], 0 offen sc1")
    a("s_mov_b64 s[4:5], 0\ns_waitcnt vmcnt(0)")
    for d in range(1, 16):
        a(f"v_cmp_ne_u32 vcc, s{72+d}, v{E+4*d+1}\ns_or_b64 s[4:5], s[4:5], vcc\nv_cmp_ne_u32 vcc, s{72+d}, v{E+4*d+3}\ns_or_b64 s[4:5], s[4:5], vcc")
    a(f"s_cmp_eq_u64 s[4:5], 0\ns_cbranch_scc1 {ld}")
    a(f"s_sub_u32 s88, s88, 1\ns_cmp_lg_u32 s88, 0\ns_cbranch_scc1 {lp}")
    a.label(ld)
    stamp(a, 5)
    a(f"v_mov_b32 v10, v{E+60}\nv_mov_b32 v12, v{E+62}")
    for d in range(14, 0, -1):
        a(f"v_fma_f32 v8, v10, v2, v{E+4*d}\nv_fma_f32 v9, v12, v2, v{E+4*d+2}\nv_fma_f32 v8, -v12, v3, v8\nv_fma_f32 v12, v10, v3, v9\nv_mov_b32 v10, v8")
    for sg in range(nseg):
        a(f"ds_write_b32 v1, v10 offset:{are - EXT + sg*nch*4}\nds_write_b32 v1, v12 offset:{aim - EXT + sg*nch*4}")
        if sg < nseg - 1:
            a(f"v_fma_f32 v8, v10, v6, v{AR+sg}\nv_fma_f32 v9, v12, v6, v{AI+sg}\nv_fma_f32 v8, -v12, v7, v8\nv_fma_f32 v12, v10, v7, v9\nv_mov_b32 v10, v8")
    a("s_mov_b64 exec, -1\ns_waitcnt lgkmcnt(0)")
    p2_ids(a)

def kernel(a, name):
    a(f".p2align 8\n.globl {name}\n.type {name},@function")
    a.label(name)
    l_end = a.lab(); l_c = a.lab(); l_s = a.lab(); l_p2 = a.lab()
    a("s_getpc_b64 s[90:91]")
    a(f"s_cmp_ge_u32 s2, 256\ns_cbranch_scc1 {l_end}")
    a("s_load_dwordx16 s[16:31], s[0:1], 0\ns_load_dwordx16 s[32:47], s[0:1], 64\ns_load_dwordx2 s[48:49], s[0:1], 128")
    a("v_lshrrev_b32 v1, 6, v0\nv_and_b32 v0, 63, v0\nv_readfirstlane_b32 s3, v1")
    a("s_and_b32 s4, s2, 7\ns_lshr_b32 s5, s2, 3")
    a("s_and_b32 s6, s4, 1\ns_lshl_b32 s6, s6, 3\ns_lshr_b32 s7, s5, 2\ns_add_u32 s6, s6, s7")
    a("s_and_b32 s7, s5, 3\ns_lshr_b32 s8, s4, 1")
    a("s_mul_i32 s9, s8, 448\ns_lshl_b32 s4, s7, 7\ns_add_u32 s9, s9, s4")
    a("s_lshl_b32 s11, s8, 7\ns_lshl_b32 s4, s7, 4\ns_add_u32 s10, s11, s4\ns_add_u32 s11, s11, 64")
    a("s_cmp_eq_u32 s7, 3\ns_cselect_b32 s12, 1, 0\ns_lshl_b32 s13, s8, 2\ns_add_u32 s13, s13, s7")
    if STAMP: a("s_mov_b32 s95, s3")
    a(f"s_cmp_lt_u32 s3, 4\ns_cbranch_scc1 {l_c}")
    a("s_sub_u32 s3, s3, 4")
    loader_pre(a)
    if STAMP: a("s_waitcnt lgkmcnt(0)")
    stamp(a, 0)
    loader(a)
    a.label(l_c)
    a("s_waitcnt lgkmcnt(0)")
    stamp(a, 0)
    p1_consumer_prologue(a, "L_code_end")
    a(f"s_and_b32 s4, s3, s12\ns_cmp_eq_u32 s4, 1\ns_cbranch_scc1 {l_s}")
    p1_addr_main(a, 'G'); p1_consumer_loop(a, 'G'); p1_epilogue(a, 'G')
    a(f"s_branch {l_p2}")
    a.label(l_s)
    p1_addr_main(a, 'S'); p1_consumer_loop(a, 'S'); p1_epilogue(a, 'S')
    a.label(l_p2)
    p2_consumer(a)
    a.label(l_end)
    a("s_endpgm")
    a.label("L_code_end")
    a("s_endpgm")

def desc(name, nv=256):
    return f""".p2align 6
.amdhsa_kernel {name}
  .amdhsa_next_free_vgpr {nv}
  .amdhsa_next_free_sgpr 102
  .amdhsa_accum_offset {nv}
  .amdhsa_group_segment_fixed_size 0
  .amdhsa_kernarg_size 136
  .amdhsa_user_sgpr_count 2
  .amdhsa_user_sgpr_kernarg_segment_ptr 1
  .amdhsa_system_sgpr_workgroup_id_x 1
.end_amdhsa_kernel
"""

def main(out):
    a = Asm()
    n1 = NAME + "_kernel"
    kernel(a, n1)
    txt = HDR
    txt += f"; @launch grid=(256,1,1) block=(512,1,1) lds={LDS1}\n"
    txt += '.amdgcn_target "amdgcn-amd-amdhsa--gfx950"\n.text\n' + a.text()
    txt += '.section .rodata,"a"\n' + desc(n1)
    open(out, "w").write(txt)

if __name__ == "__main__":
    args = sys.argv[1:]
    if "-stamp" in args: STAMP = True; args.remove("-stamp")
    for x in list(args):
        if "=" in x:
            k, v = x.split("="); OPT[k] = int(v); args.remove(x)
    main(args[0] if args else f"cdna_kernels/{NAME}.s")
```

```python
import sys

NAME = "gated_mix__ssm_conv_s5__glu_gated_glu__prompt"
HDR = open("cdna_kernels/%s.s.ref" % NAME).read().split("; Override launch")[0]

G_OFF = 0xB00000
AGG_OFF = 0xB10000
AGG_SZ = 16 * 512 * 16
FLG_OFF = 0xB30000
WS_USED = 0xB40000
NPF = 7
LOG2E = 0x3fb8aa3b
NLOG2E = 0xbfb8aa3b
INV2PI = 0x3e22f983
OPT = dict(sc1_a=1, touch1=1, touch2=1, cpf=1, per1=2, per2=3, KH=10, NSTG=7, prio=3, i2=6, LA=4, TH=6, PRE=8, PRE2=14, PRE3=8, fine=0, touchA=0, noA=0, noW=0, noS=0, noR=0, KF=1)

class Asm:
    def __init__(s): s.l = []; s.uid = 0
    def __call__(s, t):
        for x in t.strip("\n").split("\n"): s.l.append("    " + x.strip())
    def label(s, n): s.l.append(n + ":")
    def lab(s, p="L"):
        s.uid += 1; return f"{p}_{s.uid}"
    def text(s): return "\n".join(s.l) + "\n"

def vr(b, n): return f"v[{b}:{b+n-1}]" if n > 1 else f"v{b}"
def R(b, n): return list(range(b, b+n))
def srd(a, d, lo, size):
    a(f"s_mov_b32 s{d}, s{lo}\ns_mov_b32 s{d+1}, s{lo+1}\ns_mov_b32 s{d+2}, {size}\ns_mov_b32 s{d+3}, 0x20000")

sX, sLre, sLim, sBre, sBim, sCre, sCim, sLdt = 16, 18, 20, 22, 24, 26, 28, 30
sDsk, sBx, sWg, sWu, sWd, sGw, sOut, sDbg, sWs = 32, 34, 36, 38, 40, 42, 44, 46, 48

STAMP = False
TS_OFF = 0xB40000
def stamp(a, idx):
    if not STAMP: return
    a(f"s_memrealtime s[100:101]\ns_waitcnt lgkmcnt(0)\nv_writelane_b32 v31, s100, {idx}")
def cstamp(a, idx):
    if not STAMP: return
    a(f"s_memtime s[100:101]\ns_waitcnt lgkmcnt(0)\nv_writelane_b32 v31, s100, {idx}")
def stamp_flush(a):
    if not STAMP: return
    srd(a, 96, sWs, 0xC00000)
    a(f"s_lshl_b32 s94, s2, 3\ns_add_u32 s94, s94, s93\ns_lshl_b32 s94, s94, 8\ns_add_u32 s94, s94, {TS_OFF}")
    a("s_mov_b64 exec, -1\nv_lshlrev_b32 v30, 2, v0\nbuffer_store_dword v31, v30, s[96:99], s94 offen")

def bf16_round(a, d, s, t):
    a(f"v_cvt_pk_bf16_f32 v{t}, v{s}, v{s}\nv_lshlrev_b32 v{d}, 16, v{t}")

class Sched:
    def __init__(s, a): s.a = a; s.n = 0; s.prod = {}; s.done = -1
    def read(s, ins, regs):
        s.a(ins)
        for r in regs: s.prod[r] = s.n
        s.n += 1
    def need(s, regs):
        k = max([s.prod.get(r, -1) for r in regs] + [-1])
        if k > s.done:
            s.a(f"s_waitcnt lgkmcnt({min(s.n - 1 - k, 15)})")
            s.done = k if s.n - 1 - k <= 15 else s.n - 16
    def all(s):
        if s.done < s.n - 1: s.a("s_waitcnt lgkmcnt(0)")
        s.done = s.n - 1

class VM:
    def __init__(s, a): s.a = a; s.ops = []; s.done = -1
    def op(s, ins, tag):
        if len(s.ops) - 1 - s.done >= 62:
            s.a("s_waitcnt vmcnt(56)"); s.done = len(s.ops) - 1 - 56
        s.a(ins); s.ops.append(tag)
    def wait(s, *tags, extra=""):
        k = max([i for i, t in enumerate(s.ops) if t in tags] + [-1])
        if k > s.done:
            n = min(len(s.ops) - 1 - k, 63)
            s.a(f"s_waitcnt vmcnt({n}){extra}")
            s.done = len(s.ops) - 1 - n
        elif extra: s.a("s_waitcnt" + extra)
    def copy(s):
        v = VM(s.a); v.ops = list(s.ops); v.done = s.done; return v

PARAM = 0; NONCE = 2048; XR = 4096; BLK = XR + 49152; EXT = XR + 147456
AGE_RE = EXT; AGE_IM = EXT + 1024; AGM_RE = EXT + 2048; AGM_IM = EXT + 8192; TSE = EXT + 4096
LDS1 = 163840
def page(p): return XR + p*8192
P2SET = [4, 5, 8, 11, 14, 17]; P0SET = [0, 1, 6, 9, 12, 15]; P1SET = [2, 3, 7, 10, 13, 16]
SPAGES = [12, 15]
NBD = 10

NB0 = 10
NB1 = 16
OWN = [0, 1, 3, 2]
def p2_schedule():
    Bp = {}
    for s, p in enumerate(P2SET + [0, 1, 6, 9] + P1SET): Bp[s] = p
    free = []
    Bwr = {k: [] for k in range(22)}
    for k in range(22):
        if k == 0: free += SPAGES
        elif k >= 2: free += [Bp[2*k-4], Bp[2*k-3]]
        p = k + OPT['LA']
        if 2*p >= NB1 and p <= 21:
            for s in (2*p, 2*p+1):
                Bp[s] = free.pop(0); Bwr[k].append((s, 0)); Bwr[k+1].append((s, 1))
    assert len(Bp) == 44
    return Bp, Bwr

vXa = 16; vWa = 20; vXe = 24; vEa = 28; vWt = 30
ACC = 32; ACE = 160; FR = [176, 200]; FE = 224
def acc(w, m): return ACC + (w * 2 + m) * 16
def ace(comp, m): return ACE + (comp * 2 + m) * 4

def reads_main(kind, slot, kk, st):
    b = FR[st]; xs = 4096 if kind == 'G' else 1024
    def xr(m): return [(f"ds_read_b128 {vr(b+4*m,4)}, v{vXa+kk} offset:{XR + slot*16384 + m*xs}", R(b+4*m, 4))]
    def tr(d, va, off):
        return [(f"ds_read_b64_tr_b16 {vr(d,2)}, v{va} offset:{off}", R(d, 2)),
                (f"ds_read_b64_tr_b16 {vr(d+2,2)}, v{va} offset:{off+512}", R(d+2, 2))]
    def wr(w):
        d = b + 8 + 4*w
        if kind == 'G': return tr(d, vWa + (w & 1), (w >> 1)*24576 + slot*8192 + kk*2048)
        if w < 2: return tr(d, vWt, w*24576 + slot*8192 + kk*2048)
        return [(f"ds_read_b128 {vr(d,4)}, v{vWa+kk} offset:{(w-2)*24576 + slot*8192}", R(d, 4))]
    return xr(0) + wr(0) + xr(1) + wr(1) + wr(2) + wr(3)

def reads_ext(slot, k32):
    r = []
    for m in range(2): r.append((f"ds_read_b128 {vr(FE+4*m,4)}, v{vXe+2*m+k32} offset:{XR + slot*16384}", R(FE+4*m, 4)))
    for cp in range(2): r.append((f"ds_read_b128 {vr(FE+8+4*cp,4)}, v{vEa+k32} offset:{slot*4096+cp*2048}", R(FE+8+4*cp, 4)))
    return r

def mfma_main(kind, st, first):
    r = []; b = FR[st]
    for w in range(4):
        for m in range(2):
            d = vr(acc(w, m), 16); X = vr(b+4*m, 4); W = vr(b+8+4*w, 4)
            c = "0" if first else d
            glu = kind == 'G' or w < 2
            ins = f"v_mfma_f32_32x32x16_bf16 {d}, {W}, {X}, {c}" if glu else f"v_mfma_f32_32x32x16_bf16 {d}, {X}, {W}, {c}"
            r.append((ins, R(b+4*m, 4) + R(b+8+4*w, 4)))
    return r

def mfma_ext(first):
    r = []
    for cp in range(2):
        for m in range(2):
            d = vr(ace(cp, m), 4)
            r.append((f"v_mfma_f32_16x16x32_bf16 {d}, {vr(FE+4*m,4)}, {vr(FE+8+4*cp,4)}, {'0' if first else d}", R(FE+4*m, 4) + R(FE+8+4*cp, 4)))
    return r

def interleave(a, S, mf, rd, per=3, extra=None):
    rd = list(rd); extra = list(extra or [])
    for (ins, regs) in mf:
        S.need(regs); a(ins)
        if rd:
            for _ in range(per):
                if rd: S.read(*rd.pop(0))
        elif extra: a(extra.pop(0))
    for x in rd: S.read(*x)
    for x in extra: a(x)

def p1_consumer_loop(a, kind):
    S = Sched(a)
    stamp(a, 1)
    a("s_barrier")
    stamp(a, 2); cstamp(a, 56)
    for x in reads_main(kind, 0, 0, 0): S.read(*x)
    for s in range(8):
        slot = s % 3
        for kk in range(4):
            st = kk & 1
            rd = []
            if kk == 3:
                if s < 7:
                    S.all()
                    if OPT['fine']: stamp(a, 16+2*s)
                    a("s_barrier")
                    if OPT['fine']: stamp(a, 17+2*s)
                    rd = reads_main(kind, (s+1) % 3, 0, 0)
            else:
                rd = reads_main(kind, slot, kk+1, st ^ 1)
            if kk in (0, 2): rd = rd + reads_ext(slot, kk >> 1)
            mf = mfma_main(kind, st, s == 0 and kk == 0)
            if kk in (1, 3):
                mf = mf[:4] + mfma_ext(s == 0 and kk == 1) + mf[4:]
            interleave(a, S, mf, rd, per=OPT['per1'])
        if s == 3: stamp(a, 3); cstamp(a, 57)
    stamp(a, 4); cstamp(a, 58)

def cmul_pk(a, Rr, I, C, t1, t2):
    a(f"v_pk_mul_f32 {vr(t1,2)}, {vr(Rr,2)}, {vr(C,2)} op_sel:[0,0] op_sel_hi:[1,0]")
    a(f"v_pk_mul_f32 {vr(t2,2)}, {vr(Rr,2)}, {vr(C,2)} op_sel:[0,1] op_sel_hi:[1,1] neg_lo:[0,1] neg_hi:[0,1]")
    a(f"v_pk_fma_f32 {vr(Rr,2)}, {vr(I,2)}, {vr(C,2)}, {vr(t1,2)} op_sel:[0,1,0] op_sel_hi:[1,1,1] neg_lo:[0,1,0] neg_hi:[0,1,0]")
    a(f"v_pk_fma_f32 {vr(I,2)}, {vr(I,2)}, {vr(C,2)}, {vr(t2,2)} op_sel:[0,0,0] op_sel_hi:[1,0,1] neg_lo:[0,1,0] neg_hi:[0,1,0]")

def cmul_s(a, Rr, I, cr, ci, t1, t2):
    a(f"v_mul_f32 v{t1}, v{Rr}, v{cr}\nv_mul_f32 v{t2}, v{Rr}, v{ci}")
    a(f"v_fma_f32 v{Rr}, -v{I}, v{ci}, v{t1}\nv_fma_f32 v{I}, -v{I}, v{cr}, -v{t2}")

def flag_store(a, which):
    a(f"v_mov_b32 v1, s15\nv_mov_b32 v2, 0\ns_mov_b64 exec, 1\nbuffer_store_dword v1, v2, s[64:67], s81 offen offset:{which*256} sc1\ns_mov_b64 exec, -1")

def merge(l1, l2):
    o = []; i = j = 0
    while i < len(l1) or j < len(l2):
        if j >= len(l2) or (i < len(l1) and i * len(l2) <= j * len(l1)): o.append(l1[i]); i += 1
        else: o.append(l2[j]); j += 1
    return o

def p1_epilogue(a, kind):
    M = kind == 'M'
    PE = 176; PM = 180
    a(f"v_and_b32 v1, 15, v0\nv_lshlrev_b32 v1, 4, v1\nds_read_b128 {vr(PE,4)}, v1 offset:{PARAM}")
    if M:
        a(f"v_and_b32 v2, 31, v0\nv_lshlrev_b32 v2, 4, v2\ns_and_b32 s4, s3, 1\ns_lshl_b32 s4, s4, 9\nv_add_u32 v2, s4, v2")
        a(f"ds_read_b128 {vr(PM,4)}, v2 offset:{PARAM + 256}")
    l = a.lab()
    a(f"s_cmp_lg_u32 s3, 0\ns_cbranch_scc1 {l}")
    a("s_waitcnt vmcnt(0)\nv_mov_b32 v13, s14\nv_cmp_eq_u32 vcc, 0, v10\ns_mov_b64 exec, 1\nv_mov_b32 v12, 0\nv_cndmask_b32 v10, v10, v13, vcc")
    a(f"ds_write_b32 v12, v10 offset:{NONCE}\ns_mov_b64 exec, -1")
    a.label(l)
    a(f"s_lshl_b32 s4, s3, 8\ns_add_u32 s4, s4, {EXT}\nv_lshlrev_b32 v5, 2, v0\nv_add_u32 v5, s4, v5")
    if M:
        a(f"v_lshrrev_b32 v3, 5, v0\nv_lshlrev_b32 v3, 9, v3\nv_lshrrev_b32 v4, 2, v2\nv_add_u32 v3, v3, v4")
        a(f"s_lshr_b32 s4, s3, 1\ns_lshl_b32 s4, s4, 10\ns_add_u32 s4, s4, {EXT}\nv_add_u32 v3, s4, v3")
    a("s_nop 7\ns_waitcnt lgkmcnt(0)")
    lr, li = PE, PE+1
    l1 = []; l2 = []
    if M:
        S = [188, 190]; T = [196, 198]; L = vr(PM, 2)
        for pos in range(1, 16):
            m, rr = pos >> 3, (pos & 7) * 2
            Rr = vr(acc(2, m) + rr, 2); I = vr(acc(3, m) + rr, 2)
            if pos == 1: pr, pi = vr(acc(2, 0), 2), vr(acc(3, 0), 2)
            else:
                src = S if (pos & 1) else T
                pr, pi = vr(src[0], 2), vr(src[1], 2)
            dst = T if (pos & 1) else S
            dr, di = vr(dst[0], 2), vr(dst[1], 2)
            l1.append(f"v_pk_fma_f32 {dr}, {pr}, {L}, {Rr} op_sel:[0,0,0] op_sel_hi:[1,0,1]")
            l1.append(f"v_pk_fma_f32 {di}, {pi}, {L}, {I} op_sel:[0,0,0] op_sel_hi:[1,0,1]")
            l1.append(f"v_pk_fma_f32 {dr}, {pi}, {L}, {dr} op_sel:[0,1,0] op_sel_hi:[1,1,1] neg_lo:[0,1,0] neg_hi:[0,1,0]")
            l1.append(f"v_pk_fma_f32 {di}, {pr}, {L}, {di} op_sel:[0,1,0] op_sel_hi:[1,1,1]")
        for par in range(2):
            l1.append(f"ds_write_b32 v3, v{T[0]+par} offset:{AGM_RE - EXT + par*256}")
            l1.append(f"ds_write_b32 v3, v{T[1]+par} offset:{AGM_IM - EXT + par*256}")
    S = [204, 205]; T = [206, 207]
    for pos in range(1, 8):
        Rr = ace(0, pos >> 2) + (pos & 3); I = ace(1, pos >> 2) + (pos & 3)
        if pos == 1: pr, pi = ace(0, 0), ace(1, 0)
        else: pr, pi = (S if (pos & 1) else T)
        dr, di = (T if (pos & 1) else S)
        l2 += [f"v_fma_f32 v{dr}, v{pr}, v{lr}, v{Rr}", f"v_fma_f32 v{di}, v{pi}, v{lr}, v{I}",
               f"v_fma_f32 v{dr}, -v{pi}, v{li}, v{dr}", f"v_fma_f32 v{di}, v{pr}, v{li}, v{di}"]
    l2 += [f"ds_write_b32 v5, v{T[0]} offset:{AGE_RE - EXT}", f"ds_write_b32 v5, v{T[1]} offset:{AGE_IM - EXT}"]
    for x in merge(l1, l2): a(x)
    a("s_waitcnt lgkmcnt(0)")
    stamp(a, 5)
    a("s_barrier")
    a(f"v_mov_b32 v1, 0\nds_read_b32 v1, v1 offset:{NONCE}\nv_lshlrev_b32 v6, 4, v0")
    a(f"s_lshl_b32 s81, s6, 9\ns_lshl_b32 s4, s13, 4\ns_add_u32 s81, s81, s4\ns_lshl_b32 s4, s3, 2\ns_add_u32 s81, s81, s4\ns_add_u32 s81, s81, {FLG_OFF}")
    a("s_lshr_b32 s4, s3, 1\ns_lshl_b32 s4, s4, 1\ns_lshl_b32 s5, s6, 2\ns_add_u32 s4, s4, s5\ns_mul_i32 s82, s4, 176")
    a(f"s_and_b32 s5, s3, 1\ns_lshl_b32 s5, s5, {1 if M else 2}\ns_add_u32 s4, s82, s5\ns_lshr_b32 s5, s9, 4\ns_add_u32 s4, s4, s5\ns_lshl_b32 s14, s4, 10")
    a(f"s_mov_b32 s50, {NLOG2E}\ns_mov_b32 s51, {NLOG2E}")
    if M:
        a("v_and_b32 v7, 1, v0\nv_lshlrev_b32 v7, 4, v7\nv_bfe_u32 v8, v0, 3, 2\nv_lshl_or_b32 v7, v8, 1, v7\nv_bfe_u32 v8, v0, 1, 1\nv_or_b32 v7, v7, v8")
        a("v_and_b32 v8, 32, v0\nv_or_b32 v7, v7, v8\nv_lshlrev_b32 v7, 4, v7\nv_bfe_u32 v8, v0, 2, 1\ns_mov_b32 s4, 180224\nv_mad_u32_u24 v4, v8, s4, v7")
        tiles = [(acc(0, m), acc(1, m), half, half*1024, m*128, 4) for m in range(2) for half in range(2)]
    else:
        tiles = [(acc(fh, m), acc(2+fh, m), half, (m*176 + 2*fh + half)*1024, 0, 6) for fh in range(2) for m in range(2) for half in range(2)]
    for k, (g, u, half, off, imm, va) in enumerate(tiles):
        E = 208 + (k & 1) * 8; P = 224 + (k & 3) * 4
        gb, ub = g + 8*half, u + 8*half
        for i in range(0, 8, 2): a(f"v_pk_mul_f32 {vr(E+i,2)}, {vr(gb+i,2)}, s[50:51]")
        for i in range(8): a(f"v_exp_f32 v{E+i}, v{E+i}")
        for i in range(0, 8, 2): a(f"v_pk_add_f32 {vr(E+i,2)}, {vr(E+i,2)}, 1.0 op_sel_hi:[1,0]")
        for i in range(8): a(f"v_rcp_f32 v{E+i}, v{E+i}")
        for i in range(0, 8, 2): a(f"v_pk_mul_f32 {vr(E+i,2)}, {vr(E+i,2)}, {vr(ub+i,2)}")
        for i in range(0, 8, 2): a(f"v_cvt_pk_bf16_f32 v{P+i//2}, v{E+i}, v{E+i+1}")
        a(f"s_add_u32 s5, s14, {off}")
        a(f"buffer_store_dwordx4 {vr(P,4)}, v{va}, s[64:67], s5 offen offset:{imm} sc1")
    a("s_waitcnt lgkmcnt(0)\nv_readfirstlane_b32 s15, v1")
    for m in range(2):
        for i in range(4):
            cmul_s(a, ace(0, m)+i, ace(1, m)+i, PE+2, PE+3, 8 + (i & 1)*2, 9 + (i & 1)*2)
    a(f"s_lshl_b32 s4, s3, 10\ns_add_u32 s4, s4, {TSE}")
    a("v_and_b32 v7, 15, v0\nv_lshlrev_b32 v7, 6, v7\nv_lshrrev_b32 v8, 4, v0\nv_lshl_add_u32 v7, v8, 4, v7\nv_add_u32 v7, s4, v7")
    a("v_lshrrev_b32 v9, 5, v0\nv_lshlrev_b32 v9, 3, v9\nv_bfe_u32 v10, v0, 2, 2\nv_add_u32 v9, v9, v10")
    a("v_bfe_u32 v10, v0, 4, 1\nv_lshlrev_b32 v10, 5, v10\nv_and_b32 v11, 3, v0\nv_lshl_add_u32 v10, v11, 3, v10")
    a("v_lshl_add_u32 v8, v9, 6, v10\nv_add_u32 v8, s4, v8")
    a("s_waitcnt vmcnt(0)")
    flag_store(a, 0)
    if M:
        for m in range(2):
            for rr in range(0, 16, 2):
                t = 208 + ((rr >> 1) & 3) * 4
                cmul_pk(a, acc(2, m)+rr, acc(3, m)+rr, PM+2, t, t+2)
        a(f"s_mov_b32 s4, {page(SPAGES[0])}\ns_cmp_ge_u32 s3, 2\ns_cselect_b32 s4, {page(SPAGES[1])}, s4\ns_and_b32 s5, s3, 1\ns_lshl_b32 s5, s5, 12\ns_add_u32 s4, s4, s5")
        a("v_and_b32 v11, 1, v0\nv_bfe_u32 v12, v0, 2, 1\nv_lshl_or_b32 v11, v12, 1, v11\nv_bfe_u32 v12, v0, 1, 1\nv_lshl_or_b32 v11, v12, 2, v11")
        a("v_lshrrev_b32 v12, 5, v0\nv_lshlrev_b32 v12, 2, v12\nv_xor_b32 v11, v11, v12\nv_lshlrev_b32 v11, 4, v11")
        a("v_and_b32 v12, 31, v0\nv_lshl_add_u32 v16, v12, 7, v11\nv_add_u32 v16, s4, v16")
        for i in range(1, 4): a(f"v_xor_b32 v{16+i}, {i*16}, v16")
        a("v_bfe_u32 v11, v0, 2, 1\nv_bfe_u32 v12, v0, 3, 1\nv_lshl_or_b32 v11, v12, 2, v11\nv_lshlrev_b32 v11, 4, v11\nv_xor_b32 v11, v11, v10")
        a("v_lshl_add_u32 v20, v9, 7, v11\nv_add_u32 v20, s4, v20")
        a("v_xor_b32 v21, 32, v20\nv_add_u32 v21, 512, v21")
        a("v_xor_b32 v22, 64, v20\nv_xor_b32 v23, 64, v21")
        a("s_lshl_b32 s5, s8, 4\ns_add_u32 s4, s82, s5\ns_add_u32 s4, s4, 120\ns_and_b32 s5, s3, 1\ns_lshl_b32 s5, s5, 1\ns_add_u32 s4, s4, s5\ns_lshl_b32 s14, s4, 10")
    a("s_lshl_b32 s4, s6, 2\ns_add_u32 s4, s4, s3\ns_mul_i32 s4, s4, 176\ns_lshl_b32 s5, s8, 4\ns_add_u32 s4, s4, s5\ns_add_u32 s4, s4, s7\ns_add_u32 s4, s4, 112\ns_lshl_b32 s82, s4, 10")
    a("s_add_u32 s83, s82, 4096")
    stamp(a, 6); cstamp(a, 61)
    a("s_barrier")
    stamp(a, 7)
    IE = 208; IM = [212, 214]
    a(f"ds_read_b32 v{IE}, v5 offset:{AGE_RE - EXT}\nds_read_b32 v{IE+1}, v5 offset:{AGE_IM - EXT}")
    if M:
        for par in range(2):
            a(f"ds_read_b32 v{IM[0]+par}, v3 offset:{AGM_RE - EXT + par*256}")
            a(f"ds_read_b32 v{IM[1]+par}, v3 offset:{AGM_IM - EXT + par*256}")
    a("s_waitcnt lgkmcnt(0)")
    cmul_s(a, IE, IE+1, PE+2, PE+3, 220, 221)
    if M: cmul_pk(a, IM[0], IM[1], PM+2, 216, 218)
    l1 = []; l2 = []
    for pos in range(8):
        Rr = ace(0, pos >> 2) + (pos & 3); I = ace(1, pos >> 2) + (pos & 3)
        if pos == 0: pr, pi = IE, IE+1
        else: pr, pi = ace(0, (pos-1) >> 2) + ((pos-1) & 3), ace(1, (pos-1) >> 2) + ((pos-1) & 3)
        l2 += [f"v_fma_f32 v{Rr}, v{pr}, v{lr}, v{Rr}", f"v_fma_f32 v{I}, v{pi}, v{lr}, v{I}",
               f"v_fma_f32 v{Rr}, v{pi}, v{li}, v{Rr}", f"v_fma_f32 v{I}, -v{pr}, v{li}, v{I}"]
    for cp in range(2):
        for d in range(4):
            b = ace(cp, d >> 1) + (d & 1)*2
            l2.append(f"v_cvt_pk_bf16_f32 v{224+4*cp+d}, v{b}, v{b+1}")
    for cp in range(2):
        l2 += [f"ds_write_b128 v7, {vr(224+4*cp,4)}", f"ds_read_b64_tr_b16 {vr(232+4*cp,2)}, v8", f"ds_read_b64_tr_b16 {vr(234+4*cp,2)}, v8 offset:256"]
    if M:
        L = vr(PM, 2)
        for pos in range(16):
            m, rr = pos >> 3, (pos & 7) * 2
            Rr = vr(acc(2, m) + rr, 2); I = vr(acc(3, m) + rr, 2)
            if pos == 0: pr, pi = vr(IM[0], 2), vr(IM[1], 2)
            else:
                pm, prr = (pos-1) >> 3, ((pos-1) & 7) * 2
                pr, pi = vr(acc(2, pm)+prr, 2), vr(acc(3, pm)+prr, 2)
            l1.append(f"v_pk_fma_f32 {Rr}, {pr}, {L}, {Rr} op_sel:[0,0,0] op_sel_hi:[1,0,1]")
            l1.append(f"v_pk_fma_f32 {I}, {pi}, {L}, {I} op_sel:[0,0,0] op_sel_hi:[1,0,1]")
            l1.append(f"v_pk_fma_f32 {Rr}, {pi}, {L}, {Rr} op_sel:[0,1,0] op_sel_hi:[1,1,1]")
            l1.append(f"v_pk_fma_f32 {I}, {pr}, {L}, {I} op_sel:[0,1,0] op_sel_hi:[1,1,1] neg_lo:[0,1,0] neg_hi:[0,1,0]")
    for x in merge(l1, l2): a(x)
    a("s_waitcnt lgkmcnt(0)")
    a(f"buffer_store_dwordx4 {vr(232,4)}, v6, s[64:67], s82 offen sc1")
    a(f"buffer_store_dwordx4 {vr(236,4)}, v6, s[64:67], s83 offen sc1")
    if M:
        for comp in range(2):
            PB = ACC + comp*16; FB = ACC + 32 + comp*16
            k = 0
            for par in range(2):
                for m in range(2):
                    b = acc(2 + comp, m); P = PB + 4*k
                    for aa in range(4): a(f"v_cvt_pk_bf16_f32 v{P+aa}, v{b+4*aa+par}, v{b+4*aa+2+par}")
                    a(f"ds_write_b128 v{16+2*par+m}, {vr(P,4)}")
                    k += 1
            k = 0
            for mt in range(2):
                for u in range(2):
                    d = FB + 4*k
                    a(f"ds_read_b64_tr_b16 {vr(d,2)}, v{20+2*mt} offset:{u*2048}")
                    a(f"ds_read_b64_tr_b16 {vr(d+2,2)}, v{21+2*mt} offset:{u*2048}")
                    k += 1
        for comp in range(2):
            FB = ACC + 32 + comp*16
            a(f"s_waitcnt lgkmcnt({12 if comp == 0 else 0})")
            k = 0
            for mt in range(2):
                for u in range(2):
                    a(f"s_add_u32 s5, s14, {(mt*176 + 4*comp + u)*1024}")
                    a(f"buffer_store_dwordx4 {vr(FB+4*k,4)}, v6, s[64:67], s5 offen sc1")
                    k += 1
    stamp(a, 8)

def p1_consumer_prologue(a, code_end):
    srd(a, 64, sWs, WS_USED)
    l_np = a.lab(); l_nn = a.lab(); l_n2 = a.lab(); l_n1 = a.lab()
    a(f"s_cmp_lg_u32 s3, {3 if OPT['cpf'] else 77}\ns_cbranch_scc1 {l_np}")
    a(f"s_mov_b32 s4, {code_end} - {NAME}_kernel - 8\nv_lshlrev_b32 v1, 7, v0")
    a("s_lshr_b32 s5, s2, 3\ns_and_b32 s5, s5, 7\ns_lshl_b32 s5, s5, 13\nv_add_u32 v2, s5, v1\nv_min_u32 v2, s4, v2\nglobal_load_dword v15, v2, s[90:91]")
    a.label(l_np)
    a(f"s_cmp_lg_u32 s3, 0\ns_cbranch_scc1 {l_nn}")
    srd(a, 60, sDbg, 256)
    a("s_memrealtime s[14:15]\nv_mov_b32 v9, 0\nv_mov_b32 v11, 0\ns_waitcnt lgkmcnt(0)\ns_or_b32 s14, s14, 1")
    a("v_mov_b32 v10, s14\ns_mov_b64 exec, 1")
    a("buffer_atomic_cmpswap v[10:11], v9, s[60:63], 0 offen sc0\ns_mov_b64 exec, -1")
    a.label(l_nn)
    if OPT['touch1']:
        a(f"s_cmp_lg_u32 s3, 1\ns_cbranch_scc1 {l_n1}")
        srd(a, 52, sX, 2097152); srd(a, 56, sWg, 1835008); srd(a, 60, sWu, 1835008)
        a("v_and_b32 v1, 7, v0\nv_min_u32 v1, 4, v1\nv_lshlrev_b32 v1, 7, v1\nv_lshrrev_b32 v2, 3, v0\nv_lshl_add_u32 v1, v2, 10, v1\ns_lshl_b32 s4, s2, 13\ns_add_u32 s4, s4, 384")
        a("buffer_load_dword v15, v1, s[52:55], s4 offen")
        a(f"v_min_u32 v1, 34, v0\nv_lshlrev_b32 v1, 7, v1\ns_mul_i32 s4, s2, {35*128}\ns_add_u32 s4, s4, {192*3584}")
        a("buffer_load_dword v15, v1, s[56:59], s4 offen\nbuffer_load_dword v15, v1, s[60:63], s4 offen")
        a.label(l_n1)
    if OPT['touch2']:
        a(f"s_cmp_lg_u32 s3, 2\ns_cbranch_scc1 {l_n2}")
        srd(a, 52, sWd, 1835008); srd(a, 56, sCre, 524288); srd(a, 60, sCim, 524288)
        a(f"v_min_u32 v1, 55, v0\nv_lshlrev_b32 v1, 7, v1\ns_mul_i32 s4, s2, {56*128}\nbuffer_load_dword v15, v1, s[52:55], s4 offen")
        a("v_and_b32 v1, 15, v0\nv_lshlrev_b32 v1, 7, v1\ns_lshl_b32 s4, s2, 11\nbuffer_load_dword v15, v1, s[56:59], s4 offen\nbuffer_load_dword v15, v1, s[60:63], s4 offen")
        a.label(l_n2)
    a("v_bfe_u32 v1, v0, 2, 2\nv_and_b32 v2, 3, v0\nv_lshl_add_u32 v3, v1, 3, v2")
    a("v_and_b32 v4, 2, v0\nv_bfe_u32 v5, v0, 3, 1\nv_lshl_or_b32 v4, v5, 2, v4\nv_lshrrev_b32 v5, 4, v0\nv_xor_b32 v4, v4, v5")
    a(f"v_lshlrev_b32 v4, 4, v4\nv_lshl_add_u32 v{vXe}, v3, 7, v4\ns_lshl_b32 s4, s3, 12\nv_add_u32 v{vXe}, s4, v{vXe}")
    a(f"v_xor_b32 v{vXe+1}, 64, v{vXe}\nv_xor_b32 v{vXe+2}, 16, v{vXe}\nv_add_u32 v{vXe+2}, 512, v{vXe+2}\nv_xor_b32 v{vXe+3}, 64, v{vXe+2}")
    a("v_and_b32 v3, 15, v0\nv_lshrrev_b32 v4, 1, v3\nv_xor_b32 v4, v4, v5\nv_lshlrev_b32 v4, 4, v4")
    a(f"v_lshl_add_u32 v{vEa}, v3, 7, v4\nv_add_u32 v{vEa}, {EXT}, v{vEa}\nv_xor_b32 v{vEa+1}, 64, v{vEa}")

def p1_addr_main(a, kind):
    a(f"s_lshr_b32 s4, s3, 1\ns_lshl_b32 s4, s4, 13\ns_and_b32 s51, s3, 1")
    if kind == 'G':
        a("v_and_b32 v1, 31, v0")
    else:
        a("v_bfe_u32 v1, v0, 2, 1\nv_lshlrev_b32 v1, 5, v1\nv_and_b32 v2, 1, v0\nv_lshl_or_b32 v1, v2, 4, v1")
        a("v_bfe_u32 v2, v0, 3, 2\nv_lshl_or_b32 v1, v2, 1, v1\nv_bfe_u32 v2, v0, 1, 1\nv_or_b32 v1, v1, v2")
    a("v_bfe_u32 v2, v1, 2, 1\nv_and_b32 v3, 2, v1\nv_or_b32 v2, v2, v3\nv_bfe_u32 v3, v1, 4, 1\nv_lshl_or_b32 v2, v3, 2, v2")
    a(f"v_lshrrev_b32 v3, 5, v0\nv_xor_b32 v2, v2, v3\nv_lshlrev_b32 v2, 4, v2\nv_lshl_add_u32 v{vXa}, v1, 7, v2\nv_add_u32 v{vXa}, s4, v{vXa}")
    for kk in range(1, 4): a(f"v_xor_b32 v{vXa+kk}, {kk*32}, v{vXa}")
    a("v_lshrrev_b32 v1, 5, v0\nv_lshlrev_b32 v1, 3, v1\nv_bfe_u32 v2, v0, 2, 2\nv_add_u32 v1, v1, v2")
    a("v_bfe_u32 v2, v0, 4, 1\nv_lshlrev_b32 v2, 5, v2\nv_and_b32 v3, 3, v0\nv_lshl_add_u32 v2, v3, 3, v2")
    a("v_bfe_u32 v3, v0, 3, 1\nv_lshlrev_b32 v3, 6, v3\nv_xor_b32 v2, v2, v3")
    if kind == 'G':
        a(f"s_mul_i32 s5, s51, 49152\ns_add_u32 s5, s5, {BLK}")
        a(f"v_lshl_add_u32 v{vWa}, v1, 7, v2\nv_add_u32 v{vWa}, s5, v{vWa}\nv_xor_b32 v{vWa+1}, 64, v{vWa}")
    else:
        a(f"s_lshl_b32 s5, s51, 6\nv_xor_b32 v2, s5, v2\nv_lshl_add_u32 v{vWt}, v1, 7, v2\nv_add_u32 v{vWt}, {BLK}, v{vWt}")
        a(f"s_lshl_b32 s5, s51, 12\ns_add_u32 s5, s5, {BLK + 49152}")
        a("v_and_b32 v1, 31, v0\nv_bfe_u32 v2, v0, 1, 3\nv_lshrrev_b32 v3, 5, v0\nv_xor_b32 v2, v2, v3\nv_lshlrev_b32 v2, 4, v2")
        a(f"v_lshl_add_u32 v{vWa}, v1, 7, v2\nv_add_u32 v{vWa}, s5, v{vWa}")
        for kk in range(1, 4): a(f"v_xor_b32 v{vWa+kk}, {kk*32}, v{vWa}")

def p2_ids(a):
    a("s_and_b32 s4, s2, 7\ns_lshr_b32 s5, s2, 3\ns_lshl_b32 s84, s4, 2\ns_lshr_b32 s4, s5, 3\ns_add_u32 s84, s84, s4\ns_and_b32 s85, s5, 7")

def p2_consumer(a):
    Bp, Bwr = p2_schedule()
    p2_ids(a)
    a("s_and_b32 s8, s3, 1\ns_lshr_b32 s9, s3, 1")
    srd(a, 52, sX, 2097152); srd(a, 56, sDsk, 1024); srd(a, 60, sOut, 4194304)
    XV = 128; GV = 144; DV = 160; OM = 164
    AR = 192; NAR = 16
    a("s_lshl_b32 s10, s84, 6\ns_lshl_b32 s4, s9, 5\ns_add_u32 s10, s10, s4")
    a("s_lshl_b32 s11, s85, 6\ns_lshl_b32 s4, s8, 5\ns_add_u32 s11, s11, s4")
    a("v_and_b32 v1, 31, v0\nv_add_u32 v1, s11, v1\nv_lshrrev_b32 v2, 5, v0\nv_lshlrev_b32 v2, 2, v2\nv_add_u32 v2, s10, v2")
    a("v_lshlrev_b32 v3, 1, v1\nv_lshl_add_u32 v4, v2, 10, v3")
    a("v_lshlrev_b32 v5, 2, v1\nv_lshl_add_u32 v5, v2, 11, v5")
    a(f"v_lshlrev_b32 v6, 2, v2\nv_add_u32 v6, {G_OFF}, v6")
    a("s_lshl_b32 s4, s84, 1\ns_add_u32 s4, s4, s9\ns_mul_i32 s4, s4, 176\ns_lshl_b32 s5, s8, 1\ns_add_u32 s4, s4, s5\ns_lshl_b32 s80, s4, 10\nv_lshlrev_b32 v10, 4, v0")
    V = VM(a)
    V.ops = ['H'] * 10
    ld = []
    for i in range(16):
        row = 8*(i >> 2) + (i & 3)
        ld.append((f"s_mov_b32 s4, {row*1024}", f"buffer_load_ushort v{XV+i}, v4, s[52:55], s4 offen"))
    for q in range(4): ld.append((None, f"buffer_load_dwordx4 {vr(GV+4*q,4)}, v6, s[64:67], 0 offen offset:{q*32} sc1"))
    ld.append((None, f"buffer_load_ushort v{DV}, v3, s[56:59], 0 offen"))
    vBw, vBc = 13, 19
    a("v_lshrrev_b32 v7, 5, v0\nv_lshlrev_b32 v7, 2, v7\nv_bfe_u32 v8, v0, 2, 2\nv_add_u32 v7, v7, v8")
    a("v_bfe_u32 v8, v0, 4, 1\nv_lshlrev_b32 v8, 5, v8\nv_and_b32 v9, 3, v0\nv_lshl_add_u32 v8, v9, 3, v8\nv_bfe_u32 v9, v0, 3, 1\nv_lshlrev_b32 v9, 6, v9\nv_xor_b32 v8, v8, v9")
    a(f"s_lshl_b32 s4, s8, 12\nv_lshl_add_u32 v{vBw}, v7, 7, v8\nv_add_u32 v{vBw}, s4, v{vBw}\nv_xor_b32 v{vBw+1}, 64, v{vBw}")
    a("v_and_b32 v7, 31, v0\nv_bfe_u32 v8, v0, 1, 3\nv_lshrrev_b32 v9, 5, v0\nv_xor_b32 v8, v8, v9\ns_lshl_b32 s4, s8, 2\nv_xor_b32 v8, s4, v8\nv_lshlrev_b32 v8, 4, v8")
    a(f"v_lshl_add_u32 v{vBc}, v7, 7, v8\nv_xor_b32 v{vBc+1}, 32, v{vBc}")
    W = 57344
    for t in range(1, 3):
        for e in range(2):
            a(f"v_add_u32 v{vBw+2*t+e}, {t*W}, v{vBw+e}\nv_add_u32 v{vBc+2*t+e}, {t*W}, v{vBc+e}")
    AB, AY = 32, 64
    def F(s): return 96 + (s & 3) * 16 if (s & 3) < 2 else 176 + ((s & 3) - 2) * 16 - 0
    def F(s): return [96, 112, 224, 240][s & 3]
    NAR = 8
    def areg(s, e): return AR + ((2*s + e) % NAR) * 4 if False else (168 + 0)
    AREGS = list(range(180, 224, 4)) + [24, 28 - 0]
    AREGS = list(range(180, 224, 4)) + [26]
    NAR = len(AREGS)
    def areg(s, e): return AREGS[(2*s + e) % NAR]
    SC = " sc1" if OPT['sc1_a'] else ""
    def loadA(s):
        o = []
        if OPT['noA']: return o
        for e in range(2):
            o.append((f"s_add_u32 s4, s80, {s*4096 + e*1024}", f"buffer_load_dwordx4 {vr(areg(s,e),4)}, v10, s[64:67], s4 offen{SC}", ('A', s, e)))
        return o
    def win(addr): t = min((addr - XR) // W, 2); return t, addr - t*W
    def reads(s):
        tb, ob = win(page(Bp[s]))
        r = []; f = F(s)
        for e in range(2):
            for nt in range(2):
                d = f + (e*2+nt)*4
                if s < 28:
                    r.append((f"ds_read_b64_tr_b16 {vr(d,2)}, v{vBw+2*tb+nt} offset:{ob + e*2048}", R(d, 2)))
                    r.append((f"ds_read_b64_tr_b16 {vr(d+2,2)}, v{vBw+2*tb+nt} offset:{ob + e*2048 + 1024}", R(d+2, 2)))
                else:
                    r.append((f"ds_read_b128 {vr(d,4)}, v{vBc+2*tb+e} offset:{ob + nt*4096}", R(d, 4)))
        return r
    pre = [f"v_lshlrev_b32 v{DV}, 16, v{DV}", "s_mov_b32 s12, 0xffff0000"]
    for i in range(0, 16, 2):
        for e in range(2):
            pre += [f"v_lshlrev_b32 v{XV+i+e}, 16, v{XV+i+e}", f"v_mul_f32 v{XV+i+e}, v{XV+i+e}, v{DV}", f"v_sub_f32 v{OM+i+e}, 1.0, v{GV+i+e}"]
        pre += [f"v_cvt_pk_bf16_f32 v{DV+1}, v{XV+i}, v{XV+i+1}", f"v_cvt_pk_bf16_f32 v{DV+2}, v{OM+i}, v{OM+i+1}",
                f"v_lshlrev_b32 v{XV+i}, 16, v{DV+1}", f"v_and_b32 v{XV+i+1}, s12, v{DV+1}",
                f"v_lshlrev_b32 v{OM+i}, 16, v{DV+2}", f"v_and_b32 v{OM+i+1}, s12, v{DV+2}"]
    S = Sched(a)
    na = 0
    KH = OPT['KH']
    for k in range(23):
        if k < 22: a("s_barrier")
        if k == 0: stamp(a, 9); cstamp(a, 59)
        if k < 22 and (OPT['fine'] or k in (5, 12, 19)): stamp(a, 32+k)
        if k == 14: stamp(a, 10)
        rd = reads(2*k) + reads(2*k+1) if k < 22 and not OPT['noR'] else []
        if k == 0:
            while na < NAR // 2:
                for (pre_i, ins, tg) in loadA(na): a(pre_i); V.op(ins, tg)
                na += 1
            for x in rd: S.read(*x)
        else:
            rd = list(rd)
            for s in (2*k-2, 2*k-1):
                f = F(s)
                for e in range(2):
                    V.wait(('A', s, e))
                    for nt in range(2):
                        d = vr((AB if s < 28 else AY) + 16*nt, 16)
                        c = "0" if (s in (0, 28) and e == 0) else d
                        S.need(R(f+(e*2+nt)*4, 4))
                        a(f"v_mfma_f32_32x32x16_bf16 {d}, {vr(areg(s,e),4)}, {vr(f+(e*2+nt)*4,4)}, {c}")
                        for _ in range(OPT['per2']):
                            if rd: S.read(*rd.pop(0))
                while na <= 43 and na < s + 1 + NAR // 2 and (na < 28 or k > KH):
                    for (pre_i, ins, tg) in loadA(na): a(pre_i); V.op(ins, tg)
                    na += 1
            for x in rd: S.read(*x)
        if k == OPT['KF']:
            V.wait('H'); flag_store(a, 1); V.ops.append('F')
        if 4 <= k < 4 + 7:
            for (p, ins) in ld[(k-4)*3:(k-4)*3+3]:
                if p: a(p)
                V.op(ins, 'L')
        if k == 14: V.wait('L')
        if 14 <= k < 21:
            n = (len(pre) + 6) // 7
            for x in pre[(k-14)*n:(k-13)*n]: a(x)
    assert na == 44
    stamp(a, 11); cstamp(a, 60)
    used = {Bp[40], Bp[41], Bp[42], Bp[43]}
    xp = [page(p) for p in range(18) if p not in used][:4]
    a(f"s_mov_b32 s4, {xp[0]}\ns_mov_b32 s5, {xp[1]}\ns_cmp_eq_u32 s9, 1\ns_cselect_b32 s4, {xp[2]}, s4\ns_cselect_b32 s5, {xp[3]}, s5")
    a("s_cmp_eq_u32 s8, 1\ns_cselect_b32 s10, s5, s4\ns_cselect_b32 s11, s4, s5")
    a("v_lshlrev_b32 v7, 4, v0\nv_add_u32 v8, s10, v7\nv_add_u32 v9, s11, v7")
    lk1 = a.lab(); lj = a.lab()
    a(f"s_nop 4\ns_cbranch_scc1 {lk1}")
    RB, RY = 96, 112
    for kh in range(2):
        if kh == 1: a.label(lk1)
        sn = kh ^ 1
        for q in range(4):
            a(f"ds_write_b128 v8, {vr(AB+16*sn+4*q,4)} offset:{q*1024}\nds_write_b128 v8, {vr(AY+16*sn+4*q,4)} offset:{4096+q*1024}")
        for i in range(0, 16, 2): a(f"v_pk_add_f32 {vr(AY+16*kh+i,2)}, {vr(AY+16*kh+i,2)}, {vr(XV+i,2)}")
        a("s_waitcnt lgkmcnt(0)\ns_barrier")
        for q in range(4):
            a(f"ds_read_b128 {vr(RB+4*q,4)}, v9 offset:{q*1024}\nds_read_b128 {vr(RY+4*q,4)}, v9 offset:{4096+q*1024}")
        for q in range(4):
            a(f"s_waitcnt lgkmcnt({6-2*q})")
            for i in range(4*q, 4*q+4, 2):
                a(f"v_pk_add_f32 {vr(RB+i,2)}, {vr(RB+i,2)}, {vr(AB+16*kh+i,2)}\nv_pk_add_f32 {vr(RY+i,2)}, {vr(RY+i,2)}, {vr(AY+16*kh+i,2)}")
        if kh == 0: a(f"s_branch {lj}")
    a.label(lj)
    for i in range(0, 16, 2):
        T = 224 + (i & 6)
        a(f"v_cvt_pk_bf16_f32 v{T}, v{RB+i}, v{RB+i+1}\nv_pk_mul_f32 {vr(RY+i,2)}, {vr(RY+i,2)}, {vr(GV+i,2)}")
        a(f"v_lshlrev_b32 v{RB+i}, 16, v{T}\nv_and_b32 v{RB+i+1}, s12, v{T}")
        a(f"v_pk_mul_f32 {vr(RB+i,2)}, {vr(RB+i,2)}, {vr(OM+i,2)}\nv_cvt_pk_bf16_f32 v{T}, v{RB+i}, v{RB+i+1}")
        a(f"v_lshlrev_b32 v{RB+i}, 16, v{T}\nv_and_b32 v{RB+i+1}, s12, v{T}")
        a(f"v_pk_add_f32 {vr(RY+i,2)}, {vr(RY+i,2)}, {vr(RB+i,2)}")
        for e in range(2):
            row = 8*((i+e) >> 2) + ((i+e) & 3)
            a(f"s_mov_b32 s4, {row*2048}\nbuffer_store_dword v{RY+i+e}, v5, s[60:63], s4 offen")
    stamp(a, 12)
    if STAMP: a("s_waitcnt vmcnt(0)")
    stamp(a, 13)
    stamp_flush(a)
    a("s_endpgm")

def loader_pre(a):
    if OPT['prio']: a(f"s_setprio {OPT['prio']}")
    a("v_lshrrev_b32 v1, 3, v0\nv_and_b32 v2, 7, v0")
    a("v_lshrrev_b32 v3, 5, v0\nv_and_b32 v4, 2, v1\nv_or_b32 v3, v3, v4\nv_xor_b32 v3, v3, v2\nv_lshlrev_b32 v3, 4, v3\nv_lshl_add_u32 v10, v1, 10, v3\nv_xor_b32 v11, 64, v10")
    a("s_cmp_lt_u32 s3, 2\ns_cselect_b32 s70, 1, 0\ns_xor_b32 s71, s12, 1\ns_or_b32 s70, s70, s71")
    a("s_lshr_b32 s4, s3, 1\ns_lshl_b32 s4, s4, 6\ns_add_u32 s4, s4, s9\ns_lshl_b32 s4, s4, 1\ns_lshl_b32 s5, s11, 10")
    a("s_cmp_eq_u32 s70, 1\ns_cselect_b32 s80, s4, s5\ns_movk_i32 s81, 128\ns_movk_i32 s82, 8192\ns_movk_i32 s83, 1024\ns_cselect_b32 s81, 229376, s81\ns_cselect_b32 s82, 28672, s82\ns_cselect_b32 s83, 3584, s83\ns_cselect_b32 s84, 0, 64")
    a("s_mov_b32 s4, 524288\ns_cselect_b32 s58, 1835008, s4\ns_mov_b32 s59, 0x20000\ns_cselect_b64 vcc, -1, 0")
    a("v_bfe_u32 v3, v0, 4, 1\nv_lshlrev_b32 v3, 2, v3\nv_lshrrev_b32 v4, 4, v0\nv_cndmask_b32 v3, v4, v3, vcc")
    a("v_xor_b32 v3, v3, v2\nv_lshlrev_b32 v3, 4, v3\nv_mad_u32_u24 v12, v1, s83, v3\nv_xor_b32 v13, s84, v12")
    a("s_and_b32 s4, s3, 1\ns_lshl_b32 s4, s4, 2\nv_or_b32 v4, s4, v4\nv_xor_b32 v4, v4, v2\nv_lshlrev_b32 v4, 4, v4\nv_lshl_add_u32 v14, v1, 10, v4")
    a("s_and_b32 s4, s3, 1\ns_lshl_b32 s4, s4, 3\ns_add_u32 s4, s4, s10\ns_lshl_b32 s85, s4, 10")
    a("s_lshl_b32 s4, s6, 7\ns_lshl_b32 s5, s3, 5\ns_add_u32 s4, s4, s5\ns_lshl_b32 s86, s4, 10")
    a(f"s_lshl_b32 s87, s3, 12\ns_mul_i32 s88, s3, 24576\ns_add_u32 s88, s88, {BLK}\ns_lshl_b32 s89, s3, 10\ns_add_u32 s89, s89, {EXT}")
    a("s_mov_b32 s54, 2097152\ns_mov_b32 s55, 0x20000\ns_mov_b32 s62, 524288\ns_mov_b32 s63, 0x20000")

def loader(a):
    Bp, Bwr = p2_schedule()
    V = VM(a)
    a("s_waitcnt lgkmcnt(0)")
    a("s_mov_b64 s[52:53], s[16:17]")
    a("s_bitcmp1_b32 s3, 0\ns_cselect_b64 s[72:73], s[38:39], s[36:37]\ns_cselect_b64 s[74:75], s[24:25], s[22:23]")
    a("s_cmp_eq_u32 s70, 1\ns_cselect_b64 s[56:57], s[72:73], s[74:75]")
    a("s_cmp_lt_u32 s3, 2\ns_cselect_b64 s[60:61], s[22:23], s[24:25]")
    def issue(s, lo=0, hi=13):
        slot = s % 3
        n = 0
        for i in range(4):
            if lo <= n < hi:
                a(f"s_add_u32 m0, s87, {XR + slot*16384 + i*1024}\ns_add_u32 s4, s86, {i*8192 + s*128}")
                V.op(f"buffer_load_dwordx4 v{10 + (i >> 1)}, s[52:55], s4 offen lds", ('S', s))
            n += 1
        for i in range(8):
            if lo <= n < hi:
                a(f"s_add_u32 m0, s88, {slot*8192 + i*1024}")
                a("s_nop 0")
                V.op(f"buffer_load_dwordx4 v{12 + (i & 1)}, s[56:59], s80 offen lds", ('S', s))
                a("s_add_u32 s80, s80, s82" if i < 7 else "s_add_u32 s80, s80, s81")
            n += 1
        if lo <= n < hi:
            a(f"s_add_u32 m0, s89, {slot*4096}\ns_add_u32 s4, s85, {s*128}")
            V.op("buffer_load_dwordx4 v14, s[60:63], s4 offen lds", ('S', s))
    a("s_mul_i32 s4, s82, 7\ns_sub_u32 s81, s81, s4")
    NC = 8
    stg = [0]
    def staged(n):
        for _ in range(n):
            q = stg[0]; stg[0] += 1
            jj, ii = q >> 2, q & 3
            a(f"s_add_u32 s4, s92, {jj*65536 + ii*8192}")
            V.op(f"buffer_load_dwordx4 {vr(128 + q*4, 4)}, v15, s[72:75], s4 offen", ('Q', jj))
    issue(0); stamp(a, 14); issue(1)
    V.wait(('S', 0)); stamp(a, 2); a("s_barrier")
    issue(2, 0, OPT['i2'])
    srd(a, 64, sWs, WS_USED)
    srd(a, 68, sGw, 1024); srd(a, 72, sLre, 1024); srd(a, 76, sLim, 1024); srd(a, 96, sLdt, 1024)
    a("s_lshl_b32 s4, s6, 7\ns_lshl_b32 s5, s13, 3\ns_add_u32 s4, s4, s5\ns_lshl_b32 s5, s3, 1\ns_add_u32 s15, s4, s5\ns_lshl_b32 s14, s15, 10")
    a("v_lshlrev_b32 v1, 4, v0")
    a("s_and_b32 s4, s3, 1\ns_lshl_b32 s4, s4, 6\nv_add_u32 v2, s4, v0\nv_add_u32 v3, s10, v2\ns_sub_u32 s5, s11, 16\nv_add_u32 v4, s5, v2")
    a("v_cmp_gt_u32 vcc, 16, v2\ns_nop 1\nv_cndmask_b32 v3, v4, v3, vcc\nv_lshlrev_b32 v3, 1, v3")
    a("v_lshrrev_b32 v4, 3, v0\nv_and_b32 v5, 7, v0\nv_bfe_u32 v6, v0, 4, 1\nv_lshlrev_b32 v6, 2, v6\nv_xor_b32 v6, v6, v5\nv_lshlrev_b32 v6, 4, v6\nv_lshl_add_u32 v15, v4, 10, v6")
    a(f"s_and_b32 s4, s3, 1\ns_lshl_b32 s4, s4, 15\ns_lshr_b32 s5, s2, 3\ns_and_b32 s5, s5, 7\ns_lshl_b32 s5, s5, 7\ns_add_u32 s92, s4, s5\ns_lshr_b32 s4, s3, 1\ns_mul_i32 s4, s4, {NC*65536}\ns_add_u32 s92, s92, s4\ns_add_u32 s92, s92, {NBD*65536}")
    V.wait(('S', 1)); stamp(a, 9); a("s_barrier")
    issue(2, OPT['i2'], 13); issue(3)
    V.op("buffer_load_dwordx4 v[32:35], v1, s[52:55], s14 offen", 'X'); V.op("buffer_load_dwordx4 v[36:39], v1, s[52:55], s14 offen offset:1024", 'X')
    V.op("buffer_load_dwordx4 v[40:43], v1, s[68:71], 0 offen", 'X')
    V.op("buffer_load_ushort v44, v3, s[72:75], 0 offen", 'X'); V.op("buffer_load_ushort v45, v3, s[76:79], 0 offen", 'X'); V.op("buffer_load_ushort v46, v3, s[96:99], 0 offen", 'X')
    V.wait(('S', 2)); stamp(a, 10); a("s_barrier"); issue(4)
    V.wait('X')
    a("v_lshlrev_b32 v44, 16, v44\nv_lshlrev_b32 v45, 16, v45\nv_lshlrev_b32 v46, 16, v46")
    a(f"v_mul_f32 v46, {LOG2E}, v46\nv_exp_f32 v46, v46\ns_nop 0")
    bf16_round(a, 46, 46, 47)
    a(f"v_mul_f32 v47, v46, v44\nv_mul_f32 v48, v46, v45")
    a(f"v_mul_f32 v47, {LOG2E}, v47\nv_exp_f32 v47, v47\nv_mul_f32 v48, {INV2PI}, v48\nv_rndne_f32 v49, v48\nv_sub_f32 v48, v48, v49")
    a("v_cos_f32 v49, v48\nv_sin_f32 v50, v48\ns_nop 0\nv_mul_f32 v52, v47, v49\nv_mul_f32 v53, v47, v50")
    a("v_mul_f32 v49, v44, v44\nv_fma_f32 v49, v45, v45, v49\nv_rcp_f32 v49, v49\nv_add_f32 v50, -1.0, v52")
    a("v_mul_f32 v54, v50, v44\nv_fma_f32 v54, v53, v45, v54\nv_mul_f32 v55, v53, v44\nv_fma_f32 v55, -v50, v45, v55")
    a("v_add_f32 v49, v49, v49\nv_mul_f32 v54, v54, v49\nv_mul_f32 v55, v55, v49")
    a("v_lshlrev_b32 v2, 4, v2\nv_cmp_gt_u32 vcc, 1280, v2\ns_and_saveexec_b64 s[78:79], vcc")
    a(f"ds_write_b128 v2, v[52:55] offset:{PARAM}")
    a("s_mov_b64 exec, s[78:79]")
    V.wait(('S', 3), extra=" lgkmcnt(0)"); stamp(a, 11); a("s_barrier"); issue(5)
    a("v_mov_b32 v4, 0\nv_mov_b32 v5, 0\ns_mov_b32 s4, 0xffff0000")
    for i in range(4):
        a(f"v_lshlrev_b32 v6, 16, v{40+i}\nv_and_b32 v7, s4, v{40+i}")
        for r in range(2):
            x = 32 + 4*r + i
            a(f"v_lshlrev_b32 v8, 16, v{x}\nv_and_b32 v9, s4, v{x}\nv_mul_f32 v8, v8, v6\nv_mul_f32 v9, v9, v7")
            a(f"v_cvt_pk_bf16_f32 v8, v8, v9\nv_lshlrev_b32 v9, 16, v8\nv_and_b32 v8, s4, v8\nv_add_f32 v{4+r}, v{4+r}, v9\nv_add_f32 v{4+r}, v{4+r}, v8")
    V.wait(('S', 4)); stamp(a, 12); a("s_barrier"); issue(6)
    for sh in [1, 2, 4, 8]:
        a(f"s_nop 1\nv_add_f32_dpp v4, v4, v4 row_shr:{sh} row_mask:0xf bank_mask:0xf bound_ctrl:0\nv_add_f32_dpp v5, v5, v5 row_shr:{sh} row_mask:0xf bank_mask:0xf bound_ctrl:0")
    a("s_nop 1")
    for r in range(2):
        a(f"v_readlane_b32 s{76+20*r}, v{4+r}, 15\nv_readlane_b32 s{77+20*r}, v{4+r}, 31\nv_readlane_b32 s{78+20*r}, v{4+r}, 47")
    a("s_nop 1")
    for j in range(3):
        a(f"v_add_f32 v4, s{76+j}, v4\nv_add_f32 v5, s{96+j}, v5")
    a("s_nop 0\nv_readlane_b32 s4, v4, 63\nv_readlane_b32 s5, v5, 63\nv_cmp_eq_u32 vcc, 1, v0\ns_nop 0\nv_mov_b32 v4, s4\nv_mov_b32 v5, s5\nv_cndmask_b32 v4, v4, v5, vcc")
    bf16_round(a, 4, 4, 5)
    a(f"v_mul_f32 v4, {NLOG2E}, v4\nv_exp_f32 v4, v4\ns_nop 0\nv_add_f32 v4, 1.0, v4\nv_rcp_f32 v4, v4\ns_nop 0")
    bf16_round(a, 4, 4, 5)
    a(f"s_lshl_b32 s4, s15, 2\ns_add_u32 s4, s4, {G_OFF}\nv_lshlrev_b32 v5, 2, v0\ns_mov_b64 exec, 3")
    V.op("buffer_store_dword v4, v5, s[64:67], s4 offen sc1", 'G'); a("s_mov_b64 exec, -1")
    V.wait(('S', 5)); stamp(a, 13); a("s_barrier"); issue(7)
    p2_ids(a)
    a(f"v_lshlrev_b32 v16, 4, v0\nv_add_u32 v17, 57344, v16\nv_add_u32 v18, {2*57344}, v16")
    srd(a, 52, sWd, 1835008); srd(a, 56, sCre, 524288); srd(a, 60, sCim, 524288)
    a("s_lshl_b32 s89, s85, 7\ns_lshl_b32 s90, s85, 16")
    a("v_lshrrev_b32 v1, 3, v0\nv_and_b32 v2, 7, v0")
    a("v_lshrrev_b32 v3, 4, v0\nv_xor_b32 v3, v3, v2\nv_lshlrev_b32 v3, 4, v3\nv_lshl_add_u32 v28, v1, 10, v3\nv_xor_b32 v29, 64, v28")
    def sreg(s): return 32 + 32 * ((s - NB1) // 4)
    TH = OPT['TH']
    def throttle(V, n):
        if len(V.ops) - 1 - V.done >= n:
            a(f"s_waitcnt vmcnt({n-1})"); V.done = len(V.ops) - n
    def writeB(V, s, h):
        if OPT['noW']: return
        V.wait(('B', s, h))
        t = min(Bp[s] // 7, 2); off = page(Bp[s]) - t*57344 + h*4096
        for i in range(4): a(f"ds_write_b128 v{16+t}, {vr(sreg(s)+16*h+4*i,4)} offset:{off + i*1024}")
    def loadB(V, s, h, th=None):
        if OPT['noS'] and s >= NB1: return
        for i in range(4):
            if th: throttle(V, th)
            if s < NB1: a(f"s_mov_b32 m0, {page(Bp[s]) + h*4096 + i*1024}"); dst = ""; sfx = " lds"
            else: dst = vr(sreg(s) + 16*h + 4*i, 4) + ", "; sfx = ""
            if s < 28:
                a(f"s_add_u32 s4, s89, {s*65536 + h*32768 + i*8192}")
                V.op(f"buffer_load_dwordx4 {dst}v15, s[52:55], s4 offen{sfx}", ('B', s, h))
            else:
                t = s - 28
                a(f"s_add_u32 s4, s90, {(t >> 1)*128 + h*32768 + i*8192}")
                V.op(f"buffer_load_dwordx4 {dst}v{28+(i&1)}, s[{56 + 4*(t & 1)}:{59 + 4*(t & 1)}], s4 offen{sfx}", ('B', s, h))
    def mine(lw): return [(s, h) for s in range(NB1, 44) if OWN[(s - NB1) % 4] == lw for h in range(2)]
    def poll(which, pre_issued=False):
        lp = a.lab(); ld = a.lab(); lc = a.lab()
        a("s_mov_b32 s88, 0x8000")
        if pre_issued: a(f"s_branch {lc}")
        a.label(lp)
        a(f"buffer_load_dword v8, v9, s[64:67], s86 offen offset:{which*256} sc1\ns_waitcnt vmcnt(0)")
        a.label(lc)
        a(f"v_cmp_ne_u32 vcc, s72, v8\ns_cmp_eq_u64 vcc, 0\ns_cbranch_scc1 {ld}")
        a(f"s_sub_u32 s88, s88, 1\ns_cmp_lg_u32 s88, 0\ns_cbranch_scc1 {lp}")
        a.label(ld)
    KH = OPT['KH']
    def p2loop(V, lw, pend, per):
        pend = list(pend)
        for k in range(22):
            d = [('B', s, lw) for s in (2*k, 2*k+1) if s < NB1] if lw < 2 else []
            if d: V.wait(*d)
            if k >= 5: a("s_waitcnt lgkmcnt(4)" if k < 20 else "s_waitcnt lgkmcnt(0)")
            if lw == 2 and k == KH + 1:
                V.wait('P'); poll(1, pre_issued=True)
            if OPT['fine']: stamp(a, 32+k)
            a("s_barrier")
            if lw == 2 and k == KH - 1: V.op(f"buffer_load_dword v8, v9, s[64:67], s86 offen offset:256 sc1", 'P')
            for (s, h) in Bwr[k]:
                if OWN[(s - NB1) % 4] == lw:
                    assert (s, h) not in pend, (lw, k, s, h)
                    writeB(V, s, h)
            if not (lw == 2 and KH - 2 <= k <= KH):
                for _ in range(per):
                    if pend: loadB(V, *pend.pop(0))
        assert not pend
        a("s_barrier")
        stamp_flush(a)
        a("s_endpgm")
    L = [a.lab() for _ in range(4)]
    a(f"s_cmp_eq_u32 s3, 1\ns_cbranch_scc1 {L[1]}\ns_cmp_eq_u32 s3, 2\ns_cbranch_scc1 {L[2]}\ns_cmp_eq_u32 s3, 3\ns_cbranch_scc1 {L[3]}")
    V0 = V
    for lw in range(2):
        a.label(L[lw])
        V = V0.copy()
        V.wait(('S', 6), 'G'); a("s_barrier")
        for s in range(6): loadB(V, s, lw)
        V.wait(('S', 7)); a("s_barrier")
        for s in range(6, NB0): loadB(V, s, lw)
        a("s_barrier")
        for s in range(NB0, NB1): loadB(V, s, lw, TH)
        m = mine(lw)
        for x in m[:OPT['PRE']]: loadB(V, *x, th=TH)
        stamp(a, 6)
        a("s_barrier")
        for x in m[OPT['PRE']:OPT['PRE2']]: loadB(V, *x, th=TH)
        p2loop(V, lw, m[OPT['PRE2']:], 1)
    a.label(L[2])
    combine(a, V0.copy(), 16, 16, 3, AGE_RE, AGE_IM, 10, PARAM)
    stamp(a, 6)
    a("s_barrier")
    a(f"s_lshr_b32 s4, s84, 1\ns_lshl_b32 s4, s4, 9\ns_add_u32 s86, s4, {FLG_OFF}\nv_lshlrev_b32 v9, 2, v0")
    poll(0)
    stamp(a, 7)
    p2loop(VM(a), 2, mine(2), 2)
    a.label(L[3])
    l_m = a.lab(); l_j = a.lab()
    a(f"s_cmp_eq_u32 s12, 1\ns_cbranch_scc1 {l_m}")
    V = V0.copy()
    V.wait(('S', 6), 'G'); a("s_barrier"); V.wait(('S', 7)); a("s_barrier\ns_barrier")
    a(f"s_branch {l_j}")
    a.label(l_m); combine(a, V0.copy(), 8, 64, 4, AGM_RE, AGM_IM, 11, PARAM + 256)
    a.label(l_j)
    V = VM(a)
    stamp(a, 6)
    a("s_barrier")
    m = mine(3)
    for x in m[:OPT['PRE3']]: loadB(V, *x, th=TH)
    p2loop(V, 3, m[OPT['PRE3']:], 1)

def combine(a, V, nseg, nch, lg, are, aim, sch, pofs):
    a(f"s_add_u32 s68, s48, {AGG_OFF}\ns_addc_u32 s69, s49, 0\ns_mov_b32 s70, {AGG_SZ}\ns_mov_b32 s71, 0x20000")
    if nch < 64: a(f"s_mov_b64 exec, {(1 << nch) - 1}")
    a(f"v_lshlrev_b32 v1, 4, v0\nds_read_b64 v[2:3], v1 offset:{pofs}\ns_waitcnt lgkmcnt(0)")
    for i in range(7):
        a("v_mul_f32 v8, v3, v3\nv_mul_f32 v9, v2, v3\nv_fma_f32 v2, v2, v2, -v8\nv_add_f32 v3, v9, v9")
        if i == lg - 1: a("v_mov_b32 v6, v2\nv_mov_b32 v7, v3")
    a(f"s_lshl_b32 s4, s{sch}, 4\ns_lshl_b32 s5, s6, 13\ns_add_u32 s4, s4, s5\nv_add_u32 v14, s4, v1")
    a(f"v_lshlrev_b32 v1, 2, v0\nv_add_u32 v1, {EXT}, v1\nv_mov_b32 v4, 0")
    V.wait(('S', 6), 'G'); a("s_barrier"); V.wait(('S', 7)); a("s_barrier")
    a("s_barrier")
    stamp(a, 3)
    AR, AI = 32, 48
    a(f"ds_read_b32 v5, v4 offset:{NONCE}")
    for sg in range(nseg):
        a(f"ds_read_b32 v{AR+sg}, v1 offset:{are - EXT + sg*nch*4}\nds_read_b32 v{AI+sg}, v1 offset:{aim - EXT + sg*nch*4}")
    def step(pr, pi, dr, di, mr, mi, ar, ai):
        a(f"v_fma_f32 v{dr}, v{pr}, v{mr}, v{ar}\nv_fma_f32 v{di}, v{pi}, v{mr}, v{ai}\nv_fma_f32 v{dr}, -v{pi}, v{mi}, v{dr}\nv_fma_f32 v{di}, v{pr}, v{mi}, v{di}")
    a("s_waitcnt lgkmcnt(0)\nv_mov_b32 v11, v5\nv_mov_b32 v13, v5\nv_readfirstlane_b32 s72, v5")
    cur = (AR, AI)
    for sg in range(1, nseg):
        dst = (10, 12) if (nseg - 1 - sg) % 2 == 0 else (20, 21)
        step(cur[0], cur[1], dst[0], dst[1], 6, 7, AR+sg, AI+sg); cur = dst
    a("buffer_store_dwordx4 v[10:13], v14, s[68:71], 0 offen sc1")
    stamp(a, 4)
    lp = a.lab(); ld = a.lab()
    a("s_mov_b32 s88, 0x8000")
    a.label(lp)
    E = 60
    for d in range(1, 16): a(f"v_subrev_u32 v{24+(d&3)}, {d*8192}, v14\nbuffer_load_dwordx4 {vr(E+4*d,4)}, v{24+(d&3)}, s[68:71], 0 offen sc1")
    for d in range(1, 16): a(f"s_cmp_ge_u32 s6, {d}\ns_cselect_b32 s{72+d}, s72, 0")
    a("s_mov_b64 s[4:5], 0\ns_waitcnt vmcnt(0)")
    for d in range(1, 16):
        a(f"v_cmp_ne_u32 vcc, s{72+d}, v{E+4*d+1}\ns_or_b64 s[4:5], s[4:5], vcc\nv_cmp_ne_u32 vcc, s{72+d}, v{E+4*d+3}\ns_or_b64 s[4:5], s[4:5], vcc")
    a(f"s_cmp_eq_u64 s[4:5], 0\ns_cbranch_scc1 {ld}")
    a(f"s_sub_u32 s88, s88, 1\ns_cmp_lg_u32 s88, 0\ns_cbranch_scc1 {lp}")
    a.label(ld)
    stamp(a, 5)
    cur = (E+60, E+62)
    for d in range(14, 0, -1):
        dst = (20, 21) if d & 1 else (22, 23)
        step(cur[0], cur[1], dst[0], dst[1], 2, 3, E+4*d, E+4*d+2); cur = dst
    for sg in range(nseg):
        a(f"ds_write_b32 v1, v{cur[0]} offset:{are - EXT + sg*nch*4}\nds_write_b32 v1, v{cur[1]} offset:{aim - EXT + sg*nch*4}")
        if sg < nseg - 1:
            dst = (22, 23) if cur == (20, 21) else (20, 21)
            step(cur[0], cur[1], dst[0], dst[1], 6, 7, AR+sg, AI+sg); cur = dst
    a("s_mov_b64 exec, -1\ns_waitcnt lgkmcnt(0)")
    p2_ids(a)

def kernel(a, name):
    a(f".p2align 8\n.globl {name}\n.type {name},@function")
    a.label(name)
    l_end = a.lab(); l_c = a.lab(); l_s = a.lab(); l_p2 = a.lab()
    a("s_getpc_b64 s[90:91]")
    a(f"s_cmp_ge_u32 s2, 256\ns_cbranch_scc1 {l_end}")
    a("s_load_dwordx16 s[16:31], s[0:1], 0\ns_load_dwordx16 s[32:47], s[0:1], 64\ns_load_dwordx2 s[48:49], s[0:1], 128")
    a("v_lshrrev_b32 v1, 6, v0\nv_and_b32 v0, 63, v0\nv_readfirstlane_b32 s3, v1")
    a("s_and_b32 s4, s2, 7\ns_lshr_b32 s5, s2, 3")
    a("s_and_b32 s6, s4, 1\ns_lshr_b32 s7, s5, 2\ns_lshl_b32 s7, s7, 1\ns_add_u32 s6, s6, s7")
    a("s_and_b32 s7, s5, 3\ns_lshr_b32 s8, s4, 1")
    a("s_mul_i32 s9, s8, 448\ns_lshl_b32 s4, s7, 7\ns_add_u32 s9, s9, s4")
    a("s_lshl_b32 s11, s8, 7\ns_lshl_b32 s4, s7, 4\ns_add_u32 s10, s11, s4\ns_add_u32 s11, s11, 64")
    a("s_cmp_eq_u32 s7, 3\ns_cselect_b32 s12, 1, 0\ns_lshl_b32 s13, s8, 2\ns_add_u32 s13, s13, s7")
    if STAMP: a("s_mov_b32 s93, s3")
    a(f"s_cmp_lt_u32 s3, 4\ns_cbranch_scc1 {l_c}")
    a("s_sub_u32 s3, s3, 4")
    loader_pre(a)
    if STAMP: a("s_waitcnt lgkmcnt(0)")
    stamp(a, 0)
    loader(a)
    a.label(l_c)
    a("s_waitcnt lgkmcnt(0)")
    stamp(a, 0)
    p1_consumer_prologue(a, "L_code_end")
    a(f"s_cmp_eq_u32 s12, 1\ns_cbranch_scc1 {l_s}")
    p1_addr_main(a, 'G'); p1_consumer_loop(a, 'G'); p1_epilogue(a, 'G')
    a(f"s_branch {l_p2}")
    a.label(l_s)
    p1_addr_main(a, 'M'); p1_consumer_loop(a, 'M'); p1_epilogue(a, 'M')
    a.label(l_p2)
    p2_consumer(a)
    a.label(l_end)
    a("s_endpgm")
    a.label("L_code_end")
    a("s_endpgm")

def desc(name, nv=256):
    return f""".p2align 6
.amdhsa_kernel {name}
  .amdhsa_next_free_vgpr {nv}
  .amdhsa_next_free_sgpr 102
  .amdhsa_accum_offset {nv}
  .amdhsa_group_segment_fixed_size 0
  .amdhsa_kernarg_size 136
  .amdhsa_user_sgpr_count 2
  .amdhsa_user_sgpr_kernarg_segment_ptr 1
  .amdhsa_system_sgpr_workgroup_id_x 1
.end_amdhsa_kernel
"""

def main(out):
    a = Asm()
    n1 = NAME + "_kernel"
    kernel(a, n1)
    txt = HDR
    txt += f"; @launch grid=(256,1,1) block=(512,1,1) lds={LDS1}\n"
    txt += '.amdgcn_target "amdgcn-amd-amdhsa--gfx950"\n.text\n' + a.text()
    txt += '.section .rodata,"a"\n' + desc(n1)
    open(out, "w").write(txt)

if __name__ == "__main__":
    args = sys.argv[1:]
    if "-stamp" in args: STAMP = True; args.remove("-stamp")
    for x in list(args):
        if "=" in x:
            k, v = x.split("="); assert k in OPT, k; OPT[k] = int(v); args.remove(x)
    if "-sched" in args:
        print(p2_schedule()); sys.exit()
    main(args[0] if args else f"cdna_kernels/{NAME}.s")
```

```python
import sys

NAME = "gated_mix__ssm_conv_s5__glu_gated_glu__prompt"
HDR = open("cdna_kernels/%s.s.ref" % NAME).read().split("; Override launch")[0]

G_OFF = 0xB00000
AGG_OFF = 0xB10000
AGG_SZ = 16 * 512 * 16
FLG_OFF = 0xB30000
WS_USED = 0xB40000
LOG2E = 0x3fb8aa3b
NLOG2E = 0xbfb8aa3b
INV2PI = 0x3e22f983
OPT = dict(sc1_a=1, touch1=1, touch2=1, cpf=1, per2=2, KH=4, KB=10, prio=3, fine=0, t1s=1, SP=10, capM=72, halfB=0, tw=-1, BLA=7, noF=0, la=0)

class Asm:
    def __init__(s): s.l = []; s.uid = 0
    def __call__(s, t):
        for x in t.strip("\n").split("\n"): s.l.append("    " + x.strip())
    def label(s, n): s.l.append(n + ":")
    def lab(s, p="L"):
        s.uid += 1; return f"{p}_{s.uid}"
    def text(s): return "\n".join(s.l) + "\n"

def vr(b, n): return f"v[{b}:{b+n-1}]" if n > 1 else f"v{b}"
def R(b, n): return list(range(b, b+n))
def srd(a, d, lo, size):
    a(f"s_mov_b32 s{d}, s{lo}\ns_mov_b32 s{d+1}, s{lo+1}\ns_mov_b32 s{d+2}, {size}\ns_mov_b32 s{d+3}, 0x20000")

sX, sLre, sLim, sBre, sBim, sCre, sCim, sLdt = 16, 18, 20, 22, 24, 26, 28, 30
sDsk, sBx, sWg, sWu, sWd, sGw, sOut, sDbg, sWs = 32, 34, 36, 38, 40, 42, 44, 46, 48

STAMP = False
TS_OFF = 0xB40000
def stamp(a, idx):
    if not STAMP: return
    a(f"s_memrealtime s[100:101]\ns_waitcnt lgkmcnt(0)\nv_writelane_b32 v31, s100, {idx}")
def cstamp(a, idx):
    if not STAMP: return
    a(f"s_memtime s[100:101]\ns_waitcnt lgkmcnt(0)\nv_writelane_b32 v31, s100, {idx}")
def stamp_flush(a):
    if not STAMP: return
    srd(a, 96, sWs, 0xC00000)
    a(f"s_lshl_b32 s94, s2, 3\ns_add_u32 s94, s94, s93\ns_lshl_b32 s94, s94, 8\ns_add_u32 s94, s94, {TS_OFF}")
    a("s_mov_b64 exec, -1\nv_lshlrev_b32 v30, 2, v0\nbuffer_store_dword v31, v30, s[96:99], s94 offen")

def bf16_round(a, d, s, t):
    a(f"v_cvt_pk_bf16_f32 v{t}, v{s}, v{s}\nv_lshlrev_b32 v{d}, 16, v{t}")

class Sched:
    def __init__(s, a): s.a = a; s.n = 0; s.prod = {}; s.done = -1
    def read(s, ins, regs):
        s.a(ins)
        for r in regs: s.prod[r] = s.n
        s.n += 1
    def need(s, regs):
        k = max([s.prod.get(r, -1) for r in regs] + [-1])
        if k > s.done:
            s.a(f"s_waitcnt lgkmcnt({min(s.n - 1 - k, 15)})")
            s.done = k if s.n - 1 - k <= 15 else s.n - 16
    def all(s):
        if s.done < s.n - 1: s.a("s_waitcnt lgkmcnt(0)")
        s.done = s.n - 1
    def item(s, it):
        if isinstance(it, str): s.a(it)
        elif it[0] == 'lds': s.read(it[1], it[2])
        else: s.need(it[1]); s.a(it[2])

class VM:
    def __init__(s, a): s.a = a; s.ops = []; s.done = -1
    def op(s, ins, tag):
        if len(s.ops) - 1 - s.done >= 62:
            s.a("s_waitcnt vmcnt(56)"); s.done = len(s.ops) - 1 - 56
        s.a(ins); s.ops.append(tag)
    def wait(s, *tags, extra=""):
        k = max([i for i, t in enumerate(s.ops) if t in tags] + [-1])
        if k > s.done:
            n = min(len(s.ops) - 1 - k, 63)
            s.a(f"s_waitcnt vmcnt({n}){extra}")
            s.done = len(s.ops) - 1 - n
        elif extra: s.a("s_waitcnt" + extra)
    def copy(s):
        v = VM(s.a); v.ops = list(s.ops); v.done = s.done; return v

PARAM = 0; NONCE = 2048; XR = 4096; BLK = XR + 49152; EXT = XR + 147456
AGE_RE = EXT; AGE_IM = EXT + 1024; AGM_RE = EXT + 2048; AGM_IM = EXT + 8192; TSE = EXT + 4096
LDS1 = 163840
def page(p): return XR + p*8192
def slotpages(sl): return [2*sl, 2*sl+1, 6+sl, 9+sl]
SPAGES = [16, 17]
ORD = [7*g + 2*j for g in range(4) for j in range(3)] + list(range(28, 44))
ORD += [s for s in range(28) if s not in ORD]
assert sorted(ORD) == list(range(44))
NA_, NH_ = 12, 28

def p2_schedule():
    Bp = {}; Biss = {}
    nb = 0
    def take(key, pages):
        nonlocal nb
        Biss.setdefault(key, [])
        for p in pages:
            if nb <= 43: Bp[nb] = p; Biss[key].append(nb); nb += 1
    take('b12', [12, 13, 14, 15])
    take('b13', slotpages(13 % 3)); take('b14', slotpages(14 % 3)); take('Z', slotpages(15 % 3))
    for k in range(22):
        fr = []
        if k == 1: fr += SPAGES
        if k >= 2: fr += [Bp[2*k-4], Bp[2*k-3]]
        take(k, fr)
    assert nb == 44
    return Bp, Biss

vXn = 16; vWa = 20; vXe = 24; vEa = 28; vWt = 30; vXp = 12
ACA = 32; ACB = 96; ACE = 160; FR = [176, 192]; FE = 208
def acc(base, w, m): return base + (w * 2 + m) * 16
def ace(comp, m): return ACE + (comp * 2 + m) * 4

def reads_main(kind, slot, kk, st):
    b = FR[st]
    xs, vx = (4096, vXn) if kind == 'G' else (1024, vXp)
    def xr(m): return [(f"ds_read_b128 {vr(b+4*m,4)}, v{vx+kk} offset:{XR + slot*16384 + m*xs}", R(b+4*m, 4))]
    def wr(w):
        d = b + 8 + 4*w
        if kind == 'G':
            off = w*24576 + slot*8192 + kk*2048
            return [(f"ds_read_b64_tr_b16 {vr(d,2)}, v{vWt} offset:{off}", R(d, 2)),
                    (f"ds_read_b64_tr_b16 {vr(d+2,2)}, v{vWt} offset:{off+512}", R(d+2, 2))]
        return [(f"ds_read_b128 {vr(d,4)}, v{vWa+kk} offset:{w*24576 + slot*8192}", R(d, 4))]
    return xr(0) + wr(0) + xr(1) + wr(1)

def reads_ext(slot, k32):
    r = []
    for m in range(2): r.append((f"ds_read_b128 {vr(FE+4*m,4)}, v{vXe+2*m+k32} offset:{XR + slot*16384}", R(FE+4*m, 4)))
    for cp in range(2): r.append((f"ds_read_b128 {vr(FE+8+4*cp,4)}, v{vEa+k32} offset:{slot*4096+cp*2048}", R(FE+8+4*cp, 4)))
    return r

def mfma_main(kind, base, st, first):
    r = []; b = FR[st]
    for w in range(2):
        for m in range(2):
            d = vr(acc(base, w, m), 16); X = vr(b+4*m, 4); W = vr(b+8+4*w, 4)
            c = "0" if first else d
            ins = f"v_mfma_f32_32x32x16_bf16 {d}, {W}, {X}, {c}" if kind == 'G' else f"v_mfma_f32_32x32x16_bf16 {d}, {X}, {W}, {c}"
            r.append((ins, R(b+4*m, 4) + R(b+8+4*w, 4)))
    return r

def mfma_ext(first):
    r = []
    for cp in range(2):
        for m in range(2):
            d = vr(ace(cp, m), 4)
            r.append((f"v_mfma_f32_16x16x32_bf16 {d}, {vr(FE+4*m,4)}, {vr(FE+8+4*cp,4)}, {'0' if first else d}", R(FE+4*m, 4) + R(FE+8+4*cp, 4)))
    return r

def cmul_pk(Rr, I, C, t1, t2):
    return [f"v_pk_mul_f32 {vr(t1,2)}, {vr(Rr,2)}, {vr(C,2)} op_sel:[0,0] op_sel_hi:[1,0]",
            f"v_pk_mul_f32 {vr(t2,2)}, {vr(Rr,2)}, {vr(C,2)} op_sel:[0,1] op_sel_hi:[1,1] neg_lo:[0,1] neg_hi:[0,1]",
            f"v_pk_fma_f32 {vr(Rr,2)}, {vr(I,2)}, {vr(C,2)}, {vr(t1,2)} op_sel:[0,1,0] op_sel_hi:[1,1,1] neg_lo:[0,1,0] neg_hi:[0,1,0]",
            f"v_pk_fma_f32 {vr(I,2)}, {vr(I,2)}, {vr(C,2)}, {vr(t2,2)} op_sel:[0,0,0] op_sel_hi:[1,0,1] neg_lo:[0,1,0] neg_hi:[0,1,0]"]
def cmul_s(Rr, I, cr, ci, t1, t2):
    return [f"v_mul_f32 v{t1}, v{Rr}, v{cr}", f"v_mul_f32 v{t2}, v{Rr}, v{ci}",
            f"v_fma_f32 v{Rr}, -v{I}, v{ci}, v{t1}", f"v_fma_f32 v{I}, -v{I}, v{cr}, -v{t2}"]
def flag_item(which):
    return f"v_mov_b32 v1, s15\nv_mov_b32 v2, 0\ns_mov_b64 exec, 1\nbuffer_store_dword v1, v2, s[64:67], s81 offen offset:{which*256} sc1\ns_mov_b64 exec, -1"
def merge(l1, l2):
    o = []; i = j = 0
    while i < len(l1) or j < len(l2):
        if j >= len(l2) or (i < len(l1) and i * len(l2) <= j * len(l1)): o.append(l1[i]); i += 1
        else: o.append(l2[j]); j += 1
    return o

def cmul2(Rr, I, C, t):
    o = []
    for par in range(2): o += cmul_s(Rr+par, I+par, C, C+1, t+2*par, t+2*par+1)
    return [o[0], o[4], o[1], o[5], o[2], o[6], o[3], o[7]]
def step2(dr, di, pr, pi, L, Rr, I, conj):
    o = []
    n1, n2 = ("", "-") if conj else ("-", "")
    for par in range(2): o += [f"v_fma_f32 v{dr+par}, v{pr+par}, v{L}, v{Rr+par}", f"v_fma_f32 v{di+par}, v{pi+par}, v{L}, v{I+par}"]
    for par in range(2): o += [f"v_fma_f32 v{dr+par}, {n1}v{pi+par}, v{L+1}, v{dr+par}", f"v_fma_f32 v{di+par}, {n2}v{pr+par}, v{L+1}, v{di+par}"]
    return o
def stores_last(l):
    st = [x for x in l if 'buffer_store' in (x if isinstance(x, str) else x[-1] if x[0] == 'need' else '')]
    return [x for x in l if x not in st] + st
def glu_epi(base, sbase, E0, P0, morder=(0, 1)):
    o = []; k = 0
    for m in morder:
        for half in range(2):
            E = E0 + (k & 1) * 8; P = P0 + (k & 1) * 4; k += 1
            gb, ub = acc(base, 0, m) + 8*half, acc(base, 1, m) + 8*half
            t = []
            for i in range(8): t.append(f"v_mul_f32 v{E+i}, s50, v{gb+i}")
            for i in range(8): t.append(f"v_exp_f32 v{E+i}, v{E+i}")
            for i in range(8): t.append(f"v_add_f32 v{E+i}, 1.0, v{E+i}")
            for i in range(8): t.append(f"v_rcp_f32 v{E+i}, v{E+i}")
            for i in range(8): t.append(f"v_mul_f32 v{E+i}, v{E+i}, v{ub+i}")
            for i in range(0, 8, 2): t.append(f"v_cvt_pk_bf16_f32 v{P+i//2}, v{E+i}, v{E+i+1}")
            t.append(f"s_add_u32 s5, s{sbase}, {(m*176 + half)*1024}\nbuffer_store_dwordx4 {vr(P,4)}, v6, s[64:67], s5 offen sc1")
            o.append(t)
    return o

LS = 13
PE = 208; PM = 212
def passB_fillers(M):
    F = {s: [] for s in range(8, 17)}
    lr, li = PE, PE+1
    f = F[8]
    f += [f"v_and_b32 v1, 15, v0", "v_lshlrev_b32 v1, 4, v1", ('lds', f"ds_read_b128 {vr(PE,4)}, v1 offset:{PARAM}", R(PE, 4))]
    if M: f += ["v_and_b32 v2, 31, v0", "v_lshlrev_b32 v2, 4, v2", "s_and_b32 s4, s3, 1\ns_lshl_b32 s4, s4, 9\nv_add_u32 v2, s4, v2",
                ('lds', f"ds_read_b128 {vr(PM,4)}, v2 offset:{PARAM + 256}", R(PM, 4))]
    f += [f"s_lshl_b32 s4, s3, 8\ns_add_u32 s4, s4, {EXT}\nv_lshlrev_b32 v5, 2, v0", "v_add_u32 v5, s4, v5"]
    if M: f += ["v_lshrrev_b32 v3, 5, v0", "v_lshlrev_b32 v3, 9, v3", "v_lshrrev_b32 v4, 2, v2", "v_add_u32 v3, v3, v4",
                f"s_lshr_b32 s4, s3, 1\ns_lshl_b32 s4, s4, 10\ns_add_u32 s4, s4, {EXT}\nv_add_u32 v3, s4, v3"]
    l1 = []; l2 = []
    if M:
        S = [216, 218]; T = [220, 222]
        for pos in range(1, 16):
            m, rr = pos >> 3, (pos & 7) * 2
            if pos == 1: pr, pi = acc(ACA, 0, 0), acc(ACA, 1, 0)
            else: pr, pi = (S if (pos & 1) else T)
            dr, di = (T if (pos & 1) else S)
            l1 += step2(dr, di, pr, pi, PM, acc(ACA, 0, m) + rr, acc(ACA, 1, m) + rr, False)
        l1[0] = ('need', R(PM, 4), l1[0])
        for par in range(2):
            l1.append(('lds', f"ds_write_b32 v3, v{T[0]+par} offset:{AGM_RE - EXT + par*256}", []))
            l1.append(('lds', f"ds_write_b32 v3, v{T[1]+par} offset:{AGM_IM - EXT + par*256}", []))
    S = [224, 225]; T = [226, 227]
    for pos in range(1, 8):
        Rr = ace(0, pos >> 2) + (pos & 3); I = ace(1, pos >> 2) + (pos & 3)
        if pos == 1: pr, pi = ace(0, 0), ace(1, 0)
        else: pr, pi = (S if (pos & 1) else T)
        dr, di = (T if (pos & 1) else S)
        l2 += [f"v_fma_f32 v{dr}, v{pr}, v{lr}, v{Rr}", f"v_fma_f32 v{di}, v{pi}, v{lr}, v{I}",
               f"v_fma_f32 v{dr}, -v{pi}, v{li}, v{dr}", f"v_fma_f32 v{di}, v{pr}, v{li}, v{di}"]
    l2[0] = ('need', R(PE, 4), l2[0])
    l2 += [('lds', f"ds_write_b32 v5, v{T[0]} offset:{AGE_RE - EXT}", []), ('lds', f"ds_write_b32 v5, v{T[1]} offset:{AGE_IM - EXT}", [])]
    agg = merge(l1, l2)
    if M: F[8] += agg[:len(agg)//2]; F[9] += agg[len(agg)//2:]
    else: F[8] += agg
    pre_ = ["s_waitcnt vmcnt(0)", "v_mov_b32 v1, 0", ('lds', f"ds_read_b32 v1, v1 offset:{NONCE}", [1])]
    rest = [('need', [1], "v_readfirstlane_b32 s15, v1")]
    for m in range(2):
        for i in range(4): rest += cmul_s(ace(0, m)+i, ace(1, m)+i, PE+2, PE+3, 228 + (i & 1)*2, 229 + (i & 1)*2)
    rest += [f"s_lshl_b32 s4, s3, 10\ns_add_u32 s4, s4, {TSE}\nv_and_b32 v7, 15, v0", "v_lshlrev_b32 v7, 6, v7", "v_lshrrev_b32 v8, 4, v0", "v_lshl_add_u32 v7, v8, 4, v7", "v_add_u32 v7, s4, v7",
            "v_lshrrev_b32 v9, 5, v0", "v_lshlrev_b32 v9, 3, v9", "v_bfe_u32 v10, v0, 2, 2", "v_add_u32 v9, v9, v10",
            "v_bfe_u32 v10, v0, 4, 1", "v_lshlrev_b32 v10, 5, v10", "v_and_b32 v11, 3, v0", "v_lshl_add_u32 v10, v11, 3, v10",
            "v_lshl_add_u32 v8, v9, 6, v10", "v_add_u32 v8, s4, v8"]
    if M:
        rest += [f"s_mov_b32 s4, {page(SPAGES[0])}\ns_cmp_ge_u32 s3, 2\ns_cselect_b32 s4, {page(SPAGES[1])}, s4\ns_and_b32 s5, s3, 1\ns_lshl_b32 s5, s5, 12\ns_add_u32 s4, s4, s5\nv_and_b32 v11, 1, v0",
                "v_bfe_u32 v4, v0, 2, 1", "v_lshl_or_b32 v11, v4, 1, v11", "v_bfe_u32 v4, v0, 1, 1", "v_lshl_or_b32 v11, v4, 2, v11",
                "v_lshrrev_b32 v4, 5, v0", "v_lshlrev_b32 v4, 2, v4", "v_xor_b32 v11, v11, v4", "v_lshlrev_b32 v11, 4, v11",
                "v_and_b32 v4, 31, v0", "v_lshl_add_u32 v12, v4, 7, v11", "v_add_u32 v12, s4, v12"]
        rest += [f"v_xor_b32 v{12+i}, {i*16}, v12" for i in range(1, 4)]
        rest += ["v_bfe_u32 v11, v0, 2, 1", "v_bfe_u32 v4, v0, 3, 1", "v_lshl_or_b32 v11, v4, 2, v11", "v_lshlrev_b32 v11, 4, v11", "v_xor_b32 v11, v11, v10",
                "v_lshl_add_u32 v20, v9, 7, v11", "v_add_u32 v20, s4, v20", "v_xor_b32 v21, 32, v20", "v_add_u32 v21, 512, v21",
                "v_xor_b32 v22, 64, v20", "v_xor_b32 v23, 64, v21"]
        mid = list(pre_)
        for m in range(2):
            for rr in range(0, 16, 2):
                mid += cmul2(acc(ACA, 0, m)+rr, acc(ACA, 1, m)+rr, PM+2, 232 + ((rr >> 1) & 3) * 4)
        mid += rest + [flag_item(0)]
        st = list(range(10, LS))
        n = (len(mid) + len(st) - 1) // len(st)
        for i, s in enumerate(st): F[s] += mid[i*n:(i+1)*n]
    else:
        g = glu_epi(ACA, 14, 232, 248)
        F[9] += pre_ + g[0] + g[1][:20]; F[10] += g[1][20:] + g[2][:40]
        F[11] += g[2][40:] + g[3]
        F[9] = stores_last(F[9]); F[10] = stores_last(F[10])
        F[12] += rest + ["s_waitcnt vmcnt(0)\n" + flag_item(0)]
    IE = 224; IM = [216, 218]
    late = [('lds', f"ds_read_b32 v{IE}, v5 offset:{AGE_RE - EXT}", [IE]), ('lds', f"ds_read_b32 v{IE+1}, v5 offset:{AGE_IM - EXT}", [IE+1])]
    if M:
        for par in range(2):
            late += [('lds', f"ds_read_b32 v{IM[0]+par}, v3 offset:{AGM_RE - EXT + par*256}", [IM[0]+par]), ('lds', f"ds_read_b32 v{IM[1]+par}, v3 offset:{AGM_IM - EXT + par*256}", [IM[1]+par])]
    c = cmul_s(IE, IE+1, PE+2, PE+3, 228, 229); c[0] = ('need', [IE, IE+1], c[0]); late += c
    if M:
        c = cmul2(IM[0], IM[1], PM+2, 220); c[0] = ('need', R(216, 4), c[0]); late += c
    l1 = []; l2 = []
    for pos in range(8):
        Rr = ace(0, pos >> 2) + (pos & 3); I = ace(1, pos >> 2) + (pos & 3)
        if pos == 0: pr, pi = IE, IE+1
        else: pr, pi = ace(0, (pos-1) >> 2) + ((pos-1) & 3), ace(1, (pos-1) >> 2) + ((pos-1) & 3)
        l2 += [f"v_fma_f32 v{Rr}, v{pr}, v{lr}, v{Rr}", f"v_fma_f32 v{I}, v{pi}, v{lr}, v{I}",
               f"v_fma_f32 v{Rr}, v{pi}, v{li}, v{Rr}", f"v_fma_f32 v{I}, -v{pr}, v{li}, v{I}"]
    for cp in range(2):
        for d in range(4):
            b = ace(cp, d >> 1) + (d & 1)*2
            l2.append(f"v_cvt_pk_bf16_f32 v{232+4*cp+d}, v{b}, v{b+1}")
    for cp in range(2):
        l2 += [('lds', f"ds_write_b128 v7, {vr(232+4*cp,4)}", []), ('lds', f"ds_read_b64_tr_b16 {vr(240+4*cp,2)}, v8", R(240+4*cp, 2)),
               ('lds', f"ds_read_b64_tr_b16 {vr(242+4*cp,2)}, v8 offset:256", R(242+4*cp, 2))]
    l2 += ["s_nop 0"] * 6
    l2 += [('need', R(240, 4), f"buffer_store_dwordx4 {vr(240,4)}, v6, s[64:67], s82 offen sc1"), ('need', R(244, 4), f"buffer_store_dwordx4 {vr(244,4)}, v6, s[64:67], s83 offen sc1")]
    if M:
        for pos in range(16):
            m, rr = pos >> 3, (pos & 7) * 2
            if pos == 0: pr, pi = IM
            else:
                pm, prr = (pos-1) >> 3, ((pos-1) & 7) * 2
                pr, pi = acc(ACA, 0, pm)+prr, acc(ACA, 1, pm)+prr
            Rr, I = acc(ACA, 0, m) + rr, acc(ACA, 1, m) + rr
            l1 += step2(Rr, I, pr, pi, PM, Rr, I, True)
    late += merge(l1, [x for x in l2 if x != "s_nop 0"] if M else l2)
    if M:
        for comp in range(2):
            PB = 216 if comp == 0 else 232
            k = 0
            for par in range(2):
                for m in range(2):
                    b = acc(ACA, comp, m); P = PB + 4*k
                    for aa in range(4): late.append(f"v_cvt_pk_bf16_f32 v{P+aa}, v{b+4*aa+par}, v{b+4*aa+2+par}")
                    late.append(('lds', f"ds_write_b128 v{12+2*par+m}, {vr(P,4)}", []))
                    k += 1
            k = 0
            for mt in range(2):
                for u in range(2):
                    d = acc(ACA, comp, 0) + 4*k
                    late.append(('lds', f"ds_read_b64_tr_b16 {vr(d,2)}, v{20+2*mt} offset:{u*2048}", R(d, 2)))
                    late.append(('lds', f"ds_read_b64_tr_b16 {vr(d+2,2)}, v{21+2*mt} offset:{u*2048}", R(d+2, 2)))
                    k += 1
        for comp in range(2):
            k = 0
            for mt in range(2):
                for u in range(2):
                    d = acc(ACA, comp, 0) + 4*k
                    late.append(('need', R(d, 4), f"s_add_u32 s5, s80, {(mt*176 + 4*comp + u)*1024}\nbuffer_store_dwordx4 {vr(d,4)}, v6, s[64:67], s5 offen sc1"))
                    k += 1
    st = list(range(LS, 16))
    if M:
        n = OPT['capM']
        for i, s in enumerate(st): F[s] += late[i*n:(i+1)*n]
        F[16] += late[len(st)*n:]
        F[LS] = F[LS];
        for s in st: F[s] = stores_last(F[s])
    else:
        F[LS] += late
    return F

def p1_consumer(a, M):
    S = Sched(a)
    kindA = 'S' if M else 'G'
    F = passB_fillers(M)
    stamp(a, 1)
    a("s_barrier")
    stamp(a, 2); cstamp(a, 56)
    for x in reads_main(kindA, 0, 0, 0): S.read(*x)
    for s in range(16):
        slot = s % 3
        kind = kindA if s < 8 else 'G'
        base = ACA if s < 8 else ACB
        for kk in range(4):
            st = kk & 1
            rd = []
            if kk == 3:
                if s < 15:
                    S.all()
                    if OPT['fine']: stamp(a, 16 + s)
                    a("s_barrier")
                    rd = reads_main(kindA if s + 1 < 8 else 'G', (s+1) % 3, 0, 0)
            else:
                rd = reads_main(kind, slot, kk+1, st ^ 1)
            if s < 8 and kk in (0, 2): rd = rd + reads_ext(slot, kk >> 1)
            mf = mfma_main(kind, base, st, (s in (0, 8)) and kk == 0)
            if s < 8 and kk in (1, 3): mf = mf[:2] + mfma_ext(s == 0 and kk == 1) + mf[2:]
            fs = s + 1 if kk == 3 else s
            fl = []
            if fs >= 8 and not (s == 7) and not OPT['noF']:
                q = F[fs]
                nblk = {8: 3, 16: 1}.get(fs, 4)
                bi = kk if fs == 8 else (0 if kk == 3 else kk + 1)
                if fs == 16: fl = q[:16]; F[16] = q[16:]
                else:
                    n = (len(q) + nblk - 1) // nblk
                    fl = q[bi*n:(bi+1)*n]
            rd = list(rd); fl = list(fl)
            nf = (len(fl) + len(mf) - 1) // len(mf) if fl else 0
            for i, (ins, regs) in enumerate(mf):
                S.need(regs); a(ins)
                for _ in range(2):
                    if rd: S.read(*rd.pop(0))
                if s == 8 and kk == 0 and i < 2: continue
                for _ in range(nf + (1 if s == 8 and kk == 0 else 0) * nf):
                    if fl: S.item(fl.pop(0))
            for x in rd: S.read(*x)
            for x in fl: S.item(x)
            if kk == 3 and s == OPT['tw']: touches(a, 2)
        if s == 3: stamp(a, 3); cstamp(a, 57)
        if s == 7: stamp(a, 4); cstamp(a, 58)
    stamp(a, 5); cstamp(a, 61)
    if not OPT['noF']:
        for x in F[16]: S.item(x)
    S.all()
    stamp(a, 8)

def touches(a, part):
    l1 = a.lab(); l2 = a.lab()
    lo, hi = {0: (1, 8), 1: (1, 4), 2: (4, 8)}[part]
    a(f"s_cmp_lg_u32 s3, 1\ns_cbranch_scc1 {l1}")
    srd(a, 52, sX, 2097152); srd(a, 56, sWg, 1835008); srd(a, 60, sWu, 1835008)
    a(f"v_and_b32 v1, 7, v0\nv_min_u32 v1, {hi-lo-1}, v1\nv_lshlrev_b32 v1, 7, v1\nv_lshrrev_b32 v2, 3, v0\nv_lshl_add_u32 v1, v2, 10, v1\ns_lshl_b32 s4, s2, 13\ns_add_u32 s4, s4, {lo*128}")
    a("buffer_load_dword v8, v1, s[52:55], s4 offen")
    r0 = 0 if part == 0 else 64*lo
    nl = (64*hi - r0) * 28 // 256
    a(f"v_min_u32 v1, {nl-1}, v0\nv_lshlrev_b32 v1, 7, v1\ns_mul_i32 s4, s2, {nl*128}\ns_add_u32 s4, s4, {r0*3584}")
    a("buffer_load_dword v8, v1, s[56:59], s4 offen\nbuffer_load_dword v8, v1, s[60:63], s4 offen")
    if part == 2:
        a(f"v_min_u32 v1, 6, v0\nv_lshlrev_b32 v1, 7, v1\ns_mul_i32 s4, s2, {7*128}")
        a("buffer_load_dword v8, v1, s[56:59], s4 offen\nbuffer_load_dword v8, v1, s[60:63], s4 offen")
    a.label(l1)
    a(f"s_cmp_lg_u32 s3, 2\ns_cbranch_scc1 {l2}")
    if part in (0, 1):
        srd(a, 52, sBre, 524288); srd(a, 56, sBim, 524288)
        a("v_and_b32 v1, 15, v0\nv_lshlrev_b32 v1, 7, v1\ns_lshl_b32 s4, s2, 11\nbuffer_load_dword v8, v1, s[52:55], s4 offen\nbuffer_load_dword v8, v1, s[56:59], s4 offen")
    if part in (0, 2):
        srd(a, 52, sWd, 1835008); srd(a, 56, sCre, 524288); srd(a, 60, sCim, 524288)
        a("v_and_b32 v1, 15, v0\nv_lshlrev_b32 v1, 7, v1\ns_lshl_b32 s4, s2, 11\nbuffer_load_dword v8, v1, s[56:59], s4 offen\nbuffer_load_dword v8, v1, s[60:63], s4 offen")
        a(f"v_min_u32 v1, 55, v0\nv_lshlrev_b32 v1, 7, v1\ns_mul_i32 s4, s2, {56*128}\nbuffer_load_dword v8, v1, s[52:55], s4 offen")
    a.label(l2)

def p1_consumer_prologue(a, code_end):
    srd(a, 64, sWs, WS_USED)
    l_np = a.lab(); l_nn = a.lab(); l_n2 = a.lab(); l_n1 = a.lab()
    a(f"s_cmp_lg_u32 s3, {3 if OPT['cpf'] else 77}\ns_cbranch_scc1 {l_np}")
    a(f"s_mov_b32 s4, {code_end} - {NAME}_kernel - 8\nv_lshlrev_b32 v1, 7, v0")
    a("s_lshr_b32 s5, s2, 3\ns_and_b32 s5, s5, 7\ns_lshl_b32 s5, s5, 13\nv_add_u32 v2, s5, v1\nv_min_u32 v2, s4, v2\nglobal_load_dword v8, v2, s[90:91]")
    a.label(l_np)
    a(f"s_cmp_lg_u32 s3, 0\ns_cbranch_scc1 {l_nn}")
    srd(a, 60, sDbg, 256)
    a("s_memrealtime s[14:15]\nv_mov_b32 v9, 0\nv_mov_b32 v11, 0\ns_waitcnt lgkmcnt(0)\ns_or_b32 s14, s14, 1")
    a("v_mov_b32 v10, s14\ns_mov_b64 exec, 1")
    a("buffer_atomic_cmpswap v[10:11], v9, s[60:63], 0 offen sc0\ns_mov_b64 exec, -1")
    a.label(l_nn)
    touches(a, 0 if OPT['tw'] < 0 else 1)
    a("v_bfe_u32 v1, v0, 2, 2\nv_and_b32 v2, 3, v0\nv_lshl_add_u32 v3, v1, 3, v2")
    a("v_and_b32 v4, 2, v0\nv_bfe_u32 v5, v0, 3, 1\nv_lshl_or_b32 v4, v5, 2, v4\nv_lshrrev_b32 v5, 4, v0\nv_xor_b32 v4, v4, v5")
    a(f"v_lshlrev_b32 v4, 4, v4\nv_lshl_add_u32 v{vXe}, v3, 7, v4\ns_lshl_b32 s4, s3, 12\nv_add_u32 v{vXe}, s4, v{vXe}")
    a(f"v_xor_b32 v{vXe+1}, 64, v{vXe}\nv_xor_b32 v{vXe+2}, 16, v{vXe}\nv_add_u32 v{vXe+2}, 512, v{vXe+2}\nv_xor_b32 v{vXe+3}, 64, v{vXe+2}")
    a("v_and_b32 v3, 15, v0\nv_lshrrev_b32 v4, 1, v3\nv_xor_b32 v4, v4, v5\nv_lshlrev_b32 v4, 4, v4")
    a(f"v_lshl_add_u32 v{vEa}, v3, 7, v4\nv_add_u32 v{vEa}, {EXT}, v{vEa}\nv_xor_b32 v{vEa+1}, 64, v{vEa}")
    a(f"s_lshr_b32 s4, s3, 1\ns_lshl_b32 s4, s4, 13\ns_and_b32 s51, s3, 1")
    for perm, vx in ((0, vXn), (1, vXp)):
        if not perm: a("v_and_b32 v1, 31, v0")
        else:
            a("v_bfe_u32 v1, v0, 2, 1\nv_lshlrev_b32 v1, 5, v1\nv_and_b32 v2, 1, v0\nv_lshl_or_b32 v1, v2, 4, v1")
            a("v_bfe_u32 v2, v0, 3, 2\nv_lshl_or_b32 v1, v2, 1, v1\nv_bfe_u32 v2, v0, 1, 1\nv_or_b32 v1, v1, v2")
        a("v_bfe_u32 v2, v1, 2, 1\nv_and_b32 v3, 2, v1\nv_or_b32 v2, v2, v3\nv_bfe_u32 v3, v1, 4, 1\nv_lshl_or_b32 v2, v3, 2, v2")
        a(f"v_lshrrev_b32 v3, 5, v0\nv_xor_b32 v2, v2, v3\nv_lshlrev_b32 v2, 4, v2\nv_lshl_add_u32 v{vx}, v1, 7, v2\nv_add_u32 v{vx}, s4, v{vx}")
        for kk in range(1, 4): a(f"v_xor_b32 v{vx+kk}, {kk*32}, v{vx}")
    a("v_lshrrev_b32 v1, 5, v0\nv_lshlrev_b32 v1, 3, v1\nv_bfe_u32 v2, v0, 2, 2\nv_add_u32 v1, v1, v2")
    a("v_bfe_u32 v2, v0, 4, 1\nv_lshlrev_b32 v2, 5, v2\nv_and_b32 v3, 3, v0\nv_lshl_add_u32 v2, v3, 3, v2")
    a("v_bfe_u32 v3, v0, 3, 1\nv_lshlrev_b32 v3, 6, v3\nv_xor_b32 v2, v2, v3")
    a(f"s_lshl_b32 s5, s51, 6\nv_xor_b32 v2, s5, v2\nv_lshl_add_u32 v{vWt}, v1, 7, v2\nv_add_u32 v{vWt}, {BLK}, v{vWt}")
    a(f"s_lshl_b32 s5, s51, 12\ns_add_u32 s5, s5, {BLK}")
    a("v_and_b32 v1, 31, v0\nv_bfe_u32 v2, v0, 1, 3\nv_lshrrev_b32 v3, 5, v0\nv_xor_b32 v2, v2, v3\nv_lshlrev_b32 v2, 4, v2")
    a(f"v_lshl_add_u32 v{vWa}, v1, 7, v2\nv_add_u32 v{vWa}, s5, v{vWa}")
    for kk in range(1, 4): a(f"v_xor_b32 v{vWa+kk}, {kk*32}, v{vWa}")
    a("v_lshlrev_b32 v6, 4, v0")
    a(f"s_lshl_b32 s81, s6, 10\ns_lshl_b32 s4, s13, 4\ns_add_u32 s81, s81, s4\ns_lshl_b32 s4, s3, 2\ns_add_u32 s81, s81, s4\ns_add_u32 s81, s81, {FLG_OFF}")
    a("s_lshr_b32 s4, s3, 1\ns_lshl_b32 s4, s4, 1\ns_lshl_b32 s5, s6, 2\ns_add_u32 s4, s4, s5\ns_mul_i32 s79, s4, 176")
    a("s_lshl_b32 s5, s51, 1\ns_add_u32 s4, s79, s5\ns_lshr_b32 s5, s9, 4\ns_add_u32 s4, s4, s5\ns_lshl_b32 s78, s4, 10")
    a("s_xor_b32 s5, s12, 1\ns_lshl_b32 s5, s5, 12\ns_add_u32 s77, s78, s5")
    a("s_lshl_b32 s5, s8, 4\ns_add_u32 s4, s79, s5\ns_add_u32 s4, s4, 120\ns_lshl_b32 s5, s51, 1\ns_add_u32 s4, s4, s5\ns_lshl_b32 s80, s4, 10")
    a("s_lshl_b32 s4, s6, 2\ns_add_u32 s4, s4, s3\ns_mul_i32 s4, s4, 176\ns_lshl_b32 s5, s8, 4\ns_add_u32 s4, s4, s5\ns_add_u32 s4, s4, s7\ns_add_u32 s4, s4, 112\ns_lshl_b32 s82, s4, 10\ns_add_u32 s83, s82, 4096")
    a(f"s_mov_b32 s50, {NLOG2E}\ns_mov_b32 s51, {NLOG2E}")

def nonce_finish(a):
    l = a.lab()
    return (f"s_cmp_lg_u32 s3, 0\ns_cbranch_scc1 {l}\ns_waitcnt vmcnt(0)\nv_mov_b32 v9, s14\nv_cmp_eq_u32 vcc, 0, v10\ns_mov_b64 exec, 1\nv_mov_b32 v11, 0\n"
            f"v_cndmask_b32 v10, v10, v9, vcc\nds_write_b32 v11, v10 offset:{NONCE}\ns_waitcnt lgkmcnt(0)\ns_mov_b64 exec, -1\n{l}:\ns_mov_b32 s14, s78")

def p2_ids(a):
    a("s_and_b32 s4, s2, 7\ns_lshr_b32 s5, s2, 3\ns_lshl_b32 s84, s4, 2\ns_lshr_b32 s4, s5, 3\ns_add_u32 s84, s84, s4\ns_and_b32 s85, s5, 7")

def p2_consumer(a):
    Bp, Biss = p2_schedule()
    p2_ids(a)
    a("s_and_b32 s8, s3, 1\ns_lshr_b32 s9, s3, 1")
    srd(a, 52, sX, 2097152); srd(a, 56, sDsk, 1024); srd(a, 60, sOut, 4194304)
    XV = 96; GV = 112; DV = 128; OM = 132
    a("s_lshl_b32 s10, s84, 6\ns_lshl_b32 s4, s9, 5\ns_add_u32 s10, s10, s4")
    a("s_lshl_b32 s11, s85, 6\ns_lshl_b32 s4, s8, 5\ns_add_u32 s11, s11, s4")
    a("v_and_b32 v1, 31, v0\nv_add_u32 v1, s11, v1\nv_lshrrev_b32 v2, 5, v0\nv_lshlrev_b32 v2, 2, v2\nv_add_u32 v2, s10, v2")
    a("v_lshlrev_b32 v3, 1, v1\nv_lshl_add_u32 v4, v2, 10, v3")
    a("v_lshlrev_b32 v5, 2, v1\nv_lshl_add_u32 v5, v2, 11, v5")
    a(f"v_lshlrev_b32 v10, 2, v2\nv_add_u32 v10, {G_OFF}, v10")
    a("s_lshl_b32 s4, s84, 1\ns_add_u32 s4, s4, s9\ns_mul_i32 s4, s4, 176\ns_lshl_b32 s5, s8, 1\ns_add_u32 s4, s4, s5\ns_lshl_b32 s80, s4, 10")
    V = VM(a)
    V.ops = ['H'] * 10
    ld = []
    for i in range(16):
        row = 8*(i >> 2) + (i & 3)
        ld.append((f"s_mov_b32 s4, {row*1024}", f"buffer_load_ushort v{XV+i}, v4, s[52:55], s4 offen"))
    for q in range(4): ld.append((None, f"buffer_load_dwordx4 {vr(GV+4*q,4)}, v10, s[64:67], 0 offen offset:{q*32} sc1"))
    ld.append((None, f"buffer_load_ushort v{DV}, v3, s[56:59], 0 offen"))
    vBw, vBc = 12, 18
    a("v_lshrrev_b32 v7, 5, v0\nv_lshlrev_b32 v7, 2, v7\nv_bfe_u32 v8, v0, 2, 2\nv_add_u32 v7, v7, v8")
    a("v_bfe_u32 v8, v0, 4, 1\nv_lshlrev_b32 v8, 5, v8\nv_and_b32 v9, 3, v0\nv_lshl_add_u32 v8, v9, 3, v8\nv_bfe_u32 v9, v0, 3, 1\nv_lshlrev_b32 v9, 6, v9\nv_xor_b32 v8, v8, v9")
    a(f"s_lshl_b32 s4, s8, 12\nv_lshl_add_u32 v{vBw}, v7, 7, v8\nv_add_u32 v{vBw}, s4, v{vBw}\nv_xor_b32 v{vBw+1}, 64, v{vBw}")
    a("v_and_b32 v7, 31, v0\nv_bfe_u32 v8, v0, 1, 3\nv_lshrrev_b32 v9, 5, v0\nv_xor_b32 v8, v8, v9\ns_lshl_b32 s4, s8, 2\nv_xor_b32 v8, s4, v8\nv_lshlrev_b32 v8, 4, v8")
    a(f"v_lshl_add_u32 v{vBc}, v7, 7, v8\nv_xor_b32 v{vBc+1}, 32, v{vBc}")
    W = 57344
    for t in range(1, 3):
        for e in range(2):
            a(f"v_add_u32 v{vBw+2*t+e}, {t*W}, v{vBw+e}\nv_add_u32 v{vBc+2*t+e}, {t*W}, v{vBc+e}")
    AB, AY = 32, 64
    def F(p): return 176 + (p & 3) * 16
    AREGS = [240, 244, 248, 252, 160, 164, 168, 172, 24, 148, 152, 156]
    NAR = 12
    def areg(p, e): return AREGS[(2*p + e) % NAR]
    SC = " sc1" if OPT['sc1_a'] else ""
    def loadA(p):
        for e in range(2):
            a(f"s_add_u32 s4, s80, {ORD[p]*4096 + e*1024}")
            V.op(f"buffer_load_dwordx4 {vr(areg(p,e),4)}, v6, s[64:67], s4 offen{SC}", ('A', p, e))
    def win(addr): t = min((addr - XR) // W, 2); return t, addr - t*W
    def isy(p): return NA_ <= p < NH_
    def reads(p):
        tb, ob = win(page(Bp[p]))
        r = []; f = F(p)
        for e in range(2):
            for nt in range(2):
                d = f + (e*2+nt)*4
                if not isy(p):
                    r.append((f"ds_read_b64_tr_b16 {vr(d,2)}, v{vBw+2*tb+nt} offset:{ob + e*2048}", R(d, 2)))
                    r.append((f"ds_read_b64_tr_b16 {vr(d+2,2)}, v{vBw+2*tb+nt} offset:{ob + e*2048 + 1024}", R(d+2, 2)))
                else:
                    r.append((f"ds_read_b128 {vr(d,4)}, v{vBc+2*tb+e} offset:{ob + nt*4096}", R(d, 4)))
        return r
    pre = [f"v_lshlrev_b32 v{DV}, 16, v{DV}", "s_mov_b32 s12, 0xffff0000"]
    for i in range(0, 16, 2):
        for e in range(2):
            pre += [f"v_lshlrev_b32 v{XV+i+e}, 16, v{XV+i+e}", f"v_mul_f32 v{XV+i+e}, v{XV+i+e}, v{DV}", f"v_sub_f32 v{OM+i+e}, 1.0, v{GV+i+e}"]
        pre += [f"v_cvt_pk_bf16_f32 v{DV+1}, v{XV+i}, v{XV+i+1}", f"v_cvt_pk_bf16_f32 v{DV+2}, v{OM+i}, v{OM+i+1}",
                f"v_lshlrev_b32 v{XV+i}, 16, v{DV+1}", f"v_and_b32 v{XV+i+1}, s12, v{DV+1}",
                f"v_lshlrev_b32 v{OM+i}, 16, v{DV+2}", f"v_and_b32 v{OM+i+1}, s12, v{DV+2}"]
    epiB = glu_epi(ACB, 77, 64, 80, (1, 0))
    S = Sched(a)
    na = 0
    KH, KB = OPT['KH'], OPT['KB']
    def allowed(p, k): return (p < NA_) or (p < NH_ and k > KH) or k > KB
    for k in range(23):
        if k == 0: stamp(a, 6)
        if k < 22: a("s_barrier")
        if k == 0: stamp(a, 9); cstamp(a, 59)
        if k < 22 and (OPT['fine'] or k in (5, 12, 19)): stamp(a, 32+k)
        if k == 14: stamp(a, 10)
        rd = reads(2*k) + reads(2*k+1) if k < 22 else []
        if k == 0:
            while na < 4: loadA(na); na += 1
            for x in rd: S.read(*x)
            for x in epiB[0] + epiB[1]:
                a(x)
                if 'buffer_store' in x: V.ops.append('E')
            V.wait('H'); a(flag_item(1)); V.ops.append('F')
            while na < NAR // 2: loadA(na); na += 1
            eb = epiB[2] + epiB[3]
        else:
            rd = list(rd)
            for p in (2*k-2, 2*k-1):
                f = F(p)
                for e in range(2):
                    V.wait(('A', p, e))
                    for nt in range(2):
                        d = vr((AY if isy(p) else AB) + 16*nt, 16)
                        c = "0" if (p in (0, NA_) and e == 0) else d
                        S.need(R(f+(e*2+nt)*4, 4))
                        a(f"v_mfma_f32_32x32x16_bf16 {d}, {vr(areg(p,e),4)}, {vr(f+(e*2+nt)*4,4)}, {c}")
                        for _ in range(OPT['per2']):
                            if rd: S.read(*rd.pop(0))
                        for _ in range(4):
                            if eb:
                                x = eb.pop(0); a(x)
                                if 'buffer_store' in x: V.ops.append('E')
                while na <= 43 and na < p + 1 + NAR // 2 and allowed(na, k): loadA(na); na += 1
            for x in rd: S.read(*x)
        if k == 4:
            assert not eb
            V.wait('E'); a(flag_item(2)); V.ops.append('F')
        if 5 <= k < 5 + 7:
            for (p_, ins) in ld[(k-5)*3:(k-5)*3+3]:
                if p_: a(p_)
                V.op(ins, 'L')
        if k == 14: V.wait('L')
        if 14 <= k < 21:
            n = (len(pre) + 6) // 7
            for x in pre[(k-14)*n:(k-13)*n]: a(x)
    assert na == 44
    stamp(a, 11); cstamp(a, 60)
    used = {Bp[40], Bp[41], Bp[42], Bp[43]}
    xp = [page(p) for p in range(18) if p not in used][:4]
    a(f"s_mov_b32 s4, {xp[0]}\ns_mov_b32 s5, {xp[1]}\ns_cmp_eq_u32 s9, 1\ns_cselect_b32 s4, {xp[2]}, s4\ns_cselect_b32 s5, {xp[3]}, s5")
    a("s_cmp_eq_u32 s8, 1\ns_cselect_b32 s10, s5, s4\ns_cselect_b32 s11, s4, s5")
    a("v_lshlrev_b32 v7, 4, v0\nv_add_u32 v8, s10, v7\nv_add_u32 v9, s11, v7")
    lk1 = a.lab(); lj = a.lab()
    a(f"s_nop 4\ns_cbranch_scc1 {lk1}")
    RB, RY = 176, 192
    for kh in range(2):
        if kh == 1: a.label(lk1)
        sn = kh ^ 1
        for q in range(4):
            a(f"ds_write_b128 v8, {vr(AB+16*sn+4*q,4)} offset:{q*1024}\nds_write_b128 v8, {vr(AY+16*sn+4*q,4)} offset:{4096+q*1024}")
        for i in range(0, 16, 2): a(f"v_pk_add_f32 {vr(AY+16*kh+i,2)}, {vr(AY+16*kh+i,2)}, {vr(XV+i,2)}")
        a("s_waitcnt lgkmcnt(0)\ns_barrier")
        for q in range(4):
            a(f"ds_read_b128 {vr(RB+4*q,4)}, v9 offset:{q*1024}\nds_read_b128 {vr(RY+4*q,4)}, v9 offset:{4096+q*1024}")
        for q in range(4):
            a(f"s_waitcnt lgkmcnt({6-2*q})")
            for i in range(4*q, 4*q+4, 2):
                a(f"v_pk_add_f32 {vr(RB+i,2)}, {vr(RB+i,2)}, {vr(AB+16*kh+i,2)}\nv_pk_add_f32 {vr(RY+i,2)}, {vr(RY+i,2)}, {vr(AY+16*kh+i,2)}")
        if kh == 0: a(f"s_branch {lj}")
    a.label(lj)
    for i in range(0, 16, 2):
        T = 224 + (i & 6)
        a(f"v_cvt_pk_bf16_f32 v{T}, v{RB+i}, v{RB+i+1}\nv_pk_mul_f32 {vr(RY+i,2)}, {vr(RY+i,2)}, {vr(GV+i,2)}")
        a(f"v_lshlrev_b32 v{RB+i}, 16, v{T}\nv_and_b32 v{RB+i+1}, s12, v{T}")
        a(f"v_pk_mul_f32 {vr(RB+i,2)}, {vr(RB+i,2)}, {vr(OM+i,2)}\nv_cvt_pk_bf16_f32 v{T}, v{RB+i}, v{RB+i+1}")
        a(f"v_lshlrev_b32 v{RB+i}, 16, v{T}\nv_and_b32 v{RB+i+1}, s12, v{T}")
        a(f"v_pk_add_f32 {vr(RY+i,2)}, {vr(RY+i,2)}, {vr(RB+i,2)}")
        for e in range(2):
            row = 8*((i+e) >> 2) + ((i+e) & 3)
            a(f"s_mov_b32 s4, {row*2048}\nbuffer_store_dword v{RY+i+e}, v5, s[60:63], s4 offen")
    stamp(a, 12)
    if STAMP: a("s_waitcnt vmcnt(0)")
    stamp(a, 13)
    stamp_flush(a)
    a("s_endpgm")

def loader_pre(a):
    if OPT['prio']: a(f"s_setprio {OPT['prio']}")
    a("v_lshrrev_b32 v1, 3, v0\nv_and_b32 v2, 7, v0")
    a("v_lshrrev_b32 v3, 5, v0\nv_and_b32 v4, 2, v1\nv_or_b32 v3, v3, v4\nv_xor_b32 v3, v3, v2\nv_lshlrev_b32 v3, 4, v3\nv_lshl_add_u32 v10, v1, 10, v3\nv_xor_b32 v11, 64, v10")
    a("v_bfe_u32 v3, v0, 4, 1\nv_lshlrev_b32 v3, 2, v3\nv_xor_b32 v3, v3, v2\nv_lshlrev_b32 v3, 4, v3\ns_movk_i32 s4, 3584\nv_mad_u32_u24 v16, v1, s4, v3\nv_lshl_add_u32 v15, v1, 10, v3")
    a("v_lshrrev_b32 v4, 4, v0\nv_xor_b32 v3, v4, v2\nv_lshlrev_b32 v3, 4, v3\nv_lshl_add_u32 v28, v1, 10, v3\nv_xor_b32 v29, 64, v28")
    a("s_cmp_eq_u32 s12, 1\ns_cselect_b64 vcc, -1, 0\nv_cndmask_b32 v12, v16, v28, vcc\nv_cndmask_b32 v13, v16, v29, vcc")
    a("s_and_b32 s14, s3, 1")
    a("s_mul_i32 s4, s14, 114688\ns_lshl_b32 s5, s9, 1\ns_add_u32 s70, s4, s5\ns_lshl_b32 s4, s14, 5\ns_add_u32 s4, s4, s11\ns_lshl_b32 s5, s4, 10")
    a("s_cmp_eq_u32 s12, 1\ns_cselect_b32 s80, s5, s70\ns_mov_b32 s81, 143360\ns_movk_i32 s82, 28672\ns_cselect_b32 s81, -24448, s81\ns_cselect_b32 s82, 8192, s82")
    a("s_mov_b32 s4, 1835008\ns_cselect_b32 s58, 524288, s4\ns_mov_b32 s59, 0x20000")
    a("s_cselect_b32 s4, 0, 128\ns_add_u32 s70, s70, s4")
    a("s_lshl_b32 s4, s14, 2\nv_or_b32 v4, s4, v4\nv_xor_b32 v4, v4, v2\nv_lshlrev_b32 v4, 4, v4\nv_lshl_add_u32 v14, v1, 10, v4")
    a("s_lshl_b32 s4, s14, 3\ns_add_u32 s4, s4, s10\ns_lshl_b32 s85, s4, 10")
    a("s_lshl_b32 s4, s6, 7\ns_lshl_b32 s5, s3, 5\ns_add_u32 s4, s4, s5\ns_lshl_b32 s86, s4, 10")
    a(f"s_lshl_b32 s87, s3, 12\ns_lshr_b32 s4, s3, 1\ns_mul_i32 s88, s4, 24576\ns_lshl_b32 s4, s14, 12\ns_add_u32 s88, s88, s4\ns_add_u32 s88, s88, {BLK}\ns_lshl_b32 s89, s3, 10\ns_add_u32 s89, s89, {EXT}")
    a("s_mov_b32 s54, 2097152\ns_mov_b32 s55, 0x20000\ns_mov_b32 s62, 524288\ns_mov_b32 s63, 0x20000")

def loader(a):
    Bp, Biss = p2_schedule()
    V = VM(a)
    a("s_waitcnt lgkmcnt(0)")
    a("s_mov_b64 s[52:53], s[16:17]")
    a("s_cmp_ge_u32 s3, 2\ns_cselect_b64 s[72:73], s[38:39], s[36:37]\ns_cselect_b64 s[60:61], s[24:25], s[22:23]")
    a("s_cmp_eq_u32 s12, 1\ns_cselect_b64 s[56:57], s[60:61], s[72:73]\ns_mov_b64 s[90:91], s[72:73]")
    def issue(V, s):
        slot = s % 3
        if s == 8:
            a("s_mov_b64 s[56:57], s[90:91]\ns_mov_b32 s58, 1835008\ns_mov_b32 s80, s70\ns_mov_b32 s81, 143360\ns_movk_i32 s82, 28672\nv_mov_b32 v12, v16\nv_mov_b32 v13, v16")
        for i in range(4):
            a(f"s_add_u32 m0, s87, {XR + slot*16384 + i*1024}\ns_add_u32 s4, s86, {i*8192 + (s & 7)*128}")
            V.op(f"buffer_load_dwordx4 v{10 + (i >> 1)}, s[52:55], s4 offen lds", ('S', s))
        for i in range(4):
            a(f"s_add_u32 m0, s88, {slot*8192 + i*1024}\ns_nop 0")
            V.op(f"buffer_load_dwordx4 v{12 + (i & 1)}, s[56:59], s80 offen lds", ('S', s))
            a("s_add_u32 s80, s80, s82" if i < 3 else "s_add_u32 s80, s80, s81")
        if s < 8:
            a(f"s_add_u32 m0, s89, {slot*4096}\ns_add_u32 s4, s85, {s*128}")
            V.op("buffer_load_dwordx4 v14, s[60:63], s4 offen lds", ('S', s))
    def bar(V, s, extra=""):
        V.wait(('S', s+1), extra=extra)
        if OPT['fine']: stamp(a, 16 + s)
        a("s_barrier")
        if s + 3 <= 15: issue(V, s + 3)
    issue(V, 0); stamp(a, 14); issue(V, 1)
    V.wait(('S', 0)); stamp(a, 2); a("s_barrier")
    issue(V, 2)
    srd(a, 64, sWs, WS_USED)
    srd(a, 92 if not STAMP else 92, sGw, 1024) if False else None
    srd(a, 72, sLre, 1024); srd(a, 76, sLim, 1024); srd(a, 96, sLdt, 1024)
    a("s_mov_b64 s[68:69], s[42:43]\ns_mov_b32 s71, 0x20000\ns_mov_b32 s92, s70\ns_movk_i32 s70, 1024")
    a("s_lshl_b32 s4, s6, 7\ns_lshl_b32 s5, s13, 3\ns_add_u32 s4, s4, s5\ns_lshl_b32 s5, s3, 1\ns_add_u32 s15, s4, s5\ns_lshl_b32 s14, s15, 10")
    a("v_lshlrev_b32 v1, 4, v0")
    a("s_and_b32 s4, s3, 1\ns_lshl_b32 s4, s4, 6\nv_add_u32 v2, s4, v0\nv_add_u32 v3, s10, v2\ns_sub_u32 s5, s11, 16\nv_add_u32 v4, s5, v2")
    a("v_cmp_gt_u32 vcc, 16, v2\ns_nop 1\nv_cndmask_b32 v3, v4, v3, vcc\nv_lshlrev_b32 v3, 1, v3")
    bar(V, 0)
    V.op("buffer_load_dwordx4 v[32:35], v1, s[52:55], s14 offen", 'X'); V.op("buffer_load_dwordx4 v[36:39], v1, s[52:55], s14 offen offset:1024", 'X')
    V.op("buffer_load_dwordx4 v[40:43], v1, s[68:71], 0 offen", 'X')
    V.op("buffer_load_ushort v44, v3, s[72:75], 0 offen", 'X'); V.op("buffer_load_ushort v45, v3, s[76:79], 0 offen", 'X'); V.op("buffer_load_ushort v46, v3, s[96:99], 0 offen", 'X')
    a("s_mov_b32 s70, s92")
    bar(V, 1); bar(V, 2)
    V.wait('X')
    a("v_lshlrev_b32 v44, 16, v44\nv_lshlrev_b32 v45, 16, v45\nv_lshlrev_b32 v46, 16, v46")
    a(f"v_mul_f32 v46, {LOG2E}, v46\nv_exp_f32 v46, v46\ns_nop 0")
    bf16_round(a, 46, 46, 47)
    a(f"v_mul_f32 v47, v46, v44\nv_mul_f32 v48, v46, v45")
    a(f"v_mul_f32 v47, {LOG2E}, v47\nv_exp_f32 v47, v47\nv_mul_f32 v48, {INV2PI}, v48\nv_rndne_f32 v49, v48\nv_sub_f32 v48, v48, v49")
    a("v_cos_f32 v49, v48\nv_sin_f32 v50, v48\ns_nop 0\nv_mul_f32 v52, v47, v49\nv_mul_f32 v53, v47, v50")
    a("v_mul_f32 v49, v44, v44\nv_fma_f32 v49, v45, v45, v49\nv_rcp_f32 v49, v49\nv_add_f32 v50, -1.0, v52")
    a("v_mul_f32 v54, v50, v44\nv_fma_f32 v54, v53, v45, v54\nv_mul_f32 v55, v53, v44\nv_fma_f32 v55, -v50, v45, v55")
    a("v_add_f32 v49, v49, v49\nv_mul_f32 v54, v54, v49\nv_mul_f32 v55, v55, v49")
    a("v_lshlrev_b32 v2, 4, v2\nv_cmp_gt_u32 vcc, 1280, v2\ns_and_saveexec_b64 s[78:79], vcc")
    a(f"ds_write_b128 v2, v[52:55] offset:{PARAM}")
    a("s_mov_b64 exec, s[78:79]")
    bar(V, 3, " lgkmcnt(0)")
    a("v_mov_b32 v4, 0\nv_mov_b32 v5, 0\ns_mov_b32 s4, 0xffff0000")
    for i in range(4):
        a(f"v_lshlrev_b32 v6, 16, v{40+i}\nv_and_b32 v7, s4, v{40+i}")
        for r in range(2):
            x = 32 + 4*r + i
            a(f"v_lshlrev_b32 v8, 16, v{x}\nv_and_b32 v9, s4, v{x}\nv_mul_f32 v8, v8, v6\nv_mul_f32 v9, v9, v7")
            a(f"v_cvt_pk_bf16_f32 v8, v8, v9\nv_lshlrev_b32 v9, 16, v8\nv_and_b32 v8, s4, v8\nv_add_f32 v{4+r}, v{4+r}, v9\nv_add_f32 v{4+r}, v{4+r}, v8")
        if i == 1: bar(V, 4); a("s_mov_b32 s4, 0xffff0000")
    bar(V, 5)
    for sh in [1, 2, 4, 8]:
        a(f"s_nop 1\nv_add_f32_dpp v4, v4, v4 row_shr:{sh} row_mask:0xf bank_mask:0xf bound_ctrl:0\nv_add_f32_dpp v5, v5, v5 row_shr:{sh} row_mask:0xf bank_mask:0xf bound_ctrl:0")
    a("s_nop 1")
    for r in range(2):
        a(f"v_readlane_b32 s{76+20*r}, v{4+r}, 15\nv_readlane_b32 s{77+20*r}, v{4+r}, 31\nv_readlane_b32 s{78+20*r}, v{4+r}, 47")
    a("s_nop 1")
    for j in range(3):
        a(f"v_add_f32 v4, s{76+j}, v4\nv_add_f32 v5, s{96+j}, v5")
    a("s_nop 0\nv_readlane_b32 s4, v4, 63\nv_readlane_b32 s5, v5, 63\nv_cmp_eq_u32 vcc, 1, v0\ns_nop 0\nv_mov_b32 v4, s4\nv_mov_b32 v5, s5\nv_cndmask_b32 v4, v4, v5, vcc")
    bf16_round(a, 4, 4, 5)
    a(f"v_mul_f32 v4, {NLOG2E}, v4\nv_exp_f32 v4, v4\ns_nop 0\nv_add_f32 v4, 1.0, v4\nv_rcp_f32 v4, v4\ns_nop 0")
    bf16_round(a, 4, 4, 5)
    a(f"s_lshl_b32 s4, s15, 2\ns_add_u32 s4, s4, {G_OFF}\nv_lshlrev_b32 v5, 2, v0\ns_mov_b64 exec, 3")
    V.op("buffer_store_dword v4, v5, s[64:67], s4 offen sc1", 'G'); a("s_mov_b64 exec, -1")
    bar(V, 6); bar(V, 7)
    V.wait('G')
    def b_setup():
        p2_ids(a)
        srd(a, 52, sWd, 1835008); srd(a, 56, sCre, 524288); srd(a, 60, sCim, 524288)
        a("s_lshl_b32 s4, s3, 14\ns_lshl_b32 s5, s85, 7\ns_add_u32 s89, s4, s5\ns_lshl_b32 s5, s85, 16\ns_add_u32 s90, s4, s5\ns_lshl_b32 s91, s3, 11")
    def loadB(V, p):
        s = ORD[p]
        for i in range(1 if OPT['halfB'] else 2):
            a(f"s_add_u32 m0, s91, {page(Bp[p]) + i*1024}")
            if s < 28:
                a(f"s_add_u32 s4, s89, {s*65536 + i*8192}")
                V.op(f"buffer_load_dwordx4 v15, s[52:55], s4 offen lds", ('B', p))
            else:
                t = s - 28
                a(f"s_add_u32 s4, s90, {(t >> 1)*128 + i*8192}")
                V.op(f"buffer_load_dwordx4 v{28+i}, s[{56 + 4*(t & 1)}:{59 + 4*(t & 1)}], s4 offen lds", ('B', p))
    def poll(which, pre_issued=False):
        lp = a.lab(); ld = a.lab(); lc = a.lab()
        a("s_mov_b32 s88, 0x8000")
        if pre_issued: a(f"s_branch {lc}")
        a.label(lp)
        a(f"buffer_load_dword v8, v9, s[64:67], s86 offen offset:{which*256} sc1\ns_waitcnt vmcnt(0)")
        a.label(lc)
        a(f"v_cmp_ne_u32 vcc, s72, v8\ns_cmp_eq_u64 vcc, 0\ns_cbranch_scc1 {ld}")
        a(f"s_sub_u32 s88, s88, 1\ns_cmp_lg_u32 s88, 0\ns_cbranch_scc1 {lp}")
        a.label(ld)
    KH, KB = OPT['KH'], OPT['KB']
    def pollissue(V, which): V.op(f"buffer_load_dword v8, v9, s[64:67], s86 offen offset:{which*256} sc1", 'P')
    def tail(V, role):
        b_setup()
        if role == 2:
            a(f"s_lshr_b32 s4, s84, 1\ns_lshl_b32 s4, s4, 10\ns_add_u32 s86, s4, {FLG_OFF}\nv_lshlrev_b32 v9, 2, v0")
        for p in Biss['b12']: loadB(V, p)
        bar(V, 13, " lgkmcnt(0)")
        for p in Biss['b13']: loadB(V, p)
        bar(V, 14)
        if role == 2: pollissue(V, 0)
        for p in Biss['b14']: loadB(V, p)
        for k in range(22):
            V.wait(('B', 2*k), ('B', 2*k+1))
            if role == 2:
                for (kk_, wh) in ((-1, 0), (KH, 1), (KB, 2)):
                    if k == kk_ + 1:
                        V.wait('P'); poll(wh, pre_issued=True)
                        if wh == 0: stamp(a, 7)
            if OPT['fine']: stamp(a, 32+k)
            a("s_barrier")
            if role == 2 and k in (KH, KB): pollissue(V, 1 if k == KH else 2)
            if k == 0:
                for p in Biss['Z']: loadB(V, p)
            for p in Biss[k]: loadB(V, p)
        a("s_barrier")
        stamp_flush(a)
        a("s_endpgm")
    L2 = a.lab(); L3 = a.lab(); LM = a.lab()
    a(f"s_cmp_eq_u32 s3, 2\ns_cbranch_scc1 {L2}\ns_and_b32 s4, s3, s12\ns_cmp_eq_u32 s3, 3\ns_cselect_b32 s4, s4, 0\ns_cmp_eq_u32 s4, 1\ns_cbranch_scc1 {L3}")
    V0 = V
    V = V0.copy()
    for s in range(8, 13): bar(V, s)
    tail(V, 0)
    a.label(L2)
    V = V0.copy(); combine(a, V, bar, 8, 16, 16, 3, AGE_RE, AGE_IM, 10, PARAM); tail(V, 2)
    a.label(L3)
    V = V0.copy(); combine(a, V, bar, 9, 8, 64, 4, AGM_RE, AGM_IM, 11, PARAM + 256); tail(V, 3)

def combine(a, V, bar, sb, nseg, nch, lg, are, aim, sch, pofs):
    ex = f"s_mov_b64 exec, {(1 << nch) - 1}" if nch < 64 else "s_nop 0"
    a(f"s_add_u32 s96, s48, {AGG_OFF}\ns_addc_u32 s97, s49, 0\ns_mov_b32 s98, {AGG_SZ}\ns_mov_b32 s99, 0x20000")
    a(f"v_lshlrev_b32 v1, 4, v0\nds_read_b64 v[2:3], v1 offset:{pofs}\ns_waitcnt lgkmcnt(0)")
    for i in range(7):
        a("v_mul_f32 v8, v3, v3\nv_mul_f32 v9, v2, v3\nv_fma_f32 v2, v2, v2, -v8\nv_add_f32 v3, v9, v9")
        if i == lg - 1: a("v_mov_b32 v6, v2\nv_mov_b32 v7, v3")
    a(f"s_lshl_b32 s4, s{sch}, 4\ns_lshl_b32 s5, s6, 13\ns_add_u32 s4, s4, s5\nv_add_u32 v17, s4, v1")
    a(f"v_lshlrev_b32 v1, 2, v0\nv_add_u32 v1, {EXT}, v1\nv_mov_b32 v4, 0")
    bar(V, 8); bar(V, 9)
    stamp(a, 3)
    AR, AI = 32, 48
    a(ex)
    a(f"ds_read_b32 v5, v4 offset:{NONCE}")
    for sg in range(nseg):
        a(f"ds_read_b32 v{AR+sg}, v1 offset:{are - EXT + sg*nch*4}\nds_read_b32 v{AI+sg}, v1 offset:{aim - EXT + sg*nch*4}")
    def step(pr, pi, dr, di, mr, mi, ar, ai):
        a(f"v_fma_f32 v{dr}, v{pr}, v{mr}, v{ar}\nv_fma_f32 v{di}, v{pi}, v{mr}, v{ai}\nv_fma_f32 v{dr}, -v{pi}, v{mi}, v{dr}\nv_fma_f32 v{di}, v{pr}, v{mi}, v{di}")
    a("s_waitcnt lgkmcnt(0)\nv_mov_b32 v125, v5\nv_mov_b32 v127, v5\nv_readfirstlane_b32 s72, v5")
    cur = (AR, AI)
    for sg in range(1, nseg):
        dst = (124, 126) if (nseg - 1 - sg) % 2 == 0 else (20, 21)
        step(cur[0], cur[1], dst[0], dst[1], 6, 7, AR+sg, AI+sg); cur = dst
    V.op("buffer_store_dwordx4 v[124:127], v17, s[96:99], 0 offen sc1", 'Q')
    a("s_mov_b64 exec, -1")
    stamp(a, 4)
    for s in range(10, OPT['SP'] + 1): bar(V, s)
    E = 60
    def loads(first):
        for d in range(1, 16):
            a(f"v_subrev_u32 v{24+(d&3)}, {d*8192}, v17")
            ins = f"buffer_load_dwordx4 {vr(E+4*d,4)}, v{24+(d&3)}, s[96:99], 0 offen sc1"
            if first: V.op(ins, 'R')
            else: a(ins)
    a(ex)
    loads(True)
    a("s_mov_b64 exec, -1")
    for s in range(OPT['SP'] + 1, 12): bar(V, s)
    a(ex)
    lp = a.lab(); ld = a.lab(); lc = a.lab()
    a("s_mov_b32 s83, 0x8000")
    V.wait('R')
    a(f"s_branch {lc}")
    a.label(lp)
    loads(False)
    a("s_waitcnt vmcnt(0)")
    a.label(lc)
    a("s_mov_b64 s[94:95], 0")
    for d in range(1, 16):
        a(f"s_cmp_ge_u32 s6, {d}\ns_cselect_b32 s4, s72, 0\nv_cmp_ne_u32 vcc, s4, v{E+4*d+1}\ns_or_b64 s[94:95], s[94:95], vcc\nv_cmp_ne_u32 vcc, s4, v{E+4*d+3}\ns_or_b64 s[94:95], s[94:95], vcc")
    a(f"s_cmp_eq_u64 s[94:95], 0\ns_cbranch_scc1 {ld}")
    a(f"s_sub_u32 s83, s83, 1\ns_cmp_lg_u32 s83, 0\ns_cbranch_scc1 {lp}")
    a.label(ld)
    stamp(a, 5)
    cur = (E+60, E+62)
    for d in range(14, 0, -1):
        dst = (20, 21) if d & 1 else (22, 23)
        step(cur[0], cur[1], dst[0], dst[1], 2, 3, E+4*d, E+4*d+2); cur = dst
    for sg in range(nseg):
        a(f"ds_write_b32 v1, v{cur[0]} offset:{are - EXT + sg*nch*4}\nds_write_b32 v1, v{cur[1]} offset:{aim - EXT + sg*nch*4}")
        if sg < nseg - 1:
            dst = (22, 23) if cur == (20, 21) else (20, 21)
            step(cur[0], cur[1], dst[0], dst[1], 6, 7, AR+sg, AI+sg); cur = dst
    a("s_mov_b64 exec, -1")
    stamp(a, 6)
    bar(V, 12, " lgkmcnt(0)")

def kernel(a, name):
    a(f".p2align 8\n.globl {name}\n.type {name},@function")
    a.label(name)
    l_end = a.lab(); l_c = a.lab(); l_s = a.lab(); l_p2 = a.lab()
    a("s_getpc_b64 s[90:91]")
    a(f"s_cmp_ge_u32 s2, 256\ns_cbranch_scc1 {l_end}")
    a("s_load_dwordx16 s[16:31], s[0:1], 0\ns_load_dwordx16 s[32:47], s[0:1], 64\ns_load_dwordx2 s[48:49], s[0:1], 128")
    a("v_lshrrev_b32 v1, 6, v0\nv_and_b32 v0, 63, v0\nv_readfirstlane_b32 s3, v1")
    a("s_and_b32 s4, s2, 7\ns_lshr_b32 s5, s2, 3")
    a("s_and_b32 s6, s4, 1\ns_lshr_b32 s7, s5, 2\ns_lshl_b32 s7, s7, 1\ns_add_u32 s6, s6, s7")
    a("s_and_b32 s7, s5, 3\ns_lshr_b32 s8, s4, 1")
    a("s_mul_i32 s9, s8, 448\ns_lshl_b32 s4, s7, 7\ns_add_u32 s9, s9, s4")
    a("s_lshl_b32 s11, s8, 7\ns_lshl_b32 s4, s7, 4\ns_add_u32 s10, s11, s4\ns_add_u32 s11, s11, 64")
    a("s_cmp_eq_u32 s7, 3\ns_cselect_b32 s12, 1, 0\ns_lshl_b32 s13, s8, 2\ns_add_u32 s13, s13, s7")
    if STAMP: a("s_mov_b32 s93, s3")
    a(f"s_cmp_lt_u32 s3, 4\ns_cbranch_scc1 {l_c}")
    a("s_sub_u32 s3, s3, 4")
    loader_pre(a)
    if STAMP: a("s_waitcnt lgkmcnt(0)")
    stamp(a, 0)
    loader(a)
    a.label(l_c)
    a("s_waitcnt lgkmcnt(0)")
    stamp(a, 0)
    p1_consumer_prologue(a, "L_code_end")
    a(f"s_cmp_eq_u32 s12, 1\ns_cbranch_scc1 {l_s}")
    global passB_fillers
    orig = passB_fillers
    def withnonce(M):
        F = orig(M); F[8] = [nonce_finish(a)] + F[8]; return F
    passB_fillers = withnonce
    p1_consumer(a, False)
    a(f"s_branch {l_p2}")
    a.label(l_s)
    p1_consumer(a, True)
    a.label(l_p2)
    p2_consumer(a)
    a.label(l_end)
    a("s_endpgm")
    a.label("L_code_end")
    a("s_endpgm")

def desc(name, nv=256):
    return f""".p2align 6
.amdhsa_kernel {name}
  .amdhsa_next_free_vgpr {nv}
  .amdhsa_next_free_sgpr 102
  .amdhsa_accum_offset {nv}
  .amdhsa_group_segment_fixed_size 0
  .amdhsa_kernarg_size 136
  .amdhsa_user_sgpr_count 2
  .amdhsa_user_sgpr_kernarg_segment_ptr 1
  .amdhsa_system_sgpr_workgroup_id_x 1
.end_amdhsa_kernel
"""

def main(out):
    a = Asm()
    n1 = NAME + "_kernel"
    kernel(a, n1)
    txt = HDR
    txt += f"; @launch grid=(256,1,1) block=(512,1,1) lds={LDS1}\n"
    txt += '.amdgcn_target "amdgcn-amd-amdhsa--gfx950"\n.text\n' + a.text()
    txt += '.section .rodata,"a"\n' + desc(n1)
    open(out, "w").write(txt)

if __name__ == "__main__":
    args = sys.argv[1:]
    if "-stamp" in args: STAMP = True; args.remove("-stamp")
    for x in list(args):
        if "=" in x:
            k, v = x.split("="); assert k in OPT, k; OPT[k] = int(v); args.remove(x)
    if "-sched" in args:
        print(p2_schedule()); print(ORD)
        for M in (False, True): print({k: len(v) for k, v in passB_fillers(M).items()})
        sys.exit()
    main(args[0] if args else f"cdna_kernels/{NAME}.s")
```

```python
import sys

NAME = "gated_mix__ssm_conv_s5__glu_gated_glu__prompt"
HDR = open("cdna_kernels/%s.s.ref" % NAME).read().split("; Override launch")[0]

G_OFF = 0xB00000
AGG_OFF = 0xB10000
AGG_SZ = 16 * 512 * 16
FLG_OFF = 0xB30000
WS_USED = 0xB40000
LOG2E = 0x3fb8aa3b
NLOG2E = 0xbfb8aa3b
INV2PI = 0x3e22f983
OPT = dict(sc1_a=1, touch1=1, touch2=1, cpf=1, per2=2, KH=4, KB=10, prio=3, fine=0, t1s=1, SP=10, capM=72, LS=13, halfB=0, tw=2, gs=0, per1=2, be=0, l2t=0, BLA=7, noF=0, la=0)

class Asm:
    def __init__(s): s.l = []; s.uid = 0
    def __call__(s, t):
        for x in t.strip("\n").split("\n"): s.l.append("    " + x.strip())
    def label(s, n): s.l.append(n + ":")
    def lab(s, p="L"):
        s.uid += 1; return f"{p}_{s.uid}"
    def text(s): return "\n".join(s.l) + "\n"

def vr(b, n): return f"v[{b}:{b+n-1}]" if n > 1 else f"v{b}"
def R(b, n): return list(range(b, b+n))
def srd(a, d, lo, size):
    a(f"s_mov_b32 s{d}, s{lo}\ns_mov_b32 s{d+1}, s{lo+1}\ns_mov_b32 s{d+2}, {size}\ns_mov_b32 s{d+3}, 0x20000")

sX, sLre, sLim, sBre, sBim, sCre, sCim, sLdt = 16, 18, 20, 22, 24, 26, 28, 30
sDsk, sBx, sWg, sWu, sWd, sGw, sOut, sDbg, sWs = 32, 34, 36, 38, 40, 42, 44, 46, 48

STAMP = False
TS_OFF = 0xB40000
def stamp(a, idx):
    if not STAMP: return
    a(f"s_memrealtime s[100:101]\ns_waitcnt lgkmcnt(0)\nv_writelane_b32 v31, s100, {idx}")
def cstamp(a, idx):
    if not STAMP: return
    a(f"s_memtime s[100:101]\ns_waitcnt lgkmcnt(0)\nv_writelane_b32 v31, s100, {idx}")
def stamp_flush(a):
    if not STAMP: return
    srd(a, 96, sWs, 0xC00000)
    a(f"s_lshl_b32 s94, s2, 3\ns_add_u32 s94, s94, s93\ns_lshl_b32 s94, s94, 8\ns_add_u32 s94, s94, {TS_OFF}")
    a("s_mov_b64 exec, -1\nv_lshlrev_b32 v30, 2, v0\nbuffer_store_dword v31, v30, s[96:99], s94 offen")

def bf16_round(a, d, s, t):
    a(f"v_cvt_pk_bf16_f32 v{t}, v{s}, v{s}\nv_lshlrev_b32 v{d}, 16, v{t}")

class Sched:
    def __init__(s, a): s.a = a; s.n = 0; s.prod = {}; s.done = -1
    def read(s, ins, regs):
        s.a(ins)
        for r in regs: s.prod[r] = s.n
        s.n += 1
    def need(s, regs):
        k = max([s.prod.get(r, -1) for r in regs] + [-1])
        if k > s.done:
            s.a(f"s_waitcnt lgkmcnt({min(s.n - 1 - k, 15)})")
            s.done = k if s.n - 1 - k <= 15 else s.n - 16
    def all(s):
        if s.done < s.n - 1: s.a("s_waitcnt lgkmcnt(0)")
        s.done = s.n - 1
    def item(s, it):
        if isinstance(it, str): s.a(it)
        elif it[0] == 'lds': s.read(it[1], it[2])
        else: s.need(it[1]); s.a(it[2])

class VM:
    def __init__(s, a): s.a = a; s.ops = []; s.done = -1
    def op(s, ins, tag):
        if len(s.ops) - 1 - s.done >= 62:
            s.a("s_waitcnt vmcnt(56)"); s.done = len(s.ops) - 1 - 56
        s.a(ins); s.ops.append(tag)
    def wait(s, *tags, extra=""):
        k = max([i for i, t in enumerate(s.ops) if t in tags] + [-1])
        if k > s.done:
            n = min(len(s.ops) - 1 - k, 63)
            s.a(f"s_waitcnt vmcnt({n}){extra}")
            s.done = len(s.ops) - 1 - n
        elif extra: s.a("s_waitcnt" + extra)
    def copy(s):
        v = VM(s.a); v.ops = list(s.ops); v.done = s.done; return v

PARAM = 0; NONCE = 2048; XR = 4096; BLK = XR + 98304; EXT = XR + 147456
AGE_RE = EXT; AGE_IM = EXT + 1024; AGM_RE = EXT + 2048; AGM_IM = EXT + 8192; TSE = EXT + 4096
LDS1 = 163840
def page(p): return XR + p*8192
SPAGES = [8, 9]
KS = list(range(8)) + [5, 6, 7, 0, 1, 2, 3, 4]
XH = [0,0,0,1,1,1,1,1, 1,1,1,0,0,0,1,1]
XI = [0,1,2,0,1,2,0,1, 2,0,1,0,1,2,2,0]
XL = [1]*8 + [0,0,0,0,0,0,1,1]
ORD = [7*g + 2*j for g in range(4) for j in range(3)] + list(range(28, 44))
ORD += [s for s in range(28) if s not in ORD]
assert sorted(ORD) == list(range(44))
NA_, NH_ = 12, 28

def p2_schedule():
    Bp = {}; Biss = {}
    nb = 0
    def take(key, pages):
        nonlocal nb
        Biss.setdefault(key, [])
        for p in pages:
            if nb <= 43: Bp[nb] = p; Biss[key].append(nb); nb += 1
    take('b12', [0, 1, 2, 3]); take('b13', [4, 5, 13, 16]); take('b14', [10, 11, 14, 17]); take('Z', [6, 7, 12, 15])
    for k in range(22):
        fr = []
        if k == 1: fr += SPAGES
        if k >= 2: fr += [Bp[2*k-4], Bp[2*k-3]]
        take(k, fr)
    assert nb == 44
    return Bp, Biss

vXn = 16; vWa = 20; vXe = 24; vEa = 28; vWt = 30; vXp = 12
ACA = 32; ACB = 96; ACE = 160; FR = [176, 192]; FE = 208
def acc(base, w, m): return base + (w * 2 + m) * 16
def ace(comp, m): return ACE + (comp * 2 + m) * 4

def reads_main(kind, step, kk, st):
    b = FR[st]; slot = step % 3; xi = XI[step]
    xs, vx = (4096, vXn) if kind == 'G' else (1024, vXp)
    def xr(m): return [(f"ds_read_b128 {vr(b+4*m,4)}, v{vx+kk} offset:{XR + xi*16384 + m*xs}", R(b+4*m, 4))]
    def wr(w):
        d = b + 8 + 4*w
        if kind == 'G':
            off = w*24576 + slot*8192 + kk*2048
            return [(f"ds_read_b64_tr_b16 {vr(d,2)}, v{vWt} offset:{off}", R(d, 2)),
                    (f"ds_read_b64_tr_b16 {vr(d+2,2)}, v{vWt} offset:{off+512}", R(d+2, 2))]
        return [(f"ds_read_b128 {vr(d,4)}, v{vWa+kk} offset:{w*24576 + slot*8192}", R(d, 4))]
    return xr(0) + wr(0) + xr(1) + wr(1)

def reads_ext(step, k32):
    r = []; slot = step % 3; xi = XI[step]
    for m in range(2): r.append((f"ds_read_b128 {vr(FE+4*m,4)}, v{vXe+2*m+k32} offset:{XR + xi*16384}", R(FE+4*m, 4)))
    for cp in range(2): r.append((f"ds_read_b128 {vr(FE+8+4*cp,4)}, v{vEa+k32} offset:{slot*4096+cp*2048}", R(FE+8+4*cp, 4)))
    return r

def mfma_main(kind, base, st, first):
    r = []; b = FR[st]
    for w in range(2):
        for m in range(2):
            d = vr(acc(base, w, m), 16); X = vr(b+4*m, 4); W = vr(b+8+4*w, 4)
            c = "0" if first else d
            ins = f"v_mfma_f32_32x32x16_bf16 {d}, {W}, {X}, {c}" if kind == 'G' else f"v_mfma_f32_32x32x16_bf16 {d}, {X}, {W}, {c}"
            r.append((ins, R(b+4*m, 4) + R(b+8+4*w, 4)))
    return r

def mfma_ext(first):
    r = []
    for cp in range(2):
        for m in range(2):
            d = vr(ace(cp, m), 4)
            r.append((f"v_mfma_f32_16x16x32_bf16 {d}, {vr(FE+4*m,4)}, {vr(FE+8+4*cp,4)}, {'0' if first else d}", R(FE+4*m, 4) + R(FE+8+4*cp, 4)))
    return r

def cmul_pk(Rr, I, C, t1, t2):
    return [f"v_pk_mul_f32 {vr(t1,2)}, {vr(Rr,2)}, {vr(C,2)} op_sel:[0,0] op_sel_hi:[1,0]",
            f"v_pk_mul_f32 {vr(t2,2)}, {vr(Rr,2)}, {vr(C,2)} op_sel:[0,1] op_sel_hi:[1,1] neg_lo:[0,1] neg_hi:[0,1]",
            f"v_pk_fma_f32 {vr(Rr,2)}, {vr(I,2)}, {vr(C,2)}, {vr(t1,2)} op_sel:[0,1,0] op_sel_hi:[1,1,1] neg_lo:[0,1,0] neg_hi:[0,1,0]",
            f"v_pk_fma_f32 {vr(I,2)}, {vr(I,2)}, {vr(C,2)}, {vr(t2,2)} op_sel:[0,0,0] op_sel_hi:[1,0,1] neg_lo:[0,1,0] neg_hi:[0,1,0]"]
def cmul_s(Rr, I, cr, ci, t1, t2):
    return [f"v_mul_f32 v{t1}, v{Rr}, v{cr}", f"v_mul_f32 v{t2}, v{Rr}, v{ci}",
            f"v_fma_f32 v{Rr}, -v{I}, v{ci}, v{t1}", f"v_fma_f32 v{I}, -v{I}, v{cr}, -v{t2}"]
def flag_item(which):
    return f"v_mov_b32 v1, s15\nv_mov_b32 v2, 0\ns_mov_b64 exec, 1\nbuffer_store_dword v1, v2, s[64:67], s81 offen offset:{which*256} sc1\ns_mov_b64 exec, -1"
def merge(l1, l2):
    o = []; i = j = 0
    while i < len(l1) or j < len(l2):
        if j >= len(l2) or (i < len(l1) and i * len(l2) <= j * len(l1)): o.append(l1[i]); i += 1
        else: o.append(l2[j]); j += 1
    return o

def cmul2(Rr, I, C, t):
    o = []
    for par in range(2): o += cmul_s(Rr+par, I+par, C, C+1, t+2*par, t+2*par+1)
    return [o[0], o[4], o[1], o[5], o[2], o[6], o[3], o[7]]
def step2(dr, di, pr, pi, L, Rr, I, conj):
    o = []
    n1, n2 = ("", "-") if conj else ("-", "")
    for par in range(2): o += [f"v_fma_f32 v{dr+par}, v{pr+par}, v{L}, v{Rr+par}", f"v_fma_f32 v{di+par}, v{pi+par}, v{L}, v{I+par}"]
    for par in range(2): o += [f"v_fma_f32 v{dr+par}, {n1}v{pi+par}, v{L+1}, v{dr+par}", f"v_fma_f32 v{di+par}, {n2}v{pr+par}, v{L+1}, v{di+par}"]
    return o
def stores_last(l):
    st = [x for x in l if 'buffer_store' in (x if isinstance(x, str) else x[-1] if x[0] == 'need' else '')]
    return [x for x in l if x not in st] + st
def glu_epi(base, sbase, E0, P0, morder=(0, 1)):
    o = []; k = 0
    for m in morder:
        for half in range(2):
            E = E0 + (k & 1) * 8; P = P0 + (k & 1) * 4; k += 1
            gb, ub = acc(base, 0, m) + 8*half, acc(base, 1, m) + 8*half
            t = []
            for i in range(8): t.append(f"v_mul_f32 v{E+i}, s50, v{gb+i}")
            for i in range(8): t.append(f"v_exp_f32 v{E+i}, v{E+i}")
            for i in range(8): t.append(f"v_add_f32 v{E+i}, 1.0, v{E+i}")
            for i in range(8): t.append(f"v_rcp_f32 v{E+i}, v{E+i}")
            for i in range(8): t.append(f"v_mul_f32 v{E+i}, v{E+i}, v{ub+i}")
            for i in range(0, 8, 2): t.append(f"v_cvt_pk_bf16_f32 v{P+i//2}, v{E+i}, v{E+i+1}")
            t.append(f"s_add_u32 s5, s{sbase}, {(m*176 + half)*1024}\nbuffer_store_dwordx4 {vr(P,4)}, v6, s[64:67], s5 offen sc1")
            o.append(t)
    return o

PE = 224; PM = 228
def passB_fillers(M):
    F = {s: [] for s in range(8, 17)}
    lr, li = PE, PE+1
    LS = OPT['LS']
    f = F[7] = []
    f += [f"v_and_b32 v1, 15, v0", "v_lshlrev_b32 v1, 4, v1", ('lds', f"ds_read_b128 {vr(PE,4)}, v1 offset:{PARAM}", R(PE, 4))]
    if M: f += ["v_and_b32 v2, 31, v0", "v_lshlrev_b32 v2, 4, v2", "s_and_b32 s4, s3, 1\ns_lshl_b32 s4, s4, 9\nv_add_u32 v2, s4, v2",
                ('lds', f"ds_read_b128 {vr(PM,4)}, v2 offset:{PARAM + 256}", R(PM, 4))]
    f += [f"s_lshl_b32 s4, s3, 8\ns_add_u32 s4, s4, {EXT}\nv_lshlrev_b32 v5, 2, v0", "v_add_u32 v5, s4, v5"]
    if M: f += ["v_lshrrev_b32 v3, 5, v0", "v_lshlrev_b32 v3, 9, v3", "v_lshrrev_b32 v4, 2, v2", "v_add_u32 v3, v3, v4",
                f"s_lshr_b32 s4, s3, 1\ns_lshl_b32 s4, s4, 10\ns_add_u32 s4, s4, {EXT}\nv_add_u32 v3, s4, v3"]
    l1 = []; l2 = []
    if M:
        S = [216, 218]; T = [220, 222]; L = vr(PM, 2)
        for pos in range(1, 16):
            m, rr = pos >> 3, (pos & 7) * 2
            Rr = vr(acc(ACA, 0, m) + rr, 2); I = vr(acc(ACA, 1, m) + rr, 2)
            if pos == 1: pr, pi = vr(acc(ACA, 0, 0), 2), vr(acc(ACA, 1, 0), 2)
            else:
                src = S if (pos & 1) else T
                pr, pi = vr(src[0], 2), vr(src[1], 2)
            dst = T if (pos & 1) else S
            dr, di = vr(dst[0], 2), vr(dst[1], 2)
            l1.append(f"v_pk_fma_f32 {dr}, {pr}, {L}, {Rr} op_sel:[0,0,0] op_sel_hi:[1,0,1]")
            l1.append(f"v_pk_fma_f32 {di}, {pi}, {L}, {I} op_sel:[0,0,0] op_sel_hi:[1,0,1]")
            l1.append(f"v_pk_fma_f32 {dr}, {pi}, {L}, {dr} op_sel:[0,1,0] op_sel_hi:[1,1,1] neg_lo:[0,1,0] neg_hi:[0,1,0]")
            l1.append(f"v_pk_fma_f32 {di}, {pr}, {L}, {di} op_sel:[0,1,0] op_sel_hi:[1,1,1]")
        for par in range(2):
            l1.append(('lds', f"ds_write_b32 v3, v{T[0]+par} offset:{AGM_RE - EXT + par*256}", []))
            l1.append(('lds', f"ds_write_b32 v3, v{T[1]+par} offset:{AGM_IM - EXT + par*256}", []))
    S = [208, 209]; T = [210, 211]
    for pos in range(1, 8):
        Rr = ace(0, pos >> 2) + (pos & 3); I = ace(1, pos >> 2) + (pos & 3)
        if pos == 1: pr, pi = ace(0, 0), ace(1, 0)
        else: pr, pi = (S if (pos & 1) else T)
        dr, di = (T if (pos & 1) else S)
        l2 += [f"v_fma_f32 v{dr}, v{pr}, v{lr}, v{Rr}", f"v_fma_f32 v{di}, v{pi}, v{lr}, v{I}",
               f"v_fma_f32 v{dr}, -v{pi}, v{li}, v{dr}", f"v_fma_f32 v{di}, v{pr}, v{li}, v{di}"]
    l2 += [('lds', f"ds_write_b32 v5, v{T[0]} offset:{AGE_RE - EXT}", []), ('lds', f"ds_write_b32 v5, v{T[1]} offset:{AGE_IM - EXT}", [])]
    if M: F['ser'] = ["s_nop 15", "s_nop 7"] + merge(l1, l2) + ["s_nop 3"]
    else: F['ser'] = []; F[8] += l2
    pre_ = ["s_waitcnt vmcnt(0)", "v_mov_b32 v1, 0", ('lds', f"ds_read_b32 v1, v1 offset:{NONCE}", [1])]
    rest = [('need', [1], "v_readfirstlane_b32 s15, v1")]
    for m in range(2):
        for i in range(4): rest += cmul_s(ace(0, m)+i, ace(1, m)+i, PE+2, PE+3, 212 + (i & 1)*2, 213 + (i & 1)*2)
    rest += [f"s_lshl_b32 s4, s3, 10\ns_add_u32 s4, s4, {TSE}\nv_and_b32 v7, 15, v0", "v_lshlrev_b32 v7, 6, v7", "v_lshrrev_b32 v8, 4, v0", "v_lshl_add_u32 v7, v8, 4, v7", "v_add_u32 v7, s4, v7",
            "v_lshrrev_b32 v9, 5, v0", "v_lshlrev_b32 v9, 3, v9", "v_bfe_u32 v10, v0, 2, 2", "v_add_u32 v9, v9, v10",
            "v_bfe_u32 v10, v0, 4, 1", "v_lshlrev_b32 v10, 5, v10", "v_and_b32 v11, 3, v0", "v_lshl_add_u32 v10, v11, 3, v10",
            "v_lshl_add_u32 v8, v9, 6, v10", "v_add_u32 v8, s4, v8"]
    if M:
        rest += [f"s_mov_b32 s4, {page(SPAGES[0])}\ns_cmp_ge_u32 s3, 2\ns_cselect_b32 s4, {page(SPAGES[1])}, s4\ns_and_b32 s5, s3, 1\ns_lshl_b32 s5, s5, 12\ns_add_u32 s4, s4, s5\nv_and_b32 v11, 1, v0",
                "v_bfe_u32 v4, v0, 2, 1", "v_lshl_or_b32 v11, v4, 1, v11", "v_bfe_u32 v4, v0, 1, 1", "v_lshl_or_b32 v11, v4, 2, v11",
                "v_lshrrev_b32 v4, 5, v0", "v_lshlrev_b32 v4, 2, v4", "v_xor_b32 v11, v11, v4", "v_lshlrev_b32 v11, 4, v11",
                "v_and_b32 v4, 31, v0", "v_lshl_add_u32 v12, v4, 7, v11", "v_add_u32 v12, s4, v12"]
        rest += [f"v_xor_b32 v{12+i}, {i*16}, v12" for i in range(1, 4)]
        rest += ["v_bfe_u32 v11, v0, 2, 1", "v_bfe_u32 v4, v0, 3, 1", "v_lshl_or_b32 v11, v4, 2, v11", "v_lshlrev_b32 v11, 4, v11", "v_xor_b32 v11, v11, v10",
                "v_lshl_add_u32 v20, v9, 7, v11", "v_add_u32 v20, s4, v20", "v_xor_b32 v21, 32, v20", "v_add_u32 v21, 512, v21",
                "v_xor_b32 v22, 64, v20", "v_xor_b32 v23, 64, v21"]
        mid = list(pre_)
        for m in range(2):
            for rr in range(0, 16, 2):
                mid += cmul2(acc(ACA, 0, m)+rr, acc(ACA, 1, m)+rr, PM+2, 232 + ((rr >> 1) & 3) * 4)
        mid = mid[:3] + rest[:1] + ['s_nop 0', flag_item(0)] + mid[3:] + rest[1:] if OPT['gs'] == 2 else mid + rest + [flag_item(0)]
        st = list(range(8, LS))
        n = (len(mid) + len(st) - 1) // len(st)
        for i, s in enumerate(st): F[s] += mid[i*n:(i+1)*n]
    else:
        g = glu_epi(ACA, 14, 232, 248)
        if OPT['gs'] == 2:
            F[8] += ["s_waitcnt vmcnt(0)"] + g[0][:30]; F[9] += pre_[1:] + g[0][30:] + g[1] + g[2][:10]; F[10] += g[2][10:] + g[3]
            F[9] = stores_last(F[9])
            F[11] += rest[:1] + ["s_waitcnt vmcnt(0)\n" + flag_item(0)] + rest[1:25]; F[12] += rest[25:]
        elif OPT['gs'] == 0:
            F[9] += pre_ + g[0] + g[1][:20]; F[10] += g[1][20:] + g[2][:40]
            F[11] += g[2][40:] + g[3]
            F[9] = stores_last(F[9]); F[10] = stores_last(F[10])
            F[12] += rest + ["s_waitcnt vmcnt(0)\n" + flag_item(0)]
        else:
            F[9] += pre_ + g[0]; F[10] += g[1]; F[11] += g[2]; F[12] += rest; GL = g[3]
    IE = 208; IM = [216, 218]
    late = [('lds', f"ds_read_b32 v{IE}, v5 offset:{AGE_RE - EXT}", [IE]), ('lds', f"ds_read_b32 v{IE+1}, v5 offset:{AGE_IM - EXT}", [IE+1])]
    if M:
        for par in range(2):
            late += [('lds', f"ds_read_b32 v{IM[0]+par}, v3 offset:{AGM_RE - EXT + par*256}", [IM[0]+par]), ('lds', f"ds_read_b32 v{IM[1]+par}, v3 offset:{AGM_IM - EXT + par*256}", [IM[1]+par])]
    c = cmul_s(IE, IE+1, PE+2, PE+3, 212, 213); c[0] = ('need', [IE, IE+1], c[0]); late += c
    if M:
        c = cmul2(IM[0], IM[1], PM+2, 220); c[0] = ('need', R(216, 4), c[0]); late += c
    l1 = []; l2 = []
    for pos in range(8):
        Rr = ace(0, pos >> 2) + (pos & 3); I = ace(1, pos >> 2) + (pos & 3)
        if pos == 0: pr, pi = IE, IE+1
        else: pr, pi = ace(0, (pos-1) >> 2) + ((pos-1) & 3), ace(1, (pos-1) >> 2) + ((pos-1) & 3)
        l2 += [f"v_fma_f32 v{Rr}, v{pr}, v{lr}, v{Rr}", f"v_fma_f32 v{I}, v{pi}, v{lr}, v{I}",
               f"v_fma_f32 v{Rr}, v{pi}, v{li}, v{Rr}", f"v_fma_f32 v{I}, -v{pr}, v{li}, v{I}"]
    for cp in range(2):
        for d in range(4):
            b = ace(cp, d >> 1) + (d & 1)*2
            l2.append(f"v_cvt_pk_bf16_f32 v{232+4*cp+d}, v{b}, v{b+1}")
    for cp in range(2):
        l2 += [('lds', f"ds_write_b128 v7, {vr(232+4*cp,4)}", []), ('lds', f"ds_read_b64_tr_b16 {vr(240+4*cp,2)}, v8", R(240+4*cp, 2)),
               ('lds', f"ds_read_b64_tr_b16 {vr(242+4*cp,2)}, v8 offset:256", R(242+4*cp, 2))]
    l2 += ["s_nop 0"] * 6
    l2 += [('need', R(240, 4), f"buffer_store_dwordx4 {vr(240,4)}, v6, s[64:67], s82 offen sc1"), ('need', R(244, 4), f"buffer_store_dwordx4 {vr(244,4)}, v6, s[64:67], s83 offen sc1")]
    if M:
        for pos in range(16):
            m, rr = pos >> 3, (pos & 7) * 2
            if pos == 0: pr, pi = IM
            else:
                pm, prr = (pos-1) >> 3, ((pos-1) & 7) * 2
                pr, pi = acc(ACA, 0, pm)+prr, acc(ACA, 1, pm)+prr
            Rr, I = acc(ACA, 0, m) + rr, acc(ACA, 1, m) + rr
            l1 += step2(Rr, I, pr, pi, PM, Rr, I, True)
    late += merge(l1, [x for x in l2 if x != "s_nop 0"] if M else l2)
    if M:
        for comp in range(2):
            PB = 216 if comp == 0 else 232
            k = 0
            for par in range(2):
                for m in range(2):
                    b = acc(ACA, comp, m); P = PB + 4*k
                    for aa in range(4): late.append(f"v_cvt_pk_bf16_f32 v{P+aa}, v{b+4*aa+par}, v{b+4*aa+2+par}")
                    late.append(('lds', f"ds_write_b128 v{12+2*par+m}, {vr(P,4)}", []))
                    k += 1
            k = 0
            for mt in range(2):
                for u in range(2):
                    d = acc(ACA, comp, 0) + 4*k
                    late.append(('lds', f"ds_read_b64_tr_b16 {vr(d,2)}, v{20+2*mt} offset:{u*2048}", R(d, 2)))
                    late.append(('lds', f"ds_read_b64_tr_b16 {vr(d+2,2)}, v{21+2*mt} offset:{u*2048}", R(d+2, 2)))
                    k += 1
        for comp in range(2):
            k = 0
            for mt in range(2):
                for u in range(2):
                    d = acc(ACA, comp, 0) + 4*k
                    late.append(('need', R(d, 4), f"s_add_u32 s5, s80, {(mt*176 + 4*comp + u)*1024}\nbuffer_store_dwordx4 {vr(d,4)}, v6, s[64:67], s5 offen sc1"))
                    k += 1
    st = list(range(LS, 16))
    if M:
        n = OPT['capM']
        for i, s in enumerate(st): F[s] += late[i*n:(i+1)*n]
        F[16] += late[len(st)*n:]
        F[LS] = F[LS];
        for s in st: F[s] = stores_last(F[s])
    elif OPT['gs'] in (0, 2):
        F[LS] += late
    else:
        F[13] += late; F[14] += GL; F[15] += ["s_waitcnt vmcnt(0)\n" + flag_item(0)]
    return F

def p1_consumer(a, M):
    S = Sched(a)
    kindA = 'S' if M else 'G'
    F = passB_fillers(M)
    stamp(a, 1)
    a("s_barrier")
    stamp(a, 2); cstamp(a, 56)
    for x in reads_main(kindA, 0, 0, 0): S.read(*x)
    for s in range(16):
        slot = s % 3
        kind = kindA if s < 8 else 'G'
        base = ACA if s < 8 else ACB
        for kk in range(4):
            st = kk & 1
            rd = []
            if kk == 3:
                if s < 15:
                    S.all()
                    if OPT['fine']: stamp(a, 16 + s)
                    a("s_barrier")
                    if XH[s+1] != XH[s]:
                        op = "v_add_u32" if XH[s+1] else "v_subrev_u32"
                        for r_ in (list(range(12, 20)) + list(range(24, 28)) if s < 8 else range(16, 20)): a(f"{op} v{r_}, 49152, v{r_}")
                    rd = reads_main(kindA if s + 1 < 8 else 'G', s+1, 0, 0)
            else:
                rd = reads_main(kind, s, kk+1, st ^ 1)
            if s < 8 and kk in (0, 2): rd = rd + reads_ext(s, kk >> 1)
            mf = mfma_main(kind, base, st, (s in (0, 8)) and kk == 0)
            if s < 8 and kk in (1, 3): mf = mf[:2] + mfma_ext(s == 0 and kk == 1) + mf[2:]
            fs = s + 1 if kk == 3 else s
            fl = []
            if fs >= 7 and not (kk == 3 and s in (6, 7)) and not OPT['noF']:
                q = F[fs]
                nblk = {7: 3, 8: 3, 16: 1}.get(fs, 4)
                bi = kk if fs in (7, 8) else (0 if kk == 3 else kk + 1)
                if fs == 16: fl = q[:16]; F[16] = q[16:]
                else:
                    n = (len(q) + nblk - 1) // nblk
                    fl = q[bi*n:(bi+1)*n]
            rd = list(rd); fl = list(fl)
            nf = (len(fl) + len(mf) - 1) // len(mf) if fl else 0
            for i, (ins, regs) in enumerate(mf):
                S.need(regs); a(ins)
                for _ in range(OPT['per1']):
                    if rd: S.read(*rd.pop(0))
                if s == 8 and kk == 0 and i < 2: continue
                for _ in range(nf + (1 if s == 8 and kk == 0 else 0) * nf):
                    if fl: S.item(fl.pop(0))
            for x in rd: S.read(*x)
            for x in fl: S.item(x)
            if kk == 3 and s == OPT['tw']: touches(a, 2)
            if kk == 3 and s == 7:
                for x in F['ser']: S.item(x)
        if s == 3: stamp(a, 3); cstamp(a, 57)
        if s == 7: stamp(a, 4); cstamp(a, 58)
    stamp(a, 5); cstamp(a, 61)
    if not OPT['noF']:
        for x in F[16]: S.item(x)
    S.all()
    stamp(a, 8)

def touches(a, part):
    l1 = a.lab(); l2 = a.lab()
    lo, hi = {0: (1, 8), 1: (1, 4), 2: (4, 8)}[part]
    a(f"s_cmp_lg_u32 s3, 1\ns_cbranch_scc1 {l1}")
    srd(a, 52, sX, 2097152); srd(a, 56, sWg, 1835008); srd(a, 60, sWu, 1835008)
    a(f"v_and_b32 v1, 7, v0\nv_min_u32 v1, {hi-lo-1}, v1\nv_lshlrev_b32 v1, 7, v1\nv_lshrrev_b32 v2, 3, v0\nv_lshl_add_u32 v1, v2, 10, v1\ns_lshl_b32 s4, s2, 13\ns_add_u32 s4, s4, {lo*128}")
    a("buffer_load_dword v8, v1, s[52:55], s4 offen")
    r0 = 0 if part == 0 else 64*lo
    nl = (64*hi - r0) * 28 // 256
    a(f"v_min_u32 v1, {nl-1}, v0\nv_lshlrev_b32 v1, 7, v1\ns_mul_i32 s4, s2, {nl*128}\ns_add_u32 s4, s4, {r0*3584}")
    a("buffer_load_dword v8, v1, s[56:59], s4 offen\nbuffer_load_dword v8, v1, s[60:63], s4 offen")
    if part == 2:
        a(f"v_min_u32 v1, 6, v0\nv_lshlrev_b32 v1, 7, v1\ns_mul_i32 s4, s2, {7*128}")
        a("buffer_load_dword v8, v1, s[56:59], s4 offen\nbuffer_load_dword v8, v1, s[60:63], s4 offen")
    a.label(l1)
    a(f"s_cmp_lg_u32 s3, 2\ns_cbranch_scc1 {l2}")
    if part in (0, 1):
        srd(a, 52, sBre, 524288); srd(a, 56, sBim, 524288)
        a("v_and_b32 v1, 15, v0\nv_lshlrev_b32 v1, 7, v1\ns_lshl_b32 s4, s2, 11\nbuffer_load_dword v8, v1, s[52:55], s4 offen\nbuffer_load_dword v8, v1, s[56:59], s4 offen")
    if part in (0, 2):
        srd(a, 52, sWd, 1835008); srd(a, 56, sCre, 524288); srd(a, 60, sCim, 524288)
        a("v_and_b32 v1, 15, v0\nv_lshlrev_b32 v1, 7, v1\ns_lshl_b32 s4, s2, 11\nbuffer_load_dword v8, v1, s[56:59], s4 offen\nbuffer_load_dword v8, v1, s[60:63], s4 offen")
        a(f"v_min_u32 v1, 55, v0\nv_lshlrev_b32 v1, 7, v1\ns_mul_i32 s4, s2, {56*128}\nbuffer_load_dword v8, v1, s[52:55], s4 offen")
    a.label(l2)

def p1_consumer_prologue(a, code_end):
    srd(a, 64, sWs, WS_USED)
    l_np = a.lab(); l_nn = a.lab(); l_n2 = a.lab(); l_n1 = a.lab()
    a(f"s_cmp_lg_u32 s3, {3 if OPT['cpf'] else 77}\ns_cbranch_scc1 {l_np}")
    a(f"s_mov_b32 s4, {code_end} - {NAME}_kernel - 8\nv_lshlrev_b32 v1, 7, v0")
    a("s_lshr_b32 s5, s2, 3\ns_and_b32 s5, s5, 7\ns_lshl_b32 s5, s5, 13\nv_add_u32 v2, s5, v1\nv_min_u32 v2, s4, v2\nglobal_load_dword v8, v2, s[90:91]")
    a.label(l_np)
    a(f"s_cmp_lg_u32 s3, 0\ns_cbranch_scc1 {l_nn}")
    srd(a, 60, sDbg, 256)
    a("s_memrealtime s[14:15]\nv_mov_b32 v9, 0\nv_mov_b32 v11, 0\ns_waitcnt lgkmcnt(0)\ns_or_b32 s14, s14, 1")
    a("v_mov_b32 v10, s14\ns_mov_b64 exec, 1")
    a("buffer_atomic_cmpswap v[10:11], v9, s[60:63], 0 offen sc0\ns_mov_b64 exec, -1")
    a.label(l_nn)
    touches(a, 0 if OPT['tw'] < 0 else 1)
    a("v_bfe_u32 v1, v0, 2, 2\nv_and_b32 v2, 3, v0\nv_lshl_add_u32 v3, v1, 3, v2")
    a("v_and_b32 v4, 2, v0\nv_bfe_u32 v5, v0, 3, 1\nv_lshl_or_b32 v4, v5, 2, v4\nv_lshrrev_b32 v5, 4, v0\nv_xor_b32 v4, v4, v5")
    a(f"v_lshlrev_b32 v4, 4, v4\nv_lshl_add_u32 v{vXe}, v3, 7, v4\ns_lshl_b32 s4, s3, 12\nv_add_u32 v{vXe}, s4, v{vXe}")
    a(f"v_xor_b32 v{vXe+1}, 64, v{vXe}\nv_xor_b32 v{vXe+2}, 16, v{vXe}\nv_add_u32 v{vXe+2}, 512, v{vXe+2}\nv_xor_b32 v{vXe+3}, 64, v{vXe+2}")
    a("v_and_b32 v3, 15, v0\nv_lshrrev_b32 v4, 1, v3\nv_xor_b32 v4, v4, v5\nv_lshlrev_b32 v4, 4, v4")
    a(f"v_lshl_add_u32 v{vEa}, v3, 7, v4\nv_add_u32 v{vEa}, {EXT}, v{vEa}\nv_xor_b32 v{vEa+1}, 64, v{vEa}")
    a(f"s_lshr_b32 s4, s3, 1\ns_lshl_b32 s4, s4, 13\ns_and_b32 s51, s3, 1")
    for perm, vx in ((0, vXn), (1, vXp)):
        if not perm: a("v_and_b32 v1, 31, v0")
        else:
            a("v_bfe_u32 v1, v0, 2, 1\nv_lshlrev_b32 v1, 5, v1\nv_and_b32 v2, 1, v0\nv_lshl_or_b32 v1, v2, 4, v1")
            a("v_bfe_u32 v2, v0, 3, 2\nv_lshl_or_b32 v1, v2, 1, v1\nv_bfe_u32 v2, v0, 1, 1\nv_or_b32 v1, v1, v2")
        a("v_bfe_u32 v2, v1, 2, 1\nv_and_b32 v3, 2, v1\nv_or_b32 v2, v2, v3\nv_bfe_u32 v3, v1, 4, 1\nv_lshl_or_b32 v2, v3, 2, v2")
        a(f"v_lshrrev_b32 v3, 5, v0\nv_xor_b32 v2, v2, v3\nv_lshlrev_b32 v2, 4, v2\nv_lshl_add_u32 v{vx}, v1, 7, v2\nv_add_u32 v{vx}, s4, v{vx}")
        for kk in range(1, 4): a(f"v_xor_b32 v{vx+kk}, {kk*32}, v{vx}")
    a("v_lshrrev_b32 v1, 5, v0\nv_lshlrev_b32 v1, 3, v1\nv_bfe_u32 v2, v0, 2, 2\nv_add_u32 v1, v1, v2")
    a("v_bfe_u32 v2, v0, 4, 1\nv_lshlrev_b32 v2, 5, v2\nv_and_b32 v3, 3, v0\nv_lshl_add_u32 v2, v3, 3, v2")
    a("v_bfe_u32 v3, v0, 3, 1\nv_lshlrev_b32 v3, 6, v3\nv_xor_b32 v2, v2, v3")
    a(f"s_lshl_b32 s5, s51, 6\nv_xor_b32 v2, s5, v2\nv_lshl_add_u32 v{vWt}, v1, 7, v2\nv_add_u32 v{vWt}, {BLK}, v{vWt}")
    a(f"s_lshl_b32 s5, s51, 12\ns_add_u32 s5, s5, {BLK}")
    a("v_and_b32 v1, 31, v0\nv_bfe_u32 v2, v0, 1, 3\nv_lshrrev_b32 v3, 5, v0\nv_xor_b32 v2, v2, v3\nv_lshlrev_b32 v2, 4, v2")
    a(f"v_lshl_add_u32 v{vWa}, v1, 7, v2\nv_add_u32 v{vWa}, s5, v{vWa}")
    for kk in range(1, 4): a(f"v_xor_b32 v{vWa+kk}, {kk*32}, v{vWa}")
    a("v_lshlrev_b32 v6, 4, v0")
    a(f"s_lshl_b32 s81, s6, 10\ns_lshl_b32 s4, s13, 4\ns_add_u32 s81, s81, s4\ns_lshl_b32 s4, s3, 2\ns_add_u32 s81, s81, s4\ns_add_u32 s81, s81, {FLG_OFF}")
    a("s_lshr_b32 s4, s3, 1\ns_lshl_b32 s4, s4, 1\ns_lshl_b32 s5, s6, 2\ns_add_u32 s4, s4, s5\ns_mul_i32 s79, s4, 176")
    a("s_lshl_b32 s5, s51, 1\ns_add_u32 s4, s79, s5\ns_lshr_b32 s5, s9, 4\ns_add_u32 s4, s4, s5\ns_lshl_b32 s78, s4, 10")
    a("s_xor_b32 s5, s12, 1\ns_lshl_b32 s5, s5, 12\ns_add_u32 s77, s78, s5")
    a("s_lshl_b32 s5, s8, 4\ns_add_u32 s4, s79, s5\ns_add_u32 s4, s4, 120\ns_lshl_b32 s5, s51, 1\ns_add_u32 s4, s4, s5\ns_lshl_b32 s80, s4, 10")
    a("s_lshl_b32 s4, s6, 2\ns_add_u32 s4, s4, s3\ns_mul_i32 s4, s4, 176\ns_lshl_b32 s5, s8, 4\ns_add_u32 s4, s4, s5\ns_add_u32 s4, s4, s7\ns_add_u32 s4, s4, 112\ns_lshl_b32 s82, s4, 10\ns_add_u32 s83, s82, 4096")
    a(f"s_mov_b32 s50, {NLOG2E}\ns_mov_b32 s51, {NLOG2E}")

def nonce_finish(a):
    l = a.lab()
    return (f"s_cmp_lg_u32 s3, 0\ns_cbranch_scc1 {l}\ns_waitcnt vmcnt(0)\nv_mov_b32 v9, s14\nv_cmp_eq_u32 vcc, 0, v10\ns_mov_b64 exec, 1\nv_mov_b32 v11, 0\n"
            f"v_cndmask_b32 v10, v10, v9, vcc\nds_write_b32 v11, v10 offset:{NONCE}\ns_waitcnt lgkmcnt(0)\ns_mov_b64 exec, -1\n{l}:\ns_mov_b32 s14, s78")

def p2_ids(a):
    a("s_and_b32 s4, s2, 7\ns_lshr_b32 s5, s2, 3\ns_lshl_b32 s84, s4, 2\ns_lshr_b32 s4, s5, 3\ns_add_u32 s84, s84, s4\ns_and_b32 s85, s5, 7")

def p2_consumer(a):
    Bp, Biss = p2_schedule()
    p2_ids(a)
    a("s_and_b32 s8, s3, 1\ns_lshr_b32 s9, s3, 1")
    srd(a, 52, sX, 2097152); srd(a, 56, sDsk, 1024); srd(a, 60, sOut, 4194304)
    XV = 96; GV = 112; DV = 128; OM = 132
    a("s_lshl_b32 s10, s84, 6\ns_lshl_b32 s4, s9, 5\ns_add_u32 s10, s10, s4")
    a("s_lshl_b32 s11, s85, 6\ns_lshl_b32 s4, s8, 5\ns_add_u32 s11, s11, s4")
    a("v_and_b32 v1, 31, v0\nv_add_u32 v1, s11, v1\nv_lshrrev_b32 v2, 5, v0\nv_lshlrev_b32 v2, 2, v2\nv_add_u32 v2, s10, v2")
    a("v_lshlrev_b32 v3, 1, v1\nv_lshl_add_u32 v4, v2, 10, v3")
    a("v_lshlrev_b32 v5, 2, v1\nv_lshl_add_u32 v5, v2, 11, v5")
    a(f"v_lshlrev_b32 v10, 2, v2\nv_add_u32 v10, {G_OFF}, v10")
    a("s_lshl_b32 s4, s84, 1\ns_add_u32 s4, s4, s9\ns_mul_i32 s4, s4, 176\ns_lshl_b32 s5, s8, 1\ns_add_u32 s4, s4, s5\ns_lshl_b32 s80, s4, 10")
    V = VM(a)
    V.ops = ['H'] * 10
    ld = []
    for i in range(16):
        row = 8*(i >> 2) + (i & 3)
        ld.append((f"s_mov_b32 s4, {row*1024}", f"buffer_load_ushort v{XV+i}, v4, s[52:55], s4 offen"))
    for q in range(4): ld.append((None, f"buffer_load_dwordx4 {vr(GV+4*q,4)}, v10, s[64:67], 0 offen offset:{q*32} sc1"))
    ld.append((None, f"buffer_load_ushort v{DV}, v3, s[56:59], 0 offen"))
    vBw, vBc = 12, 18
    a("v_lshrrev_b32 v7, 5, v0\nv_lshlrev_b32 v7, 2, v7\nv_bfe_u32 v8, v0, 2, 2\nv_add_u32 v7, v7, v8")
    a("v_bfe_u32 v8, v0, 4, 1\nv_lshlrev_b32 v8, 5, v8\nv_and_b32 v9, 3, v0\nv_lshl_add_u32 v8, v9, 3, v8\nv_bfe_u32 v9, v0, 3, 1\nv_lshlrev_b32 v9, 6, v9\nv_xor_b32 v8, v8, v9")
    a(f"s_lshl_b32 s4, s8, 12\nv_lshl_add_u32 v{vBw}, v7, 7, v8\nv_add_u32 v{vBw}, s4, v{vBw}\nv_xor_b32 v{vBw+1}, 64, v{vBw}")
    a("v_and_b32 v7, 31, v0\nv_bfe_u32 v8, v0, 1, 3\nv_lshrrev_b32 v9, 5, v0\nv_xor_b32 v8, v8, v9\ns_lshl_b32 s4, s8, 2\nv_xor_b32 v8, s4, v8\nv_lshlrev_b32 v8, 4, v8")
    a(f"v_lshl_add_u32 v{vBc}, v7, 7, v8\nv_xor_b32 v{vBc+1}, 32, v{vBc}")
    W = 57344
    for t in range(1, 3):
        for e in range(2):
            a(f"v_add_u32 v{vBw+2*t+e}, {t*W}, v{vBw+e}\nv_add_u32 v{vBc+2*t+e}, {t*W}, v{vBc+e}")
    AB, AY = 32, 64
    def F(p): return 176 + (p & 3) * 16
    AREGS = [240, 244, 248, 252, 160, 164, 168, 172, 24, 148, 152, 156]
    NAR = 12
    def areg(p, e): return AREGS[(2*p + e) % NAR]
    SC = " sc1" if OPT['sc1_a'] else ""
    def loadA(p):
        for e in range(2):
            a(f"s_add_u32 s4, s80, {ORD[p]*4096 + e*1024}")
            V.op(f"buffer_load_dwordx4 {vr(areg(p,e),4)}, v6, s[64:67], s4 offen{SC}", ('A', p, e))
    def win(addr): t = min((addr - XR) // W, 2); return t, addr - t*W
    def isy(p): return NA_ <= p < NH_
    def reads(p):
        tb, ob = win(page(Bp[p]))
        r = []; f = F(p)
        for e in range(2):
            for nt in range(2):
                d = f + (e*2+nt)*4
                if not isy(p):
                    r.append((f"ds_read_b64_tr_b16 {vr(d,2)}, v{vBw+2*tb+nt} offset:{ob + e*2048}", R(d, 2)))
                    r.append((f"ds_read_b64_tr_b16 {vr(d+2,2)}, v{vBw+2*tb+nt} offset:{ob + e*2048 + 1024}", R(d+2, 2)))
                else:
                    r.append((f"ds_read_b128 {vr(d,4)}, v{vBc+2*tb+e} offset:{ob + nt*4096}", R(d, 4)))
        return r
    pre = [f"v_lshlrev_b32 v{DV}, 16, v{DV}", "s_mov_b32 s12, 0xffff0000"]
    for i in range(0, 16, 2):
        for e in range(2):
            pre += [f"v_lshlrev_b32 v{XV+i+e}, 16, v{XV+i+e}", f"v_mul_f32 v{XV+i+e}, v{XV+i+e}, v{DV}", f"v_sub_f32 v{OM+i+e}, 1.0, v{GV+i+e}"]
        pre += [f"v_cvt_pk_bf16_f32 v{DV+1}, v{XV+i}, v{XV+i+1}", f"v_cvt_pk_bf16_f32 v{DV+2}, v{OM+i}, v{OM+i+1}",
                f"v_lshlrev_b32 v{XV+i}, 16, v{DV+1}", f"v_and_b32 v{XV+i+1}, s12, v{DV+1}",
                f"v_lshlrev_b32 v{OM+i}, 16, v{DV+2}", f"v_and_b32 v{OM+i+1}, s12, v{DV+2}"]
    epiB = glu_epi(ACB, 77, 64, 80, (1, 0))
    S = Sched(a)
    na = 0
    KH, KB = OPT['KH'], OPT['KB']
    def allowed(p, k): return (p < NA_) or (p < NH_ and k > KH) or k > KB
    for k in range(23):
        if k == 0: stamp(a, 6)
        if k < 22: a("s_barrier")
        if k == 0: stamp(a, 9); cstamp(a, 59)
        if k < 22 and (OPT['fine'] or k in (5, 12, 19)): stamp(a, 32+k)
        if k == 14: stamp(a, 10)
        rd = reads(2*k) + reads(2*k+1) if k < 22 else []
        if k == 0:
            while na < 4: loadA(na); na += 1
            for x in rd: S.read(*x)
            for x in epiB[0] + epiB[1]:
                a(x)
                if 'buffer_store' in x: V.ops.append('E')
            V.wait('H'); a(flag_item(1)); V.ops.append('F')
            while na < NAR // 2: loadA(na); na += 1
            eb = epiB[2] + epiB[3]
        else:
            rd = list(rd)
            for p in (2*k-2, 2*k-1):
                f = F(p)
                for e in range(2):
                    V.wait(('A', p, e))
                    for nt in range(2):
                        d = vr((AY if isy(p) else AB) + 16*nt, 16)
                        c = "0" if (p in (0, NA_) and e == 0) else d
                        S.need(R(f+(e*2+nt)*4, 4))
                        a(f"v_mfma_f32_32x32x16_bf16 {d}, {vr(areg(p,e),4)}, {vr(f+(e*2+nt)*4,4)}, {c}")
                        for _ in range(OPT['per2']):
                            if rd: S.read(*rd.pop(0))
                        for _ in range(4):
                            if eb:
                                x = eb.pop(0); a(x)
                                if 'buffer_store' in x: V.ops.append('E')
                while na <= 43 and na < p + 1 + NAR // 2 and allowed(na, k): loadA(na); na += 1
            for x in rd: S.read(*x)
        if k == 4:
            assert not eb
            V.wait('E'); a(flag_item(2)); V.ops.append('F')
        if 5 <= k < 5 + 7:
            for (p_, ins) in ld[(k-5)*3:(k-5)*3+3]:
                if p_: a(p_)
                V.op(ins, 'L')
        if k == 14: V.wait('L')
        if 14 <= k < 21:
            n = (len(pre) + 6) // 7
            for x in pre[(k-14)*n:(k-13)*n]: a(x)
    assert na == 44
    stamp(a, 11); cstamp(a, 60)
    used = {Bp[40], Bp[41], Bp[42], Bp[43]}
    xp = [page(p) for p in range(18) if p not in used][:4]
    a(f"s_mov_b32 s4, {xp[0]}\ns_mov_b32 s5, {xp[1]}\ns_cmp_eq_u32 s9, 1\ns_cselect_b32 s4, {xp[2]}, s4\ns_cselect_b32 s5, {xp[3]}, s5")
    a("s_cmp_eq_u32 s8, 1\ns_cselect_b32 s10, s5, s4\ns_cselect_b32 s11, s4, s5")
    a("v_lshlrev_b32 v7, 4, v0\nv_add_u32 v8, s10, v7\nv_add_u32 v9, s11, v7")
    lk1 = a.lab(); lj = a.lab()
    a(f"s_nop 4\ns_cbranch_scc1 {lk1}")
    RB, RY = 176, 192
    for kh in range(2):
        if kh == 1: a.label(lk1)
        sn = kh ^ 1
        for q in range(4):
            a(f"ds_write_b128 v8, {vr(AB+16*sn+4*q,4)} offset:{q*1024}\nds_write_b128 v8, {vr(AY+16*sn+4*q,4)} offset:{4096+q*1024}")
        for i in range(0, 16, 2): a(f"v_pk_add_f32 {vr(AY+16*kh+i,2)}, {vr(AY+16*kh+i,2)}, {vr(XV+i,2)}")
        a("s_waitcnt lgkmcnt(0)\ns_barrier")
        for q in range(4):
            a(f"ds_read_b128 {vr(RB+4*q,4)}, v9 offset:{q*1024}\nds_read_b128 {vr(RY+4*q,4)}, v9 offset:{4096+q*1024}")
        for q in range(4):
            a(f"s_waitcnt lgkmcnt({6-2*q})")
            for i in range(4*q, 4*q+4, 2):
                a(f"v_pk_add_f32 {vr(RB+i,2)}, {vr(RB+i,2)}, {vr(AB+16*kh+i,2)}\nv_pk_add_f32 {vr(RY+i,2)}, {vr(RY+i,2)}, {vr(AY+16*kh+i,2)}")
        if kh == 0: a(f"s_branch {lj}")
    a.label(lj)
    for i in range(0, 16, 2):
        T = 224 + (i & 6)
        a(f"v_cvt_pk_bf16_f32 v{T}, v{RB+i}, v{RB+i+1}\nv_pk_mul_f32 {vr(RY+i,2)}, {vr(RY+i,2)}, {vr(GV+i,2)}")
        a(f"v_lshlrev_b32 v{RB+i}, 16, v{T}\nv_and_b32 v{RB+i+1}, s12, v{T}")
        a(f"v_pk_mul_f32 {vr(RB+i,2)}, {vr(RB+i,2)}, {vr(OM+i,2)}\nv_cvt_pk_bf16_f32 v{T}, v{RB+i}, v{RB+i+1}")
        a(f"v_lshlrev_b32 v{RB+i}, 16, v{T}\nv_and_b32 v{RB+i+1}, s12, v{T}")
        a(f"v_pk_add_f32 {vr(RY+i,2)}, {vr(RY+i,2)}, {vr(RB+i,2)}")
        for e in range(2):
            row = 8*((i+e) >> 2) + ((i+e) & 3)
            a(f"s_mov_b32 s4, {row*2048}\nbuffer_store_dword v{RY+i+e}, v5, s[60:63], s4 offen")
    stamp(a, 12)
    if STAMP: a("s_waitcnt vmcnt(0)")
    stamp(a, 13)
    stamp_flush(a)
    a("s_endpgm")

def loader_pre(a):
    if OPT['prio']: a(f"s_setprio {OPT['prio']}")
    a("v_lshrrev_b32 v1, 3, v0\nv_and_b32 v2, 7, v0")
    a("v_lshrrev_b32 v3, 5, v0\nv_and_b32 v4, 2, v1\nv_or_b32 v3, v3, v4\nv_xor_b32 v3, v3, v2\nv_lshlrev_b32 v3, 4, v3\nv_lshl_add_u32 v10, v1, 10, v3\nv_xor_b32 v11, 64, v10")
    a("v_bfe_u32 v3, v0, 4, 1\nv_lshlrev_b32 v3, 2, v3\nv_xor_b32 v3, v3, v2\nv_lshlrev_b32 v3, 4, v3\ns_movk_i32 s4, 3584\nv_mad_u32_u24 v16, v1, s4, v3\nv_lshl_add_u32 v15, v1, 10, v3")
    a("v_lshrrev_b32 v4, 4, v0\nv_xor_b32 v3, v4, v2\nv_lshlrev_b32 v3, 4, v3\nv_lshl_add_u32 v28, v1, 10, v3\nv_xor_b32 v29, 64, v28")
    a("s_cmp_eq_u32 s12, 1\ns_cselect_b64 vcc, -1, 0\nv_cndmask_b32 v12, v16, v28, vcc\nv_cndmask_b32 v13, v16, v29, vcc")
    a("s_and_b32 s14, s3, 1")
    a("s_mul_i32 s4, s14, 114688\ns_lshl_b32 s5, s9, 1\ns_add_u32 s70, s4, s5\ns_lshl_b32 s4, s14, 5\ns_add_u32 s4, s4, s11\ns_lshl_b32 s5, s4, 10")
    a("s_cmp_eq_u32 s12, 1\ns_cselect_b32 s80, s5, s70\ns_mov_b32 s81, 143360\ns_movk_i32 s82, 28672\ns_cselect_b32 s81, -24448, s81\ns_cselect_b32 s82, 8192, s82")
    a("s_mov_b32 s4, 1835008\ns_cselect_b32 s58, 524288, s4\ns_mov_b32 s59, 0x20000")
    a("s_cselect_b32 s4, 0, 128\ns_add_u32 s70, s70, s4")
    a("s_lshl_b32 s4, s14, 2\nv_or_b32 v4, s4, v4\nv_xor_b32 v4, v4, v2\nv_lshlrev_b32 v4, 4, v4\nv_lshl_add_u32 v14, v1, 10, v4")
    a("s_lshl_b32 s4, s14, 3\ns_add_u32 s4, s4, s10\ns_lshl_b32 s85, s4, 10")
    a("s_lshl_b32 s4, s6, 7\ns_lshl_b32 s5, s3, 5\ns_add_u32 s4, s4, s5\ns_lshl_b32 s86, s4, 10")
    a(f"s_lshl_b32 s87, s3, 12\ns_lshr_b32 s4, s3, 1\ns_mul_i32 s88, s4, 24576\ns_lshl_b32 s4, s14, 12\ns_add_u32 s88, s88, s4\ns_add_u32 s88, s88, {BLK}\ns_lshl_b32 s89, s3, 10\ns_add_u32 s89, s89, {EXT}")
    a("s_mov_b32 s54, 2097152\ns_mov_b32 s55, 0x20000\ns_mov_b32 s62, 524288\ns_mov_b32 s63, 0x20000")

def loader(a):
    Bp, Biss = p2_schedule()
    V = VM(a)
    a("s_waitcnt lgkmcnt(0)")
    a("s_mov_b64 s[52:53], s[16:17]")
    a("s_cmp_ge_u32 s3, 2\ns_cselect_b64 s[72:73], s[38:39], s[36:37]\ns_cselect_b64 s[60:61], s[24:25], s[22:23]")
    a("s_cmp_eq_u32 s12, 1\ns_cselect_b64 s[56:57], s[60:61], s[72:73]\ns_mov_b64 s[90:91], s[72:73]")
    def issue(V, s):
        slot = s % 3
        if s == 8:
            a("s_mov_b64 s[56:57], s[90:91]\ns_mov_b32 s58, 1835008\ns_add_u32 s80, s70, 1146880\ns_mov_b32 s81, 143360\ns_movk_i32 s82, 28672\nv_mov_b32 v12, v16\nv_mov_b32 v13, v16")
        if s == 11: a("s_sub_u32 s80, s80, 1835008")
        for i in range(4 if XL[s] else 0):
            a(f"s_add_u32 m0, s87, {XR + XH[s]*49152 + XI[s]*16384 + i*1024}\ns_add_u32 s4, s86, {i*8192 + KS[s]*128}")
            V.op(f"buffer_load_dwordx4 v{10 + (i >> 1)}, s[52:55], s4 offen lds", ('S', s))
        for i in range(4):
            a(f"s_add_u32 m0, s88, {slot*8192 + i*1024}\ns_nop 0")
            V.op(f"buffer_load_dwordx4 v{12 + (i & 1)}, s[56:59], s80 offen lds", ('S', s))
            a("s_add_u32 s80, s80, s82" if i < 3 else "s_add_u32 s80, s80, s81")
        if s < 8:
            a(f"s_add_u32 m0, s89, {slot*4096}\ns_add_u32 s4, s85, {s*128}")
            V.op("buffer_load_dwordx4 v14, s[60:63], s4 offen lds", ('S', s))
    def bar(V, s, extra=""):
        V.wait(('S', s+1), extra=extra)
        if OPT['fine']: stamp(a, 16 + s)
        a("s_barrier")
        if s + 3 <= 15: issue(V, s + 3)
        r = s - OPT['l2t']
        if OPT['l2t'] and 0 <= r <= 2:
            if r < 2:
                srd(a, 76, sWd, 1835008)
                a(f"s_lshr_b32 s4, s2, 3\ns_mul_i32 s4, s4, 57344\ns_lshl_b32 s5, s3, 13\ns_add_u32 s4, s4, s5\ns_add_u32 s4, s4, {r*32768}\nv_lshlrev_b32 v18, 7, v0")
                if r == 1: a("s_cmp_eq_u32 s3, 3\ns_cselect_b32 s78, 0, s78")
            else:
                a("s_cmp_ge_u32 s3, 2\ns_cselect_b64 s[76:77], s[28:29], s[26:27]\ns_mov_b32 s78, 524288\ns_mov_b32 s79, 0x20000")
                a("s_lshr_b32 s4, s2, 3\ns_lshl_b32 s4, s4, 14\ns_and_b32 s5, s3, 1\ns_lshl_b32 s5, s5, 13\ns_add_u32 s4, s4, s5")
            V.op("buffer_load_dword v19, v18, s[76:79], s4 offen", 'T')
    issue(V, 0); stamp(a, 14); issue(V, 1)
    V.wait(('S', 0)); stamp(a, 2); a("s_barrier")
    issue(V, 2)
    srd(a, 64, sWs, WS_USED)
    srd(a, 92 if not STAMP else 92, sGw, 1024) if False else None
    srd(a, 72, sLre, 1024); srd(a, 76, sLim, 1024); srd(a, 96, sLdt, 1024)
    a("s_mov_b64 s[68:69], s[42:43]\ns_mov_b32 s71, 0x20000\ns_mov_b32 s92, s70\ns_movk_i32 s70, 1024")
    a("s_lshl_b32 s4, s6, 7\ns_lshl_b32 s5, s13, 3\ns_add_u32 s4, s4, s5\ns_lshl_b32 s5, s3, 1\ns_add_u32 s15, s4, s5\ns_lshl_b32 s14, s15, 10")
    a("v_lshlrev_b32 v1, 4, v0")
    a("s_and_b32 s4, s3, 1\ns_lshl_b32 s4, s4, 6\nv_add_u32 v2, s4, v0\nv_add_u32 v3, s10, v2\ns_sub_u32 s5, s11, 16\nv_add_u32 v4, s5, v2")
    a("v_cmp_gt_u32 vcc, 16, v2\ns_nop 1\nv_cndmask_b32 v3, v4, v3, vcc\nv_lshlrev_b32 v3, 1, v3")
    bar(V, 0)
    V.op("buffer_load_dwordx4 v[32:35], v1, s[52:55], s14 offen", 'X'); V.op("buffer_load_dwordx4 v[36:39], v1, s[52:55], s14 offen offset:1024", 'X')
    V.op("buffer_load_dwordx4 v[40:43], v1, s[68:71], 0 offen", 'X')
    V.op("buffer_load_ushort v44, v3, s[72:75], 0 offen", 'X'); V.op("buffer_load_ushort v45, v3, s[76:79], 0 offen", 'X'); V.op("buffer_load_ushort v46, v3, s[96:99], 0 offen", 'X')
    a("s_mov_b32 s70, s92")
    bar(V, 1); bar(V, 2)
    V.wait('X')
    a("v_lshlrev_b32 v44, 16, v44\nv_lshlrev_b32 v45, 16, v45\nv_lshlrev_b32 v46, 16, v46")
    a(f"v_mul_f32 v46, {LOG2E}, v46\nv_exp_f32 v46, v46\ns_nop 0")
    bf16_round(a, 46, 46, 47)
    a(f"v_mul_f32 v47, v46, v44\nv_mul_f32 v48, v46, v45")
    a(f"v_mul_f32 v47, {LOG2E}, v47\nv_exp_f32 v47, v47\nv_mul_f32 v48, {INV2PI}, v48\nv_rndne_f32 v49, v48\nv_sub_f32 v48, v48, v49")
    a("v_cos_f32 v49, v48\nv_sin_f32 v50, v48\ns_nop 0\nv_mul_f32 v52, v47, v49\nv_mul_f32 v53, v47, v50")
    a("v_mul_f32 v49, v44, v44\nv_fma_f32 v49, v45, v45, v49\nv_rcp_f32 v49, v49\nv_add_f32 v50, -1.0, v52")
    a("v_mul_f32 v54, v50, v44\nv_fma_f32 v54, v53, v45, v54\nv_mul_f32 v55, v53, v44\nv_fma_f32 v55, -v50, v45, v55")
    a("v_add_f32 v49, v49, v49\nv_mul_f32 v54, v54, v49\nv_mul_f32 v55, v55, v49")
    a("v_lshlrev_b32 v2, 4, v2\nv_cmp_gt_u32 vcc, 1280, v2\ns_and_saveexec_b64 s[78:79], vcc")
    a(f"ds_write_b128 v2, v[52:55] offset:{PARAM}")
    a("s_mov_b64 exec, s[78:79]")
    bar(V, 3, " lgkmcnt(0)")
    a("v_mov_b32 v4, 0\nv_mov_b32 v5, 0\ns_mov_b32 s4, 0xffff0000")
    for i in range(4):
        a(f"v_lshlrev_b32 v6, 16, v{40+i}\nv_and_b32 v7, s4, v{40+i}")
        for r in range(2):
            x = 32 + 4*r + i
            a(f"v_lshlrev_b32 v8, 16, v{x}\nv_and_b32 v9, s4, v{x}\nv_mul_f32 v8, v8, v6\nv_mul_f32 v9, v9, v7")
            a(f"v_cvt_pk_bf16_f32 v8, v8, v9\nv_lshlrev_b32 v9, 16, v8\nv_and_b32 v8, s4, v8\nv_add_f32 v{4+r}, v{4+r}, v9\nv_add_f32 v{4+r}, v{4+r}, v8")
        if i == 1: bar(V, 4); a("s_mov_b32 s4, 0xffff0000")
    bar(V, 5)
    for sh in [1, 2, 4, 8]:
        a(f"s_nop 1\nv_add_f32_dpp v4, v4, v4 row_shr:{sh} row_mask:0xf bank_mask:0xf bound_ctrl:0\nv_add_f32_dpp v5, v5, v5 row_shr:{sh} row_mask:0xf bank_mask:0xf bound_ctrl:0")
    a("s_nop 1")
    for r in range(2):
        a(f"v_readlane_b32 s{76+20*r}, v{4+r}, 15\nv_readlane_b32 s{77+20*r}, v{4+r}, 31\nv_readlane_b32 s{78+20*r}, v{4+r}, 47")
    a("s_nop 1")
    for j in range(3):
        a(f"v_add_f32 v4, s{76+j}, v4\nv_add_f32 v5, s{96+j}, v5")
    a("s_nop 0\nv_readlane_b32 s4, v4, 63\nv_readlane_b32 s5, v5, 63\nv_cmp_eq_u32 vcc, 1, v0\ns_nop 0\nv_mov_b32 v4, s4\nv_mov_b32 v5, s5\nv_cndmask_b32 v4, v4, v5, vcc")
    bf16_round(a, 4, 4, 5)
    a(f"v_mul_f32 v4, {NLOG2E}, v4\nv_exp_f32 v4, v4\ns_nop 0\nv_add_f32 v4, 1.0, v4\nv_rcp_f32 v4, v4\ns_nop 0")
    bf16_round(a, 4, 4, 5)
    a(f"s_lshl_b32 s4, s15, 2\ns_add_u32 s4, s4, {G_OFF}\nv_lshlrev_b32 v5, 2, v0\ns_mov_b64 exec, 3")
    V.op("buffer_store_dword v4, v5, s[64:67], s4 offen sc1", 'G'); a("s_mov_b64 exec, -1")
    bar(V, 6); bar(V, 7)
    V.wait('G')
    def b_setup():
        p2_ids(a)
        srd(a, 52, sWd, 1835008); srd(a, 56, sCre, 524288); srd(a, 60, sCim, 524288)
        a("s_lshl_b32 s4, s3, 14\ns_lshl_b32 s5, s85, 7\ns_add_u32 s89, s4, s5\ns_lshl_b32 s5, s85, 16\ns_add_u32 s90, s4, s5\ns_lshl_b32 s91, s3, 11")
    def loadB(V, p):
        s = ORD[p]
        for i in range(1 if OPT['halfB'] else 2):
            a(f"s_add_u32 m0, s91, {page(Bp[p]) + i*1024}")
            if s < 28:
                a(f"s_add_u32 s4, s89, {s*65536 + i*8192}")
                V.op(f"buffer_load_dwordx4 v15, s[52:55], s4 offen lds", ('B', p))
            else:
                t = s - 28
                a(f"s_add_u32 s4, s90, {(t >> 1)*128 + i*8192}")
                V.op(f"buffer_load_dwordx4 v{28+i}, s[{56 + 4*(t & 1)}:{59 + 4*(t & 1)}], s4 offen lds", ('B', p))
    def poll(which, pre_issued=False):
        lp = a.lab(); ld = a.lab(); lc = a.lab()
        a("s_mov_b32 s88, 0x8000")
        if pre_issued: a(f"s_branch {lc}")
        a.label(lp)
        a(f"buffer_load_dword v8, v9, s[64:67], s86 offen offset:{which*256} sc1\ns_waitcnt vmcnt(0)")
        a.label(lc)
        a(f"v_cmp_ne_u32 vcc, s72, v8\ns_cmp_eq_u64 vcc, 0\ns_cbranch_scc1 {ld}")
        a(f"s_sub_u32 s88, s88, 1\ns_cmp_lg_u32 s88, 0\ns_cbranch_scc1 {lp}")
        a.label(ld)
    KH, KB = OPT['KH'], OPT['KB']
    def pollissue(V, which): V.op(f"buffer_load_dword v8, v9, s[64:67], s86 offen offset:{which*256} sc1", 'P')
    def tail(V, role):
        b_setup()
        if role == 2:
            a(f"s_lshr_b32 s4, s84, 1\ns_lshl_b32 s4, s4, 10\ns_add_u32 s86, s4, {FLG_OFF}\nv_lshlrev_b32 v9, 2, v0")
        for p in Biss['b12']: loadB(V, p)
        bar(V, 13, " lgkmcnt(0)")
        for p in Biss['b13']: loadB(V, p)
        bar(V, 14)
        if role == 2: pollissue(V, 0)
        for p in Biss['b14']: loadB(V, p)
        for k in range(22):
            V.wait(('B', 2*k), ('B', 2*k+1))
            if role == 2:
                for (kk_, wh) in ((-1, 0), (KH, 1), (KB, 2)):
                    if k == kk_ + 1:
                        V.wait('P'); poll(wh, pre_issued=True)
                        if wh == 0: stamp(a, 7)
            if OPT['fine']: stamp(a, 32+k)
            a("s_barrier")
            if role == 2 and k in (KH, KB): pollissue(V, 1 if k == KH else 2)
            if k == 0:
                for p in Biss['Z']: loadB(V, p)
            for p in Biss[k]: loadB(V, p)
        a("s_barrier")
        stamp_flush(a)
        a("s_endpgm")
    L2 = a.lab(); L3 = a.lab(); LM = a.lab()
    a(f"s_cmp_eq_u32 s3, 2\ns_cbranch_scc1 {L2}\ns_and_b32 s4, s3, s12\ns_cmp_eq_u32 s3, 3\ns_cselect_b32 s4, s4, 0\ns_cmp_eq_u32 s4, 1\ns_cbranch_scc1 {L3}")
    V0 = V
    V = V0.copy()
    for s in range(8, 13): bar(V, s)
    tail(V, 0)
    a.label(L2)
    V = V0.copy(); combine(a, V, bar, 8, 16, 16, 3, AGE_RE, AGE_IM, 10, PARAM); tail(V, 2)
    a.label(L3)
    V = V0.copy(); combine(a, V, bar, 9, 8, 64, 4, AGM_RE, AGM_IM, 11, PARAM + 256); tail(V, 3)

def combine(a, V, bar, sb, nseg, nch, lg, are, aim, sch, pofs):
    ex = f"s_mov_b64 exec, {(1 << nch) - 1}" if nch < 64 else "s_nop 0"
    a(f"s_add_u32 s96, s48, {AGG_OFF}\ns_addc_u32 s97, s49, 0\ns_mov_b32 s98, {AGG_SZ}\ns_mov_b32 s99, 0x20000")
    a(f"v_lshlrev_b32 v1, 4, v0\nds_read_b64 v[2:3], v1 offset:{pofs}\ns_waitcnt lgkmcnt(0)")
    for i in range(7):
        a("v_mul_f32 v8, v3, v3\nv_mul_f32 v9, v2, v3\nv_fma_f32 v2, v2, v2, -v8\nv_add_f32 v3, v9, v9")
        if i == lg - 1: a("v_mov_b32 v6, v2\nv_mov_b32 v7, v3")
    a(f"s_lshl_b32 s4, s{sch}, 4\ns_lshl_b32 s5, s6, 13\ns_add_u32 s4, s4, s5\nv_add_u32 v17, s4, v1")
    a(f"v_lshlrev_b32 v1, 2, v0\nv_add_u32 v1, {EXT}, v1\nv_mov_b32 v4, 0")
    bar(V, 8)
    stamp(a, 3)
    AR, AI = 32, 48
    a(ex)
    a(f"ds_read_b32 v5, v4 offset:{NONCE}")
    for sg in range(nseg):
        a(f"ds_read_b32 v{AR+sg}, v1 offset:{are - EXT + sg*nch*4}\nds_read_b32 v{AI+sg}, v1 offset:{aim - EXT + sg*nch*4}")
    def step(pr, pi, dr, di, mr, mi, ar, ai):
        a(f"v_fma_f32 v{dr}, v{pr}, v{mr}, v{ar}\nv_fma_f32 v{di}, v{pi}, v{mr}, v{ai}\nv_fma_f32 v{dr}, -v{pi}, v{mi}, v{dr}\nv_fma_f32 v{di}, v{pr}, v{mi}, v{di}")
    a("s_waitcnt lgkmcnt(0)\nv_mov_b32 v125, v5\nv_mov_b32 v127, v5\nv_readfirstlane_b32 s72, v5")
    cur = (AR, AI)
    for sg in range(1, nseg):
        dst = (124, 126) if (nseg - 1 - sg) % 2 == 0 else (20, 21)
        step(cur[0], cur[1], dst[0], dst[1], 6, 7, AR+sg, AI+sg); cur = dst
    V.op("buffer_store_dwordx4 v[124:127], v17, s[96:99], 0 offen sc1", 'Q')
    a("s_mov_b64 exec, -1")
    stamp(a, 4)
    for s in range(9, OPT['SP'] + 1): bar(V, s)
    E = 60
    def loads(first):
        for d in range(1, 16):
            a(f"v_subrev_u32 v{24+(d&3)}, {d*8192}, v17")
            ins = f"buffer_load_dwordx4 {vr(E+4*d,4)}, v{24+(d&3)}, s[96:99], 0 offen sc1"
            if first: V.op(ins, 'R')
            else: a(ins)
    a(ex)
    loads(True)
    a("s_mov_b64 exec, -1")
    for s in range(OPT['SP'] + 1, OPT['LS'] - 1): bar(V, s)
    a(ex)
    lp = a.lab(); ld = a.lab(); lc = a.lab()
    a("s_mov_b32 s83, 0x8000")
    V.wait('R')
    a(f"s_branch {lc}")
    a.label(lp)
    loads(False)
    a("s_waitcnt vmcnt(0)")
    a.label(lc)
    a("s_mov_b64 s[94:95], 0")
    for d in range(1, 16):
        a(f"s_cmp_ge_u32 s6, {d}\ns_cselect_b32 s4, s72, 0\nv_cmp_ne_u32 vcc, s4, v{E+4*d+1}\ns_or_b64 s[94:95], s[94:95], vcc\nv_cmp_ne_u32 vcc, s4, v{E+4*d+3}\ns_or_b64 s[94:95], s[94:95], vcc")
    a(f"s_cmp_eq_u64 s[94:95], 0\ns_cbranch_scc1 {ld}")
    a(f"s_sub_u32 s83, s83, 1\ns_cmp_lg_u32 s83, 0\ns_cbranch_scc1 {lp}")
    a.label(ld)
    stamp(a, 5)
    cur = (E+60, E+62)
    for d in range(14, 0, -1):
        dst = (20, 21) if d & 1 else (22, 23)
        step(cur[0], cur[1], dst[0], dst[1], 2, 3, E+4*d, E+4*d+2); cur = dst
    for sg in range(nseg):
        a(f"ds_write_b32 v1, v{cur[0]} offset:{are - EXT + sg*nch*4}\nds_write_b32 v1, v{cur[1]} offset:{aim - EXT + sg*nch*4}")
        if sg < nseg - 1:
            dst = (22, 23) if cur == (20, 21) else (20, 21)
            step(cur[0], cur[1], dst[0], dst[1], 6, 7, AR+sg, AI+sg); cur = dst
    a("s_mov_b64 exec, -1")
    stamp(a, 6)
    if OPT['LS'] == 13: bar(V, 12, " lgkmcnt(0)")

def kernel(a, name):
    a(f".p2align 8\n.globl {name}\n.type {name},@function")
    a.label(name)
    l_end = a.lab(); l_c = a.lab(); l_s = a.lab(); l_p2 = a.lab()
    a("s_getpc_b64 s[90:91]")
    a(f"s_cmp_ge_u32 s2, 256\ns_cbranch_scc1 {l_end}")
    a("s_load_dwordx16 s[16:31], s[0:1], 0\ns_load_dwordx16 s[32:47], s[0:1], 64\ns_load_dwordx2 s[48:49], s[0:1], 128")
    a("v_lshrrev_b32 v1, 6, v0\nv_and_b32 v0, 63, v0\nv_readfirstlane_b32 s3, v1")
    a("s_and_b32 s4, s2, 7\ns_lshr_b32 s5, s2, 3")
    a("s_and_b32 s6, s4, 1\ns_lshr_b32 s7, s5, 2\ns_lshl_b32 s7, s7, 1\ns_add_u32 s6, s6, s7")
    a("s_and_b32 s7, s5, 3\ns_lshr_b32 s8, s4, 1")
    a("s_mul_i32 s9, s8, 448\ns_lshl_b32 s4, s7, 7\ns_add_u32 s9, s9, s4")
    a("s_lshl_b32 s11, s8, 7\ns_lshl_b32 s4, s7, 4\ns_add_u32 s10, s11, s4\ns_add_u32 s11, s11, 64")
    a("s_cmp_eq_u32 s7, 3\ns_cselect_b32 s12, 1, 0\ns_lshl_b32 s13, s8, 2\ns_add_u32 s13, s13, s7")
    if STAMP: a("s_mov_b32 s93, s3")
    a(f"s_cmp_lt_u32 s3, 4\ns_cbranch_scc1 {l_c}")
    a("s_sub_u32 s3, s3, 4")
    loader_pre(a)
    if STAMP: a("s_waitcnt lgkmcnt(0)")
    stamp(a, 0)
    loader(a)
    a.label(l_c)
    a("s_waitcnt lgkmcnt(0)")
    stamp(a, 0)
    p1_consumer_prologue(a, "L_code_end")
    a(f"s_cmp_eq_u32 s12, 1\ns_cbranch_scc1 {l_s}")
    global passB_fillers
    orig = passB_fillers
    def withnonce(M):
        F = orig(M); F[7] = [nonce_finish(a)] + F[7]; return F
    passB_fillers = withnonce
    p1_consumer(a, False)
    a(f"s_branch {l_p2}")
    a.label(l_s)
    p1_consumer(a, True)
    a.label(l_p2)
    p2_consumer(a)
    a.label(l_end)
    a("s_endpgm")
    a.label("L_code_end")
    a("s_endpgm")

def desc(name, nv=256):
    return f""".p2align 6
.amdhsa_kernel {name}
  .amdhsa_next_free_vgpr {nv}
  .amdhsa_next_free_sgpr 102
  .amdhsa_accum_offset {nv}
  .amdhsa_group_segment_fixed_size 0
  .amdhsa_kernarg_size 136
  .amdhsa_user_sgpr_count 2
  .amdhsa_user_sgpr_kernarg_segment_ptr 1
  .amdhsa_system_sgpr_workgroup_id_x 1
.end_amdhsa_kernel
"""

def main(out):
    a = Asm()
    n1 = NAME + "_kernel"
    kernel(a, n1)
    txt = HDR
    txt += f"; @launch grid=(256,1,1) block=(512,1,1) lds={LDS1}\n"
    txt += '.amdgcn_target "amdgcn-amd-amdhsa--gfx950"\n.text\n' + a.text()
    txt += '.section .rodata,"a"\n' + desc(n1)
    open(out, "w").write(txt)

if __name__ == "__main__":
    args = sys.argv[1:]
    if "-stamp" in args: STAMP = True; args.remove("-stamp")
    for x in list(args):
        if "=" in x:
            k, v = x.split("="); assert k in OPT, k; OPT[k] = int(v); args.remove(x)
    if "-sched" in args:
        print(p2_schedule()); print(ORD)
        for M in (False, True): print({k: len(v) for k, v in passB_fillers(M).items()})
        sys.exit()
    main(args[0] if args else f"cdna_kernels/{NAME}.s")
```

```python
import sys

NAME = "gated_mix__ssm_conv_s5__glu_gated_glu__prompt"
HDR = open("cdna_kernels/%s.s.ref" % NAME).read().split("; Override launch")[0]

G_OFF = 0xB00000
AGG_OFF = 0xB10000
AGG_SZ = 16 * 512 * 16
FLG_OFF = 0xB30000
WS_USED = 0xB40000
LOG2E = 0x3fb8aa3b
NLOG2E = 0xbfb8aa3b
INV2PI = 0x3e22f983
OPT = dict(sc1_a=1, touch1=1, touch2=1, cpf=1, per2=2, KH=3, KB=8, prio=3, fine=0, t1s=1, SP=11, capM=72, LS=14, ts=2566, halfB=0, tw=2, gs=0, per1=2, be=0, l2t=0, BLA=7, noF=0, la=0)

class Asm:
    def __init__(s): s.l = []; s.uid = 0
    def __call__(s, t):
        for x in t.strip("\n").split("\n"): s.l.append("    " + x.strip())
    def label(s, n): s.l.append(n + ":")
    def lab(s, p="L"):
        s.uid += 1; return f"{p}_{s.uid}"
    def text(s): return "\n".join(s.l) + "\n"

def vr(b, n): return f"v[{b}:{b+n-1}]" if n > 1 else f"v{b}"
def R(b, n): return list(range(b, b+n))
def srd(a, d, lo, size):
    a(f"s_mov_b32 s{d}, s{lo}\ns_mov_b32 s{d+1}, s{lo+1}\ns_mov_b32 s{d+2}, {size}\ns_mov_b32 s{d+3}, 0x20000")

sX, sLre, sLim, sBre, sBim, sCre, sCim, sLdt = 16, 18, 20, 22, 24, 26, 28, 30
sDsk, sBx, sWg, sWu, sWd, sGw, sOut, sDbg, sWs = 32, 34, 36, 38, 40, 42, 44, 46, 48

STAMP = False
TS_OFF = 0xB40000
def stamp(a, idx):
    if not STAMP or (STAMP == 2 and idx not in (0, 13)): return
    a(f"s_memrealtime s[100:101]\ns_waitcnt lgkmcnt(0)\nv_writelane_b32 v31, s100, {idx}")
def cstamp(a, idx):
    if not STAMP or STAMP == 2: return
    a(f"s_memtime s[100:101]\ns_waitcnt lgkmcnt(0)\nv_writelane_b32 v31, s100, {idx}")
def stamp_flush(a):
    if not STAMP: return
    srd(a, 96, sWs, 0xC00000)
    a(f"s_lshl_b32 s94, s2, 3\ns_add_u32 s94, s94, s93\ns_lshl_b32 s94, s94, 8\ns_add_u32 s94, s94, {TS_OFF}")
    a("s_mov_b64 exec, -1\nv_lshlrev_b32 v30, 2, v0\nbuffer_store_dword v31, v30, s[96:99], s94 offen")

def bf16_round(a, d, s, t):
    a(f"v_cvt_pk_bf16_f32 v{t}, v{s}, v{s}\nv_lshlrev_b32 v{d}, 16, v{t}")

class Sched:
    def __init__(s, a): s.a = a; s.n = 0; s.prod = {}; s.done = -1
    def read(s, ins, regs):
        s.a(ins)
        for r in regs: s.prod[r] = s.n
        s.n += 1
    def need(s, regs):
        k = max([s.prod.get(r, -1) for r in regs] + [-1])
        if k > s.done:
            s.a(f"s_waitcnt lgkmcnt({min(s.n - 1 - k, 15)})")
            s.done = k if s.n - 1 - k <= 15 else s.n - 16
    def all(s):
        if s.done < s.n - 1: s.a("s_waitcnt lgkmcnt(0)")
        s.done = s.n - 1
    def item(s, it):
        if isinstance(it, str): s.a(it)
        elif it[0] == 'lds': s.read(it[1], it[2])
        else: s.need(it[1]); s.a(it[2])

class VM:
    def __init__(s, a): s.a = a; s.ops = []; s.done = -1
    def op(s, ins, tag):
        if len(s.ops) - 1 - s.done >= 62:
            s.a("s_waitcnt vmcnt(56)"); s.done = len(s.ops) - 1 - 56
        s.a(ins); s.ops.append(tag)
    def wait(s, *tags, extra=""):
        k = max([i for i, t in enumerate(s.ops) if t in tags] + [-1])
        if k > s.done:
            n = min(len(s.ops) - 1 - k, 63)
            s.a(f"s_waitcnt vmcnt({n}){extra}")
            s.done = len(s.ops) - 1 - n
        elif extra: s.a("s_waitcnt" + extra)
    def copy(s):
        v = VM(s.a); v.ops = list(s.ops); v.done = s.done; return v

PARAM = 0; NONCE = 2048; XR = 4096; BLK = XR + 98304; EXT = XR + 147456
AGE_RE = EXT; AGE_IM = EXT + 1024; AGM_RE = EXT + 2048; AGM_IM = EXT + 8192; TSE = EXT + 4096
LDS1 = 163840
def page(p): return XR + p*8192
SPAGES = [8, 9]
KS = list(range(8)) + [5, 6, 7, 0, 1, 2, 3, 4]
XH = [0,0,0,1,1,1,1,1, 1,1,1,0,0,0,1,1]
XI = [0,1,2,0,1,2,0,1, 2,0,1,0,1,2,2,0]
XL = [1]*8 + [0,0,0,0,0,0,1,1]
ORD = [7*g + 2*j for g in range(4) for j in range(3)] + list(range(28, 44))
ORD += [s for s in range(28) if s not in ORD]
assert sorted(ORD) == list(range(44))
NA_, NH_ = 12, 28

def p2_schedule():
    Bp = {}; Biss = {}
    nb = 0
    def take(key, pages):
        nonlocal nb
        Biss.setdefault(key, [])
        for p in pages:
            if nb <= 43: Bp[nb] = p; Biss[key].append(nb); nb += 1
    take('b12', [0, 1, 2, 3]); take('b13', [4, 5, 13, 16]); take('b14', [10, 11, 14, 17]); take('Z', [6, 7, 12, 15])
    for k in range(22):
        fr = []
        if k == 1: fr += SPAGES
        if k >= 2: fr += [Bp[2*k-4], Bp[2*k-3]]
        take(k, fr)
    assert nb == 44
    return Bp, Biss

vXn = 16; vWa = 20; vXe = 24; vEa = 28; vWt = 30; vXp = 12
ACA = 32; ACB = 96; ACE = 160; FR = [176, 192]; FE = 208
def acc(base, w, m): return base + (w * 2 + m) * 16
def ace(comp, m): return ACE + (comp * 2 + m) * 4

def reads_main(kind, step, kk, st):
    b = FR[st]; slot = step % 3; xi = XI[step]
    xs, vx = (4096, vXn) if kind == 'G' else (1024, vXp)
    def xr(m): return [(f"ds_read_b128 {vr(b+4*m,4)}, v{vx+kk} offset:{XR + xi*16384 + m*xs}", R(b+4*m, 4))]
    def wr(w):
        d = b + 8 + 4*w
        if kind == 'G':
            off = w*24576 + slot*8192 + kk*2048
            return [(f"ds_read_b64_tr_b16 {vr(d,2)}, v{vWt} offset:{off}", R(d, 2)),
                    (f"ds_read_b64_tr_b16 {vr(d+2,2)}, v{vWt} offset:{off+512}", R(d+2, 2))]
        return [(f"ds_read_b128 {vr(d,4)}, v{vWa+kk} offset:{w*24576 + slot*8192}", R(d, 4))]
    return xr(0) + wr(0) + xr(1) + wr(1)

def reads_ext(step, k32):
    r = []; slot = step % 3; xi = XI[step]
    for m in range(2): r.append((f"ds_read_b128 {vr(FE+4*m,4)}, v{vXe+2*m+k32} offset:{XR + xi*16384}", R(FE+4*m, 4)))
    for cp in range(2): r.append((f"ds_read_b128 {vr(FE+8+4*cp,4)}, v{vEa+k32} offset:{slot*4096+cp*2048}", R(FE+8+4*cp, 4)))
    return r

def mfma_main(kind, base, st, first):
    r = []; b = FR[st]
    for w in range(2):
        for m in range(2):
            d = vr(acc(base, w, m), 16); X = vr(b+4*m, 4); W = vr(b+8+4*w, 4)
            c = "0" if first else d
            ins = f"v_mfma_f32_32x32x16_bf16 {d}, {W}, {X}, {c}" if kind == 'G' else f"v_mfma_f32_32x32x16_bf16 {d}, {X}, {W}, {c}"
            r.append((ins, R(b+4*m, 4) + R(b+8+4*w, 4)))
    return r

def mfma_ext(first):
    r = []
    for cp in range(2):
        for m in range(2):
            d = vr(ace(cp, m), 4)
            r.append((f"v_mfma_f32_16x16x32_bf16 {d}, {vr(FE+4*m,4)}, {vr(FE+8+4*cp,4)}, {'0' if first else d}", R(FE+4*m, 4) + R(FE+8+4*cp, 4)))
    return r

def cmul_pk(Rr, I, C, t1, t2):
    return [f"v_pk_mul_f32 {vr(t1,2)}, {vr(Rr,2)}, {vr(C,2)} op_sel:[0,0] op_sel_hi:[1,0]",
            f"v_pk_mul_f32 {vr(t2,2)}, {vr(Rr,2)}, {vr(C,2)} op_sel:[0,1] op_sel_hi:[1,1] neg_lo:[0,1] neg_hi:[0,1]",
            f"v_pk_fma_f32 {vr(Rr,2)}, {vr(I,2)}, {vr(C,2)}, {vr(t1,2)} op_sel:[0,1,0] op_sel_hi:[1,1,1] neg_lo:[0,1,0] neg_hi:[0,1,0]",
            f"v_pk_fma_f32 {vr(I,2)}, {vr(I,2)}, {vr(C,2)}, {vr(t2,2)} op_sel:[0,0,0] op_sel_hi:[1,0,1] neg_lo:[0,1,0] neg_hi:[0,1,0]"]
def cmul_s(Rr, I, cr, ci, t1, t2):
    return [f"v_mul_f32 v{t1}, v{Rr}, v{cr}", f"v_mul_f32 v{t2}, v{Rr}, v{ci}",
            f"v_fma_f32 v{Rr}, -v{I}, v{ci}, v{t1}", f"v_fma_f32 v{I}, -v{I}, v{cr}, -v{t2}"]
def flag_item(which):
    return f"v_mov_b32 v1, s15\nv_mov_b32 v2, 0\ns_mov_b64 exec, 1\nbuffer_store_dword v1, v2, s[64:67], s81 offen offset:{which*256} sc1\ns_mov_b64 exec, -1"
def merge(l1, l2):
    o = []; i = j = 0
    while i < len(l1) or j < len(l2):
        if j >= len(l2) or (i < len(l1) and i * len(l2) <= j * len(l1)): o.append(l1[i]); i += 1
        else: o.append(l2[j]); j += 1
    return o

def cmul2(Rr, I, C, t):
    o = []
    for par in range(2): o += cmul_s(Rr+par, I+par, C, C+1, t+2*par, t+2*par+1)
    return [o[0], o[4], o[1], o[5], o[2], o[6], o[3], o[7]]
def step2(dr, di, pr, pi, L, Rr, I, conj):
    o = []
    n1, n2 = ("", "-") if conj else ("-", "")
    for par in range(2): o += [f"v_fma_f32 v{dr+par}, v{pr+par}, v{L}, v{Rr+par}", f"v_fma_f32 v{di+par}, v{pi+par}, v{L}, v{I+par}"]
    for par in range(2): o += [f"v_fma_f32 v{dr+par}, {n1}v{pi+par}, v{L+1}, v{dr+par}", f"v_fma_f32 v{di+par}, {n2}v{pr+par}, v{L+1}, v{di+par}"]
    return o
def stores_last(l):
    st = [x for x in l if 'buffer_store' in (x if isinstance(x, str) else x[-1] if x[0] == 'need' else '')]
    return [x for x in l if x not in st] + st
def glu_epi(base, sbase, E0, P0, morder=(0, 1)):
    o = []; k = 0
    for m in morder:
        for half in range(2):
            E = E0 + (k & 1) * 8; P = P0 + (k & 1) * 4; k += 1
            gb, ub = acc(base, 0, m) + 8*half, acc(base, 1, m) + 8*half
            t = []
            for i in range(8): t.append(f"v_mul_f32 v{E+i}, s50, v{gb+i}")
            for i in range(8): t.append(f"v_exp_f32 v{E+i}, v{E+i}")
            for i in range(8): t.append(f"v_add_f32 v{E+i}, 1.0, v{E+i}")
            for i in range(8): t.append(f"v_rcp_f32 v{E+i}, v{E+i}")
            for i in range(8): t.append(f"v_mul_f32 v{E+i}, v{E+i}, v{ub+i}")
            for i in range(0, 8, 2): t.append(f"v_cvt_pk_bf16_f32 v{P+i//2}, v{E+i}, v{E+i+1}")
            t.append(f"s_add_u32 s5, s{sbase}, {(m*176 + half)*1024}\nbuffer_store_dwordx4 {vr(P,4)}, v6, s[64:67], s5 offen sc1")
            o.append(t)
    return o

PE = 224; PM = 228
def passB_fillers(M):
    F = {s: [] for s in range(8, 17)}
    lr, li = PE, PE+1
    LS = OPT['LS']
    f = F[7] = []
    f += [f"v_and_b32 v1, 15, v0", "v_lshlrev_b32 v1, 4, v1", ('lds', f"ds_read_b128 {vr(PE,4)}, v1 offset:{PARAM}", R(PE, 4))]
    if M: f += ["v_and_b32 v2, 31, v0", "v_lshlrev_b32 v2, 4, v2", "s_and_b32 s4, s3, 1\ns_lshl_b32 s4, s4, 9\nv_add_u32 v2, s4, v2",
                ('lds', f"ds_read_b128 {vr(PM,4)}, v2 offset:{PARAM + 256}", R(PM, 4))]
    f += [f"s_lshl_b32 s4, s3, 8\ns_add_u32 s4, s4, {EXT}\nv_lshlrev_b32 v5, 2, v0", "v_add_u32 v5, s4, v5"]
    if M: f += ["v_lshrrev_b32 v3, 5, v0", "v_lshlrev_b32 v3, 9, v3", "v_lshrrev_b32 v4, 2, v2", "v_add_u32 v3, v3, v4",
                f"s_lshr_b32 s4, s3, 1\ns_lshl_b32 s4, s4, 10\ns_add_u32 s4, s4, {EXT}\nv_add_u32 v3, s4, v3"]
    l1 = []; l2 = []
    if M:
        S = [216, 218]; T = [220, 222]; L = vr(PM, 2)
        for pos in range(1, 16):
            m, rr = pos >> 3, (pos & 7) * 2
            Rr = vr(acc(ACA, 0, m) + rr, 2); I = vr(acc(ACA, 1, m) + rr, 2)
            if pos == 1: pr, pi = vr(acc(ACA, 0, 0), 2), vr(acc(ACA, 1, 0), 2)
            else:
                src = S if (pos & 1) else T
                pr, pi = vr(src[0], 2), vr(src[1], 2)
            dst = T if (pos & 1) else S
            dr, di = vr(dst[0], 2), vr(dst[1], 2)
            l1.append(f"v_pk_fma_f32 {dr}, {pr}, {L}, {Rr} op_sel:[0,0,0] op_sel_hi:[1,0,1]")
            l1.append(f"v_pk_fma_f32 {di}, {pi}, {L}, {I} op_sel:[0,0,0] op_sel_hi:[1,0,1]")
            l1.append(f"v_pk_fma_f32 {dr}, {pi}, {L}, {dr} op_sel:[0,1,0] op_sel_hi:[1,1,1] neg_lo:[0,1,0] neg_hi:[0,1,0]")
            l1.append(f"v_pk_fma_f32 {di}, {pr}, {L}, {di} op_sel:[0,1,0] op_sel_hi:[1,1,1]")
        for par in range(2):
            l1.append(('lds', f"ds_write_b32 v3, v{T[0]+par} offset:{AGM_RE - EXT + par*256}", []))
            l1.append(('lds', f"ds_write_b32 v3, v{T[1]+par} offset:{AGM_IM - EXT + par*256}", []))
    S = [208, 209]; T = [210, 211]
    for pos in range(1, 8):
        Rr = ace(0, pos >> 2) + (pos & 3); I = ace(1, pos >> 2) + (pos & 3)
        if pos == 1: pr, pi = ace(0, 0), ace(1, 0)
        else: pr, pi = (S if (pos & 1) else T)
        dr, di = (T if (pos & 1) else S)
        l2 += [f"v_fma_f32 v{dr}, v{pr}, v{lr}, v{Rr}", f"v_fma_f32 v{di}, v{pi}, v{lr}, v{I}",
               f"v_fma_f32 v{dr}, -v{pi}, v{li}, v{dr}", f"v_fma_f32 v{di}, v{pr}, v{li}, v{di}"]
    l2 += [('lds', f"ds_write_b32 v5, v{T[0]} offset:{AGE_RE - EXT}", []), ('lds', f"ds_write_b32 v5, v{T[1]} offset:{AGE_IM - EXT}", [])]
    if M: F['ser'] = ["s_nop 15", "s_nop 7"] + merge(l1, l2) + ["s_nop 3"]
    else: F['ser'] = []; F[8] += l2
    pre_ = ["s_waitcnt vmcnt(0)", "v_mov_b32 v1, 0", ('lds', f"ds_read_b32 v1, v1 offset:{NONCE}", [1])]
    rest = [('need', [1], "v_readfirstlane_b32 s15, v1")]
    for m in range(2):
        for i in range(4): rest += cmul_s(ace(0, m)+i, ace(1, m)+i, PE+2, PE+3, 212 + (i & 1)*2, 213 + (i & 1)*2)
    rest += [f"s_lshl_b32 s4, s3, 10\ns_add_u32 s4, s4, {TSE}\nv_and_b32 v7, 15, v0", "v_lshlrev_b32 v7, 6, v7", "v_lshrrev_b32 v8, 4, v0", "v_lshl_add_u32 v7, v8, 4, v7", "v_add_u32 v7, s4, v7",
            "v_lshrrev_b32 v9, 5, v0", "v_lshlrev_b32 v9, 3, v9", "v_bfe_u32 v10, v0, 2, 2", "v_add_u32 v9, v9, v10",
            "v_bfe_u32 v10, v0, 4, 1", "v_lshlrev_b32 v10, 5, v10", "v_and_b32 v11, 3, v0", "v_lshl_add_u32 v10, v11, 3, v10",
            "v_lshl_add_u32 v8, v9, 6, v10", "v_add_u32 v8, s4, v8"]
    if M:
        rest += [f"s_mov_b32 s4, {page(SPAGES[0])}\ns_cmp_ge_u32 s3, 2\ns_cselect_b32 s4, {page(SPAGES[1])}, s4\ns_and_b32 s5, s3, 1\ns_lshl_b32 s5, s5, 12\ns_add_u32 s4, s4, s5\nv_and_b32 v11, 1, v0",
                "v_bfe_u32 v4, v0, 2, 1", "v_lshl_or_b32 v11, v4, 1, v11", "v_bfe_u32 v4, v0, 1, 1", "v_lshl_or_b32 v11, v4, 2, v11",
                "v_lshrrev_b32 v4, 5, v0", "v_lshlrev_b32 v4, 2, v4", "v_xor_b32 v11, v11, v4", "v_lshlrev_b32 v11, 4, v11",
                "v_and_b32 v4, 31, v0", "v_lshl_add_u32 v12, v4, 7, v11", "v_add_u32 v12, s4, v12"]
        rest += [f"v_xor_b32 v{12+i}, {i*16}, v12" for i in range(1, 4)]
        rest += ["v_bfe_u32 v11, v0, 2, 1", "v_bfe_u32 v4, v0, 3, 1", "v_lshl_or_b32 v11, v4, 2, v11", "v_lshlrev_b32 v11, 4, v11", "v_xor_b32 v11, v11, v10",
                "v_lshl_add_u32 v20, v9, 7, v11", "v_add_u32 v20, s4, v20", "v_xor_b32 v21, 32, v20", "v_add_u32 v21, 512, v21",
                "v_xor_b32 v22, 64, v20", "v_xor_b32 v23, 64, v21"]
        mid = list(pre_)
        for m in range(2):
            for rr in range(0, 16, 2):
                mid += cmul2(acc(ACA, 0, m)+rr, acc(ACA, 1, m)+rr, PM+2, 232 + ((rr >> 1) & 3) * 4)
        mid = mid[:3] + rest[:1] + ['s_nop 0', flag_item(0)] + mid[3:] + rest[1:] if OPT['gs'] == 2 else mid + rest + [flag_item(0)]
        st = list(range(8, LS))
        n = (len(mid) + len(st) - 1) // len(st)
        for i, s in enumerate(st): F[s] += mid[i*n:(i+1)*n]
    else:
        g = glu_epi(ACA, 14, 232, 248)
        if OPT['gs'] == 2:
            F[8] += ["s_waitcnt vmcnt(0)"] + g[0][:30]; F[9] += pre_[1:] + g[0][30:] + g[1] + g[2][:10]; F[10] += g[2][10:] + g[3]
            F[9] = stores_last(F[9])
            F[11] += rest[:1] + ["s_waitcnt vmcnt(0)\n" + flag_item(0)] + rest[1:25]; F[12] += rest[25:]
        elif OPT['gs'] == 0:
            F[9] += pre_ + g[0] + g[1][:20]; F[10] += g[1][20:] + g[2][:40]
            F[11] += g[2][40:] + g[3]
            F[9] = stores_last(F[9]); F[10] = stores_last(F[10])
            F[12] += rest + ["s_waitcnt vmcnt(0)\n" + flag_item(0)]
        else:
            F[9] += pre_ + g[0]; F[10] += g[1]; F[11] += g[2]; F[12] += rest; GL = g[3]
    IE = 208; IM = [216, 218]
    late = [('lds', f"ds_read_b32 v{IE}, v5 offset:{AGE_RE - EXT}", [IE]), ('lds', f"ds_read_b32 v{IE+1}, v5 offset:{AGE_IM - EXT}", [IE+1])]
    if M:
        for par in range(2):
            late += [('lds', f"ds_read_b32 v{IM[0]+par}, v3 offset:{AGM_RE - EXT + par*256}", [IM[0]+par]), ('lds', f"ds_read_b32 v{IM[1]+par}, v3 offset:{AGM_IM - EXT + par*256}", [IM[1]+par])]
    c = cmul_s(IE, IE+1, PE+2, PE+3, 212, 213); c[0] = ('need', [IE, IE+1], c[0]); late += c
    if M:
        c = cmul2(IM[0], IM[1], PM+2, 220); c[0] = ('need', R(216, 4), c[0]); late += c
    l1 = []; l2 = []
    for pos in range(8):
        Rr = ace(0, pos >> 2) + (pos & 3); I = ace(1, pos >> 2) + (pos & 3)
        if pos == 0: pr, pi = IE, IE+1
        else: pr, pi = ace(0, (pos-1) >> 2) + ((pos-1) & 3), ace(1, (pos-1) >> 2) + ((pos-1) & 3)
        l2 += [f"v_fma_f32 v{Rr}, v{pr}, v{lr}, v{Rr}", f"v_fma_f32 v{I}, v{pi}, v{lr}, v{I}",
               f"v_fma_f32 v{Rr}, v{pi}, v{li}, v{Rr}", f"v_fma_f32 v{I}, -v{pr}, v{li}, v{I}"]
    for cp in range(2):
        for d in range(4):
            b = ace(cp, d >> 1) + (d & 1)*2
            l2.append(f"v_cvt_pk_bf16_f32 v{232+4*cp+d}, v{b}, v{b+1}")
    for cp in range(2):
        l2 += [('lds', f"ds_write_b128 v7, {vr(232+4*cp,4)}", []), ('lds', f"ds_read_b64_tr_b16 {vr(240+4*cp,2)}, v8", R(240+4*cp, 2)),
               ('lds', f"ds_read_b64_tr_b16 {vr(242+4*cp,2)}, v8 offset:256", R(242+4*cp, 2))]
    l2 += ["s_nop 0"] * 6
    l2 += [('need', R(240, 4), f"buffer_store_dwordx4 {vr(240,4)}, v6, s[64:67], s82 offen sc1"), ('need', R(244, 4), f"buffer_store_dwordx4 {vr(244,4)}, v6, s[64:67], s83 offen sc1")]
    if M:
        for pos in range(16):
            m, rr = pos >> 3, (pos & 7) * 2
            if pos == 0: pr, pi = IM
            else:
                pm, prr = (pos-1) >> 3, ((pos-1) & 7) * 2
                pr, pi = acc(ACA, 0, pm)+prr, acc(ACA, 1, pm)+prr
            Rr, I = acc(ACA, 0, m) + rr, acc(ACA, 1, m) + rr
            l1 += step2(Rr, I, pr, pi, PM, Rr, I, True)
    late += merge(l1, [x for x in l2 if x != "s_nop 0"] if M else l2)
    if M:
        for comp in range(2):
            PB = 216 if comp == 0 else 232
            k = 0
            for par in range(2):
                for m in range(2):
                    b = acc(ACA, comp, m); P = PB + 4*k
                    for aa in range(4): late.append(f"v_cvt_pk_bf16_f32 v{P+aa}, v{b+4*aa+par}, v{b+4*aa+2+par}")
                    late.append(('lds', f"ds_write_b128 v{12+2*par+m}, {vr(P,4)}", []))
                    k += 1
            k = 0
            for mt in range(2):
                for u in range(2):
                    d = acc(ACA, comp, 0) + 4*k
                    late.append(('lds', f"ds_read_b64_tr_b16 {vr(d,2)}, v{20+2*mt} offset:{u*2048}", R(d, 2)))
                    late.append(('lds', f"ds_read_b64_tr_b16 {vr(d+2,2)}, v{21+2*mt} offset:{u*2048}", R(d+2, 2)))
                    k += 1
        for comp in range(2):
            k = 0
            for mt in range(2):
                for u in range(2):
                    d = acc(ACA, comp, 0) + 4*k
                    late.append(('need', R(d, 4), f"s_add_u32 s5, s80, {(mt*176 + 4*comp + u)*1024}\nbuffer_store_dwordx4 {vr(d,4)}, v6, s[64:67], s5 offen sc1"))
                    k += 1
    st = list(range(LS, 16))
    if M:
        n = OPT['capM']
        for i, s in enumerate(st): F[s] += late[i*n:(i+1)*n]
        F[16] += late[len(st)*n:]
        F[LS] = F[LS];
        for s in st: F[s] = stores_last(F[s])
    elif OPT['gs'] in (0, 2):
        F[LS] += late
    else:
        F[13] += late; F[14] += GL; F[15] += ["s_waitcnt vmcnt(0)\n" + flag_item(0)]
    return F

def p1_consumer(a, M):
    S = Sched(a)
    kindA = 'S' if M else 'G'
    F = passB_fillers(M)
    stamp(a, 1)
    a("s_barrier")
    stamp(a, 2); cstamp(a, 56)
    for x in reads_main(kindA, 0, 0, 0): S.read(*x)
    for s in range(16):
        slot = s % 3
        kind = kindA if s < 8 else 'G'
        base = ACA if s < 8 else ACB
        for kk in range(4):
            st = kk & 1
            rd = []
            if kk == 3:
                if s < 15:
                    S.all()
                    if OPT['fine']: stamp(a, 16 + s)
                    a("s_barrier")
                    if XH[s+1] != XH[s]:
                        op = "v_add_u32" if XH[s+1] else "v_subrev_u32"
                        for r_ in (list(range(12, 20)) + list(range(24, 28)) if s < 8 else range(16, 20)): a(f"{op} v{r_}, 49152, v{r_}")
                    rd = reads_main(kindA if s + 1 < 8 else 'G', s+1, 0, 0)
            else:
                rd = reads_main(kind, s, kk+1, st ^ 1)
            if s < 8 and kk in (0, 2): rd = rd + reads_ext(s, kk >> 1)
            mf = mfma_main(kind, base, st, (s in (0, 8)) and kk == 0)
            if s < 8 and kk in (1, 3): mf = mf[:2] + mfma_ext(s == 0 and kk == 1) + mf[2:]
            fs = s + 1 if kk == 3 else s
            fl = []
            if fs >= 7 and not (kk == 3 and s in (6, 7)) and not OPT['noF']:
                q = F[fs]
                nblk = {7: 3, 8: 3, 16: 1}.get(fs, 4)
                bi = kk if fs in (7, 8) else (0 if kk == 3 else kk + 1)
                if fs == 16: fl = q[:16]; F[16] = q[16:]
                else:
                    n = (len(q) + nblk - 1) // nblk
                    fl = q[bi*n:(bi+1)*n]
            rd = list(rd); fl = list(fl)
            nf = (len(fl) + len(mf) - 1) // len(mf) if fl else 0
            for i, (ins, regs) in enumerate(mf):
                S.need(regs); a(ins)
                for _ in range(OPT['per1']):
                    if rd: S.read(*rd.pop(0))
                if s == 8 and kk == 0 and i < 2: continue
                for _ in range(nf + (1 if s == 8 and kk == 0 else 0) * nf):
                    if fl: S.item(fl.pop(0))
            for x in rd: S.read(*x)
            for x in fl: S.item(x)
            if kk == 3 and s == OPT['tw'] and not OPT['ts']: touches(a, 2)
            if kk == 3 and OPT['ts']:
                for sub, st_ in enumerate([int(c) for c in str(OPT['ts'])]):
                    if s == st_: touch_sub(a, sub)
            if kk == 3 and s == 7:
                for x in F['ser']: S.item(x)
        if s == 3: stamp(a, 3); cstamp(a, 57)
        if s == 7: stamp(a, 4); cstamp(a, 58)
    stamp(a, 5); cstamp(a, 61)
    if not OPT['noF']:
        for x in F[16]: S.item(x)
    S.all()
    stamp(a, 8)

def touches(a, part):
    l1 = a.lab(); l2 = a.lab()
    lo, hi = {0: (1, 8), 1: (1, 4), 2: (4, 8)}[part]
    a(f"s_cmp_lg_u32 s3, 1\ns_cbranch_scc1 {l1}")
    srd(a, 52, sX, 2097152); srd(a, 56, sWg, 1835008); srd(a, 60, sWu, 1835008)
    a(f"v_and_b32 v1, 7, v0\nv_min_u32 v1, {hi-lo-1}, v1\nv_lshlrev_b32 v1, 7, v1\nv_lshrrev_b32 v2, 3, v0\nv_lshl_add_u32 v1, v2, 10, v1\ns_lshl_b32 s4, s2, 13\ns_add_u32 s4, s4, {lo*128}")
    a("buffer_load_dword v8, v1, s[52:55], s4 offen")
    r0 = 0 if part == 0 else 64*lo
    nl = (64*hi - r0) * 28 // 256
    a(f"v_min_u32 v1, {nl-1}, v0\nv_lshlrev_b32 v1, 7, v1\ns_mul_i32 s4, s2, {nl*128}\ns_add_u32 s4, s4, {r0*3584}")
    a("buffer_load_dword v8, v1, s[56:59], s4 offen\nbuffer_load_dword v8, v1, s[60:63], s4 offen")
    if part == 2:
        a(f"v_min_u32 v1, 6, v0\nv_lshlrev_b32 v1, 7, v1\ns_mul_i32 s4, s2, {7*128}")
        a("buffer_load_dword v8, v1, s[56:59], s4 offen\nbuffer_load_dword v8, v1, s[60:63], s4 offen")
    a.label(l1)
    a(f"s_cmp_lg_u32 s3, 2\ns_cbranch_scc1 {l2}")
    if part in (0, 1):
        srd(a, 52, sBre, 524288); srd(a, 56, sBim, 524288)
        a("v_and_b32 v1, 15, v0\nv_lshlrev_b32 v1, 7, v1\ns_lshl_b32 s4, s2, 11\nbuffer_load_dword v8, v1, s[52:55], s4 offen\nbuffer_load_dword v8, v1, s[56:59], s4 offen")
    if part in (0, 2):
        srd(a, 52, sWd, 1835008); srd(a, 56, sCre, 524288); srd(a, 60, sCim, 524288)
        a("v_and_b32 v1, 15, v0\nv_lshlrev_b32 v1, 7, v1\ns_lshl_b32 s4, s2, 11\nbuffer_load_dword v8, v1, s[56:59], s4 offen\nbuffer_load_dword v8, v1, s[60:63], s4 offen")
        a(f"v_min_u32 v1, 55, v0\nv_lshlrev_b32 v1, 7, v1\ns_mul_i32 s4, s2, {56*128}\nbuffer_load_dword v8, v1, s[52:55], s4 offen")
    a.label(l2)

def touch_sub(a, sub):
    l = a.lab()
    a(f"s_cmp_lg_u32 s3, {1 + (sub >> 1)}\ns_cbranch_scc1 {l}")
    if sub == 0:
        srd(a, 52, sX, 2097152); srd(a, 56, sWg, 1835008)
        a(f"v_and_b32 v1, 7, v0\nv_min_u32 v1, 3, v1\nv_lshlrev_b32 v1, 7, v1\nv_lshrrev_b32 v2, 3, v0\nv_lshl_add_u32 v1, v2, 10, v1\ns_lshl_b32 s4, s2, 13\ns_add_u32 s4, s4, 512")
        a("buffer_load_dword v8, v1, s[52:55], s4 offen")
        a(f"v_min_u32 v1, 27, v0\nv_lshlrev_b32 v1, 7, v1\ns_mul_i32 s4, s2, {28*128}\ns_add_u32 s4, s4, {256*3584}\nbuffer_load_dword v8, v1, s[56:59], s4 offen")
        srd(a, 60, sWu, 1835008)
        a("buffer_load_dword v8, v1, s[60:63], s4 offen")
    elif sub == 1:
        srd(a, 56, sWg, 1835008); srd(a, 60, sWu, 1835008)
        a(f"v_min_u32 v1, 6, v0\nv_lshlrev_b32 v1, 7, v1\ns_mul_i32 s4, s2, {7*128}")
        a("buffer_load_dword v8, v1, s[56:59], s4 offen\nbuffer_load_dword v8, v1, s[60:63], s4 offen")
    elif sub == 2:
        srd(a, 52, sWd, 1835008)
        a(f"v_min_u32 v1, 55, v0\nv_lshlrev_b32 v1, 7, v1\ns_mul_i32 s4, s2, {56*128}\nbuffer_load_dword v8, v1, s[52:55], s4 offen")
    else:
        srd(a, 56, sCre, 524288); srd(a, 60, sCim, 524288)
        a("v_and_b32 v1, 15, v0\nv_lshlrev_b32 v1, 7, v1\ns_lshl_b32 s4, s2, 11\nbuffer_load_dword v8, v1, s[56:59], s4 offen\nbuffer_load_dword v8, v1, s[60:63], s4 offen")
    a.label(l)

def p1_consumer_prologue(a, code_end):
    srd(a, 64, sWs, WS_USED)
    l_np = a.lab(); l_nn = a.lab(); l_n2 = a.lab(); l_n1 = a.lab()
    a(f"s_cmp_lg_u32 s3, {3 if OPT['cpf'] else 77}\ns_cbranch_scc1 {l_np}")
    a(f"s_mov_b32 s4, {code_end} - {NAME}_kernel - 8\nv_lshlrev_b32 v1, 7, v0")
    a("s_lshr_b32 s5, s2, 3\ns_and_b32 s5, s5, 7\ns_lshl_b32 s5, s5, 13\nv_add_u32 v2, s5, v1\nv_min_u32 v2, s4, v2\nglobal_load_dword v8, v2, s[90:91]")
    a.label(l_np)
    a(f"s_cmp_lg_u32 s3, 0\ns_cbranch_scc1 {l_nn}")
    srd(a, 60, sDbg, 256)
    a("s_memrealtime s[14:15]\nv_mov_b32 v9, 0\nv_mov_b32 v11, 0\ns_waitcnt lgkmcnt(0)\ns_or_b32 s14, s14, 1")
    a("v_mov_b32 v10, s14\ns_mov_b64 exec, 1")
    a("buffer_atomic_cmpswap v[10:11], v9, s[60:63], 0 offen sc0\ns_mov_b64 exec, -1")
    a.label(l_nn)
    touches(a, 0 if OPT['tw'] < 0 else 1)
    a("v_bfe_u32 v1, v0, 2, 2\nv_and_b32 v2, 3, v0\nv_lshl_add_u32 v3, v1, 3, v2")
    a("v_and_b32 v4, 2, v0\nv_bfe_u32 v5, v0, 3, 1\nv_lshl_or_b32 v4, v5, 2, v4\nv_lshrrev_b32 v5, 4, v0\nv_xor_b32 v4, v4, v5")
    a(f"v_lshlrev_b32 v4, 4, v4\nv_lshl_add_u32 v{vXe}, v3, 7, v4\ns_lshl_b32 s4, s3, 12\nv_add_u32 v{vXe}, s4, v{vXe}")
    a(f"v_xor_b32 v{vXe+1}, 64, v{vXe}\nv_xor_b32 v{vXe+2}, 16, v{vXe}\nv_add_u32 v{vXe+2}, 512, v{vXe+2}\nv_xor_b32 v{vXe+3}, 64, v{vXe+2}")
    a("v_and_b32 v3, 15, v0\nv_lshrrev_b32 v4, 1, v3\nv_xor_b32 v4, v4, v5\nv_lshlrev_b32 v4, 4, v4")
    a(f"v_lshl_add_u32 v{vEa}, v3, 7, v4\nv_add_u32 v{vEa}, {EXT}, v{vEa}\nv_xor_b32 v{vEa+1}, 64, v{vEa}")
    a(f"s_lshr_b32 s4, s3, 1\ns_lshl_b32 s4, s4, 13\ns_and_b32 s51, s3, 1")
    for perm, vx in ((0, vXn), (1, vXp)):
        if not perm: a("v_and_b32 v1, 31, v0")
        else:
            a("v_bfe_u32 v1, v0, 2, 1\nv_lshlrev_b32 v1, 5, v1\nv_and_b32 v2, 1, v0\nv_lshl_or_b32 v1, v2, 4, v1")
            a("v_bfe_u32 v2, v0, 3, 2\nv_lshl_or_b32 v1, v2, 1, v1\nv_bfe_u32 v2, v0, 1, 1\nv_or_b32 v1, v1, v2")
        a("v_bfe_u32 v2, v1, 2, 1\nv_and_b32 v3, 2, v1\nv_or_b32 v2, v2, v3\nv_bfe_u32 v3, v1, 4, 1\nv_lshl_or_b32 v2, v3, 2, v2")
        a(f"v_lshrrev_b32 v3, 5, v0\nv_xor_b32 v2, v2, v3\nv_lshlrev_b32 v2, 4, v2\nv_lshl_add_u32 v{vx}, v1, 7, v2\nv_add_u32 v{vx}, s4, v{vx}")
        for kk in range(1, 4): a(f"v_xor_b32 v{vx+kk}, {kk*32}, v{vx}")
    a("v_lshrrev_b32 v1, 5, v0\nv_lshlrev_b32 v1, 3, v1\nv_bfe_u32 v2, v0, 2, 2\nv_add_u32 v1, v1, v2")
    a("v_bfe_u32 v2, v0, 4, 1\nv_lshlrev_b32 v2, 5, v2\nv_and_b32 v3, 3, v0\nv_lshl_add_u32 v2, v3, 3, v2")
    a("v_bfe_u32 v3, v0, 3, 1\nv_lshlrev_b32 v3, 6, v3\nv_xor_b32 v2, v2, v3")
    a(f"s_lshl_b32 s5, s51, 6\nv_xor_b32 v2, s5, v2\nv_lshl_add_u32 v{vWt}, v1, 7, v2\nv_add_u32 v{vWt}, {BLK}, v{vWt}")
    a(f"s_lshl_b32 s5, s51, 12\ns_add_u32 s5, s5, {BLK}")
    a("v_and_b32 v1, 31, v0\nv_bfe_u32 v2, v0, 1, 3\nv_lshrrev_b32 v3, 5, v0\nv_xor_b32 v2, v2, v3\nv_lshlrev_b32 v2, 4, v2")
    a(f"v_lshl_add_u32 v{vWa}, v1, 7, v2\nv_add_u32 v{vWa}, s5, v{vWa}")
    for kk in range(1, 4): a(f"v_xor_b32 v{vWa+kk}, {kk*32}, v{vWa}")
    a("v_lshlrev_b32 v6, 4, v0")
    a(f"s_lshl_b32 s81, s6, 10\ns_lshl_b32 s4, s13, 4\ns_add_u32 s81, s81, s4\ns_lshl_b32 s4, s3, 2\ns_add_u32 s81, s81, s4\ns_add_u32 s81, s81, {FLG_OFF}")
    a("s_lshr_b32 s4, s3, 1\ns_lshl_b32 s4, s4, 1\ns_lshl_b32 s5, s6, 2\ns_add_u32 s4, s4, s5\ns_mul_i32 s79, s4, 176")
    a("s_lshl_b32 s5, s51, 1\ns_add_u32 s4, s79, s5\ns_lshr_b32 s5, s9, 4\ns_add_u32 s4, s4, s5\ns_lshl_b32 s78, s4, 10")
    a("s_xor_b32 s5, s12, 1\ns_lshl_b32 s5, s5, 12\ns_add_u32 s77, s78, s5")
    a("s_lshl_b32 s5, s8, 4\ns_add_u32 s4, s79, s5\ns_add_u32 s4, s4, 120\ns_lshl_b32 s5, s51, 1\ns_add_u32 s4, s4, s5\ns_lshl_b32 s80, s4, 10")
    a("s_lshl_b32 s4, s6, 2\ns_add_u32 s4, s4, s3\ns_mul_i32 s4, s4, 176\ns_lshl_b32 s5, s8, 4\ns_add_u32 s4, s4, s5\ns_add_u32 s4, s4, s7\ns_add_u32 s4, s4, 112\ns_lshl_b32 s82, s4, 10\ns_add_u32 s83, s82, 4096")
    a(f"s_mov_b32 s50, {NLOG2E}\ns_mov_b32 s51, {NLOG2E}")

def nonce_finish(a):
    l = a.lab()
    return (f"s_cmp_lg_u32 s3, 0\ns_cbranch_scc1 {l}\ns_waitcnt vmcnt(0)\nv_mov_b32 v9, s14\nv_cmp_eq_u32 vcc, 0, v10\ns_mov_b64 exec, 1\nv_mov_b32 v11, 0\n"
            f"v_cndmask_b32 v10, v10, v9, vcc\nds_write_b32 v11, v10 offset:{NONCE}\ns_waitcnt lgkmcnt(0)\ns_mov_b64 exec, -1\n{l}:\ns_mov_b32 s14, s78")

def p2_ids(a):
    a("s_and_b32 s4, s2, 7\ns_lshr_b32 s5, s2, 3\ns_lshl_b32 s84, s4, 2\ns_lshr_b32 s4, s5, 3\ns_add_u32 s84, s84, s4\ns_and_b32 s85, s5, 7")

def p2_consumer(a):
    Bp, Biss = p2_schedule()
    p2_ids(a)
    a("s_and_b32 s8, s3, 1\ns_lshr_b32 s9, s3, 1")
    srd(a, 52, sX, 2097152); srd(a, 56, sDsk, 1024); srd(a, 60, sOut, 4194304)
    XV = 96; GV = 112; DV = 128; OM = 132
    a("s_lshl_b32 s10, s84, 6\ns_lshl_b32 s4, s9, 5\ns_add_u32 s10, s10, s4")
    a("s_lshl_b32 s11, s85, 6\ns_lshl_b32 s4, s8, 5\ns_add_u32 s11, s11, s4")
    a("v_and_b32 v1, 31, v0\nv_add_u32 v1, s11, v1\nv_lshrrev_b32 v2, 5, v0\nv_lshlrev_b32 v2, 2, v2\nv_add_u32 v2, s10, v2")
    a("v_lshlrev_b32 v3, 1, v1\nv_lshl_add_u32 v4, v2, 10, v3")
    a("v_lshlrev_b32 v5, 2, v1\nv_lshl_add_u32 v5, v2, 11, v5")
    a(f"v_lshlrev_b32 v10, 2, v2\nv_add_u32 v10, {G_OFF}, v10")
    a("s_lshl_b32 s4, s84, 1\ns_add_u32 s4, s4, s9\ns_mul_i32 s4, s4, 176\ns_lshl_b32 s5, s8, 1\ns_add_u32 s4, s4, s5\ns_lshl_b32 s80, s4, 10")
    V = VM(a)
    V.ops = ['H'] * 10
    ld = []
    for i in range(16):
        row = 8*(i >> 2) + (i & 3)
        ld.append((f"s_mov_b32 s4, {row*1024}", f"buffer_load_ushort v{XV+i}, v4, s[52:55], s4 offen"))
    for q in range(4): ld.append((None, f"buffer_load_dwordx4 {vr(GV+4*q,4)}, v10, s[64:67], 0 offen offset:{q*32} sc1"))
    ld.append((None, f"buffer_load_ushort v{DV}, v3, s[56:59], 0 offen"))
    vBw, vBc = 12, 18
    a("v_lshrrev_b32 v7, 5, v0\nv_lshlrev_b32 v7, 2, v7\nv_bfe_u32 v8, v0, 2, 2\nv_add_u32 v7, v7, v8")
    a("v_bfe_u32 v8, v0, 4, 1\nv_lshlrev_b32 v8, 5, v8\nv_and_b32 v9, 3, v0\nv_lshl_add_u32 v8, v9, 3, v8\nv_bfe_u32 v9, v0, 3, 1\nv_lshlrev_b32 v9, 6, v9\nv_xor_b32 v8, v8, v9")
    a(f"s_lshl_b32 s4, s8, 12\nv_lshl_add_u32 v{vBw}, v7, 7, v8\nv_add_u32 v{vBw}, s4, v{vBw}\nv_xor_b32 v{vBw+1}, 64, v{vBw}")
    a("v_and_b32 v7, 31, v0\nv_bfe_u32 v8, v0, 1, 3\nv_lshrrev_b32 v9, 5, v0\nv_xor_b32 v8, v8, v9\ns_lshl_b32 s4, s8, 2\nv_xor_b32 v8, s4, v8\nv_lshlrev_b32 v8, 4, v8")
    a(f"v_lshl_add_u32 v{vBc}, v7, 7, v8\nv_xor_b32 v{vBc+1}, 32, v{vBc}")
    W = 57344
    for t in range(1, 3):
        for e in range(2):
            a(f"v_add_u32 v{vBw+2*t+e}, {t*W}, v{vBw+e}\nv_add_u32 v{vBc+2*t+e}, {t*W}, v{vBc+e}")
    AB, AY = 32, 64
    def F(p): return 176 + (p & 3) * 16
    AREGS = [240, 244, 248, 252, 160, 164, 168, 172, 24, 148, 152, 156]
    NAR = 12
    def areg(p, e): return AREGS[(2*p + e) % NAR]
    SC = " sc1" if OPT['sc1_a'] else ""
    def loadA(p):
        for e in range(2):
            a(f"s_add_u32 s4, s80, {ORD[p]*4096 + e*1024}")
            V.op(f"buffer_load_dwordx4 {vr(areg(p,e),4)}, v6, s[64:67], s4 offen{SC}", ('A', p, e))
    def win(addr): t = min((addr - XR) // W, 2); return t, addr - t*W
    def isy(p): return NA_ <= p < NH_
    def reads(p):
        tb, ob = win(page(Bp[p]))
        r = []; f = F(p)
        for e in range(2):
            for nt in range(2):
                d = f + (e*2+nt)*4
                if not isy(p):
                    r.append((f"ds_read_b64_tr_b16 {vr(d,2)}, v{vBw+2*tb+nt} offset:{ob + e*2048}", R(d, 2)))
                    r.append((f"ds_read_b64_tr_b16 {vr(d+2,2)}, v{vBw+2*tb+nt} offset:{ob + e*2048 + 1024}", R(d+2, 2)))
                else:
                    r.append((f"ds_read_b128 {vr(d,4)}, v{vBc+2*tb+e} offset:{ob + nt*4096}", R(d, 4)))
        return r
    pre = [f"v_lshlrev_b32 v{DV}, 16, v{DV}", "s_mov_b32 s12, 0xffff0000"]
    for i in range(0, 16, 2):
        for e in range(2):
            pre += [f"v_lshlrev_b32 v{XV+i+e}, 16, v{XV+i+e}", f"v_mul_f32 v{XV+i+e}, v{XV+i+e}, v{DV}", f"v_sub_f32 v{OM+i+e}, 1.0, v{GV+i+e}"]
        pre += [f"v_cvt_pk_bf16_f32 v{DV+1}, v{XV+i}, v{XV+i+1}", f"v_cvt_pk_bf16_f32 v{DV+2}, v{OM+i}, v{OM+i+1}",
                f"v_lshlrev_b32 v{XV+i}, 16, v{DV+1}", f"v_and_b32 v{XV+i+1}, s12, v{DV+1}",
                f"v_lshlrev_b32 v{OM+i}, 16, v{DV+2}", f"v_and_b32 v{OM+i+1}, s12, v{DV+2}"]
    epiB = glu_epi(ACB, 77, 64, 80, (1, 0))
    S = Sched(a)
    na = 0
    KH, KB = OPT['KH'], OPT['KB']
    def allowed(p, k): return (p < NA_) or (p < NH_ and k > KH) or k > KB
    for k in range(23):
        if k == 0: stamp(a, 6)
        if k < 22: a("s_barrier")
        if k == 0: stamp(a, 9); cstamp(a, 59)
        if k < 22 and (OPT['fine'] or k in (5, 12, 19)): stamp(a, 32+k)
        if k == 14: stamp(a, 10)
        rd = reads(2*k) + reads(2*k+1) if k < 22 else []
        if k == 0:
            while na < 4: loadA(na); na += 1
            for x in rd: S.read(*x)
            for x in epiB[0] + epiB[1]:
                a(x)
                if 'buffer_store' in x: V.ops.append('E')
            V.wait('H'); a(flag_item(1)); V.ops.append('F')
            while na < NAR // 2: loadA(na); na += 1
            eb = epiB[2] + epiB[3]
        else:
            rd = list(rd)
            for p in (2*k-2, 2*k-1):
                f = F(p)
                for e in range(2):
                    V.wait(('A', p, e))
                    for nt in range(2):
                        d = vr((AY if isy(p) else AB) + 16*nt, 16)
                        c = "0" if (p in (0, NA_) and e == 0) else d
                        S.need(R(f+(e*2+nt)*4, 4))
                        a(f"v_mfma_f32_32x32x16_bf16 {d}, {vr(areg(p,e),4)}, {vr(f+(e*2+nt)*4,4)}, {c}")
                        for _ in range(OPT['per2']):
                            if rd: S.read(*rd.pop(0))
                        for _ in range(4):
                            if eb:
                                x = eb.pop(0); a(x)
                                if 'buffer_store' in x: V.ops.append('E')
                while na <= 43 and na < p + 1 + NAR // 2 and allowed(na, k): loadA(na); na += 1
            for x in rd: S.read(*x)
        if k == 4:
            assert not eb
            V.wait('E'); a(flag_item(2)); V.ops.append('F')
        if 5 <= k < 5 + 7:
            for (p_, ins) in ld[(k-5)*3:(k-5)*3+3]:
                if p_: a(p_)
                V.op(ins, 'L')
        if k == 14: V.wait('L')
        if 14 <= k < 21:
            n = (len(pre) + 6) // 7
            for x in pre[(k-14)*n:(k-13)*n]: a(x)
    assert na == 44
    stamp(a, 11); cstamp(a, 60)
    used = {Bp[40], Bp[41], Bp[42], Bp[43]}
    xp = [page(p) for p in range(18) if p not in used][:4]
    a(f"s_mov_b32 s4, {xp[0]}\ns_mov_b32 s5, {xp[1]}\ns_cmp_eq_u32 s9, 1\ns_cselect_b32 s4, {xp[2]}, s4\ns_cselect_b32 s5, {xp[3]}, s5")
    a("s_cmp_eq_u32 s8, 1\ns_cselect_b32 s10, s5, s4\ns_cselect_b32 s11, s4, s5")
    a("v_lshlrev_b32 v7, 4, v0\nv_add_u32 v8, s10, v7\nv_add_u32 v9, s11, v7")
    lk1 = a.lab(); lj = a.lab()
    a(f"s_nop 4\ns_cbranch_scc1 {lk1}")
    RB, RY = 176, 192
    for kh in range(2):
        if kh == 1: a.label(lk1)
        sn = kh ^ 1
        for q in range(4):
            a(f"ds_write_b128 v8, {vr(AB+16*sn+4*q,4)} offset:{q*1024}\nds_write_b128 v8, {vr(AY+16*sn+4*q,4)} offset:{4096+q*1024}")
        for i in range(0, 16, 2): a(f"v_pk_add_f32 {vr(AY+16*kh+i,2)}, {vr(AY+16*kh+i,2)}, {vr(XV+i,2)}")
        a("s_waitcnt lgkmcnt(0)\ns_barrier")
        for q in range(4):
            a(f"ds_read_b128 {vr(RB+4*q,4)}, v9 offset:{q*1024}\nds_read_b128 {vr(RY+4*q,4)}, v9 offset:{4096+q*1024}")
        for q in range(4):
            a(f"s_waitcnt lgkmcnt({6-2*q})")
            for i in range(4*q, 4*q+4, 2):
                a(f"v_pk_add_f32 {vr(RB+i,2)}, {vr(RB+i,2)}, {vr(AB+16*kh+i,2)}\nv_pk_add_f32 {vr(RY+i,2)}, {vr(RY+i,2)}, {vr(AY+16*kh+i,2)}")
        if kh == 0: a(f"s_branch {lj}")
    a.label(lj)
    for i in range(0, 16, 2):
        T = 224 + (i & 6)
        a(f"v_cvt_pk_bf16_f32 v{T}, v{RB+i}, v{RB+i+1}\nv_pk_mul_f32 {vr(RY+i,2)}, {vr(RY+i,2)}, {vr(GV+i,2)}")
        a(f"v_lshlrev_b32 v{RB+i}, 16, v{T}\nv_and_b32 v{RB+i+1}, s12, v{T}")
        a(f"v_pk_mul_f32 {vr(RB+i,2)}, {vr(RB+i,2)}, {vr(OM+i,2)}\nv_cvt_pk_bf16_f32 v{T}, v{RB+i}, v{RB+i+1}")
        a(f"v_lshlrev_b32 v{RB+i}, 16, v{T}\nv_and_b32 v{RB+i+1}, s12, v{T}")
        a(f"v_pk_add_f32 {vr(RY+i,2)}, {vr(RY+i,2)}, {vr(RB+i,2)}")
        for e in range(2):
            row = 8*((i+e) >> 2) + ((i+e) & 3)
            a(f"s_mov_b32 s4, {row*2048}\nbuffer_store_dword v{RY+i+e}, v5, s[60:63], s4 offen")
    stamp(a, 12)
    if STAMP: a("s_waitcnt vmcnt(0)")
    stamp(a, 13)
    stamp_flush(a)
    a("s_endpgm")

def loader_pre(a):
    if OPT['prio']: a(f"s_setprio {OPT['prio']}")
    a("v_lshrrev_b32 v1, 3, v0\nv_and_b32 v2, 7, v0")
    a("v_lshrrev_b32 v3, 5, v0\nv_and_b32 v4, 2, v1\nv_or_b32 v3, v3, v4\nv_xor_b32 v3, v3, v2\nv_lshlrev_b32 v3, 4, v3\nv_lshl_add_u32 v10, v1, 10, v3\nv_xor_b32 v11, 64, v10")
    a("v_bfe_u32 v3, v0, 4, 1\nv_lshlrev_b32 v3, 2, v3\nv_xor_b32 v3, v3, v2\nv_lshlrev_b32 v3, 4, v3\ns_movk_i32 s4, 3584\nv_mad_u32_u24 v16, v1, s4, v3\nv_lshl_add_u32 v15, v1, 10, v3")
    a("v_lshrrev_b32 v4, 4, v0\nv_xor_b32 v3, v4, v2\nv_lshlrev_b32 v3, 4, v3\nv_lshl_add_u32 v28, v1, 10, v3\nv_xor_b32 v29, 64, v28")
    a("s_cmp_eq_u32 s12, 1\ns_cselect_b64 vcc, -1, 0\nv_cndmask_b32 v12, v16, v28, vcc\nv_cndmask_b32 v13, v16, v29, vcc")
    a("s_and_b32 s14, s3, 1")
    a("s_mul_i32 s4, s14, 114688\ns_lshl_b32 s5, s9, 1\ns_add_u32 s70, s4, s5\ns_lshl_b32 s4, s14, 5\ns_add_u32 s4, s4, s11\ns_lshl_b32 s5, s4, 10")
    a("s_cmp_eq_u32 s12, 1\ns_cselect_b32 s80, s5, s70\ns_mov_b32 s81, 143360\ns_movk_i32 s82, 28672\ns_cselect_b32 s81, -24448, s81\ns_cselect_b32 s82, 8192, s82")
    a("s_mov_b32 s4, 1835008\ns_cselect_b32 s58, 524288, s4\ns_mov_b32 s59, 0x20000")
    a("s_cselect_b32 s4, 0, 128\ns_add_u32 s70, s70, s4")
    a("s_lshl_b32 s4, s14, 2\nv_or_b32 v4, s4, v4\nv_xor_b32 v4, v4, v2\nv_lshlrev_b32 v4, 4, v4\nv_lshl_add_u32 v14, v1, 10, v4")
    a("s_lshl_b32 s4, s14, 3\ns_add_u32 s4, s4, s10\ns_lshl_b32 s85, s4, 10")
    a("s_lshl_b32 s4, s6, 7\ns_lshl_b32 s5, s3, 5\ns_add_u32 s4, s4, s5\ns_lshl_b32 s86, s4, 10")
    a(f"s_lshl_b32 s87, s3, 12\ns_lshr_b32 s4, s3, 1\ns_mul_i32 s88, s4, 24576\ns_lshl_b32 s4, s14, 12\ns_add_u32 s88, s88, s4\ns_add_u32 s88, s88, {BLK}\ns_lshl_b32 s89, s3, 10\ns_add_u32 s89, s89, {EXT}")
    a("s_mov_b32 s54, 2097152\ns_mov_b32 s55, 0x20000\ns_mov_b32 s62, 524288\ns_mov_b32 s63, 0x20000")

def loader(a):
    Bp, Biss = p2_schedule()
    V = VM(a)
    a("s_waitcnt lgkmcnt(0)")
    a("s_mov_b64 s[52:53], s[16:17]")
    a("s_cmp_ge_u32 s3, 2\ns_cselect_b64 s[72:73], s[38:39], s[36:37]\ns_cselect_b64 s[60:61], s[24:25], s[22:23]")
    a("s_cmp_eq_u32 s12, 1\ns_cselect_b64 s[56:57], s[60:61], s[72:73]\ns_mov_b64 s[90:91], s[72:73]")
    def issue(V, s):
        slot = s % 3
        if s == 8:
            a("s_mov_b64 s[56:57], s[90:91]\ns_mov_b32 s58, 1835008\ns_add_u32 s80, s70, 1146880\ns_mov_b32 s81, 143360\ns_movk_i32 s82, 28672\nv_mov_b32 v12, v16\nv_mov_b32 v13, v16")
        if s == 11: a("s_sub_u32 s80, s80, 1835008")
        for i in range(4 if XL[s] else 0):
            a(f"s_add_u32 m0, s87, {XR + XH[s]*49152 + XI[s]*16384 + i*1024}\ns_add_u32 s4, s86, {i*8192 + KS[s]*128}")
            V.op(f"buffer_load_dwordx4 v{10 + (i >> 1)}, s[52:55], s4 offen lds", ('S', s))
        for i in range(4):
            a(f"s_add_u32 m0, s88, {slot*8192 + i*1024}\ns_nop 0")
            V.op(f"buffer_load_dwordx4 v{12 + (i & 1)}, s[56:59], s80 offen lds", ('S', s))
            a("s_add_u32 s80, s80, s82" if i < 3 else "s_add_u32 s80, s80, s81")
        if s < 8:
            a(f"s_add_u32 m0, s89, {slot*4096}\ns_add_u32 s4, s85, {s*128}")
            V.op("buffer_load_dwordx4 v14, s[60:63], s4 offen lds", ('S', s))
    def bar(V, s, extra=""):
        V.wait(('S', s+1), extra=extra)
        if OPT['fine']: stamp(a, 16 + s)
        a("s_barrier")
        if s + 3 <= 15: issue(V, s + 3)
        r = s - OPT['l2t']
        if OPT['l2t'] and 0 <= r <= 2:
            if r < 2:
                srd(a, 76, sWd, 1835008)
                a(f"s_lshr_b32 s4, s2, 3\ns_mul_i32 s4, s4, 57344\ns_lshl_b32 s5, s3, 13\ns_add_u32 s4, s4, s5\ns_add_u32 s4, s4, {r*32768}\nv_lshlrev_b32 v18, 7, v0")
                if r == 1: a("s_cmp_eq_u32 s3, 3\ns_cselect_b32 s78, 0, s78")
            else:
                a("s_cmp_ge_u32 s3, 2\ns_cselect_b64 s[76:77], s[28:29], s[26:27]\ns_mov_b32 s78, 524288\ns_mov_b32 s79, 0x20000")
                a("s_lshr_b32 s4, s2, 3\ns_lshl_b32 s4, s4, 14\ns_and_b32 s5, s3, 1\ns_lshl_b32 s5, s5, 13\ns_add_u32 s4, s4, s5")
            V.op("buffer_load_dword v19, v18, s[76:79], s4 offen", 'T')
    issue(V, 0); stamp(a, 14); issue(V, 1)
    V.wait(('S', 0)); stamp(a, 2); a("s_barrier")
    issue(V, 2)
    srd(a, 64, sWs, WS_USED)
    srd(a, 92 if not STAMP else 92, sGw, 1024) if False else None
    srd(a, 72, sLre, 1024); srd(a, 76, sLim, 1024); srd(a, 96, sLdt, 1024)
    a("s_mov_b64 s[68:69], s[42:43]\ns_mov_b32 s71, 0x20000\ns_mov_b32 s92, s70\ns_movk_i32 s70, 1024")
    a("s_lshl_b32 s4, s6, 7\ns_lshl_b32 s5, s13, 3\ns_add_u32 s4, s4, s5\ns_lshl_b32 s5, s3, 1\ns_add_u32 s15, s4, s5\ns_lshl_b32 s14, s15, 10")
    a("v_lshlrev_b32 v1, 4, v0")
    a("s_and_b32 s4, s3, 1\ns_lshl_b32 s4, s4, 6\nv_add_u32 v2, s4, v0\nv_add_u32 v3, s10, v2\ns_sub_u32 s5, s11, 16\nv_add_u32 v4, s5, v2")
    a("v_cmp_gt_u32 vcc, 16, v2\ns_nop 1\nv_cndmask_b32 v3, v4, v3, vcc\nv_lshlrev_b32 v3, 1, v3")
    bar(V, 0)
    V.op("buffer_load_dwordx4 v[32:35], v1, s[52:55], s14 offen", 'X'); V.op("buffer_load_dwordx4 v[36:39], v1, s[52:55], s14 offen offset:1024", 'X')
    V.op("buffer_load_dwordx4 v[40:43], v1, s[68:71], 0 offen", 'X')
    V.op("buffer_load_ushort v44, v3, s[72:75], 0 offen", 'X'); V.op("buffer_load_ushort v45, v3, s[76:79], 0 offen", 'X'); V.op("buffer_load_ushort v46, v3, s[96:99], 0 offen", 'X')
    a("s_mov_b32 s70, s92")
    bar(V, 1); bar(V, 2)
    V.wait('X')
    a("v_lshlrev_b32 v44, 16, v44\nv_lshlrev_b32 v45, 16, v45\nv_lshlrev_b32 v46, 16, v46")
    a(f"v_mul_f32 v46, {LOG2E}, v46\nv_exp_f32 v46, v46\ns_nop 0")
    bf16_round(a, 46, 46, 47)
    a(f"v_mul_f32 v47, v46, v44\nv_mul_f32 v48, v46, v45")
    a(f"v_mul_f32 v47, {LOG2E}, v47\nv_exp_f32 v47, v47\nv_mul_f32 v48, {INV2PI}, v48\nv_rndne_f32 v49, v48\nv_sub_f32 v48, v48, v49")
    a("v_cos_f32 v49, v48\nv_sin_f32 v50, v48\ns_nop 0\nv_mul_f32 v52, v47, v49\nv_mul_f32 v53, v47, v50")
    a("v_mul_f32 v49, v44, v44\nv_fma_f32 v49, v45, v45, v49\nv_rcp_f32 v49, v49\nv_add_f32 v50, -1.0, v52")
    a("v_mul_f32 v54, v50, v44\nv_fma_f32 v54, v53, v45, v54\nv_mul_f32 v55, v53, v44\nv_fma_f32 v55, -v50, v45, v55")
    a("v_add_f32 v49, v49, v49\nv_mul_f32 v54, v54, v49\nv_mul_f32 v55, v55, v49")
    a("v_lshlrev_b32 v2, 4, v2\nv_cmp_gt_u32 vcc, 1280, v2\ns_and_saveexec_b64 s[78:79], vcc")
    a(f"ds_write_b128 v2, v[52:55] offset:{PARAM}")
    a("s_mov_b64 exec, s[78:79]")
    bar(V, 3, " lgkmcnt(0)")
    a("v_mov_b32 v4, 0\nv_mov_b32 v5, 0\ns_mov_b32 s4, 0xffff0000")
    for i in range(4):
        a(f"v_lshlrev_b32 v6, 16, v{40+i}\nv_and_b32 v7, s4, v{40+i}")
        for r in range(2):
            x = 32 + 4*r + i
            a(f"v_lshlrev_b32 v8, 16, v{x}\nv_and_b32 v9, s4, v{x}\nv_mul_f32 v8, v8, v6\nv_mul_f32 v9, v9, v7")
            a(f"v_cvt_pk_bf16_f32 v8, v8, v9\nv_lshlrev_b32 v9, 16, v8\nv_and_b32 v8, s4, v8\nv_add_f32 v{4+r}, v{4+r}, v9\nv_add_f32 v{4+r}, v{4+r}, v8")
        if i == 1: bar(V, 4); a("s_mov_b32 s4, 0xffff0000")
    bar(V, 5)
    for sh in [1, 2, 4, 8]:
        a(f"s_nop 1\nv_add_f32_dpp v4, v4, v4 row_shr:{sh} row_mask:0xf bank_mask:0xf bound_ctrl:0\nv_add_f32_dpp v5, v5, v5 row_shr:{sh} row_mask:0xf bank_mask:0xf bound_ctrl:0")
    a("s_nop 1")
    for r in range(2):
        a(f"v_readlane_b32 s{76+20*r}, v{4+r}, 15\nv_readlane_b32 s{77+20*r}, v{4+r}, 31\nv_readlane_b32 s{78+20*r}, v{4+r}, 47")
    a("s_nop 1")
    for j in range(3):
        a(f"v_add_f32 v4, s{76+j}, v4\nv_add_f32 v5, s{96+j}, v5")
    a("s_nop 0\nv_readlane_b32 s4, v4, 63\nv_readlane_b32 s5, v5, 63\nv_cmp_eq_u32 vcc, 1, v0\ns_nop 0\nv_mov_b32 v4, s4\nv_mov_b32 v5, s5\nv_cndmask_b32 v4, v4, v5, vcc")
    bf16_round(a, 4, 4, 5)
    a(f"v_mul_f32 v4, {NLOG2E}, v4\nv_exp_f32 v4, v4\ns_nop 0\nv_add_f32 v4, 1.0, v4\nv_rcp_f32 v4, v4\ns_nop 0")
    bf16_round(a, 4, 4, 5)
    a(f"s_lshl_b32 s4, s15, 2\ns_add_u32 s4, s4, {G_OFF}\nv_lshlrev_b32 v5, 2, v0\ns_mov_b64 exec, 3")
    V.op("buffer_store_dword v4, v5, s[64:67], s4 offen sc1", 'G'); a("s_mov_b64 exec, -1")
    bar(V, 6); bar(V, 7)
    V.wait('G')
    def b_setup():
        p2_ids(a)
        srd(a, 52, sWd, 1835008); srd(a, 56, sCre, 524288); srd(a, 60, sCim, 524288)
        a("s_lshl_b32 s4, s3, 14\ns_lshl_b32 s5, s85, 7\ns_add_u32 s89, s4, s5\ns_lshl_b32 s5, s85, 16\ns_add_u32 s90, s4, s5\ns_lshl_b32 s91, s3, 11")
    def loadB(V, p):
        s = ORD[p]
        for i in range(1 if OPT['halfB'] else 2):
            a(f"s_add_u32 m0, s91, {page(Bp[p]) + i*1024}")
            if s < 28:
                a(f"s_add_u32 s4, s89, {s*65536 + i*8192}")
                V.op(f"buffer_load_dwordx4 v15, s[52:55], s4 offen lds", ('B', p))
            else:
                t = s - 28
                a(f"s_add_u32 s4, s90, {(t >> 1)*128 + i*8192}")
                V.op(f"buffer_load_dwordx4 v{28+i}, s[{56 + 4*(t & 1)}:{59 + 4*(t & 1)}], s4 offen lds", ('B', p))
    def poll(which, pre_issued=False):
        lp = a.lab(); ld = a.lab(); lc = a.lab()
        a("s_mov_b32 s88, 0x8000")
        if pre_issued: a(f"s_branch {lc}")
        a.label(lp)
        a(f"buffer_load_dword v8, v9, s[64:67], s86 offen offset:{which*256} sc1\ns_waitcnt vmcnt(0)")
        a.label(lc)
        a(f"v_cmp_ne_u32 vcc, s72, v8\ns_cmp_eq_u64 vcc, 0\ns_cbranch_scc1 {ld}")
        a(f"s_sub_u32 s88, s88, 1\ns_cmp_lg_u32 s88, 0\ns_cbranch_scc1 {lp}")
        a.label(ld)
    KH, KB = OPT['KH'], OPT['KB']
    def pollissue(V, which): V.op(f"buffer_load_dword v8, v9, s[64:67], s86 offen offset:{which*256} sc1", 'P')
    def tail(V, role):
        b_setup()
        if role == 2:
            a(f"s_lshr_b32 s4, s84, 1\ns_lshl_b32 s4, s4, 10\ns_add_u32 s86, s4, {FLG_OFF}\nv_lshlrev_b32 v9, 2, v0")
        for p in Biss['b12']: loadB(V, p)
        bar(V, 13, " lgkmcnt(0)")
        for p in Biss['b13']: loadB(V, p)
        bar(V, 14)
        if role == 2: pollissue(V, 0)
        for p in Biss['b14']: loadB(V, p)
        for k in range(22):
            V.wait(('B', 2*k), ('B', 2*k+1))
            if role == 2:
                for (kk_, wh) in ((-1, 0), (KH, 1), (KB, 2)):
                    if k == kk_ + 1:
                        V.wait('P'); poll(wh, pre_issued=True)
                        if wh == 0: stamp(a, 7)
            if OPT['fine']: stamp(a, 32+k)
            a("s_barrier")
            if role == 2 and k in (KH, KB): pollissue(V, 1 if k == KH else 2)
            if k == 0:
                for p in Biss['Z']: loadB(V, p)
            for p in Biss[k]: loadB(V, p)
        a("s_barrier")
        stamp_flush(a)
        a("s_endpgm")
    L2 = a.lab(); L3 = a.lab(); LM = a.lab()
    a(f"s_cmp_eq_u32 s3, 2\ns_cbranch_scc1 {L2}\ns_and_b32 s4, s3, s12\ns_cmp_eq_u32 s3, 3\ns_cselect_b32 s4, s4, 0\ns_cmp_eq_u32 s4, 1\ns_cbranch_scc1 {L3}")
    V0 = V
    V = V0.copy()
    for s in range(8, 13): bar(V, s)
    tail(V, 0)
    a.label(L2)
    V = V0.copy(); combine(a, V, bar, 8, 16, 16, 3, AGE_RE, AGE_IM, 10, PARAM); tail(V, 2)
    a.label(L3)
    V = V0.copy(); combine(a, V, bar, 9, 8, 64, 4, AGM_RE, AGM_IM, 11, PARAM + 256); tail(V, 3)

def combine(a, V, bar, sb, nseg, nch, lg, are, aim, sch, pofs):
    ex = f"s_mov_b64 exec, {(1 << nch) - 1}" if nch < 64 else "s_nop 0"
    a(f"s_add_u32 s96, s48, {AGG_OFF}\ns_addc_u32 s97, s49, 0\ns_mov_b32 s98, {AGG_SZ}\ns_mov_b32 s99, 0x20000")
    a(f"v_lshlrev_b32 v1, 4, v0\nds_read_b64 v[2:3], v1 offset:{pofs}\ns_waitcnt lgkmcnt(0)")
    for i in range(7):
        a("v_mul_f32 v8, v3, v3\nv_mul_f32 v9, v2, v3\nv_fma_f32 v2, v2, v2, -v8\nv_add_f32 v3, v9, v9")
        if i == lg - 1: a("v_mov_b32 v6, v2\nv_mov_b32 v7, v3")
    a(f"s_lshl_b32 s4, s{sch}, 4\ns_lshl_b32 s5, s6, 13\ns_add_u32 s4, s4, s5\nv_add_u32 v17, s4, v1")
    a(f"v_lshlrev_b32 v1, 2, v0\nv_add_u32 v1, {EXT}, v1\nv_mov_b32 v4, 0")
    bar(V, 8)
    stamp(a, 3)
    AR, AI = 32, 48
    a(ex)
    a(f"ds_read_b32 v5, v4 offset:{NONCE}")
    for sg in range(nseg):
        a(f"ds_read_b32 v{AR+sg}, v1 offset:{are - EXT + sg*nch*4}\nds_read_b32 v{AI+sg}, v1 offset:{aim - EXT + sg*nch*4}")
    def step(pr, pi, dr, di, mr, mi, ar, ai):
        a(f"v_fma_f32 v{dr}, v{pr}, v{mr}, v{ar}\nv_fma_f32 v{di}, v{pi}, v{mr}, v{ai}\nv_fma_f32 v{dr}, -v{pi}, v{mi}, v{dr}\nv_fma_f32 v{di}, v{pr}, v{mi}, v{di}")
    a("s_waitcnt lgkmcnt(0)\nv_mov_b32 v125, v5\nv_mov_b32 v127, v5\nv_readfirstlane_b32 s72, v5")
    cur = (AR, AI)
    for sg in range(1, nseg):
        dst = (124, 126) if (nseg - 1 - sg) % 2 == 0 else (20, 21)
        step(cur[0], cur[1], dst[0], dst[1], 6, 7, AR+sg, AI+sg); cur = dst
    V.op("buffer_store_dwordx4 v[124:127], v17, s[96:99], 0 offen sc1", 'Q')
    a("s_mov_b64 exec, -1")
    stamp(a, 4)
    for s in range(9, OPT['SP'] + 1): bar(V, s)
    E = 60
    def loads(first):
        for d in range(1, 16):
            a(f"v_subrev_u32 v{24+(d&3)}, {d*8192}, v17")
            ins = f"buffer_load_dwordx4 {vr(E+4*d,4)}, v{24+(d&3)}, s[96:99], 0 offen sc1"
            if first: V.op(ins, 'R')
            else: a(ins)
    a(ex)
    loads(True)
    a("s_mov_b64 exec, -1")
    for s in range(OPT['SP'] + 1, OPT['LS'] - 1): bar(V, s)
    a(ex)
    lp = a.lab(); ld = a.lab(); lc = a.lab()
    a("s_mov_b32 s83, 0x8000")
    V.wait('R')
    a(f"s_branch {lc}")
    a.label(lp)
    loads(False)
    a("s_waitcnt vmcnt(0)")
    a.label(lc)
    a("s_mov_b64 s[94:95], 0")
    for d in range(1, 16):
        a(f"s_cmp_ge_u32 s6, {d}\ns_cselect_b32 s4, s72, 0\nv_cmp_ne_u32 vcc, s4, v{E+4*d+1}\ns_or_b64 s[94:95], s[94:95], vcc\nv_cmp_ne_u32 vcc, s4, v{E+4*d+3}\ns_or_b64 s[94:95], s[94:95], vcc")
    a(f"s_cmp_eq_u64 s[94:95], 0\ns_cbranch_scc1 {ld}")
    a(f"s_sub_u32 s83, s83, 1\ns_cmp_lg_u32 s83, 0\ns_cbranch_scc1 {lp}")
    a.label(ld)
    stamp(a, 5)
    cur = (E+60, E+62)
    for d in range(14, 0, -1):
        dst = (20, 21) if d & 1 else (22, 23)
        step(cur[0], cur[1], dst[0], dst[1], 2, 3, E+4*d, E+4*d+2); cur = dst
    for sg in range(nseg):
        a(f"ds_write_b32 v1, v{cur[0]} offset:{are - EXT + sg*nch*4}\nds_write_b32 v1, v{cur[1]} offset:{aim - EXT + sg*nch*4}")
        if sg < nseg - 1:
            dst = (22, 23) if cur == (20, 21) else (20, 21)
            step(cur[0], cur[1], dst[0], dst[1], 6, 7, AR+sg, AI+sg); cur = dst
    a("s_mov_b64 exec, -1")
    stamp(a, 6)
    if OPT['LS'] == 13: bar(V, 12, " lgkmcnt(0)")

def kernel(a, name):
    a(f".p2align 8\n.globl {name}\n.type {name},@function")
    a.label(name)
    l_end = a.lab(); l_c = a.lab(); l_s = a.lab(); l_p2 = a.lab()
    a("s_getpc_b64 s[90:91]")
    a(f"s_cmp_ge_u32 s2, 256\ns_cbranch_scc1 {l_end}")
    a("s_load_dwordx16 s[16:31], s[0:1], 0\ns_load_dwordx16 s[32:47], s[0:1], 64\ns_load_dwordx2 s[48:49], s[0:1], 128")
    a("v_lshrrev_b32 v1, 6, v0\nv_and_b32 v0, 63, v0\nv_readfirstlane_b32 s3, v1")
    a("s_and_b32 s4, s2, 7\ns_lshr_b32 s5, s2, 3")
    a("s_and_b32 s6, s4, 1\ns_lshr_b32 s7, s5, 2\ns_lshl_b32 s7, s7, 1\ns_add_u32 s6, s6, s7")
    a("s_and_b32 s7, s5, 3\ns_lshr_b32 s8, s4, 1")
    a("s_mul_i32 s9, s8, 448\ns_lshl_b32 s4, s7, 7\ns_add_u32 s9, s9, s4")
    a("s_lshl_b32 s11, s8, 7\ns_lshl_b32 s4, s7, 4\ns_add_u32 s10, s11, s4\ns_add_u32 s11, s11, 64")
    a("s_cmp_eq_u32 s7, 3\ns_cselect_b32 s12, 1, 0\ns_lshl_b32 s13, s8, 2\ns_add_u32 s13, s13, s7")
    if STAMP: a("s_mov_b32 s93, s3")
    a(f"s_cmp_lt_u32 s3, 4\ns_cbranch_scc1 {l_c}")
    a("s_sub_u32 s3, s3, 4")
    loader_pre(a)
    if STAMP: a("s_waitcnt lgkmcnt(0)")
    stamp(a, 0)
    loader(a)
    a.label(l_c)
    a("s_waitcnt lgkmcnt(0)")
    stamp(a, 0)
    p1_consumer_prologue(a, "L_code_end")
    a(f"s_cmp_eq_u32 s12, 1\ns_cbranch_scc1 {l_s}")
    global passB_fillers
    orig = passB_fillers
    def withnonce(M):
        F = orig(M); F[7] = [nonce_finish(a)] + F[7]; return F
    passB_fillers = withnonce
    p1_consumer(a, False)
    a(f"s_branch {l_p2}")
    a.label(l_s)
    p1_consumer(a, True)
    a.label(l_p2)
    p2_consumer(a)
    a.label(l_end)
    a("s_endpgm")
    a.label("L_code_end")
    a("s_endpgm")

def desc(name, nv=256):
    return f""".p2align 6
.amdhsa_kernel {name}
  .amdhsa_next_free_vgpr {nv}
  .amdhsa_next_free_sgpr 102
  .amdhsa_accum_offset {nv}
  .amdhsa_group_segment_fixed_size 0
  .amdhsa_kernarg_size 136
  .amdhsa_user_sgpr_count 2
  .amdhsa_user_sgpr_kernarg_segment_ptr 1
  .amdhsa_system_sgpr_workgroup_id_x 1
.end_amdhsa_kernel
"""

def main(out):
    a = Asm()
    n1 = NAME + "_kernel"
    kernel(a, n1)
    txt = HDR
    txt += f"; @launch grid=(256,1,1) block=(512,1,1) lds={LDS1}\n"
    txt += '.amdgcn_target "amdgcn-amd-amdhsa--gfx950"\n.text\n' + a.text()
    txt += '.section .rodata,"a"\n' + desc(n1)
    open(out, "w").write(txt)

if __name__ == "__main__":
    args = sys.argv[1:]
    if "-tot" in args: STAMP = 2; args.remove("-tot")
    if "-stamp" in args: STAMP = True; args.remove("-stamp")
    for x in list(args):
        if "=" in x:
            k, v = x.split("="); assert k in OPT, k; OPT[k] = int(v); args.remove(x)
    if "-sched" in args:
        print(p2_schedule()); print(ORD)
        for M in (False, True): print({k: len(v) for k, v in passB_fillers(M).items()})
        sys.exit()
    main(args[0] if args else f"cdna_kernels/{NAME}.s")
```

```python
import sys

NAME = "gated_mix__ssm_conv_s5__glu_gated_glu__prompt"
HDR = open("cdna_kernels/%s.s.ref" % NAME).read().split("; Override launch")[0]

G_OFF = 0xB00000
AGG_OFF = 0xB10000
AGG_SZ = 16 * 512 * 16
FLG_OFF = 0xB30000
WS_USED = 0xB40000
LOG2E = 0x3fb8aa3b
NLOG2E = 0xbfb8aa3b
INV2PI = 0x3e22f983
OPT = dict(sc1_a=1, touch1=1, touch2=1, cpf=1, per2=2, KH=3, KB=8, prio=3, fine=0, t1s=1, SP=11, capM=72, LS=14, ts=2566, halfB=0, tw=2, gs=0, per1=2, be=0, l2t=0, BLA=7, noF=0, la=0)

class Asm:
    def __init__(s): s.l = []; s.uid = 0
    def __call__(s, t):
        for x in t.strip("\n").split("\n"): s.l.append("    " + x.strip())
    def label(s, n): s.l.append(n + ":")
    def lab(s, p="L"):
        s.uid += 1; return f"{p}_{s.uid}"
    def text(s): return "\n".join(s.l) + "\n"

def vr(b, n): return f"v[{b}:{b+n-1}]" if n > 1 else f"v{b}"
def R(b, n): return list(range(b, b+n))
def srd(a, d, lo, size):
    a(f"s_mov_b32 s{d}, s{lo}\ns_mov_b32 s{d+1}, s{lo+1}\ns_mov_b32 s{d+2}, {size}\ns_mov_b32 s{d+3}, 0x20000")

sX, sLre, sLim, sBre, sBim, sCre, sCim, sLdt = 16, 18, 20, 22, 24, 26, 28, 30
sDsk, sBx, sWg, sWu, sWd, sGw, sOut, sDbg, sWs = 32, 34, 36, 38, 40, 42, 44, 46, 48

STAMP = False
TS_OFF = 0xB40000
def stamp(a, idx):
    if not STAMP or (STAMP == 2 and idx not in (0, 13)): return
    a(f"s_memrealtime s[100:101]\ns_waitcnt lgkmcnt(0)\nv_writelane_b32 v31, s100, {idx}")
def cstamp(a, idx):
    if not STAMP or STAMP == 2: return
    a(f"s_memtime s[100:101]\ns_waitcnt lgkmcnt(0)\nv_writelane_b32 v31, s100, {idx}")
def stamp_flush(a):
    if not STAMP: return
    srd(a, 96, sWs, 0xC00000)
    a(f"s_lshl_b32 s94, s2, 3\ns_add_u32 s94, s94, s93\ns_lshl_b32 s94, s94, 8\ns_add_u32 s94, s94, {TS_OFF}")
    a("s_mov_b64 exec, -1\nv_lshlrev_b32 v30, 2, v0\nbuffer_store_dword v31, v30, s[96:99], s94 offen")

def bf16_round(a, d, s, t):
    a(f"v_cvt_pk_bf16_f32 v{t}, v{s}, v{s}\nv_lshlrev_b32 v{d}, 16, v{t}")

class Sched:
    def __init__(s, a): s.a = a; s.n = 0; s.prod = {}; s.done = -1
    def read(s, ins, regs):
        s.a(ins)
        for r in regs: s.prod[r] = s.n
        s.n += 1
    def need(s, regs):
        k = max([s.prod.get(r, -1) for r in regs] + [-1])
        if k > s.done:
            s.a(f"s_waitcnt lgkmcnt({min(s.n - 1 - k, 15)})")
            s.done = k if s.n - 1 - k <= 15 else s.n - 16
    def all(s):
        if s.done < s.n - 1: s.a("s_waitcnt lgkmcnt(0)")
        s.done = s.n - 1
    def item(s, it):
        if isinstance(it, str): s.a(it)
        elif it[0] == 'lds': s.read(it[1], it[2])
        else: s.need(it[1]); s.a(it[2])

class VM:
    def __init__(s, a): s.a = a; s.ops = []; s.done = -1
    def op(s, ins, tag):
        if len(s.ops) - 1 - s.done >= 62:
            s.a("s_waitcnt vmcnt(56)"); s.done = len(s.ops) - 1 - 56
        s.a(ins); s.ops.append(tag)
    def wait(s, *tags, extra=""):
        k = max([i for i, t in enumerate(s.ops) if t in tags] + [-1])
        if k > s.done:
            n = min(len(s.ops) - 1 - k, 63)
            s.a(f"s_waitcnt vmcnt({n}){extra}")
            s.done = len(s.ops) - 1 - n
        elif extra: s.a("s_waitcnt" + extra)
    def copy(s):
        v = VM(s.a); v.ops = list(s.ops); v.done = s.done; return v

PARAM = 0; NONCE = 2048; XR = 4096; BLK = XR + 98304; EXT = XR + 147456
AGE_RE = EXT; AGE_IM = EXT + 1024; AGM_RE = EXT + 2048; AGM_IM = EXT + 8192; TSE = EXT + 4096
LDS1 = 163840
def page(p): return XR + p*8192
SPAGES = [8, 9]
KS = list(range(8)) + [5, 6, 7, 0, 1, 2, 3, 4]
XH = [0,0,0,1,1,1,1,1, 1,1,1,0,0,0,1,1]
XI = [0,1,2,0,1,2,0,1, 2,0,1,0,1,2,2,0]
XL = [1]*8 + [0,0,0,0,0,0,1,1]
ORD = [7*g + 2*j for g in range(4) for j in range(3)] + list(range(28, 44))
ORD += [s for s in range(28) if s not in ORD]
assert sorted(ORD) == list(range(44))
NA_, NH_ = 12, 28

def p2_schedule():
    Bp = {}; Biss = {}
    nb = 0
    def take(key, pages):
        nonlocal nb
        Biss.setdefault(key, [])
        for p in pages:
            if nb <= 43: Bp[nb] = p; Biss[key].append(nb); nb += 1
    take('b12', [0, 1, 2, 3]); take('b13', [4, 5, 13, 16]); take('b14', [10, 11, 14, 17]); take('Z', [6, 7, 12, 15])
    for k in range(22):
        fr = []
        if k == 1: fr += SPAGES
        if k >= 2: fr += [Bp[2*k-4], Bp[2*k-3]]
        take(k, fr)
    assert nb == 44
    return Bp, Biss

vXn = 16; vWa = 20; vXe = 24; vEa = 28; vWt = 30; vXp = 12
ACA = 32; ACB = 96; ACE = 160; FR = [176, 192]; FE = 208
def acc(base, w, m): return base + (w * 2 + m) * 16
def ace(comp, m): return ACE + (comp * 2 + m) * 4

def reads_main(kind, step, kk, st):
    b = FR[st]; slot = step % 3; xi = XI[step]
    xs, vx = (4096, vXn) if kind == 'G' else (1024, vXp)
    def xr(m): return [(f"ds_read_b128 {vr(b+4*m,4)}, v{vx+kk} offset:{XR + xi*16384 + m*xs}", R(b+4*m, 4))]
    def wr(w):
        d = b + 8 + 4*w
        if kind == 'G':
            off = w*24576 + slot*8192 + kk*2048
            return [(f"ds_read_b64_tr_b16 {vr(d,2)}, v{vWt} offset:{off}", R(d, 2)),
                    (f"ds_read_b64_tr_b16 {vr(d+2,2)}, v{vWt} offset:{off+512}", R(d+2, 2))]
        return [(f"ds_read_b128 {vr(d,4)}, v{vWa+kk} offset:{w*24576 + slot*8192}", R(d, 4))]
    return xr(0) + wr(0) + xr(1) + wr(1)

def reads_ext(step, k32):
    r = []; slot = step % 3; xi = XI[step]
    for m in range(2): r.append((f"ds_read_b128 {vr(FE+4*m,4)}, v{vXe+2*m+k32} offset:{XR + xi*16384}", R(FE+4*m, 4)))
    for cp in range(2): r.append((f"ds_read_b128 {vr(FE+8+4*cp,4)}, v{vEa+k32} offset:{slot*4096+cp*2048}", R(FE+8+4*cp, 4)))
    return r

def mfma_main(kind, base, st, first):
    r = []; b = FR[st]
    for w in range(2):
        for m in range(2):
            d = vr(acc(base, w, m), 16); X = vr(b+4*m, 4); W = vr(b+8+4*w, 4)
            c = "0" if first else d
            ins = f"v_mfma_f32_32x32x16_bf16 {d}, {W}, {X}, {c}" if kind == 'G' else f"v_mfma_f32_32x32x16_bf16 {d}, {X}, {W}, {c}"
            r.append((ins, R(b+4*m, 4) + R(b+8+4*w, 4)))
    return r

def mfma_ext(first):
    r = []
    for cp in range(2):
        for m in range(2):
            d = vr(ace(cp, m), 4)
            r.append((f"v_mfma_f32_16x16x32_bf16 {d}, {vr(FE+4*m,4)}, {vr(FE+8+4*cp,4)}, {'0' if first else d}", R(FE+4*m, 4) + R(FE+8+4*cp, 4)))
    return r

def cmul_pk(Rr, I, C, t1, t2):
    return [f"v_pk_mul_f32 {vr(t1,2)}, {vr(Rr,2)}, {vr(C,2)} op_sel:[0,0] op_sel_hi:[1,0]",
            f"v_pk_mul_f32 {vr(t2,2)}, {vr(Rr,2)}, {vr(C,2)} op_sel:[0,1] op_sel_hi:[1,1] neg_lo:[0,1] neg_hi:[0,1]",
            f"v_pk_fma_f32 {vr(Rr,2)}, {vr(I,2)}, {vr(C,2)}, {vr(t1,2)} op_sel:[0,1,0] op_sel_hi:[1,1,1] neg_lo:[0,1,0] neg_hi:[0,1,0]",
            f"v_pk_fma_f32 {vr(I,2)}, {vr(I,2)}, {vr(C,2)}, {vr(t2,2)} op_sel:[0,0,0] op_sel_hi:[1,0,1] neg_lo:[0,1,0] neg_hi:[0,1,0]"]
def cmul_s(Rr, I, cr, ci, t1, t2):
    return [f"v_mul_f32 v{t1}, v{Rr}, v{cr}", f"v_mul_f32 v{t2}, v{Rr}, v{ci}",
            f"v_fma_f32 v{Rr}, -v{I}, v{ci}, v{t1}", f"v_fma_f32 v{I}, -v{I}, v{cr}, -v{t2}"]
def flag_item(which):
    return f"v_mov_b32 v1, s15\nv_mov_b32 v2, 0\ns_mov_b64 exec, 1\nbuffer_store_dword v1, v2, s[64:67], s81 offen offset:{which*256} sc1\ns_mov_b64 exec, -1"
def merge(l1, l2):
    o = []; i = j = 0
    while i < len(l1) or j < len(l2):
        if j >= len(l2) or (i < len(l1) and i * len(l2) <= j * len(l1)): o.append(l1[i]); i += 1
        else: o.append(l2[j]); j += 1
    return o

def cmul2(Rr, I, C, t):
    o = []
    for par in range(2): o += cmul_s(Rr+par, I+par, C, C+1, t+2*par, t+2*par+1)
    return [o[0], o[4], o[1], o[5], o[2], o[6], o[3], o[7]]
def step2(dr, di, pr, pi, L, Rr, I, conj):
    o = []
    n1, n2 = ("", "-") if conj else ("-", "")
    for par in range(2): o += [f"v_fma_f32 v{dr+par}, v{pr+par}, v{L}, v{Rr+par}", f"v_fma_f32 v{di+par}, v{pi+par}, v{L}, v{I+par}"]
    for par in range(2): o += [f"v_fma_f32 v{dr+par}, {n1}v{pi+par}, v{L+1}, v{dr+par}", f"v_fma_f32 v{di+par}, {n2}v{pr+par}, v{L+1}, v{di+par}"]
    return o
def stores_last(l):
    st = [x for x in l if 'buffer_store' in (x if isinstance(x, str) else x[-1] if x[0] == 'need' else '')]
    return [x for x in l if x not in st] + st
def glu_epi(base, sbase, E0, P0, morder=(0, 1)):
    o = []; k = 0
    for m in morder:
        for half in range(2):
            E = E0 + (k & 1) * 8; P = P0 + (k & 1) * 4; k += 1
            gb, ub = acc(base, 0, m) + 8*half, acc(base, 1, m) + 8*half
            t = []
            for i in range(8): t.append(f"v_mul_f32 v{E+i}, s50, v{gb+i}")
            for i in range(8): t.append(f"v_exp_f32 v{E+i}, v{E+i}")
            for i in range(8): t.append(f"v_add_f32 v{E+i}, 1.0, v{E+i}")
            for i in range(8): t.append(f"v_rcp_f32 v{E+i}, v{E+i}")
            for i in range(8): t.append(f"v_mul_f32 v{E+i}, v{E+i}, v{ub+i}")
            for i in range(0, 8, 2): t.append(f"v_cvt_pk_bf16_f32 v{P+i//2}, v{E+i}, v{E+i+1}")
            t.append(f"s_add_u32 s5, s{sbase}, {(m*176 + half)*1024}\nbuffer_store_dwordx4 {vr(P,4)}, v6, s[64:67], s5 offen sc1")
            o.append(t)
    return o

PE = 224; PM = 228
def passB_fillers(M):
    F = {s: [] for s in range(8, 17)}
    lr, li = PE, PE+1
    LS = OPT['LS']
    f = F[7] = []
    f += [f"v_and_b32 v1, 15, v0", "v_lshlrev_b32 v1, 4, v1", ('lds', f"ds_read_b128 {vr(PE,4)}, v1 offset:{PARAM}", R(PE, 4))]
    if M: f += ["v_and_b32 v2, 31, v0", "v_lshlrev_b32 v2, 4, v2", "s_and_b32 s4, s3, 1\ns_lshl_b32 s4, s4, 9\nv_add_u32 v2, s4, v2",
                ('lds', f"ds_read_b128 {vr(PM,4)}, v2 offset:{PARAM + 256}", R(PM, 4))]
    f += [f"s_lshl_b32 s4, s3, 8\ns_add_u32 s4, s4, {EXT}\nv_lshlrev_b32 v5, 2, v0", "v_add_u32 v5, s4, v5"]
    if M: f += ["v_lshrrev_b32 v3, 5, v0", "v_lshlrev_b32 v3, 9, v3", "v_lshrrev_b32 v4, 2, v2", "v_add_u32 v3, v3, v4",
                f"s_lshr_b32 s4, s3, 1\ns_lshl_b32 s4, s4, 10\ns_add_u32 s4, s4, {EXT}\nv_add_u32 v3, s4, v3"]
    l1 = []; l2 = []
    if M:
        S = [216, 218]; T = [220, 222]; L = vr(PM, 2)
        for pos in range(1, 16):
            m, rr = pos >> 3, (pos & 7) * 2
            Rr = vr(acc(ACA, 0, m) + rr, 2); I = vr(acc(ACA, 1, m) + rr, 2)
            if pos == 1: pr, pi = vr(acc(ACA, 0, 0), 2), vr(acc(ACA, 1, 0), 2)
            else:
                src = S if (pos & 1) else T
                pr, pi = vr(src[0], 2), vr(src[1], 2)
            dst = T if (pos & 1) else S
            dr, di = vr(dst[0], 2), vr(dst[1], 2)
            l1.append(f"v_pk_fma_f32 {dr}, {pr}, {L}, {Rr} op_sel:[0,0,0] op_sel_hi:[1,0,1]")
            l1.append(f"v_pk_fma_f32 {di}, {pi}, {L}, {I} op_sel:[0,0,0] op_sel_hi:[1,0,1]")
            l1.append(f"v_pk_fma_f32 {dr}, {pi}, {L}, {dr} op_sel:[0,1,0] op_sel_hi:[1,1,1] neg_lo:[0,1,0] neg_hi:[0,1,0]")
            l1.append(f"v_pk_fma_f32 {di}, {pr}, {L}, {di} op_sel:[0,1,0] op_sel_hi:[1,1,1]")
        for par in range(2):
            l1.append(('lds', f"ds_write_b32 v3, v{T[0]+par} offset:{AGM_RE - EXT + par*256}", []))
            l1.append(('lds', f"ds_write_b32 v3, v{T[1]+par} offset:{AGM_IM - EXT + par*256}", []))
    S = [208, 209]; T = [210, 211]
    for pos in range(1, 8):
        Rr = ace(0, pos >> 2) + (pos & 3); I = ace(1, pos >> 2) + (pos & 3)
        if pos == 1: pr, pi = ace(0, 0), ace(1, 0)
        else: pr, pi = (S if (pos & 1) else T)
        dr, di = (T if (pos & 1) else S)
        l2 += [f"v_fma_f32 v{dr}, v{pr}, v{lr}, v{Rr}", f"v_fma_f32 v{di}, v{pi}, v{lr}, v{I}",
               f"v_fma_f32 v{dr}, -v{pi}, v{li}, v{dr}", f"v_fma_f32 v{di}, v{pr}, v{li}, v{di}"]
    l2 += [('lds', f"ds_write_b32 v5, v{T[0]} offset:{AGE_RE - EXT}", []), ('lds', f"ds_write_b32 v5, v{T[1]} offset:{AGE_IM - EXT}", [])]
    if M: F['ser'] = ["s_nop 15", "s_nop 7"] + merge(l1, l2) + ["s_nop 3"]
    else: F['ser'] = []; F[8] += l2
    pre_ = ["s_waitcnt vmcnt(0)", "v_mov_b32 v1, 0", ('lds', f"ds_read_b32 v1, v1 offset:{NONCE}", [1])]
    rest = [('need', [1], "v_readfirstlane_b32 s15, v1")]
    for m in range(2):
        for i in range(4): rest += cmul_s(ace(0, m)+i, ace(1, m)+i, PE+2, PE+3, 212 + (i & 1)*2, 213 + (i & 1)*2)
    rest += [f"s_lshl_b32 s4, s3, 10\ns_add_u32 s4, s4, {TSE}\nv_and_b32 v7, 15, v0", "v_lshlrev_b32 v7, 6, v7", "v_lshrrev_b32 v8, 4, v0", "v_lshl_add_u32 v7, v8, 4, v7", "v_add_u32 v7, s4, v7",
            "v_lshrrev_b32 v9, 5, v0", "v_lshlrev_b32 v9, 3, v9", "v_bfe_u32 v10, v0, 2, 2", "v_add_u32 v9, v9, v10",
            "v_bfe_u32 v10, v0, 4, 1", "v_lshlrev_b32 v10, 5, v10", "v_and_b32 v11, 3, v0", "v_lshl_add_u32 v10, v11, 3, v10",
            "v_lshl_add_u32 v8, v9, 6, v10", "v_add_u32 v8, s4, v8"]
    if M:
        rest += [f"s_mov_b32 s4, {page(SPAGES[0])}\ns_cmp_ge_u32 s3, 2\ns_cselect_b32 s4, {page(SPAGES[1])}, s4\ns_and_b32 s5, s3, 1\ns_lshl_b32 s5, s5, 12\ns_add_u32 s4, s4, s5\nv_and_b32 v11, 1, v0",
                "v_bfe_u32 v4, v0, 2, 1", "v_lshl_or_b32 v11, v4, 1, v11", "v_bfe_u32 v4, v0, 1, 1", "v_lshl_or_b32 v11, v4, 2, v11",
                "v_lshrrev_b32 v4, 5, v0", "v_lshlrev_b32 v4, 2, v4", "v_xor_b32 v11, v11, v4", "v_lshlrev_b32 v11, 4, v11",
                "v_and_b32 v4, 31, v0", "v_lshl_add_u32 v12, v4, 7, v11", "v_add_u32 v12, s4, v12"]
        rest += [f"v_xor_b32 v{12+i}, {i*16}, v12" for i in range(1, 4)]
        rest += ["v_bfe_u32 v11, v0, 2, 1", "v_bfe_u32 v4, v0, 3, 1", "v_lshl_or_b32 v11, v4, 2, v11", "v_lshlrev_b32 v11, 4, v11", "v_xor_b32 v11, v11, v10",
                "v_lshl_add_u32 v20, v9, 7, v11", "v_add_u32 v20, s4, v20", "v_xor_b32 v21, 32, v20", "v_add_u32 v21, 512, v21",
                "v_xor_b32 v22, 64, v20", "v_xor_b32 v23, 64, v21"]
        mid = list(pre_)
        for m in range(2):
            for rr in range(0, 16, 2):
                mid += cmul2(acc(ACA, 0, m)+rr, acc(ACA, 1, m)+rr, PM+2, 232 + ((rr >> 1) & 3) * 4)
        mid = mid[:3] + rest[:1] + ['s_nop 0', flag_item(0)] + mid[3:] + rest[1:] if OPT['gs'] == 2 else mid + rest + [flag_item(0)]
        st = list(range(8, LS))
        n = (len(mid) + len(st) - 1) // len(st)
        for i, s in enumerate(st): F[s] += mid[i*n:(i+1)*n]
    else:
        g = glu_epi(ACA, 14, 232, 248)
        if OPT['gs'] == 2:
            F[8] += ["s_waitcnt vmcnt(0)"] + g[0][:30]; F[9] += pre_[1:] + g[0][30:] + g[1] + g[2][:10]; F[10] += g[2][10:] + g[3]
            F[9] = stores_last(F[9])
            F[11] += rest[:1] + ["s_waitcnt vmcnt(0)\n" + flag_item(0)] + rest[1:25]; F[12] += rest[25:]
        elif OPT['gs'] == 0:
            F[9] += pre_ + g[0] + g[1][:20]; F[10] += g[1][20:] + g[2][:40]
            F[11] += g[2][40:] + g[3]
            F[9] = stores_last(F[9]); F[10] = stores_last(F[10])
            F[12] += rest + ["s_waitcnt vmcnt(0)\n" + flag_item(0)]
        else:
            F[9] += pre_ + g[0]; F[10] += g[1]; F[11] += g[2]; F[12] += rest; GL = g[3]
    IE = 208; IM = [216, 218]
    late = [('lds', f"ds_read_b32 v{IE}, v5 offset:{AGE_RE - EXT}", [IE]), ('lds', f"ds_read_b32 v{IE+1}, v5 offset:{AGE_IM - EXT}", [IE+1])]
    if M:
        for par in range(2):
            late += [('lds', f"ds_read_b32 v{IM[0]+par}, v3 offset:{AGM_RE - EXT + par*256}", [IM[0]+par]), ('lds', f"ds_read_b32 v{IM[1]+par}, v3 offset:{AGM_IM - EXT + par*256}", [IM[1]+par])]
    c = cmul_s(IE, IE+1, PE+2, PE+3, 212, 213); c[0] = ('need', [IE, IE+1], c[0]); late += c
    if M:
        c = cmul2(IM[0], IM[1], PM+2, 220); c[0] = ('need', R(216, 4), c[0]); late += c
    l1 = []; l2 = []
    for pos in range(8):
        Rr = ace(0, pos >> 2) + (pos & 3); I = ace(1, pos >> 2) + (pos & 3)
        if pos == 0: pr, pi = IE, IE+1
        else: pr, pi = ace(0, (pos-1) >> 2) + ((pos-1) & 3), ace(1, (pos-1) >> 2) + ((pos-1) & 3)
        l2 += [f"v_fma_f32 v{Rr}, v{pr}, v{lr}, v{Rr}", f"v_fma_f32 v{I}, v{pi}, v{lr}, v{I}",
               f"v_fma_f32 v{Rr}, v{pi}, v{li}, v{Rr}", f"v_fma_f32 v{I}, -v{pr}, v{li}, v{I}"]
    for cp in range(2):
        for d in range(4):
            b = ace(cp, d >> 1) + (d & 1)*2
            l2.append(f"v_cvt_pk_bf16_f32 v{232+4*cp+d}, v{b}, v{b+1}")
    for cp in range(2):
        l2 += [('lds', f"ds_write_b128 v7, {vr(232+4*cp,4)}", []), ('lds', f"ds_read_b64_tr_b16 {vr(240+4*cp,2)}, v8", R(240+4*cp, 2)),
               ('lds', f"ds_read_b64_tr_b16 {vr(242+4*cp,2)}, v8 offset:256", R(242+4*cp, 2))]
    l2 += ["s_nop 0"] * 6
    l2 += [('need', R(240, 4), f"buffer_store_dwordx4 {vr(240,4)}, v6, s[64:67], s82 offen sc1"), ('need', R(244, 4), f"buffer_store_dwordx4 {vr(244,4)}, v6, s[64:67], s83 offen sc1")]
    if M:
        for pos in range(16):
            m, rr = pos >> 3, (pos & 7) * 2
            if pos == 0: pr, pi = IM
            else:
                pm, prr = (pos-1) >> 3, ((pos-1) & 7) * 2
                pr, pi = acc(ACA, 0, pm)+prr, acc(ACA, 1, pm)+prr
            Rr, I = acc(ACA, 0, m) + rr, acc(ACA, 1, m) + rr
            l1 += step2(Rr, I, pr, pi, PM, Rr, I, True)
    late += merge(l1, [x for x in l2 if x != "s_nop 0"] if M else l2)
    if M:
        for comp in range(2):
            PB = 216 if comp == 0 else 232
            k = 0
            for par in range(2):
                for m in range(2):
                    b = acc(ACA, comp, m); P = PB + 4*k
                    for aa in range(4): late.append(f"v_cvt_pk_bf16_f32 v{P+aa}, v{b+4*aa+par}, v{b+4*aa+2+par}")
                    late.append(('lds', f"ds_write_b128 v{12+2*par+m}, {vr(P,4)}", []))
                    k += 1
            k = 0
            for mt in range(2):
                for u in range(2):
                    d = acc(ACA, comp, 0) + 4*k
                    late.append(('lds', f"ds_read_b64_tr_b16 {vr(d,2)}, v{20+2*mt} offset:{u*2048}", R(d, 2)))
                    late.append(('lds', f"ds_read_b64_tr_b16 {vr(d+2,2)}, v{21+2*mt} offset:{u*2048}", R(d+2, 2)))
                    k += 1
        for comp in range(2):
            k = 0
            for mt in range(2):
                for u in range(2):
                    d = acc(ACA, comp, 0) + 4*k
                    late.append(('need', R(d, 4), f"s_add_u32 s5, s80, {(mt*176 + 4*comp + u)*1024}\nbuffer_store_dwordx4 {vr(d,4)}, v6, s[64:67], s5 offen sc1"))
                    k += 1
    st = list(range(LS, 16))
    if M:
        n = OPT['capM']
        for i, s in enumerate(st): F[s] += late[i*n:(i+1)*n]
        F[16] += late[len(st)*n:]
        F[LS] = F[LS];
        for s in st: F[s] = stores_last(F[s])
    elif OPT['gs'] in (0, 2):
        F[LS] += late
    else:
        F[13] += late; F[14] += GL; F[15] += ["s_waitcnt vmcnt(0)\n" + flag_item(0)]
    return F

def p1_consumer(a, M):
    S = Sched(a)
    kindA = 'S' if M else 'G'
    F = passB_fillers(M)
    stamp(a, 1)
    a("s_barrier")
    stamp(a, 2); cstamp(a, 56)
    for x in reads_main(kindA, 0, 0, 0): S.read(*x)
    for s in range(16):
        slot = s % 3
        kind = kindA if s < 8 else 'G'
        base = ACA if s < 8 else ACB
        for kk in range(4):
            st = kk & 1
            rd = []
            if kk == 3:
                if s < 15:
                    S.all()
                    if OPT['fine']: stamp(a, 16 + s)
                    a("s_barrier")
                    if XH[s+1] != XH[s]:
                        op = "v_add_u32" if XH[s+1] else "v_subrev_u32"
                        for r_ in (list(range(12, 20)) + list(range(24, 28)) if s < 8 else range(16, 20)): a(f"{op} v{r_}, 49152, v{r_}")
                    rd = reads_main(kindA if s + 1 < 8 else 'G', s+1, 0, 0)
            else:
                rd = reads_main(kind, s, kk+1, st ^ 1)
            if s < 8 and kk in (0, 2): rd = rd + reads_ext(s, kk >> 1)
            mf = mfma_main(kind, base, st, (s in (0, 8)) and kk == 0)
            if s < 8 and kk in (1, 3): mf = mf[:2] + mfma_ext(s == 0 and kk == 1) + mf[2:]
            fs = s + 1 if kk == 3 else s
            fl = []
            if fs >= 7 and not (kk == 3 and s in (6, 7)) and not OPT['noF']:
                q = F[fs]
                nblk = {7: 3, 8: 3, 16: 1}.get(fs, 4)
                bi = kk if fs in (7, 8) else (0 if kk == 3 else kk + 1)
                if fs == 16: fl = q[:16]; F[16] = q[16:]
                else:
                    n = (len(q) + nblk - 1) // nblk
                    fl = q[bi*n:(bi+1)*n]
            rd = list(rd); fl = list(fl)
            nf = (len(fl) + len(mf) - 1) // len(mf) if fl else 0
            for i, (ins, regs) in enumerate(mf):
                S.need(regs); a(ins)
                for _ in range(OPT['per1']):
                    if rd: S.read(*rd.pop(0))
                if s == 8 and kk == 0 and i < 2: continue
                for _ in range(nf + (1 if s == 8 and kk == 0 else 0) * nf):
                    if fl: S.item(fl.pop(0))
            for x in rd: S.read(*x)
            for x in fl: S.item(x)
            if kk == 3 and s == OPT['tw'] and not OPT['ts']: touches(a, 2)
            if kk == 3 and OPT['ts']:
                for sub, st_ in enumerate([int(c) for c in str(OPT['ts'])]):
                    if s == st_: touch_sub(a, sub)
            if kk == 3 and s == 7:
                for x in F['ser']: S.item(x)
        if s == 3: stamp(a, 3); cstamp(a, 57)
        if s == 7: stamp(a, 4); cstamp(a, 58)
    stamp(a, 5); cstamp(a, 61)
    if not OPT['noF']:
        for x in F[16]: S.item(x)
    S.all()
    stamp(a, 8)

def touches(a, part):
    l1 = a.lab(); l2 = a.lab()
    lo, hi = {0: (1, 8), 1: (1, 4), 2: (4, 8)}[part]
    a(f"s_cmp_lg_u32 s3, 1\ns_cbranch_scc1 {l1}")
    srd(a, 52, sX, 2097152); srd(a, 56, sWg, 1835008); srd(a, 60, sWu, 1835008)
    a(f"v_and_b32 v1, 7, v0\nv_min_u32 v1, {hi-lo-1}, v1\nv_lshlrev_b32 v1, 7, v1\nv_lshrrev_b32 v2, 3, v0\nv_lshl_add_u32 v1, v2, 10, v1\ns_lshl_b32 s4, s2, 13\ns_add_u32 s4, s4, {lo*128}")
    a("buffer_load_dword v8, v1, s[52:55], s4 offen")
    r0 = 0 if part == 0 else 64*lo
    nl = (64*hi - r0) * 28 // 256
    a(f"v_min_u32 v1, {nl-1}, v0\nv_lshlrev_b32 v1, 7, v1\ns_mul_i32 s4, s2, {nl*128}\ns_add_u32 s4, s4, {r0*3584}")
    a("buffer_load_dword v8, v1, s[56:59], s4 offen\nbuffer_load_dword v8, v1, s[60:63], s4 offen")
    if part == 2:
        a(f"v_min_u32 v1, 6, v0\nv_lshlrev_b32 v1, 7, v1\ns_mul_i32 s4, s2, {7*128}")
        a("buffer_load_dword v8, v1, s[56:59], s4 offen\nbuffer_load_dword v8, v1, s[60:63], s4 offen")
    a.label(l1)
    a(f"s_cmp_lg_u32 s3, 2\ns_cbranch_scc1 {l2}")
    if part in (0, 1):
        srd(a, 52, sBre, 524288); srd(a, 56, sBim, 524288)
        a("v_and_b32 v1, 15, v0\nv_lshlrev_b32 v1, 7, v1\ns_lshl_b32 s4, s2, 11\nbuffer_load_dword v8, v1, s[52:55], s4 offen\nbuffer_load_dword v8, v1, s[56:59], s4 offen")
    if part in (0, 2):
        srd(a, 52, sWd, 1835008); srd(a, 56, sCre, 524288); srd(a, 60, sCim, 524288)
        a("v_and_b32 v1, 15, v0\nv_lshlrev_b32 v1, 7, v1\ns_lshl_b32 s4, s2, 11\nbuffer_load_dword v8, v1, s[56:59], s4 offen\nbuffer_load_dword v8, v1, s[60:63], s4 offen")
        a(f"v_min_u32 v1, 55, v0\nv_lshlrev_b32 v1, 7, v1\ns_mul_i32 s4, s2, {56*128}\nbuffer_load_dword v8, v1, s[52:55], s4 offen")
    a.label(l2)

def touch_sub(a, sub):
    l = a.lab()
    a(f"s_cmp_lg_u32 s3, {1 + (sub >> 1)}\ns_cbranch_scc1 {l}")
    if sub == 0:
        srd(a, 52, sX, 2097152); srd(a, 56, sWg, 1835008)
        a(f"v_and_b32 v1, 7, v0\nv_min_u32 v1, 3, v1\nv_lshlrev_b32 v1, 7, v1\nv_lshrrev_b32 v2, 3, v0\nv_lshl_add_u32 v1, v2, 10, v1\ns_lshl_b32 s4, s2, 13\ns_add_u32 s4, s4, 512")
        a("buffer_load_dword v8, v1, s[52:55], s4 offen")
        a(f"v_min_u32 v1, 27, v0\nv_lshlrev_b32 v1, 7, v1\ns_mul_i32 s4, s2, {28*128}\ns_add_u32 s4, s4, {256*3584}\nbuffer_load_dword v8, v1, s[56:59], s4 offen")
        srd(a, 60, sWu, 1835008)
        a("buffer_load_dword v8, v1, s[60:63], s4 offen")
    elif sub == 1:
        srd(a, 56, sWg, 1835008); srd(a, 60, sWu, 1835008)
        a(f"v_min_u32 v1, 6, v0\nv_lshlrev_b32 v1, 7, v1\ns_mul_i32 s4, s2, {7*128}")
        a("buffer_load_dword v8, v1, s[56:59], s4 offen\nbuffer_load_dword v8, v1, s[60:63], s4 offen")
    elif sub == 2:
        srd(a, 52, sWd, 1835008)
        a(f"v_min_u32 v1, 55, v0\nv_lshlrev_b32 v1, 7, v1\ns_mul_i32 s4, s2, {56*128}\nbuffer_load_dword v8, v1, s[52:55], s4 offen")
    else:
        srd(a, 56, sCre, 524288); srd(a, 60, sCim, 524288)
        a("v_and_b32 v1, 15, v0\nv_lshlrev_b32 v1, 7, v1\ns_lshl_b32 s4, s2, 11\nbuffer_load_dword v8, v1, s[56:59], s4 offen\nbuffer_load_dword v8, v1, s[60:63], s4 offen")
    a.label(l)

def p1_consumer_prologue(a, code_end):
    srd(a, 64, sWs, WS_USED)
    l_np = a.lab(); l_nn = a.lab(); l_n2 = a.lab(); l_n1 = a.lab()
    a(f"s_cmp_lg_u32 s3, {3 if OPT['cpf'] else 77}\ns_cbranch_scc1 {l_np}")
    a(f"s_mov_b32 s4, {code_end} - {NAME}_kernel - 8\nv_lshlrev_b32 v1, 7, v0")
    a("s_lshr_b32 s5, s2, 3\ns_and_b32 s5, s5, 7\ns_lshl_b32 s5, s5, 13\nv_add_u32 v2, s5, v1\nv_min_u32 v2, s4, v2\nglobal_load_dword v8, v2, s[90:91]")
    a.label(l_np)
    a(f"s_cmp_lg_u32 s3, 0\ns_cbranch_scc1 {l_nn}")
    srd(a, 60, sDbg, 256)
    a("s_memrealtime s[14:15]\nv_mov_b32 v9, 0\nv_mov_b32 v11, 0\ns_waitcnt lgkmcnt(0)\ns_or_b32 s14, s14, 1")
    a("v_mov_b32 v10, s14\ns_mov_b64 exec, 1")
    a("buffer_atomic_cmpswap v[10:11], v9, s[60:63], 0 offen sc0\ns_mov_b64 exec, -1")
    a.label(l_nn)
    touches(a, 0 if OPT['tw'] < 0 else 1)
    a("v_bfe_u32 v1, v0, 2, 2\nv_and_b32 v2, 3, v0\nv_lshl_add_u32 v3, v1, 3, v2")
    a("v_and_b32 v4, 2, v0\nv_bfe_u32 v5, v0, 3, 1\nv_lshl_or_b32 v4, v5, 2, v4\nv_lshrrev_b32 v5, 4, v0\nv_xor_b32 v4, v4, v5")
    a(f"v_lshlrev_b32 v4, 4, v4\nv_lshl_add_u32 v{vXe}, v3, 7, v4\ns_lshl_b32 s4, s3, 12\nv_add_u32 v{vXe}, s4, v{vXe}")
    a(f"v_xor_b32 v{vXe+1}, 64, v{vXe}\nv_xor_b32 v{vXe+2}, 16, v{vXe}\nv_add_u32 v{vXe+2}, 512, v{vXe+2}\nv_xor_b32 v{vXe+3}, 64, v{vXe+2}")
    a("v_and_b32 v3, 15, v0\nv_lshrrev_b32 v4, 1, v3\nv_xor_b32 v4, v4, v5\nv_lshlrev_b32 v4, 4, v4")
    a(f"v_lshl_add_u32 v{vEa}, v3, 7, v4\nv_add_u32 v{vEa}, {EXT}, v{vEa}\nv_xor_b32 v{vEa+1}, 64, v{vEa}")
    a(f"s_lshr_b32 s4, s3, 1\ns_lshl_b32 s4, s4, 13\ns_and_b32 s51, s3, 1")
    for perm, vx in ((0, vXn), (1, vXp)):
        if not perm: a("v_and_b32 v1, 31, v0")
        else:
            a("v_bfe_u32 v1, v0, 2, 1\nv_lshlrev_b32 v1, 5, v1\nv_and_b32 v2, 1, v0\nv_lshl_or_b32 v1, v2, 4, v1")
            a("v_bfe_u32 v2, v0, 3, 2\nv_lshl_or_b32 v1, v2, 1, v1\nv_bfe_u32 v2, v0, 1, 1\nv_or_b32 v1, v1, v2")
        a("v_bfe_u32 v2, v1, 2, 1\nv_and_b32 v3, 2, v1\nv_or_b32 v2, v2, v3\nv_bfe_u32 v3, v1, 4, 1\nv_lshl_or_b32 v2, v3, 2, v2")
        a(f"v_lshrrev_b32 v3, 5, v0\nv_xor_b32 v2, v2, v3\nv_lshlrev_b32 v2, 4, v2\nv_lshl_add_u32 v{vx}, v1, 7, v2\nv_add_u32 v{vx}, s4, v{vx}")
        for kk in range(1, 4): a(f"v_xor_b32 v{vx+kk}, {kk*32}, v{vx}")
    a("v_lshrrev_b32 v1, 5, v0\nv_lshlrev_b32 v1, 3, v1\nv_bfe_u32 v2, v0, 2, 2\nv_add_u32 v1, v1, v2")
    a("v_bfe_u32 v2, v0, 4, 1\nv_lshlrev_b32 v2, 5, v2\nv_and_b32 v3, 3, v0\nv_lshl_add_u32 v2, v3, 3, v2")
    a("v_bfe_u32 v3, v0, 3, 1\nv_lshlrev_b32 v3, 6, v3\nv_xor_b32 v2, v2, v3")
    a(f"s_lshl_b32 s5, s51, 6\nv_xor_b32 v2, s5, v2\nv_lshl_add_u32 v{vWt}, v1, 7, v2\nv_add_u32 v{vWt}, {BLK}, v{vWt}")
    a(f"s_lshl_b32 s5, s51, 12\ns_add_u32 s5, s5, {BLK}")
    a("v_and_b32 v1, 31, v0\nv_bfe_u32 v2, v0, 1, 3\nv_lshrrev_b32 v3, 5, v0\nv_xor_b32 v2, v2, v3\nv_lshlrev_b32 v2, 4, v2")
    a(f"v_lshl_add_u32 v{vWa}, v1, 7, v2\nv_add_u32 v{vWa}, s5, v{vWa}")
    for kk in range(1, 4): a(f"v_xor_b32 v{vWa+kk}, {kk*32}, v{vWa}")
    a("v_lshlrev_b32 v6, 4, v0")
    a(f"s_lshl_b32 s81, s6, 10\ns_lshl_b32 s4, s13, 4\ns_add_u32 s81, s81, s4\ns_lshl_b32 s4, s3, 2\ns_add_u32 s81, s81, s4\ns_add_u32 s81, s81, {FLG_OFF}")
    a("s_lshr_b32 s4, s3, 1\ns_lshl_b32 s4, s4, 1\ns_lshl_b32 s5, s6, 2\ns_add_u32 s4, s4, s5\ns_mul_i32 s79, s4, 176")
    a("s_lshl_b32 s5, s51, 1\ns_add_u32 s4, s79, s5\ns_lshr_b32 s5, s9, 4\ns_add_u32 s4, s4, s5\ns_lshl_b32 s78, s4, 10")
    a("s_xor_b32 s5, s12, 1\ns_lshl_b32 s5, s5, 12\ns_add_u32 s77, s78, s5")
    a("s_lshl_b32 s5, s8, 4\ns_add_u32 s4, s79, s5\ns_add_u32 s4, s4, 120\ns_lshl_b32 s5, s51, 1\ns_add_u32 s4, s4, s5\ns_lshl_b32 s80, s4, 10")
    a("s_lshl_b32 s4, s6, 2\ns_add_u32 s4, s4, s3\ns_mul_i32 s4, s4, 176\ns_lshl_b32 s5, s8, 4\ns_add_u32 s4, s4, s5\ns_add_u32 s4, s4, s7\ns_add_u32 s4, s4, 112\ns_lshl_b32 s82, s4, 10\ns_add_u32 s83, s82, 4096")
    a(f"s_mov_b32 s50, {NLOG2E}\ns_mov_b32 s51, {NLOG2E}")

def nonce_finish(a):
    l = a.lab()
    return (f"s_cmp_lg_u32 s3, 0\ns_cbranch_scc1 {l}\ns_waitcnt vmcnt(0)\nv_mov_b32 v9, s14\nv_cmp_eq_u32 vcc, 0, v10\ns_mov_b64 exec, 1\nv_mov_b32 v11, 0\n"
            f"v_cndmask_b32 v10, v10, v9, vcc\nds_write_b32 v11, v10 offset:{NONCE}\ns_waitcnt lgkmcnt(0)\ns_mov_b64 exec, -1\n{l}:\ns_mov_b32 s14, s78")

def p2_ids(a):
    a("s_and_b32 s4, s2, 7\ns_lshr_b32 s5, s2, 3\ns_lshl_b32 s84, s4, 2\ns_lshr_b32 s4, s5, 3\ns_add_u32 s84, s84, s4\ns_and_b32 s85, s5, 7")

def p2_consumer(a):
    Bp, Biss = p2_schedule()
    p2_ids(a)
    a("s_and_b32 s8, s3, 1\ns_lshr_b32 s9, s3, 1")
    srd(a, 52, sX, 2097152); srd(a, 56, sDsk, 1024); srd(a, 60, sOut, 4194304)
    XV = 96; GV = 112; DV = 128; OM = 132
    a("s_lshl_b32 s10, s84, 6\ns_lshl_b32 s4, s9, 5\ns_add_u32 s10, s10, s4")
    a("s_lshl_b32 s11, s85, 6\ns_lshl_b32 s4, s8, 5\ns_add_u32 s11, s11, s4")
    a("v_and_b32 v1, 31, v0\nv_add_u32 v1, s11, v1\nv_lshrrev_b32 v2, 5, v0\nv_lshlrev_b32 v2, 2, v2\nv_add_u32 v2, s10, v2")
    a("v_lshlrev_b32 v3, 1, v1\nv_lshl_add_u32 v4, v2, 10, v3")
    a("v_lshlrev_b32 v5, 2, v1\nv_lshl_add_u32 v5, v2, 11, v5")
    a(f"v_lshlrev_b32 v10, 2, v2\nv_add_u32 v10, {G_OFF}, v10")
    a("s_lshl_b32 s4, s84, 1\ns_add_u32 s4, s4, s9\ns_mul_i32 s4, s4, 176\ns_lshl_b32 s5, s8, 1\ns_add_u32 s4, s4, s5\ns_lshl_b32 s80, s4, 10")
    V = VM(a)
    V.ops = ['H'] * 10
    ld = []
    for i in range(16):
        row = 8*(i >> 2) + (i & 3)
        ld.append((f"s_mov_b32 s4, {row*1024}", f"buffer_load_ushort v{XV+i}, v4, s[52:55], s4 offen"))
    for q in range(4): ld.append((None, f"buffer_load_dwordx4 {vr(GV+4*q,4)}, v10, s[64:67], 0 offen offset:{q*32} sc1"))
    ld.append((None, f"buffer_load_ushort v{DV}, v3, s[56:59], 0 offen"))
    vBw, vBc = 12, 18
    a("v_lshrrev_b32 v7, 5, v0\nv_lshlrev_b32 v7, 2, v7\nv_bfe_u32 v8, v0, 2, 2\nv_add_u32 v7, v7, v8")
    a("v_bfe_u32 v8, v0, 4, 1\nv_lshlrev_b32 v8, 5, v8\nv_and_b32 v9, 3, v0\nv_lshl_add_u32 v8, v9, 3, v8\nv_bfe_u32 v9, v0, 3, 1\nv_lshlrev_b32 v9, 6, v9\nv_xor_b32 v8, v8, v9")
    a(f"s_lshl_b32 s4, s8, 12\nv_lshl_add_u32 v{vBw}, v7, 7, v8\nv_add_u32 v{vBw}, s4, v{vBw}\nv_xor_b32 v{vBw+1}, 64, v{vBw}")
    a("v_and_b32 v7, 31, v0\nv_bfe_u32 v8, v0, 1, 3\nv_lshrrev_b32 v9, 5, v0\nv_xor_b32 v8, v8, v9\ns_lshl_b32 s4, s8, 2\nv_xor_b32 v8, s4, v8\nv_lshlrev_b32 v8, 4, v8")
    a(f"v_lshl_add_u32 v{vBc}, v7, 7, v8\nv_xor_b32 v{vBc+1}, 32, v{vBc}")
    W = 57344
    for t in range(1, 3):
        for e in range(2):
            a(f"v_add_u32 v{vBw+2*t+e}, {t*W}, v{vBw+e}\nv_add_u32 v{vBc+2*t+e}, {t*W}, v{vBc+e}")
    AB, AY = 32, 64
    def F(p): return 176 + (p & 3) * 16
    AREGS = [240, 244, 248, 252, 160, 164, 168, 172, 24, 148, 152, 156]
    NAR = 12
    def areg(p, e): return AREGS[(2*p + e) % NAR]
    SC = " sc1" if OPT['sc1_a'] else ""
    def loadA(p):
        for e in range(2):
            a(f"s_add_u32 s4, s80, {ORD[p]*4096 + e*1024}")
            V.op(f"buffer_load_dwordx4 {vr(areg(p,e),4)}, v6, s[64:67], s4 offen{SC}", ('A', p, e))
    def win(addr): t = min((addr - XR) // W, 2); return t, addr - t*W
    def isy(p): return NA_ <= p < NH_
    def reads(p):
        tb, ob = win(page(Bp[p]))
        r = []; f = F(p)
        for e in range(2):
            for nt in range(2):
                d = f + (e*2+nt)*4
                if not isy(p):
                    r.append((f"ds_read_b64_tr_b16 {vr(d,2)}, v{vBw+2*tb+nt} offset:{ob + e*2048}", R(d, 2)))
                    r.append((f"ds_read_b64_tr_b16 {vr(d+2,2)}, v{vBw+2*tb+nt} offset:{ob + e*2048 + 1024}", R(d+2, 2)))
                else:
                    r.append((f"ds_read_b128 {vr(d,4)}, v{vBc+2*tb+e} offset:{ob + nt*4096}", R(d, 4)))
        return r
    pre = [f"v_lshlrev_b32 v{DV}, 16, v{DV}", "s_mov_b32 s12, 0xffff0000"]
    for i in range(0, 16, 2):
        for e in range(2):
            pre += [f"v_lshlrev_b32 v{XV+i+e}, 16, v{XV+i+e}", f"v_mul_f32 v{XV+i+e}, v{XV+i+e}, v{DV}", f"v_sub_f32 v{OM+i+e}, 1.0, v{GV+i+e}"]
        pre += [f"v_cvt_pk_bf16_f32 v{DV+1}, v{XV+i}, v{XV+i+1}", f"v_cvt_pk_bf16_f32 v{DV+2}, v{OM+i}, v{OM+i+1}",
                f"v_lshlrev_b32 v{XV+i}, 16, v{DV+1}", f"v_and_b32 v{XV+i+1}, s12, v{DV+1}",
                f"v_lshlrev_b32 v{OM+i}, 16, v{DV+2}", f"v_and_b32 v{OM+i+1}, s12, v{DV+2}"]
    epiB = glu_epi(ACB, 77, 64, 80, (1, 0))
    S = Sched(a)
    na = 0
    KH, KB = OPT['KH'], OPT['KB']
    def allowed(p, k): return (p < NA_) or (p < NH_ and k > KH) or k > KB
    for k in range(23):
        if k == 0: stamp(a, 6)
        if k < 22: a("s_barrier")
        if k == 0: stamp(a, 9); cstamp(a, 59)
        if k < 22 and (OPT['fine'] or k in (5, 12, 19)): stamp(a, 32+k)
        if k == 14: stamp(a, 10)
        rd = reads(2*k) + reads(2*k+1) if k < 22 else []
        if k == 0:
            while na < 4: loadA(na); na += 1
            for x in rd: S.read(*x)
            for x in epiB[0] + epiB[1]:
                a(x)
                if 'buffer_store' in x: V.ops.append('E')
            V.wait('H'); a(flag_item(1)); V.ops.append('F')
            while na < NAR // 2: loadA(na); na += 1
            eb = epiB[2] + epiB[3]
        else:
            rd = list(rd)
            for p in (2*k-2, 2*k-1):
                f = F(p)
                for e in range(2):
                    V.wait(('A', p, e))
                    for nt in range(2):
                        d = vr((AY if isy(p) else AB) + 16*nt, 16)
                        c = "0" if (p in (0, NA_) and e == 0) else d
                        S.need(R(f+(e*2+nt)*4, 4))
                        a(f"v_mfma_f32_32x32x16_bf16 {d}, {vr(areg(p,e),4)}, {vr(f+(e*2+nt)*4,4)}, {c}")
                        for _ in range(OPT['per2']):
                            if rd: S.read(*rd.pop(0))
                        for _ in range(4):
                            if eb:
                                x = eb.pop(0); a(x)
                                if 'buffer_store' in x: V.ops.append('E')
                while na <= 43 and na < p + 1 + NAR // 2 and allowed(na, k): loadA(na); na += 1
            for x in rd: S.read(*x)
        if k == 4:
            assert not eb
            V.wait('E'); a(flag_item(2)); V.ops.append('F')
        if 5 <= k < 5 + 7:
            for (p_, ins) in ld[(k-5)*3:(k-5)*3+3]:
                if p_: a(p_)
                V.op(ins, 'L')
        if k == 13: V.wait('L')
        if 13 <= k < 17:
            n = (len(pre) + 3) // 4
            for x in pre[(k-13)*n:(k-12)*n]: a(x)
        if k == 16:
            yp = [page(Bp[26]), page(Bp[27])]
            a(f"s_mov_b32 s4, {yp[0]}\ns_cmp_eq_u32 s9, 1\ns_cselect_b32 s4, {yp[1]}, s4\ns_lshl_b32 s5, s8, 12\ns_add_u32 s10, s4, s5\ns_xor_b32 s5, s5, 0x1000\ns_add_u32 s5, s4, s5\nv_add_u32 v8, s10, v6\nv_add_u32 v9, s5, v6")
            l1 = a.lab(); l2 = a.lab()
            a(f"s_cmp_eq_u32 s8, 1\ns_cbranch_scc1 {l1}")
            for q in range(4): a(f"ds_write_b128 v8, {vr(AY+16+4*q,4)} offset:{q*1024}")
            a(f"s_branch {l2}"); a.label(l1)
            for q in range(4): a(f"ds_write_b128 v8, {vr(AY+4*q,4)} offset:{q*1024}")
            for i in range(16): a(f"v_mov_b32 v{AY+i}, v{AY+16+i}")
            a.label(l2)
            S.n += 4
            for i in range(16): a(f"v_add_f32 v{AY+i}, v{AY+i}, v{XV+i}")
            S.all()
        if k == 17:
            for q in range(4): S.read(f"ds_read_b128 {vr(AY+16+4*q,4)}, v9 offset:{q*1024}", R(AY+16+4*q, 4))
        if k == 18:
            S.need(R(AY+16, 16))
            for i in range(16): a(f"v_add_f32 v{AY+i}, v{AY+i}, v{AY+16+i}")
        if k == 19:
            for i in range(16): a(f"v_mul_f32 v{AY+i}, v{AY+i}, v{GV+i}")
    assert na == 44
    stamp(a, 11); cstamp(a, 60)
    used = {Bp[40], Bp[41], Bp[42], Bp[43]}
    xp = [page(p) for p in range(18) if p not in used][:4]
    a(f"s_mov_b32 s4, {xp[0]}\ns_mov_b32 s5, {xp[1]}\ns_cmp_eq_u32 s9, 1\ns_cselect_b32 s4, {xp[2]}, s4\ns_cselect_b32 s5, {xp[3]}, s5")
    a("s_cmp_eq_u32 s8, 1\ns_cselect_b32 s10, s5, s4\ns_cselect_b32 s11, s4, s5")
    a("v_lshlrev_b32 v7, 4, v0\nv_add_u32 v8, s10, v7\nv_add_u32 v9, s11, v7")
    lk1 = a.lab(); lj = a.lab()
    a(f"s_nop 4\ns_cbranch_scc1 {lk1}")
    RB = 176
    for kh in range(2):
        if kh == 1: a.label(lk1)
        sn = kh ^ 1
        for q in range(4): a(f"ds_write_b128 v8, {vr(AB+16*sn+4*q,4)} offset:{q*1024}")
        a("s_waitcnt lgkmcnt(0)\ns_barrier")
        for q in range(4): a(f"ds_read_b128 {vr(RB+4*q,4)}, v9 offset:{q*1024}")
        for q in range(4):
            a(f"s_waitcnt lgkmcnt({3-q})")
            for i in range(4*q, 4*q+4, 2): a(f"v_pk_add_f32 {vr(RB+i,2)}, {vr(RB+i,2)}, {vr(AB+16*kh+i,2)}")
        if kh == 0: a(f"s_branch {lj}")
    a.label(lj)
    for i in range(0, 16, 2):
        T = 224 + (i & 6)
        a(f"v_cvt_pk_bf16_f32 v{T}, v{RB+i}, v{RB+i+1}")
        a(f"v_lshlrev_b32 v{RB+i}, 16, v{T}\nv_and_b32 v{RB+i+1}, s12, v{T}")
        a(f"v_pk_mul_f32 {vr(RB+i,2)}, {vr(RB+i,2)}, {vr(OM+i,2)}\nv_cvt_pk_bf16_f32 v{T}, v{RB+i}, v{RB+i+1}")
        a(f"v_lshlrev_b32 v{RB+i}, 16, v{T}\nv_and_b32 v{RB+i+1}, s12, v{T}")
        a(f"v_pk_add_f32 {vr(AY+i,2)}, {vr(AY+i,2)}, {vr(RB+i,2)}")
        for e in range(2):
            row = 8*((i+e) >> 2) + ((i+e) & 3)
            a(f"s_mov_b32 s4, {row*2048}\nbuffer_store_dword v{AY+i+e}, v5, s[60:63], s4 offen")
    stamp(a, 12)
    if STAMP: a("s_waitcnt vmcnt(0)")
    stamp(a, 13)
    stamp_flush(a)
    a("s_endpgm")

def loader_pre(a):
    if OPT['prio']: a(f"s_setprio {OPT['prio']}")
    a("v_lshrrev_b32 v1, 3, v0\nv_and_b32 v2, 7, v0")
    a("v_lshrrev_b32 v3, 5, v0\nv_and_b32 v4, 2, v1\nv_or_b32 v3, v3, v4\nv_xor_b32 v3, v3, v2\nv_lshlrev_b32 v3, 4, v3\nv_lshl_add_u32 v10, v1, 10, v3\nv_xor_b32 v11, 64, v10")
    a("v_bfe_u32 v3, v0, 4, 1\nv_lshlrev_b32 v3, 2, v3\nv_xor_b32 v3, v3, v2\nv_lshlrev_b32 v3, 4, v3\ns_movk_i32 s4, 3584\nv_mad_u32_u24 v16, v1, s4, v3\nv_lshl_add_u32 v15, v1, 10, v3")
    a("v_lshrrev_b32 v4, 4, v0\nv_xor_b32 v3, v4, v2\nv_lshlrev_b32 v3, 4, v3\nv_lshl_add_u32 v28, v1, 10, v3\nv_xor_b32 v29, 64, v28")
    a("s_cmp_eq_u32 s12, 1\ns_cselect_b64 vcc, -1, 0\nv_cndmask_b32 v12, v16, v28, vcc\nv_cndmask_b32 v13, v16, v29, vcc")
    a("s_and_b32 s14, s3, 1")
    a("s_mul_i32 s4, s14, 114688\ns_lshl_b32 s5, s9, 1\ns_add_u32 s70, s4, s5\ns_lshl_b32 s4, s14, 5\ns_add_u32 s4, s4, s11\ns_lshl_b32 s5, s4, 10")
    a("s_cmp_eq_u32 s12, 1\ns_cselect_b32 s80, s5, s70\ns_mov_b32 s81, 143360\ns_movk_i32 s82, 28672\ns_cselect_b32 s81, -24448, s81\ns_cselect_b32 s82, 8192, s82")
    a("s_mov_b32 s4, 1835008\ns_cselect_b32 s58, 524288, s4\ns_mov_b32 s59, 0x20000")
    a("s_cselect_b32 s4, 0, 128\ns_add_u32 s70, s70, s4")
    a("s_lshl_b32 s4, s14, 2\nv_or_b32 v4, s4, v4\nv_xor_b32 v4, v4, v2\nv_lshlrev_b32 v4, 4, v4\nv_lshl_add_u32 v14, v1, 10, v4")
    a("s_lshl_b32 s4, s14, 3\ns_add_u32 s4, s4, s10\ns_lshl_b32 s85, s4, 10")
    a("s_lshl_b32 s4, s6, 7\ns_lshl_b32 s5, s3, 5\ns_add_u32 s4, s4, s5\ns_lshl_b32 s86, s4, 10")
    a(f"s_lshl_b32 s87, s3, 12\ns_lshr_b32 s4, s3, 1\ns_mul_i32 s88, s4, 24576\ns_lshl_b32 s4, s14, 12\ns_add_u32 s88, s88, s4\ns_add_u32 s88, s88, {BLK}\ns_lshl_b32 s89, s3, 10\ns_add_u32 s89, s89, {EXT}")
    a("s_mov_b32 s54, 2097152\ns_mov_b32 s55, 0x20000\ns_mov_b32 s62, 524288\ns_mov_b32 s63, 0x20000")

def loader(a):
    Bp, Biss = p2_schedule()
    V = VM(a)
    a("s_waitcnt lgkmcnt(0)")
    a("s_mov_b64 s[52:53], s[16:17]")
    a("s_cmp_ge_u32 s3, 2\ns_cselect_b64 s[72:73], s[38:39], s[36:37]\ns_cselect_b64 s[60:61], s[24:25], s[22:23]")
    a("s_cmp_eq_u32 s12, 1\ns_cselect_b64 s[56:57], s[60:61], s[72:73]\ns_mov_b64 s[90:91], s[72:73]")
    def issue(V, s):
        slot = s % 3
        if s == 8:
            a("s_mov_b64 s[56:57], s[90:91]\ns_mov_b32 s58, 1835008\ns_add_u32 s80, s70, 1146880\ns_mov_b32 s81, 143360\ns_movk_i32 s82, 28672\nv_mov_b32 v12, v16\nv_mov_b32 v13, v16")
        if s == 11: a("s_sub_u32 s80, s80, 1835008")
        for i in range(4 if XL[s] else 0):
            a(f"s_add_u32 m0, s87, {XR + XH[s]*49152 + XI[s]*16384 + i*1024}\ns_add_u32 s4, s86, {i*8192 + KS[s]*128}")
            V.op(f"buffer_load_dwordx4 v{10 + (i >> 1)}, s[52:55], s4 offen lds", ('S', s))
        for i in range(4):
            a(f"s_add_u32 m0, s88, {slot*8192 + i*1024}\ns_nop 0")
            V.op(f"buffer_load_dwordx4 v{12 + (i & 1)}, s[56:59], s80 offen lds", ('S', s))
            a("s_add_u32 s80, s80, s82" if i < 3 else "s_add_u32 s80, s80, s81")
        if s < 8:
            a(f"s_add_u32 m0, s89, {slot*4096}\ns_add_u32 s4, s85, {s*128}")
            V.op("buffer_load_dwordx4 v14, s[60:63], s4 offen lds", ('S', s))
    def bar(V, s, extra=""):
        V.wait(('S', s+1), extra=extra)
        if OPT['fine']: stamp(a, 16 + s)
        a("s_barrier")
        if s + 3 <= 15: issue(V, s + 3)
        r = s - OPT['l2t']
        if OPT['l2t'] and 0 <= r <= 2:
            if r < 2:
                srd(a, 76, sWd, 1835008)
                a(f"s_lshr_b32 s4, s2, 3\ns_mul_i32 s4, s4, 57344\ns_lshl_b32 s5, s3, 13\ns_add_u32 s4, s4, s5\ns_add_u32 s4, s4, {r*32768}\nv_lshlrev_b32 v18, 7, v0")
                if r == 1: a("s_cmp_eq_u32 s3, 3\ns_cselect_b32 s78, 0, s78")
            else:
                a("s_cmp_ge_u32 s3, 2\ns_cselect_b64 s[76:77], s[28:29], s[26:27]\ns_mov_b32 s78, 524288\ns_mov_b32 s79, 0x20000")
                a("s_lshr_b32 s4, s2, 3\ns_lshl_b32 s4, s4, 14\ns_and_b32 s5, s3, 1\ns_lshl_b32 s5, s5, 13\ns_add_u32 s4, s4, s5")
            V.op("buffer_load_dword v19, v18, s[76:79], s4 offen", 'T')
    issue(V, 0); stamp(a, 14); issue(V, 1)
    V.wait(('S', 0)); stamp(a, 2); a("s_barrier")
    issue(V, 2)
    srd(a, 64, sWs, WS_USED)
    srd(a, 92 if not STAMP else 92, sGw, 1024) if False else None
    srd(a, 72, sLre, 1024); srd(a, 76, sLim, 1024); srd(a, 96, sLdt, 1024)
    a("s_mov_b64 s[68:69], s[42:43]\ns_mov_b32 s71, 0x20000\ns_mov_b32 s92, s70\ns_movk_i32 s70, 1024")
    a("s_lshl_b32 s4, s6, 7\ns_lshl_b32 s5, s13, 3\ns_add_u32 s4, s4, s5\ns_lshl_b32 s5, s3, 1\ns_add_u32 s15, s4, s5\ns_lshl_b32 s14, s15, 10")
    a("v_lshlrev_b32 v1, 4, v0")
    a("s_and_b32 s4, s3, 1\ns_lshl_b32 s4, s4, 6\nv_add_u32 v2, s4, v0\nv_add_u32 v3, s10, v2\ns_sub_u32 s5, s11, 16\nv_add_u32 v4, s5, v2")
    a("v_cmp_gt_u32 vcc, 16, v2\ns_nop 1\nv_cndmask_b32 v3, v4, v3, vcc\nv_lshlrev_b32 v3, 1, v3")
    bar(V, 0)
    V.op("buffer_load_dwordx4 v[32:35], v1, s[52:55], s14 offen", 'X'); V.op("buffer_load_dwordx4 v[36:39], v1, s[52:55], s14 offen offset:1024", 'X')
    V.op("buffer_load_dwordx4 v[40:43], v1, s[68:71], 0 offen", 'X')
    V.op("buffer_load_ushort v44, v3, s[72:75], 0 offen", 'X'); V.op("buffer_load_ushort v45, v3, s[76:79], 0 offen", 'X'); V.op("buffer_load_ushort v46, v3, s[96:99], 0 offen", 'X')
    a("s_mov_b32 s70, s92")
    bar(V, 1); bar(V, 2)
    V.wait('X')
    a("v_lshlrev_b32 v44, 16, v44\nv_lshlrev_b32 v45, 16, v45\nv_lshlrev_b32 v46, 16, v46")
    a(f"v_mul_f32 v46, {LOG2E}, v46\nv_exp_f32 v46, v46\ns_nop 0")
    bf16_round(a, 46, 46, 47)
    a(f"v_mul_f32 v47, v46, v44\nv_mul_f32 v48, v46, v45")
    a(f"v_mul_f32 v47, {LOG2E}, v47\nv_exp_f32 v47, v47\nv_mul_f32 v48, {INV2PI}, v48\nv_rndne_f32 v49, v48\nv_sub_f32 v48, v48, v49")
    a("v_cos_f32 v49, v48\nv_sin_f32 v50, v48\ns_nop 0\nv_mul_f32 v52, v47, v49\nv_mul_f32 v53, v47, v50")
    a("v_mul_f32 v49, v44, v44\nv_fma_f32 v49, v45, v45, v49\nv_rcp_f32 v49, v49\nv_add_f32 v50, -1.0, v52")
    a("v_mul_f32 v54, v50, v44\nv_fma_f32 v54, v53, v45, v54\nv_mul_f32 v55, v53, v44\nv_fma_f32 v55, -v50, v45, v55")
    a("v_add_f32 v49, v49, v49\nv_mul_f32 v54, v54, v49\nv_mul_f32 v55, v55, v49")
    a("v_lshlrev_b32 v2, 4, v2\nv_cmp_gt_u32 vcc, 1280, v2\ns_and_saveexec_b64 s[78:79], vcc")
    a(f"ds_write_b128 v2, v[52:55] offset:{PARAM}")
    a("s_mov_b64 exec, s[78:79]")
    bar(V, 3, " lgkmcnt(0)")
    a("v_mov_b32 v4, 0\nv_mov_b32 v5, 0\ns_mov_b32 s4, 0xffff0000")
    for i in range(4):
        a(f"v_lshlrev_b32 v6, 16, v{40+i}\nv_and_b32 v7, s4, v{40+i}")
        for r in range(2):
            x = 32 + 4*r + i
            a(f"v_lshlrev_b32 v8, 16, v{x}\nv_and_b32 v9, s4, v{x}\nv_mul_f32 v8, v8, v6\nv_mul_f32 v9, v9, v7")
            a(f"v_cvt_pk_bf16_f32 v8, v8, v9\nv_lshlrev_b32 v9, 16, v8\nv_and_b32 v8, s4, v8\nv_add_f32 v{4+r}, v{4+r}, v9\nv_add_f32 v{4+r}, v{4+r}, v8")
        if i == 1: bar(V, 4); a("s_mov_b32 s4, 0xffff0000")
    bar(V, 5)
    for sh in [1, 2, 4, 8]:
        a(f"s_nop 1\nv_add_f32_dpp v4, v4, v4 row_shr:{sh} row_mask:0xf bank_mask:0xf bound_ctrl:0\nv_add_f32_dpp v5, v5, v5 row_shr:{sh} row_mask:0xf bank_mask:0xf bound_ctrl:0")
    a("s_nop 1")
    for r in range(2):
        a(f"v_readlane_b32 s{76+20*r}, v{4+r}, 15\nv_readlane_b32 s{77+20*r}, v{4+r}, 31\nv_readlane_b32 s{78+20*r}, v{4+r}, 47")
    a("s_nop 1")
    for j in range(3):
        a(f"v_add_f32 v4, s{76+j}, v4\nv_add_f32 v5, s{96+j}, v5")
    a("s_nop 0\nv_readlane_b32 s4, v4, 63\nv_readlane_b32 s5, v5, 63\nv_cmp_eq_u32 vcc, 1, v0\ns_nop 0\nv_mov_b32 v4, s4\nv_mov_b32 v5, s5\nv_cndmask_b32 v4, v4, v5, vcc")
    bf16_round(a, 4, 4, 5)
    a(f"v_mul_f32 v4, {NLOG2E}, v4\nv_exp_f32 v4, v4\ns_nop 0\nv_add_f32 v4, 1.0, v4\nv_rcp_f32 v4, v4\ns_nop 0")
    bf16_round(a, 4, 4, 5)
    a(f"s_lshl_b32 s4, s15, 2\ns_add_u32 s4, s4, {G_OFF}\nv_lshlrev_b32 v5, 2, v0\ns_mov_b64 exec, 3")
    V.op("buffer_store_dword v4, v5, s[64:67], s4 offen sc1", 'G'); a("s_mov_b64 exec, -1")
    bar(V, 6); bar(V, 7)
    V.wait('G')
    def b_setup():
        p2_ids(a)
        srd(a, 52, sWd, 1835008); srd(a, 56, sCre, 524288); srd(a, 60, sCim, 524288)
        a("s_lshl_b32 s4, s3, 14\ns_lshl_b32 s5, s85, 7\ns_add_u32 s89, s4, s5\ns_lshl_b32 s5, s85, 16\ns_add_u32 s90, s4, s5\ns_lshl_b32 s91, s3, 11")
    def loadB(V, p):
        s = ORD[p]
        for i in range(1 if OPT['halfB'] else 2):
            a(f"s_add_u32 m0, s91, {page(Bp[p]) + i*1024}")
            if s < 28:
                a(f"s_add_u32 s4, s89, {s*65536 + i*8192}")
                V.op(f"buffer_load_dwordx4 v15, s[52:55], s4 offen lds", ('B', p))
            else:
                t = s - 28
                a(f"s_add_u32 s4, s90, {(t >> 1)*128 + i*8192}")
                V.op(f"buffer_load_dwordx4 v{28+i}, s[{56 + 4*(t & 1)}:{59 + 4*(t & 1)}], s4 offen lds", ('B', p))
    def poll(which, pre_issued=False):
        lp = a.lab(); ld = a.lab(); lc = a.lab()
        a("s_mov_b32 s88, 0x8000")
        if pre_issued: a(f"s_branch {lc}")
        a.label(lp)
        a(f"buffer_load_dword v8, v9, s[64:67], s86 offen offset:{which*256} sc1\ns_waitcnt vmcnt(0)")
        a.label(lc)
        a(f"v_cmp_ne_u32 vcc, s72, v8\ns_cmp_eq_u64 vcc, 0\ns_cbranch_scc1 {ld}")
        a(f"s_sub_u32 s88, s88, 1\ns_cmp_lg_u32 s88, 0\ns_cbranch_scc1 {lp}")
        a.label(ld)
    KH, KB = OPT['KH'], OPT['KB']
    def pollissue(V, which): V.op(f"buffer_load_dword v8, v9, s[64:67], s86 offen offset:{which*256} sc1", 'P')
    def tail(V, role):
        b_setup()
        if role == 2:
            a(f"s_lshr_b32 s4, s84, 1\ns_lshl_b32 s4, s4, 10\ns_add_u32 s86, s4, {FLG_OFF}\nv_lshlrev_b32 v9, 2, v0")
        for p in Biss['b12']: loadB(V, p)
        bar(V, 13, " lgkmcnt(0)")
        for p in Biss['b13']: loadB(V, p)
        bar(V, 14)
        if role == 2: pollissue(V, 0)
        for p in Biss['b14']: loadB(V, p)
        for k in range(22):
            V.wait(('B', 2*k), ('B', 2*k+1))
            if role == 2:
                for (kk_, wh) in ((-1, 0), (KH, 1), (KB, 2)):
                    if k == kk_ + 1:
                        V.wait('P'); poll(wh, pre_issued=True)
                        if wh == 0: stamp(a, 7)
            if OPT['fine']: stamp(a, 32+k)
            a("s_barrier")
            if role == 2 and k in (KH, KB): pollissue(V, 1 if k == KH else 2)
            if k == 0:
                for p in Biss['Z']: loadB(V, p)
            for p in Biss[k]: loadB(V, p)
        a("s_barrier")
        stamp_flush(a)
        a("s_endpgm")
    L2 = a.lab(); L3 = a.lab(); LM = a.lab()
    a(f"s_cmp_eq_u32 s3, 2\ns_cbranch_scc1 {L2}\ns_and_b32 s4, s3, s12\ns_cmp_eq_u32 s3, 3\ns_cselect_b32 s4, s4, 0\ns_cmp_eq_u32 s4, 1\ns_cbranch_scc1 {L3}")
    V0 = V
    V = V0.copy()
    for s in range(8, 13): bar(V, s)
    tail(V, 0)
    a.label(L2)
    V = V0.copy(); combine(a, V, bar, 8, 16, 16, 3, AGE_RE, AGE_IM, 10, PARAM); tail(V, 2)
    a.label(L3)
    V = V0.copy(); combine(a, V, bar, 9, 8, 64, 4, AGM_RE, AGM_IM, 11, PARAM + 256); tail(V, 3)

def combine(a, V, bar, sb, nseg, nch, lg, are, aim, sch, pofs):
    ex = f"s_mov_b64 exec, {(1 << nch) - 1}" if nch < 64 else "s_nop 0"
    a(f"s_add_u32 s96, s48, {AGG_OFF}\ns_addc_u32 s97, s49, 0\ns_mov_b32 s98, {AGG_SZ}\ns_mov_b32 s99, 0x20000")
    a(f"v_lshlrev_b32 v1, 4, v0\nds_read_b64 v[2:3], v1 offset:{pofs}\ns_waitcnt lgkmcnt(0)")
    for i in range(7):
        a("v_mul_f32 v8, v3, v3\nv_mul_f32 v9, v2, v3\nv_fma_f32 v2, v2, v2, -v8\nv_add_f32 v3, v9, v9")
        if i == lg - 1: a("v_mov_b32 v6, v2\nv_mov_b32 v7, v3")
    a(f"s_lshl_b32 s4, s{sch}, 4\ns_lshl_b32 s5, s6, 13\ns_add_u32 s4, s4, s5\nv_add_u32 v17, s4, v1")
    a(f"v_lshlrev_b32 v1, 2, v0\nv_add_u32 v1, {EXT}, v1\nv_mov_b32 v4, 0")
    bar(V, 8)
    stamp(a, 3)
    AR, AI = 32, 48
    a(ex)
    a(f"ds_read_b32 v5, v4 offset:{NONCE}")
    for sg in range(nseg):
        a(f"ds_read_b32 v{AR+sg}, v1 offset:{are - EXT + sg*nch*4}\nds_read_b32 v{AI+sg}, v1 offset:{aim - EXT + sg*nch*4}")
    def step(pr, pi, dr, di, mr, mi, ar, ai):
        a(f"v_fma_f32 v{dr}, v{pr}, v{mr}, v{ar}\nv_fma_f32 v{di}, v{pi}, v{mr}, v{ai}\nv_fma_f32 v{dr}, -v{pi}, v{mi}, v{dr}\nv_fma_f32 v{di}, v{pr}, v{mi}, v{di}")
    a("s_waitcnt lgkmcnt(0)\nv_mov_b32 v125, v5\nv_mov_b32 v127, v5\nv_readfirstlane_b32 s72, v5")
    cur = (AR, AI)
    for sg in range(1, nseg):
        dst = (124, 126) if (nseg - 1 - sg) % 2 == 0 else (20, 21)
        step(cur[0], cur[1], dst[0], dst[1], 6, 7, AR+sg, AI+sg); cur = dst
    V.op("buffer_store_dwordx4 v[124:127], v17, s[96:99], 0 offen sc1", 'Q')
    a("s_mov_b64 exec, -1")
    stamp(a, 4)
    for s in range(9, OPT['SP'] + 1): bar(V, s)
    E = 60
    def loads(first):
        for d in range(1, 16):
            a(f"v_subrev_u32 v{24+(d&3)}, {d*8192}, v17")
            ins = f"buffer_load_dwordx4 {vr(E+4*d,4)}, v{24+(d&3)}, s[96:99], 0 offen sc1"
            if first: V.op(ins, 'R')
            else: a(ins)
    a(ex)
    loads(True)
    a("s_mov_b64 exec, -1")
    for s in range(OPT['SP'] + 1, OPT['LS'] - 1): bar(V, s)
    a(ex)
    lp = a.lab(); ld = a.lab(); lc = a.lab()
    a("s_mov_b32 s83, 0x8000")
    V.wait('R')
    a(f"s_branch {lc}")
    a.label(lp)
    loads(False)
    a("s_waitcnt vmcnt(0)")
    a.label(lc)
    a("s_mov_b64 s[94:95], 0")
    for d in range(1, 16):
        a(f"s_cmp_ge_u32 s6, {d}\ns_cselect_b32 s4, s72, 0\nv_cmp_ne_u32 vcc, s4, v{E+4*d+1}\ns_or_b64 s[94:95], s[94:95], vcc\nv_cmp_ne_u32 vcc, s4, v{E+4*d+3}\ns_or_b64 s[94:95], s[94:95], vcc")
    a(f"s_cmp_eq_u64 s[94:95], 0\ns_cbranch_scc1 {ld}")
    a(f"s_sub_u32 s83, s83, 1\ns_cmp_lg_u32 s83, 0\ns_cbranch_scc1 {lp}")
    a.label(ld)
    stamp(a, 5)
    cur = (E+60, E+62)
    for d in range(14, 0, -1):
        dst = (20, 21) if d & 1 else (22, 23)
        step(cur[0], cur[1], dst[0], dst[1], 2, 3, E+4*d, E+4*d+2); cur = dst
    for sg in range(nseg):
        a(f"ds_write_b32 v1, v{cur[0]} offset:{are - EXT + sg*nch*4}\nds_write_b32 v1, v{cur[1]} offset:{aim - EXT + sg*nch*4}")
        if sg < nseg - 1:
            dst = (22, 23) if cur == (20, 21) else (20, 21)
            step(cur[0], cur[1], dst[0], dst[1], 6, 7, AR+sg, AI+sg); cur = dst
    a("s_mov_b64 exec, -1")
    stamp(a, 6)
    if OPT['LS'] == 13: bar(V, 12, " lgkmcnt(0)")

def kernel(a, name):
    a(f".p2align 8\n.globl {name}\n.type {name},@function")
    a.label(name)
    l_end = a.lab(); l_c = a.lab(); l_s = a.lab(); l_p2 = a.lab()
    a("s_getpc_b64 s[90:91]")
    a(f"s_cmp_ge_u32 s2, 256\ns_cbranch_scc1 {l_end}")
    a("s_load_dwordx16 s[16:31], s[0:1], 0\ns_load_dwordx16 s[32:47], s[0:1], 64\ns_load_dwordx2 s[48:49], s[0:1], 128")
    a("v_lshrrev_b32 v1, 6, v0\nv_and_b32 v0, 63, v0\nv_readfirstlane_b32 s3, v1")
    a("s_and_b32 s4, s2, 7\ns_lshr_b32 s5, s2, 3")
    a("s_and_b32 s6, s4, 1\ns_lshr_b32 s7, s5, 2\ns_lshl_b32 s7, s7, 1\ns_add_u32 s6, s6, s7")
    a("s_and_b32 s7, s5, 3\ns_lshr_b32 s8, s4, 1")
    a("s_mul_i32 s9, s8, 448\ns_lshl_b32 s4, s7, 7\ns_add_u32 s9, s9, s4")
    a("s_lshl_b32 s11, s8, 7\ns_lshl_b32 s4, s7, 4\ns_add_u32 s10, s11, s4\ns_add_u32 s11, s11, 64")
    a("s_cmp_eq_u32 s7, 3\ns_cselect_b32 s12, 1, 0\ns_lshl_b32 s13, s8, 2\ns_add_u32 s13, s13, s7")
    if STAMP: a("s_mov_b32 s93, s3")
    a(f"s_cmp_lt_u32 s3, 4\ns_cbranch_scc1 {l_c}")
    a("s_sub_u32 s3, s3, 4")
    loader_pre(a)
    if STAMP: a("s_waitcnt lgkmcnt(0)")
    stamp(a, 0)
    loader(a)
    a.label(l_c)
    a("s_waitcnt lgkmcnt(0)")
    stamp(a, 0)
    p1_consumer_prologue(a, "L_code_end")
    a(f"s_cmp_eq_u32 s12, 1\ns_cbranch_scc1 {l_s}")
    global passB_fillers
    orig = passB_fillers
    def withnonce(M):
        F = orig(M); F[7] = [nonce_finish(a)] + F[7]; return F
    passB_fillers = withnonce
    p1_consumer(a, False)
    a(f"s_branch {l_p2}")
    a.label(l_s)
    p1_consumer(a, True)
    a.label(l_p2)
    p2_consumer(a)
    a.label(l_end)
    a("s_endpgm")
    a.label("L_code_end")
    a("s_endpgm")

def desc(name, nv=256):
    return f""".p2align 6
.amdhsa_kernel {name}
  .amdhsa_next_free_vgpr {nv}
  .amdhsa_next_free_sgpr 102
  .amdhsa_accum_offset {nv}
  .amdhsa_group_segment_fixed_size 0
  .amdhsa_kernarg_size 136
  .amdhsa_user_sgpr_count 2
  .amdhsa_user_sgpr_kernarg_segment_ptr 1
  .amdhsa_system_sgpr_workgroup_id_x 1
.end_amdhsa_kernel
"""

def main(out):
    a = Asm()
    n1 = NAME + "_kernel"
    kernel(a, n1)
    txt = HDR
    txt += f"; @launch grid=(256,1,1) block=(512,1,1) lds={LDS1}\n"
    txt += '.amdgcn_target "amdgcn-amd-amdhsa--gfx950"\n.text\n' + a.text()
    txt += '.section .rodata,"a"\n' + desc(n1)
    open(out, "w").write(txt)

if __name__ == "__main__":
    args = sys.argv[1:]
    if "-tot" in args: STAMP = 2; args.remove("-tot")
    if "-stamp" in args: STAMP = True; args.remove("-stamp")
    for x in list(args):
        if "=" in x:
            k, v = x.split("="); assert k in OPT, k; OPT[k] = int(v); args.remove(x)
    if "-sched" in args:
        print(p2_schedule()); print(ORD)
        for M in (False, True): print({k: len(v) for k, v in passB_fillers(M).items()})
        sys.exit()
    main(args[0] if args else f"cdna_kernels/{NAME}.s")
```

```python
import sys

NAME = "gated_mix__ssm_conv_s5__glu_gated_glu__prompt"
HDR = open("cdna_kernels/%s.s.ref" % NAME).read().split("; Override launch")[0]

G_OFF = 0xB00000
AGG_OFF = 0xB10000
AGG_SZ = 16 * 512 * 16
FLG_OFF = 0xB30000
WS_USED = 0xB40000
LOG2E = 0x3fb8aa3b
NLOG2E = 0xbfb8aa3b
INV2PI = 0x3e22f983
OPT = dict(sc1_a=1, touch1=1, touch2=1, cpf=1, per2=2, KH=3, KB=8, prio=3, fine=0, t1s=1, SP=11, capM=72, LS=14, dly=0, ts=2566, halfB=0, tw=2, gs=0, per1=2, be=0, l2t=0, BLA=7, noF=0, la=0)

class Asm:
    def __init__(s): s.l = []; s.uid = 0
    def __call__(s, t):
        for x in t.strip("\n").split("\n"): s.l.append("    " + x.strip())
    def label(s, n): s.l.append(n + ":")
    def lab(s, p="L"):
        s.uid += 1; return f"{p}_{s.uid}"
    def text(s): return "\n".join(s.l) + "\n"

def vr(b, n): return f"v[{b}:{b+n-1}]" if n > 1 else f"v{b}"
def R(b, n): return list(range(b, b+n))
def srd(a, d, lo, size):
    a(f"s_mov_b32 s{d}, s{lo}\ns_mov_b32 s{d+1}, s{lo+1}\ns_mov_b32 s{d+2}, {size}\ns_mov_b32 s{d+3}, 0x20000")

sX, sLre, sLim, sBre, sBim, sCre, sCim, sLdt = 16, 18, 20, 22, 24, 26, 28, 30
sDsk, sBx, sWg, sWu, sWd, sGw, sOut, sDbg, sWs = 32, 34, 36, 38, 40, 42, 44, 46, 48

STAMP = False
TS_OFF = 0xB40000
def stamp(a, idx):
    if not STAMP or (STAMP == 2 and idx not in (0, 13)): return
    a(f"s_memrealtime s[100:101]\ns_waitcnt lgkmcnt(0)\nv_writelane_b32 v31, s100, {idx}")
def cstamp(a, idx):
    if not STAMP or STAMP == 2: return
    a(f"s_memtime s[100:101]\ns_waitcnt lgkmcnt(0)\nv_writelane_b32 v31, s100, {idx}")
def stamp_flush(a):
    if not STAMP: return
    srd(a, 96, sWs, 0xC00000)
    a(f"s_lshl_b32 s94, s2, 3\ns_add_u32 s94, s94, s93\ns_lshl_b32 s94, s94, 8\ns_add_u32 s94, s94, {TS_OFF}")
    a("s_mov_b64 exec, -1\nv_lshlrev_b32 v30, 2, v0\nbuffer_store_dword v31, v30, s[96:99], s94 offen")

def bf16_round(a, d, s, t):
    a(f"v_cvt_pk_bf16_f32 v{t}, v{s}, v{s}\nv_lshlrev_b32 v{d}, 16, v{t}")

class Sched:
    def __init__(s, a): s.a = a; s.n = 0; s.prod = {}; s.done = -1
    def read(s, ins, regs):
        s.a(ins)
        for r in regs: s.prod[r] = s.n
        s.n += 1
    def need(s, regs):
        k = max([s.prod.get(r, -1) for r in regs] + [-1])
        if k > s.done:
            s.a(f"s_waitcnt lgkmcnt({min(s.n - 1 - k, 15)})")
            s.done = k if s.n - 1 - k <= 15 else s.n - 16
    def all(s):
        if s.done < s.n - 1: s.a("s_waitcnt lgkmcnt(0)")
        s.done = s.n - 1
    def item(s, it):
        if isinstance(it, str): s.a(it)
        elif it[0] == 'lds': s.read(it[1], it[2])
        else: s.need(it[1]); s.a(it[2])

class VM:
    def __init__(s, a): s.a = a; s.ops = []; s.done = -1
    def op(s, ins, tag):
        if len(s.ops) - 1 - s.done >= 62:
            s.a("s_waitcnt vmcnt(56)"); s.done = len(s.ops) - 1 - 56
        s.a(ins); s.ops.append(tag)
    def wait(s, *tags, extra=""):
        k = max([i for i, t in enumerate(s.ops) if t in tags] + [-1])
        if k > s.done:
            n = min(len(s.ops) - 1 - k, 63)
            s.a(f"s_waitcnt vmcnt({n}){extra}")
            s.done = len(s.ops) - 1 - n
        elif extra: s.a("s_waitcnt" + extra)
    def copy(s):
        v = VM(s.a); v.ops = list(s.ops); v.done = s.done; return v

PARAM = 0; NONCE = 2048; XR = 4096; BLK = XR + 98304; EXT = XR + 147456
AGE_RE = EXT; AGE_IM = EXT + 1024; AGM_RE = EXT + 2048; AGM_IM = EXT + 8192; TSE = EXT + 4096
LDS1 = 163840
def page(p): return XR + p*8192
SPAGES = [8, 9]
KS = list(range(8)) + [5, 6, 7, 0, 1, 2, 3, 4]
XH = [0,0,0,1,1,1,1,1, 1,1,1,0,0,0,1,1]
XI = [0,1,2,0,1,2,0,1, 2,0,1,0,1,2,2,0]
XL = [1]*8 + [0,0,0,0,0,0,1,1]
ORD = [7*g + 2*j for g in range(4) for j in range(3)] + list(range(28, 44))
ORD += [s for s in range(28) if s not in ORD]
assert sorted(ORD) == list(range(44))
NA_, NH_ = 12, 28

def p2_schedule():
    Bp = {}; Biss = {}
    nb = 0
    def take(key, pages):
        nonlocal nb
        Biss.setdefault(key, [])
        for p in pages:
            if nb <= 43: Bp[nb] = p; Biss[key].append(nb); nb += 1
    take('b12', [0, 1, 2, 3]); take('b13', [4, 5, 13, 16]); take('b14', [10, 11, 14, 17]); take('Z', [6, 7, 12, 15])
    for k in range(22):
        fr = []
        if k == 1: fr += SPAGES
        if k >= 2: fr += [Bp[2*k-4], Bp[2*k-3]]
        take(k, fr)
    assert nb == 44
    return Bp, Biss

vXn = 16; vWa = 20; vXe = 24; vEa = 28; vWt = 30; vXp = 12
ACA = 32; ACB = 96; ACE = 160; FR = [176, 192]; FE = 208
def acc(base, w, m): return base + (w * 2 + m) * 16
def ace(comp, m): return ACE + (comp * 2 + m) * 4

def reads_main(kind, step, kk, st):
    b = FR[st]; slot = step % 3; xi = XI[step]
    xs, vx = (4096, vXn) if kind == 'G' else (1024, vXp)
    def xr(m): return [(f"ds_read_b128 {vr(b+4*m,4)}, v{vx+kk} offset:{XR + xi*16384 + m*xs}", R(b+4*m, 4))]
    def wr(w):
        d = b + 8 + 4*w
        if kind == 'G':
            off = w*24576 + slot*8192 + kk*2048
            return [(f"ds_read_b64_tr_b16 {vr(d,2)}, v{vWt} offset:{off}", R(d, 2)),
                    (f"ds_read_b64_tr_b16 {vr(d+2,2)}, v{vWt} offset:{off+512}", R(d+2, 2))]
        return [(f"ds_read_b128 {vr(d,4)}, v{vWa+kk} offset:{w*24576 + slot*8192}", R(d, 4))]
    return xr(0) + wr(0) + xr(1) + wr(1)

def reads_ext(step, k32):
    r = []; slot = step % 3; xi = XI[step]
    for m in range(2): r.append((f"ds_read_b128 {vr(FE+4*m,4)}, v{vXe+2*m+k32} offset:{XR + xi*16384}", R(FE+4*m, 4)))
    for cp in range(2): r.append((f"ds_read_b128 {vr(FE+8+4*cp,4)}, v{vEa+k32} offset:{slot*4096+cp*2048}", R(FE+8+4*cp, 4)))
    return r

def mfma_main(kind, base, st, first):
    r = []; b = FR[st]
    for w in range(2):
        for m in range(2):
            d = vr(acc(base, w, m), 16); X = vr(b+4*m, 4); W = vr(b+8+4*w, 4)
            c = "0" if first else d
            ins = f"v_mfma_f32_32x32x16_bf16 {d}, {W}, {X}, {c}" if kind == 'G' else f"v_mfma_f32_32x32x16_bf16 {d}, {X}, {W}, {c}"
            r.append((ins, R(b+4*m, 4) + R(b+8+4*w, 4)))
    return r

def mfma_ext(first):
    r = []
    for cp in range(2):
        for m in range(2):
            d = vr(ace(cp, m), 4)
            r.append((f"v_mfma_f32_16x16x32_bf16 {d}, {vr(FE+4*m,4)}, {vr(FE+8+4*cp,4)}, {'0' if first else d}", R(FE+4*m, 4) + R(FE+8+4*cp, 4)))
    return r

def cmul_pk(Rr, I, C, t1, t2):
    return [f"v_pk_mul_f32 {vr(t1,2)}, {vr(Rr,2)}, {vr(C,2)} op_sel:[0,0] op_sel_hi:[1,0]",
            f"v_pk_mul_f32 {vr(t2,2)}, {vr(Rr,2)}, {vr(C,2)} op_sel:[0,1] op_sel_hi:[1,1] neg_lo:[0,1] neg_hi:[0,1]",
            f"v_pk_fma_f32 {vr(Rr,2)}, {vr(I,2)}, {vr(C,2)}, {vr(t1,2)} op_sel:[0,1,0] op_sel_hi:[1,1,1] neg_lo:[0,1,0] neg_hi:[0,1,0]",
            f"v_pk_fma_f32 {vr(I,2)}, {vr(I,2)}, {vr(C,2)}, {vr(t2,2)} op_sel:[0,0,0] op_sel_hi:[1,0,1] neg_lo:[0,1,0] neg_hi:[0,1,0]"]
def cmul_s(Rr, I, cr, ci, t1, t2):
    return [f"v_mul_f32 v{t1}, v{Rr}, v{cr}", f"v_mul_f32 v{t2}, v{Rr}, v{ci}",
            f"v_fma_f32 v{Rr}, -v{I}, v{ci}, v{t1}", f"v_fma_f32 v{I}, -v{I}, v{cr}, -v{t2}"]
def flag_item(which):
    return f"v_mov_b32 v1, s15\nv_mov_b32 v2, 0\ns_mov_b64 exec, 1\nbuffer_store_dword v1, v2, s[64:67], s81 offen offset:{which*256} sc1\ns_mov_b64 exec, -1"
def merge(l1, l2):
    o = []; i = j = 0
    while i < len(l1) or j < len(l2):
        if j >= len(l2) or (i < len(l1) and i * len(l2) <= j * len(l1)): o.append(l1[i]); i += 1
        else: o.append(l2[j]); j += 1
    return o

def cmul2(Rr, I, C, t):
    o = []
    for par in range(2): o += cmul_s(Rr+par, I+par, C, C+1, t+2*par, t+2*par+1)
    return [o[0], o[4], o[1], o[5], o[2], o[6], o[3], o[7]]
def step2(dr, di, pr, pi, L, Rr, I, conj):
    o = []
    n1, n2 = ("", "-") if conj else ("-", "")
    for par in range(2): o += [f"v_fma_f32 v{dr+par}, v{pr+par}, v{L}, v{Rr+par}", f"v_fma_f32 v{di+par}, v{pi+par}, v{L}, v{I+par}"]
    for par in range(2): o += [f"v_fma_f32 v{dr+par}, {n1}v{pi+par}, v{L+1}, v{dr+par}", f"v_fma_f32 v{di+par}, {n2}v{pr+par}, v{L+1}, v{di+par}"]
    return o
def stores_last(l):
    st = [x for x in l if 'buffer_store' in (x if isinstance(x, str) else x[-1] if x[0] == 'need' else '')]
    return [x for x in l if x not in st] + st
def glu_epi(base, sbase, E0, P0, morder=(0, 1)):
    o = []; k = 0
    for m in morder:
        for half in range(2):
            E = E0 + (k & 1) * 8; P = P0 + (k & 1) * 4; k += 1
            gb, ub = acc(base, 0, m) + 8*half, acc(base, 1, m) + 8*half
            t = []
            for i in range(8): t.append(f"v_mul_f32 v{E+i}, s50, v{gb+i}")
            for i in range(8): t.append(f"v_exp_f32 v{E+i}, v{E+i}")
            for i in range(8): t.append(f"v_add_f32 v{E+i}, 1.0, v{E+i}")
            for i in range(8): t.append(f"v_rcp_f32 v{E+i}, v{E+i}")
            for i in range(8): t.append(f"v_mul_f32 v{E+i}, v{E+i}, v{ub+i}")
            for i in range(0, 8, 2): t.append(f"v_cvt_pk_bf16_f32 v{P+i//2}, v{E+i}, v{E+i+1}")
            t.append(f"s_add_u32 s5, s{sbase}, {(m*176 + half)*1024}\nbuffer_store_dwordx4 {vr(P,4)}, v6, s[64:67], s5 offen sc1")
            o.append(t)
    return o

PE = 224; PM = 228
def passB_fillers(M):
    F = {s: [] for s in range(8, 17)}
    lr, li = PE, PE+1
    LS = OPT['LS']
    f = F[7] = []
    f += [f"v_and_b32 v1, 15, v0", "v_lshlrev_b32 v1, 4, v1", ('lds', f"ds_read_b128 {vr(PE,4)}, v1 offset:{PARAM}", R(PE, 4))]
    if M: f += ["v_and_b32 v2, 31, v0", "v_lshlrev_b32 v2, 4, v2", "s_and_b32 s4, s3, 1\ns_lshl_b32 s4, s4, 9\nv_add_u32 v2, s4, v2",
                ('lds', f"ds_read_b128 {vr(PM,4)}, v2 offset:{PARAM + 256}", R(PM, 4))]
    f += [f"s_lshl_b32 s4, s3, 8\ns_add_u32 s4, s4, {EXT}\nv_lshlrev_b32 v5, 2, v0", "v_add_u32 v5, s4, v5"]
    if M: f += ["v_lshrrev_b32 v3, 5, v0", "v_lshlrev_b32 v3, 9, v3", "v_lshrrev_b32 v4, 2, v2", "v_add_u32 v3, v3, v4",
                f"s_lshr_b32 s4, s3, 1\ns_lshl_b32 s4, s4, 10\ns_add_u32 s4, s4, {EXT}\nv_add_u32 v3, s4, v3"]
    l1 = []; l2 = []
    if M:
        S = [216, 218]; T = [220, 222]; L = vr(PM, 2)
        for pos in range(1, 16):
            m, rr = pos >> 3, (pos & 7) * 2
            Rr = vr(acc(ACA, 0, m) + rr, 2); I = vr(acc(ACA, 1, m) + rr, 2)
            if pos == 1: pr, pi = vr(acc(ACA, 0, 0), 2), vr(acc(ACA, 1, 0), 2)
            else:
                src = S if (pos & 1) else T
                pr, pi = vr(src[0], 2), vr(src[1], 2)
            dst = T if (pos & 1) else S
            dr, di = vr(dst[0], 2), vr(dst[1], 2)
            l1.append(f"v_pk_fma_f32 {dr}, {pr}, {L}, {Rr} op_sel:[0,0,0] op_sel_hi:[1,0,1]")
            l1.append(f"v_pk_fma_f32 {di}, {pi}, {L}, {I} op_sel:[0,0,0] op_sel_hi:[1,0,1]")
            l1.append(f"v_pk_fma_f32 {dr}, {pi}, {L}, {dr} op_sel:[0,1,0] op_sel_hi:[1,1,1] neg_lo:[0,1,0] neg_hi:[0,1,0]")
            l1.append(f"v_pk_fma_f32 {di}, {pr}, {L}, {di} op_sel:[0,1,0] op_sel_hi:[1,1,1]")
        for par in range(2):
            l1.append(('lds', f"ds_write_b32 v3, v{T[0]+par} offset:{AGM_RE - EXT + par*256}", []))
            l1.append(('lds', f"ds_write_b32 v3, v{T[1]+par} offset:{AGM_IM - EXT + par*256}", []))
    S = [208, 209]; T = [210, 211]
    for pos in range(1, 8):
        Rr = ace(0, pos >> 2) + (pos & 3); I = ace(1, pos >> 2) + (pos & 3)
        if pos == 1: pr, pi = ace(0, 0), ace(1, 0)
        else: pr, pi = (S if (pos & 1) else T)
        dr, di = (T if (pos & 1) else S)
        l2 += [f"v_fma_f32 v{dr}, v{pr}, v{lr}, v{Rr}", f"v_fma_f32 v{di}, v{pi}, v{lr}, v{I}",
               f"v_fma_f32 v{dr}, -v{pi}, v{li}, v{dr}", f"v_fma_f32 v{di}, v{pr}, v{li}, v{di}"]
    l2 += [('lds', f"ds_write_b32 v5, v{T[0]} offset:{AGE_RE - EXT}", []), ('lds', f"ds_write_b32 v5, v{T[1]} offset:{AGE_IM - EXT}", [])]
    if M: F['ser'] = ["s_nop 15", "s_nop 7"] + merge(l1, l2) + ["s_nop 3"]
    else: F['ser'] = []; F[8] += l2
    pre_ = ["s_waitcnt vmcnt(0)", "v_mov_b32 v1, 0", ('lds', f"ds_read_b32 v1, v1 offset:{NONCE}", [1])]
    rest = [('need', [1], "v_readfirstlane_b32 s15, v1")]
    for m in range(2):
        for i in range(4): rest += cmul_s(ace(0, m)+i, ace(1, m)+i, PE+2, PE+3, 212 + (i & 1)*2, 213 + (i & 1)*2)
    rest += [f"s_lshl_b32 s4, s3, 10\ns_add_u32 s4, s4, {TSE}\nv_and_b32 v7, 15, v0", "v_lshlrev_b32 v7, 6, v7", "v_lshrrev_b32 v8, 4, v0", "v_lshl_add_u32 v7, v8, 4, v7", "v_add_u32 v7, s4, v7",
            "v_lshrrev_b32 v9, 5, v0", "v_lshlrev_b32 v9, 3, v9", "v_bfe_u32 v10, v0, 2, 2", "v_add_u32 v9, v9, v10",
            "v_bfe_u32 v10, v0, 4, 1", "v_lshlrev_b32 v10, 5, v10", "v_and_b32 v11, 3, v0", "v_lshl_add_u32 v10, v11, 3, v10",
            "v_lshl_add_u32 v8, v9, 6, v10", "v_add_u32 v8, s4, v8"]
    if M:
        rest += [f"s_mov_b32 s4, {page(SPAGES[0])}\ns_cmp_ge_u32 s3, 2\ns_cselect_b32 s4, {page(SPAGES[1])}, s4\ns_and_b32 s5, s3, 1\ns_lshl_b32 s5, s5, 12\ns_add_u32 s4, s4, s5\nv_and_b32 v11, 1, v0",
                "v_bfe_u32 v4, v0, 2, 1", "v_lshl_or_b32 v11, v4, 1, v11", "v_bfe_u32 v4, v0, 1, 1", "v_lshl_or_b32 v11, v4, 2, v11",
                "v_lshrrev_b32 v4, 5, v0", "v_lshlrev_b32 v4, 2, v4", "v_xor_b32 v11, v11, v4", "v_lshlrev_b32 v11, 4, v11",
                "v_and_b32 v4, 31, v0", "v_lshl_add_u32 v12, v4, 7, v11", "v_add_u32 v12, s4, v12"]
        rest += [f"v_xor_b32 v{12+i}, {i*16}, v12" for i in range(1, 4)]
        rest += ["v_bfe_u32 v11, v0, 2, 1", "v_bfe_u32 v4, v0, 3, 1", "v_lshl_or_b32 v11, v4, 2, v11", "v_lshlrev_b32 v11, 4, v11", "v_xor_b32 v11, v11, v10",
                "v_lshl_add_u32 v20, v9, 7, v11", "v_add_u32 v20, s4, v20", "v_xor_b32 v21, 32, v20", "v_add_u32 v21, 512, v21",
                "v_xor_b32 v22, 64, v20", "v_xor_b32 v23, 64, v21"]
        mid = list(pre_)
        for m in range(2):
            for rr in range(0, 16, 2):
                mid += cmul2(acc(ACA, 0, m)+rr, acc(ACA, 1, m)+rr, PM+2, 232 + ((rr >> 1) & 3) * 4)
        mid = mid[:3] + rest[:1] + ['s_nop 0', flag_item(0)] + mid[3:] + rest[1:] if OPT['gs'] == 2 else mid + rest + [flag_item(0)]
        st = list(range(8, LS))
        n = (len(mid) + len(st) - 1) // len(st)
        for i, s in enumerate(st): F[s] += mid[i*n:(i+1)*n]
    else:
        g = glu_epi(ACA, 14, 232, 248)
        if OPT['gs'] == 2:
            F[8] += ["s_waitcnt vmcnt(0)"] + g[0][:30]; F[9] += pre_[1:] + g[0][30:] + g[1] + g[2][:10]; F[10] += g[2][10:] + g[3]
            F[9] = stores_last(F[9])
            F[11] += rest[:1] + ["s_waitcnt vmcnt(0)\n" + flag_item(0)] + rest[1:25]; F[12] += rest[25:]
        elif OPT['gs'] == 0:
            F[9] += pre_ + g[0] + g[1][:20]; F[10] += g[1][20:] + g[2][:40]
            F[11] += g[2][40:] + g[3]
            F[9] = stores_last(F[9]); F[10] = stores_last(F[10])
            F[12] += rest + ["s_waitcnt vmcnt(0)\n" + flag_item(0)]
        else:
            F[9] += pre_ + g[0]; F[10] += g[1]; F[11] += g[2]; F[12] += rest; GL = g[3]
    IE = 208; IM = [216, 218]
    late = [('lds', f"ds_read_b32 v{IE}, v5 offset:{AGE_RE - EXT}", [IE]), ('lds', f"ds_read_b32 v{IE+1}, v5 offset:{AGE_IM - EXT}", [IE+1])]
    if M:
        for par in range(2):
            late += [('lds', f"ds_read_b32 v{IM[0]+par}, v3 offset:{AGM_RE - EXT + par*256}", [IM[0]+par]), ('lds', f"ds_read_b32 v{IM[1]+par}, v3 offset:{AGM_IM - EXT + par*256}", [IM[1]+par])]
    c = cmul_s(IE, IE+1, PE+2, PE+3, 212, 213); c[0] = ('need', [IE, IE+1], c[0]); late += c
    if M:
        c = cmul2(IM[0], IM[1], PM+2, 220); c[0] = ('need', R(216, 4), c[0]); late += c
    l1 = []; l2 = []
    for pos in range(8):
        Rr = ace(0, pos >> 2) + (pos & 3); I = ace(1, pos >> 2) + (pos & 3)
        if pos == 0: pr, pi = IE, IE+1
        else: pr, pi = ace(0, (pos-1) >> 2) + ((pos-1) & 3), ace(1, (pos-1) >> 2) + ((pos-1) & 3)
        l2 += [f"v_fma_f32 v{Rr}, v{pr}, v{lr}, v{Rr}", f"v_fma_f32 v{I}, v{pi}, v{lr}, v{I}",
               f"v_fma_f32 v{Rr}, v{pi}, v{li}, v{Rr}", f"v_fma_f32 v{I}, -v{pr}, v{li}, v{I}"]
    for cp in range(2):
        for d in range(4):
            b = ace(cp, d >> 1) + (d & 1)*2
            l2.append(f"v_cvt_pk_bf16_f32 v{232+4*cp+d}, v{b}, v{b+1}")
    for cp in range(2):
        l2 += [('lds', f"ds_write_b128 v7, {vr(232+4*cp,4)}", []), ('lds', f"ds_read_b64_tr_b16 {vr(240+4*cp,2)}, v8", R(240+4*cp, 2)),
               ('lds', f"ds_read_b64_tr_b16 {vr(242+4*cp,2)}, v8 offset:256", R(242+4*cp, 2))]
    l2 += ["s_nop 0"] * 6
    l2 += [('need', R(240, 4), f"buffer_store_dwordx4 {vr(240,4)}, v6, s[64:67], s82 offen sc1"), ('need', R(244, 4), f"buffer_store_dwordx4 {vr(244,4)}, v6, s[64:67], s83 offen sc1")]
    if M:
        for pos in range(16):
            m, rr = pos >> 3, (pos & 7) * 2
            if pos == 0: pr, pi = IM
            else:
                pm, prr = (pos-1) >> 3, ((pos-1) & 7) * 2
                pr, pi = acc(ACA, 0, pm)+prr, acc(ACA, 1, pm)+prr
            Rr, I = acc(ACA, 0, m) + rr, acc(ACA, 1, m) + rr
            l1 += step2(Rr, I, pr, pi, PM, Rr, I, True)
    late += merge(l1, [x for x in l2 if x != "s_nop 0"] if M else l2)
    if M:
        for comp in range(2):
            PB = 216 if comp == 0 else 232
            k = 0
            for par in range(2):
                for m in range(2):
                    b = acc(ACA, comp, m); P = PB + 4*k
                    for aa in range(4): late.append(f"v_cvt_pk_bf16_f32 v{P+aa}, v{b+4*aa+par}, v{b+4*aa+2+par}")
                    late.append(('lds', f"ds_write_b128 v{12+2*par+m}, {vr(P,4)}", []))
                    k += 1
            k = 0
            for mt in range(2):
                for u in range(2):
                    d = acc(ACA, comp, 0) + 4*k
                    late.append(('lds', f"ds_read_b64_tr_b16 {vr(d,2)}, v{20+2*mt} offset:{u*2048}", R(d, 2)))
                    late.append(('lds', f"ds_read_b64_tr_b16 {vr(d+2,2)}, v{21+2*mt} offset:{u*2048}", R(d+2, 2)))
                    k += 1
        for comp in range(2):
            k = 0
            for mt in range(2):
                for u in range(2):
                    d = acc(ACA, comp, 0) + 4*k
                    late.append(('need', R(d, 4), f"s_add_u32 s5, s80, {(mt*176 + 4*comp + u)*1024}\nbuffer_store_dwordx4 {vr(d,4)}, v6, s[64:67], s5 offen sc1"))
                    k += 1
    st = list(range(LS, 16))
    if M:
        n = OPT['capM']
        for i, s in enumerate(st): F[s] += late[i*n:(i+1)*n]
        F[16] += late[len(st)*n:]
        F[LS] = F[LS];
        for s in st: F[s] = stores_last(F[s])
    elif OPT['gs'] in (0, 2):
        F[LS] += late
    else:
        F[13] += late; F[14] += GL; F[15] += ["s_waitcnt vmcnt(0)\n" + flag_item(0)]
    return F

def p1_consumer(a, M):
    S = Sched(a)
    kindA = 'S' if M else 'G'
    F = passB_fillers(M)
    stamp(a, 1)
    if OPT['dly']:
        l = a.lab()
        a(f"s_memrealtime s[96:97]\ns_waitcnt lgkmcnt(0)\ns_add_u32 s98, s96, {OPT['dly']}")
        a.label(l)
        a(f"s_memrealtime s[96:97]\ns_waitcnt lgkmcnt(0)\ns_sub_u32 s99, s98, s96\ns_cmp_gt_i32 s99, 0\ns_cbranch_scc1 {l}")
    a("s_barrier")
    stamp(a, 2); cstamp(a, 56)
    for x in reads_main(kindA, 0, 0, 0): S.read(*x)
    for s in range(16):
        slot = s % 3
        kind = kindA if s < 8 else 'G'
        base = ACA if s < 8 else ACB
        for kk in range(4):
            st = kk & 1
            rd = []
            if kk == 3:
                if s < 15:
                    S.all()
                    if OPT['fine']: stamp(a, 16 + s)
                    a("s_barrier")
                    if XH[s+1] != XH[s]:
                        op = "v_add_u32" if XH[s+1] else "v_subrev_u32"
                        for r_ in (list(range(12, 20)) + list(range(24, 28)) if s < 8 else range(16, 20)): a(f"{op} v{r_}, 49152, v{r_}")
                    rd = reads_main(kindA if s + 1 < 8 else 'G', s+1, 0, 0)
            else:
                rd = reads_main(kind, s, kk+1, st ^ 1)
            if s < 8 and kk in (0, 2): rd = rd + reads_ext(s, kk >> 1)
            mf = mfma_main(kind, base, st, (s in (0, 8)) and kk == 0)
            if s < 8 and kk in (1, 3): mf = mf[:2] + mfma_ext(s == 0 and kk == 1) + mf[2:]
            fs = s + 1 if kk == 3 else s
            fl = []
            if fs >= 7 and not (kk == 3 and s in (6, 7)) and not OPT['noF']:
                q = F[fs]
                nblk = {7: 3, 8: 3, 16: 1}.get(fs, 4)
                bi = kk if fs in (7, 8) else (0 if kk == 3 else kk + 1)
                if fs == 16: fl = q[:16]; F[16] = q[16:]
                else:
                    n = (len(q) + nblk - 1) // nblk
                    fl = q[bi*n:(bi+1)*n]
            rd = list(rd); fl = list(fl)
            nf = (len(fl) + len(mf) - 1) // len(mf) if fl else 0
            for i, (ins, regs) in enumerate(mf):
                S.need(regs); a(ins)
                for _ in range(OPT['per1']):
                    if rd: S.read(*rd.pop(0))
                if s == 8 and kk == 0 and i < 2: continue
                for _ in range(nf + (1 if s == 8 and kk == 0 else 0) * nf):
                    if fl: S.item(fl.pop(0))
            for x in rd: S.read(*x)
            for x in fl: S.item(x)
            if kk == 3 and s == OPT['tw'] and not OPT['ts']: touches(a, 2)
            if kk == 3 and OPT['ts']:
                for sub, st_ in enumerate([int(c) for c in str(OPT['ts'])]):
                    if s == st_: touch_sub(a, sub)
            if kk == 3 and s == 7:
                for x in F['ser']: S.item(x)
        if s == 3: stamp(a, 3); cstamp(a, 57)
        if s == 7: stamp(a, 4); cstamp(a, 58)
    stamp(a, 5); cstamp(a, 61)
    if not OPT['noF']:
        for x in F[16]: S.item(x)
    S.all()
    stamp(a, 8)

def touches(a, part):
    l1 = a.lab(); l2 = a.lab()
    lo, hi = {0: (1, 8), 1: (1, 4), 2: (4, 8)}[part]
    a(f"s_cmp_lg_u32 s3, 1\ns_cbranch_scc1 {l1}")
    srd(a, 52, sX, 2097152); srd(a, 56, sWg, 1835008); srd(a, 60, sWu, 1835008)
    a(f"v_and_b32 v1, 7, v0\nv_min_u32 v1, {hi-lo-1}, v1\nv_lshlrev_b32 v1, 7, v1\nv_lshrrev_b32 v2, 3, v0\nv_lshl_add_u32 v1, v2, 10, v1\ns_lshl_b32 s4, s2, 13\ns_add_u32 s4, s4, {lo*128}")
    a("buffer_load_dword v8, v1, s[52:55], s4 offen")
    r0 = 0 if part == 0 else 64*lo
    nl = (64*hi - r0) * 28 // 256
    a(f"v_min_u32 v1, {nl-1}, v0\nv_lshlrev_b32 v1, 7, v1\ns_mul_i32 s4, s2, {nl*128}\ns_add_u32 s4, s4, {r0*3584}")
    a("buffer_load_dword v8, v1, s[56:59], s4 offen\nbuffer_load_dword v8, v1, s[60:63], s4 offen")
    if part == 2:
        a(f"v_min_u32 v1, 6, v0\nv_lshlrev_b32 v1, 7, v1\ns_mul_i32 s4, s2, {7*128}")
        a("buffer_load_dword v8, v1, s[56:59], s4 offen\nbuffer_load_dword v8, v1, s[60:63], s4 offen")
    a.label(l1)
    a(f"s_cmp_lg_u32 s3, 2\ns_cbranch_scc1 {l2}")
    if part in (0, 1):
        srd(a, 52, sBre, 524288); srd(a, 56, sBim, 524288)
        a("v_and_b32 v1, 15, v0\nv_lshlrev_b32 v1, 7, v1\ns_lshl_b32 s4, s2, 11\nbuffer_load_dword v8, v1, s[52:55], s4 offen\nbuffer_load_dword v8, v1, s[56:59], s4 offen")
    if part in (0, 2):
        srd(a, 52, sWd, 1835008); srd(a, 56, sCre, 524288); srd(a, 60, sCim, 524288)
        a("v_and_b32 v1, 15, v0\nv_lshlrev_b32 v1, 7, v1\ns_lshl_b32 s4, s2, 11\nbuffer_load_dword v8, v1, s[56:59], s4 offen\nbuffer_load_dword v8, v1, s[60:63], s4 offen")
        a(f"v_min_u32 v1, 55, v0\nv_lshlrev_b32 v1, 7, v1\ns_mul_i32 s4, s2, {56*128}\nbuffer_load_dword v8, v1, s[52:55], s4 offen")
    a.label(l2)

def touch_sub(a, sub):
    l = a.lab()
    a(f"s_cmp_lg_u32 s3, {1 + (sub >> 1)}\ns_cbranch_scc1 {l}")
    if sub == 0:
        srd(a, 52, sX, 2097152); srd(a, 56, sWg, 1835008)
        a(f"v_and_b32 v1, 7, v0\nv_min_u32 v1, 3, v1\nv_lshlrev_b32 v1, 7, v1\nv_lshrrev_b32 v2, 3, v0\nv_lshl_add_u32 v1, v2, 10, v1\ns_lshl_b32 s4, s2, 13\ns_add_u32 s4, s4, 512")
        a("buffer_load_dword v8, v1, s[52:55], s4 offen")
        a(f"v_min_u32 v1, 27, v0\nv_lshlrev_b32 v1, 7, v1\ns_mul_i32 s4, s2, {28*128}\ns_add_u32 s4, s4, {256*3584}\nbuffer_load_dword v8, v1, s[56:59], s4 offen")
        srd(a, 60, sWu, 1835008)
        a("buffer_load_dword v8, v1, s[60:63], s4 offen")
    elif sub == 1:
        srd(a, 56, sWg, 1835008); srd(a, 60, sWu, 1835008)
        a(f"v_min_u32 v1, 6, v0\nv_lshlrev_b32 v1, 7, v1\ns_mul_i32 s4, s2, {7*128}")
        a("buffer_load_dword v8, v1, s[56:59], s4 offen\nbuffer_load_dword v8, v1, s[60:63], s4 offen")
    elif sub == 2:
        srd(a, 52, sWd, 1835008)
        a(f"v_min_u32 v1, 55, v0\nv_lshlrev_b32 v1, 7, v1\ns_mul_i32 s4, s2, {56*128}\nbuffer_load_dword v8, v1, s[52:55], s4 offen")
    else:
        srd(a, 56, sCre, 524288); srd(a, 60, sCim, 524288)
        a("v_and_b32 v1, 15, v0\nv_lshlrev_b32 v1, 7, v1\ns_lshl_b32 s4, s2, 11\nbuffer_load_dword v8, v1, s[56:59], s4 offen\nbuffer_load_dword v8, v1, s[60:63], s4 offen")
    a.label(l)

def p1_consumer_prologue(a, code_end):
    srd(a, 64, sWs, WS_USED)
    l_np = a.lab(); l_nn = a.lab(); l_n2 = a.lab(); l_n1 = a.lab()
    a(f"s_cmp_lg_u32 s3, {3 if OPT['cpf'] else 77}\ns_cbranch_scc1 {l_np}")
    a(f"s_mov_b32 s4, {code_end} - {NAME}_kernel - 8\nv_lshlrev_b32 v1, 7, v0")
    a("s_lshr_b32 s5, s2, 3\ns_and_b32 s5, s5, 7\ns_lshl_b32 s5, s5, 13\nv_add_u32 v2, s5, v1\nv_min_u32 v2, s4, v2\nglobal_load_dword v8, v2, s[90:91]")
    a.label(l_np)
    a(f"s_cmp_lg_u32 s3, 0\ns_cbranch_scc1 {l_nn}")
    srd(a, 60, sDbg, 256)
    a("s_memrealtime s[14:15]\nv_mov_b32 v9, 0\nv_mov_b32 v11, 0\ns_waitcnt lgkmcnt(0)\ns_or_b32 s14, s14, 1")
    a("v_mov_b32 v10, s14\ns_mov_b64 exec, 1")
    a("buffer_atomic_cmpswap v[10:11], v9, s[60:63], 0 offen sc0\ns_mov_b64 exec, -1")
    a.label(l_nn)
    touches(a, 0 if OPT['tw'] < 0 else 1)
    a("v_bfe_u32 v1, v0, 2, 2\nv_and_b32 v2, 3, v0\nv_lshl_add_u32 v3, v1, 3, v2")
    a("v_and_b32 v4, 2, v0\nv_bfe_u32 v5, v0, 3, 1\nv_lshl_or_b32 v4, v5, 2, v4\nv_lshrrev_b32 v5, 4, v0\nv_xor_b32 v4, v4, v5")
    a(f"v_lshlrev_b32 v4, 4, v4\nv_lshl_add_u32 v{vXe}, v3, 7, v4\ns_lshl_b32 s4, s3, 12\nv_add_u32 v{vXe}, s4, v{vXe}")
    a(f"v_xor_b32 v{vXe+1}, 64, v{vXe}\nv_xor_b32 v{vXe+2}, 16, v{vXe}\nv_add_u32 v{vXe+2}, 512, v{vXe+2}\nv_xor_b32 v{vXe+3}, 64, v{vXe+2}")
    a("v_and_b32 v3, 15, v0\nv_lshrrev_b32 v4, 1, v3\nv_xor_b32 v4, v4, v5\nv_lshlrev_b32 v4, 4, v4")
    a(f"v_lshl_add_u32 v{vEa}, v3, 7, v4\nv_add_u32 v{vEa}, {EXT}, v{vEa}\nv_xor_b32 v{vEa+1}, 64, v{vEa}")
    a(f"s_lshr_b32 s4, s3, 1\ns_lshl_b32 s4, s4, 13\ns_and_b32 s51, s3, 1")
    for perm, vx in ((0, vXn), (1, vXp)):
        if not perm: a("v_and_b32 v1, 31, v0")
        else:
            a("v_bfe_u32 v1, v0, 2, 1\nv_lshlrev_b32 v1, 5, v1\nv_and_b32 v2, 1, v0\nv_lshl_or_b32 v1, v2, 4, v1")
            a("v_bfe_u32 v2, v0, 3, 2\nv_lshl_or_b32 v1, v2, 1, v1\nv_bfe_u32 v2, v0, 1, 1\nv_or_b32 v1, v1, v2")
        a("v_bfe_u32 v2, v1, 2, 1\nv_and_b32 v3, 2, v1\nv_or_b32 v2, v2, v3\nv_bfe_u32 v3, v1, 4, 1\nv_lshl_or_b32 v2, v3, 2, v2")
        a(f"v_lshrrev_b32 v3, 5, v0\nv_xor_b32 v2, v2, v3\nv_lshlrev_b32 v2, 4, v2\nv_lshl_add_u32 v{vx}, v1, 7, v2\nv_add_u32 v{vx}, s4, v{vx}")
        for kk in range(1, 4): a(f"v_xor_b32 v{vx+kk}, {kk*32}, v{vx}")
    a("v_lshrrev_b32 v1, 5, v0\nv_lshlrev_b32 v1, 3, v1\nv_bfe_u32 v2, v0, 2, 2\nv_add_u32 v1, v1, v2")
    a("v_bfe_u32 v2, v0, 4, 1\nv_lshlrev_b32 v2, 5, v2\nv_and_b32 v3, 3, v0\nv_lshl_add_u32 v2, v3, 3, v2")
    a("v_bfe_u32 v3, v0, 3, 1\nv_lshlrev_b32 v3, 6, v3\nv_xor_b32 v2, v2, v3")
    a(f"s_lshl_b32 s5, s51, 6\nv_xor_b32 v2, s5, v2\nv_lshl_add_u32 v{vWt}, v1, 7, v2\nv_add_u32 v{vWt}, {BLK}, v{vWt}")
    a(f"s_lshl_b32 s5, s51, 12\ns_add_u32 s5, s5, {BLK}")
    a("v_and_b32 v1, 31, v0\nv_bfe_u32 v2, v0, 1, 3\nv_lshrrev_b32 v3, 5, v0\nv_xor_b32 v2, v2, v3\nv_lshlrev_b32 v2, 4, v2")
    a(f"v_lshl_add_u32 v{vWa}, v1, 7, v2\nv_add_u32 v{vWa}, s5, v{vWa}")
    for kk in range(1, 4): a(f"v_xor_b32 v{vWa+kk}, {kk*32}, v{vWa}")
    a("v_lshlrev_b32 v6, 4, v0")
    a(f"s_lshl_b32 s81, s6, 10\ns_lshl_b32 s4, s13, 4\ns_add_u32 s81, s81, s4\ns_lshl_b32 s4, s3, 2\ns_add_u32 s81, s81, s4\ns_add_u32 s81, s81, {FLG_OFF}")
    a("s_lshr_b32 s4, s3, 1\ns_lshl_b32 s4, s4, 1\ns_lshl_b32 s5, s6, 2\ns_add_u32 s4, s4, s5\ns_mul_i32 s79, s4, 176")
    a("s_lshl_b32 s5, s51, 1\ns_add_u32 s4, s79, s5\ns_lshr_b32 s5, s9, 4\ns_add_u32 s4, s4, s5\ns_lshl_b32 s78, s4, 10")
    a("s_xor_b32 s5, s12, 1\ns_lshl_b32 s5, s5, 12\ns_add_u32 s77, s78, s5")
    a("s_lshl_b32 s5, s8, 4\ns_add_u32 s4, s79, s5\ns_add_u32 s4, s4, 120\ns_lshl_b32 s5, s51, 1\ns_add_u32 s4, s4, s5\ns_lshl_b32 s80, s4, 10")
    a("s_lshl_b32 s4, s6, 2\ns_add_u32 s4, s4, s3\ns_mul_i32 s4, s4, 176\ns_lshl_b32 s5, s8, 4\ns_add_u32 s4, s4, s5\ns_add_u32 s4, s4, s7\ns_add_u32 s4, s4, 112\ns_lshl_b32 s82, s4, 10\ns_add_u32 s83, s82, 4096")
    a(f"s_mov_b32 s50, {NLOG2E}\ns_mov_b32 s51, {NLOG2E}")

def nonce_finish(a):
    l = a.lab()
    return (f"s_cmp_lg_u32 s3, 0\ns_cbranch_scc1 {l}\ns_waitcnt vmcnt(0)\nv_mov_b32 v9, s14\nv_cmp_eq_u32 vcc, 0, v10\ns_mov_b64 exec, 1\nv_mov_b32 v11, 0\n"
            f"v_cndmask_b32 v10, v10, v9, vcc\nds_write_b32 v11, v10 offset:{NONCE}\ns_waitcnt lgkmcnt(0)\ns_mov_b64 exec, -1\n{l}:\ns_mov_b32 s14, s78")

def p2_ids(a):
    a("s_and_b32 s4, s2, 7\ns_lshr_b32 s5, s2, 3\ns_lshl_b32 s84, s4, 2\ns_lshr_b32 s4, s5, 3\ns_add_u32 s84, s84, s4\ns_and_b32 s85, s5, 7")

def p2_consumer(a):
    Bp, Biss = p2_schedule()
    p2_ids(a)
    a("s_and_b32 s8, s3, 1\ns_lshr_b32 s9, s3, 1")
    srd(a, 52, sX, 2097152); srd(a, 56, sDsk, 1024); srd(a, 60, sOut, 4194304)
    XV = 96; GV = 112; DV = 128; OM = 132
    a("s_lshl_b32 s10, s84, 6\ns_lshl_b32 s4, s9, 5\ns_add_u32 s10, s10, s4")
    a("s_lshl_b32 s11, s85, 6\ns_lshl_b32 s4, s8, 5\ns_add_u32 s11, s11, s4")
    a("v_and_b32 v1, 31, v0\nv_add_u32 v1, s11, v1\nv_lshrrev_b32 v2, 5, v0\nv_lshlrev_b32 v2, 2, v2\nv_add_u32 v2, s10, v2")
    a("v_lshlrev_b32 v3, 1, v1\nv_lshl_add_u32 v4, v2, 10, v3")
    a("v_lshlrev_b32 v5, 2, v1\nv_lshl_add_u32 v5, v2, 11, v5")
    a(f"v_lshlrev_b32 v10, 2, v2\nv_add_u32 v10, {G_OFF}, v10")
    a("s_lshl_b32 s4, s84, 1\ns_add_u32 s4, s4, s9\ns_mul_i32 s4, s4, 176\ns_lshl_b32 s5, s8, 1\ns_add_u32 s4, s4, s5\ns_lshl_b32 s80, s4, 10")
    V = VM(a)
    V.ops = ['H'] * 10
    ld = []
    for i in range(16):
        row = 8*(i >> 2) + (i & 3)
        ld.append((f"s_mov_b32 s4, {row*1024}", f"buffer_load_ushort v{XV+i}, v4, s[52:55], s4 offen"))
    for q in range(4): ld.append((None, f"buffer_load_dwordx4 {vr(GV+4*q,4)}, v10, s[64:67], 0 offen offset:{q*32} sc1"))
    ld.append((None, f"buffer_load_ushort v{DV}, v3, s[56:59], 0 offen"))
    vBw, vBc = 12, 18
    a("v_lshrrev_b32 v7, 5, v0\nv_lshlrev_b32 v7, 2, v7\nv_bfe_u32 v8, v0, 2, 2\nv_add_u32 v7, v7, v8")
    a("v_bfe_u32 v8, v0, 4, 1\nv_lshlrev_b32 v8, 5, v8\nv_and_b32 v9, 3, v0\nv_lshl_add_u32 v8, v9, 3, v8\nv_bfe_u32 v9, v0, 3, 1\nv_lshlrev_b32 v9, 6, v9\nv_xor_b32 v8, v8, v9")
    a(f"s_lshl_b32 s4, s8, 12\nv_lshl_add_u32 v{vBw}, v7, 7, v8\nv_add_u32 v{vBw}, s4, v{vBw}\nv_xor_b32 v{vBw+1}, 64, v{vBw}")
    a("v_and_b32 v7, 31, v0\nv_bfe_u32 v8, v0, 1, 3\nv_lshrrev_b32 v9, 5, v0\nv_xor_b32 v8, v8, v9\ns_lshl_b32 s4, s8, 2\nv_xor_b32 v8, s4, v8\nv_lshlrev_b32 v8, 4, v8")
    a(f"v_lshl_add_u32 v{vBc}, v7, 7, v8\nv_xor_b32 v{vBc+1}, 32, v{vBc}")
    W = 57344
    for t in range(1, 3):
        for e in range(2):
            a(f"v_add_u32 v{vBw+2*t+e}, {t*W}, v{vBw+e}\nv_add_u32 v{vBc+2*t+e}, {t*W}, v{vBc+e}")
    AB, AY = 32, 64
    def F(p): return 176 + (p & 3) * 16
    AREGS = [240, 244, 248, 252, 160, 164, 168, 172, 24, 148, 152, 156]
    NAR = 12
    def areg(p, e): return AREGS[(2*p + e) % NAR]
    SC = " sc1" if OPT['sc1_a'] else ""
    def loadA(p):
        for e in range(2):
            a(f"s_add_u32 s4, s80, {ORD[p]*4096 + e*1024}")
            V.op(f"buffer_load_dwordx4 {vr(areg(p,e),4)}, v6, s[64:67], s4 offen{SC}", ('A', p, e))
    def win(addr): t = min((addr - XR) // W, 2); return t, addr - t*W
    def isy(p): return NA_ <= p < NH_
    def reads(p):
        tb, ob = win(page(Bp[p]))
        r = []; f = F(p)
        for e in range(2):
            for nt in range(2):
                d = f + (e*2+nt)*4
                if not isy(p):
                    r.append((f"ds_read_b64_tr_b16 {vr(d,2)}, v{vBw+2*tb+nt} offset:{ob + e*2048}", R(d, 2)))
                    r.append((f"ds_read_b64_tr_b16 {vr(d+2,2)}, v{vBw+2*tb+nt} offset:{ob + e*2048 + 1024}", R(d+2, 2)))
                else:
                    r.append((f"ds_read_b128 {vr(d,4)}, v{vBc+2*tb+e} offset:{ob + nt*4096}", R(d, 4)))
        return r
    pre = [f"v_lshlrev_b32 v{DV}, 16, v{DV}", "s_mov_b32 s12, 0xffff0000"]
    for i in range(0, 16, 2):
        for e in range(2):
            pre += [f"v_lshlrev_b32 v{XV+i+e}, 16, v{XV+i+e}", f"v_mul_f32 v{XV+i+e}, v{XV+i+e}, v{DV}", f"v_sub_f32 v{OM+i+e}, 1.0, v{GV+i+e}"]
        pre += [f"v_cvt_pk_bf16_f32 v{DV+1}, v{XV+i}, v{XV+i+1}", f"v_cvt_pk_bf16_f32 v{DV+2}, v{OM+i}, v{OM+i+1}",
                f"v_lshlrev_b32 v{XV+i}, 16, v{DV+1}", f"v_and_b32 v{XV+i+1}, s12, v{DV+1}",
                f"v_lshlrev_b32 v{OM+i}, 16, v{DV+2}", f"v_and_b32 v{OM+i+1}, s12, v{DV+2}"]
    epiB = glu_epi(ACB, 77, 64, 80, (1, 0))
    S = Sched(a)
    na = 0
    KH, KB = OPT['KH'], OPT['KB']
    def allowed(p, k): return (p < NA_) or (p < NH_ and k > KH) or k > KB
    for k in range(23):
        if k == 0: stamp(a, 6)
        if k < 22: a("s_barrier")
        if k == 0: stamp(a, 9); cstamp(a, 59)
        if k < 22 and (OPT['fine'] or k in (5, 12, 19)): stamp(a, 32+k)
        if k == 14: stamp(a, 10)
        rd = reads(2*k) + reads(2*k+1) if k < 22 else []
        if k == 0:
            while na < 4: loadA(na); na += 1
            for x in rd: S.read(*x)
            for x in epiB[0] + epiB[1]:
                a(x)
                if 'buffer_store' in x: V.ops.append('E')
            V.wait('H'); a(flag_item(1)); V.ops.append('F')
            while na < NAR // 2: loadA(na); na += 1
            eb = epiB[2] + epiB[3]
        else:
            rd = list(rd)
            for p in (2*k-2, 2*k-1):
                f = F(p)
                for e in range(2):
                    V.wait(('A', p, e))
                    for nt in range(2):
                        d = vr((AY if isy(p) else AB) + 16*nt, 16)
                        c = "0" if (p in (0, NA_) and e == 0) else d
                        S.need(R(f+(e*2+nt)*4, 4))
                        a(f"v_mfma_f32_32x32x16_bf16 {d}, {vr(areg(p,e),4)}, {vr(f+(e*2+nt)*4,4)}, {c}")
                        for _ in range(OPT['per2']):
                            if rd: S.read(*rd.pop(0))
                        for _ in range(4):
                            if eb:
                                x = eb.pop(0); a(x)
                                if 'buffer_store' in x: V.ops.append('E')
                while na <= 43 and na < p + 1 + NAR // 2 and allowed(na, k): loadA(na); na += 1
            for x in rd: S.read(*x)
        if k == 4:
            assert not eb
            V.wait('E'); a(flag_item(2)); V.ops.append('F')
        if 5 <= k < 5 + 7:
            for (p_, ins) in ld[(k-5)*3:(k-5)*3+3]:
                if p_: a(p_)
                V.op(ins, 'L')
        if k == 14: V.wait('L')
        if 14 <= k < 21:
            n = (len(pre) + 6) // 7
            for x in pre[(k-14)*n:(k-13)*n]: a(x)
    assert na == 44
    stamp(a, 11); cstamp(a, 60)
    used = {Bp[40], Bp[41], Bp[42], Bp[43]}
    xp = [page(p) for p in range(18) if p not in used][:4]
    a(f"s_mov_b32 s4, {xp[0]}\ns_mov_b32 s5, {xp[1]}\ns_cmp_eq_u32 s9, 1\ns_cselect_b32 s4, {xp[2]}, s4\ns_cselect_b32 s5, {xp[3]}, s5")
    a("s_cmp_eq_u32 s8, 1\ns_cselect_b32 s10, s5, s4\ns_cselect_b32 s11, s4, s5")
    a("v_lshlrev_b32 v7, 4, v0\nv_add_u32 v8, s10, v7\nv_add_u32 v9, s11, v7")
    lk1 = a.lab(); lj = a.lab()
    a(f"s_nop 4\ns_cbranch_scc1 {lk1}")
    RB, RY = 176, 192
    for kh in range(2):
        if kh == 1: a.label(lk1)
        sn = kh ^ 1
        for q in range(4):
            a(f"ds_write_b128 v8, {vr(AB+16*sn+4*q,4)} offset:{q*1024}\nds_write_b128 v8, {vr(AY+16*sn+4*q,4)} offset:{4096+q*1024}")
        for i in range(0, 16, 2): a(f"v_pk_add_f32 {vr(AY+16*kh+i,2)}, {vr(AY+16*kh+i,2)}, {vr(XV+i,2)}")
        a("s_waitcnt lgkmcnt(0)\ns_barrier")
        for q in range(4):
            a(f"ds_read_b128 {vr(RB+4*q,4)}, v9 offset:{q*1024}\nds_read_b128 {vr(RY+4*q,4)}, v9 offset:{4096+q*1024}")
        for q in range(4):
            a(f"s_waitcnt lgkmcnt({6-2*q})")
            for i in range(4*q, 4*q+4, 2):
                a(f"v_pk_add_f32 {vr(RB+i,2)}, {vr(RB+i,2)}, {vr(AB+16*kh+i,2)}\nv_pk_add_f32 {vr(RY+i,2)}, {vr(RY+i,2)}, {vr(AY+16*kh+i,2)}")
        if kh == 0: a(f"s_branch {lj}")
    a.label(lj)
    for i in range(0, 16, 2):
        T = 224 + (i & 6)
        a(f"v_cvt_pk_bf16_f32 v{T}, v{RB+i}, v{RB+i+1}\nv_pk_mul_f32 {vr(RY+i,2)}, {vr(RY+i,2)}, {vr(GV+i,2)}")
        a(f"v_lshlrev_b32 v{RB+i}, 16, v{T}\nv_and_b32 v{RB+i+1}, s12, v{T}")
        a(f"v_pk_mul_f32 {vr(RB+i,2)}, {vr(RB+i,2)}, {vr(OM+i,2)}\nv_cvt_pk_bf16_f32 v{T}, v{RB+i}, v{RB+i+1}")
        a(f"v_lshlrev_b32 v{RB+i}, 16, v{T}\nv_and_b32 v{RB+i+1}, s12, v{T}")
        a(f"v_pk_add_f32 {vr(RY+i,2)}, {vr(RY+i,2)}, {vr(RB+i,2)}")
        for e in range(2):
            row = 8*((i+e) >> 2) + ((i+e) & 3)
            a(f"s_mov_b32 s4, {row*2048}\nbuffer_store_dword v{RY+i+e}, v5, s[60:63], s4 offen")
    stamp(a, 12)
    if STAMP: a("s_waitcnt vmcnt(0)")
    stamp(a, 13)
    stamp_flush(a)
    a("s_endpgm")

def loader_pre(a):
    if OPT['prio']: a(f"s_setprio {OPT['prio']}")
    a("v_lshrrev_b32 v1, 3, v0\nv_and_b32 v2, 7, v0")
    a("v_lshrrev_b32 v3, 5, v0\nv_and_b32 v4, 2, v1\nv_or_b32 v3, v3, v4\nv_xor_b32 v3, v3, v2\nv_lshlrev_b32 v3, 4, v3\nv_lshl_add_u32 v10, v1, 10, v3\nv_xor_b32 v11, 64, v10")
    a("v_bfe_u32 v3, v0, 4, 1\nv_lshlrev_b32 v3, 2, v3\nv_xor_b32 v3, v3, v2\nv_lshlrev_b32 v3, 4, v3\ns_movk_i32 s4, 3584\nv_mad_u32_u24 v16, v1, s4, v3\nv_lshl_add_u32 v15, v1, 10, v3")
    a("v_lshrrev_b32 v4, 4, v0\nv_xor_b32 v3, v4, v2\nv_lshlrev_b32 v3, 4, v3\nv_lshl_add_u32 v28, v1, 10, v3\nv_xor_b32 v29, 64, v28")
    a("s_cmp_eq_u32 s12, 1\ns_cselect_b64 vcc, -1, 0\nv_cndmask_b32 v12, v16, v28, vcc\nv_cndmask_b32 v13, v16, v29, vcc")
    a("s_and_b32 s14, s3, 1")
    a("s_mul_i32 s4, s14, 114688\ns_lshl_b32 s5, s9, 1\ns_add_u32 s70, s4, s5\ns_lshl_b32 s4, s14, 5\ns_add_u32 s4, s4, s11\ns_lshl_b32 s5, s4, 10")
    a("s_cmp_eq_u32 s12, 1\ns_cselect_b32 s80, s5, s70\ns_mov_b32 s81, 143360\ns_movk_i32 s82, 28672\ns_cselect_b32 s81, -24448, s81\ns_cselect_b32 s82, 8192, s82")
    a("s_mov_b32 s4, 1835008\ns_cselect_b32 s58, 524288, s4\ns_mov_b32 s59, 0x20000")
    a("s_cselect_b32 s4, 0, 128\ns_add_u32 s70, s70, s4")
    a("s_lshl_b32 s4, s14, 2\nv_or_b32 v4, s4, v4\nv_xor_b32 v4, v4, v2\nv_lshlrev_b32 v4, 4, v4\nv_lshl_add_u32 v14, v1, 10, v4")
    a("s_lshl_b32 s4, s14, 3\ns_add_u32 s4, s4, s10\ns_lshl_b32 s85, s4, 10")
    a("s_lshl_b32 s4, s6, 7\ns_lshl_b32 s5, s3, 5\ns_add_u32 s4, s4, s5\ns_lshl_b32 s86, s4, 10")
    a(f"s_lshl_b32 s87, s3, 12\ns_lshr_b32 s4, s3, 1\ns_mul_i32 s88, s4, 24576\ns_lshl_b32 s4, s14, 12\ns_add_u32 s88, s88, s4\ns_add_u32 s88, s88, {BLK}\ns_lshl_b32 s89, s3, 10\ns_add_u32 s89, s89, {EXT}")
    a("s_mov_b32 s54, 2097152\ns_mov_b32 s55, 0x20000\ns_mov_b32 s62, 524288\ns_mov_b32 s63, 0x20000")

def loader(a):
    Bp, Biss = p2_schedule()
    V = VM(a)
    a("s_waitcnt lgkmcnt(0)")
    a("s_mov_b64 s[52:53], s[16:17]")
    a("s_cmp_ge_u32 s3, 2\ns_cselect_b64 s[72:73], s[38:39], s[36:37]\ns_cselect_b64 s[60:61], s[24:25], s[22:23]")
    a("s_cmp_eq_u32 s12, 1\ns_cselect_b64 s[56:57], s[60:61], s[72:73]\ns_mov_b64 s[90:91], s[72:73]")
    def issue(V, s):
        slot = s % 3
        if s == 8:
            a("s_mov_b64 s[56:57], s[90:91]\ns_mov_b32 s58, 1835008\ns_add_u32 s80, s70, 1146880\ns_mov_b32 s81, 143360\ns_movk_i32 s82, 28672\nv_mov_b32 v12, v16\nv_mov_b32 v13, v16")
        if s == 11: a("s_sub_u32 s80, s80, 1835008")
        for i in range(4 if XL[s] else 0):
            a(f"s_add_u32 m0, s87, {XR + XH[s]*49152 + XI[s]*16384 + i*1024}\ns_add_u32 s4, s86, {i*8192 + KS[s]*128}")
            V.op(f"buffer_load_dwordx4 v{10 + (i >> 1)}, s[52:55], s4 offen lds", ('S', s))
        for i in range(4):
            a(f"s_add_u32 m0, s88, {slot*8192 + i*1024}\ns_nop 0")
            V.op(f"buffer_load_dwordx4 v{12 + (i & 1)}, s[56:59], s80 offen lds", ('S', s))
            a("s_add_u32 s80, s80, s82" if i < 3 else "s_add_u32 s80, s80, s81")
        if s < 8:
            a(f"s_add_u32 m0, s89, {slot*4096}\ns_add_u32 s4, s85, {s*128}")
            V.op("buffer_load_dwordx4 v14, s[60:63], s4 offen lds", ('S', s))
    def bar(V, s, extra=""):
        V.wait(('S', s+1), extra=extra)
        if OPT['fine']: stamp(a, 16 + s)
        a("s_barrier")
        if s + 3 <= 15: issue(V, s + 3)
        r = s - OPT['l2t']
        if OPT['l2t'] and 0 <= r <= 2:
            if r < 2:
                srd(a, 76, sWd, 1835008)
                a(f"s_lshr_b32 s4, s2, 3\ns_mul_i32 s4, s4, 57344\ns_lshl_b32 s5, s3, 13\ns_add_u32 s4, s4, s5\ns_add_u32 s4, s4, {r*32768}\nv_lshlrev_b32 v18, 7, v0")
                if r == 1: a("s_cmp_eq_u32 s3, 3\ns_cselect_b32 s78, 0, s78")
            else:
                a("s_cmp_ge_u32 s3, 2\ns_cselect_b64 s[76:77], s[28:29], s[26:27]\ns_mov_b32 s78, 524288\ns_mov_b32 s79, 0x20000")
                a("s_lshr_b32 s4, s2, 3\ns_lshl_b32 s4, s4, 14\ns_and_b32 s5, s3, 1\ns_lshl_b32 s5, s5, 13\ns_add_u32 s4, s4, s5")
            V.op("buffer_load_dword v19, v18, s[76:79], s4 offen", 'T')
    issue(V, 0); stamp(a, 14); issue(V, 1)
    V.wait(('S', 0)); stamp(a, 2); a("s_barrier")
    issue(V, 2)
    srd(a, 64, sWs, WS_USED)
    srd(a, 92 if not STAMP else 92, sGw, 1024) if False else None
    srd(a, 72, sLre, 1024); srd(a, 76, sLim, 1024); srd(a, 96, sLdt, 1024)
    a("s_mov_b64 s[68:69], s[42:43]\ns_mov_b32 s71, 0x20000\ns_mov_b32 s92, s70\ns_movk_i32 s70, 1024")
    a("s_lshl_b32 s4, s6, 7\ns_lshl_b32 s5, s13, 3\ns_add_u32 s4, s4, s5\ns_lshl_b32 s5, s3, 1\ns_add_u32 s15, s4, s5\ns_lshl_b32 s14, s15, 10")
    a("v_lshlrev_b32 v1, 4, v0")
    a("s_and_b32 s4, s3, 1\ns_lshl_b32 s4, s4, 6\nv_add_u32 v2, s4, v0\nv_add_u32 v3, s10, v2\ns_sub_u32 s5, s11, 16\nv_add_u32 v4, s5, v2")
    a("v_cmp_gt_u32 vcc, 16, v2\ns_nop 1\nv_cndmask_b32 v3, v4, v3, vcc\nv_lshlrev_b32 v3, 1, v3")
    bar(V, 0)
    V.op("buffer_load_dwordx4 v[32:35], v1, s[52:55], s14 offen", 'X'); V.op("buffer_load_dwordx4 v[36:39], v1, s[52:55], s14 offen offset:1024", 'X')
    V.op("buffer_load_dwordx4 v[40:43], v1, s[68:71], 0 offen", 'X')
    V.op("buffer_load_ushort v44, v3, s[72:75], 0 offen", 'X'); V.op("buffer_load_ushort v45, v3, s[76:79], 0 offen", 'X'); V.op("buffer_load_ushort v46, v3, s[96:99], 0 offen", 'X')
    a("s_mov_b32 s70, s92")
    bar(V, 1); bar(V, 2)
    V.wait('X')
    a("v_lshlrev_b32 v44, 16, v44\nv_lshlrev_b32 v45, 16, v45\nv_lshlrev_b32 v46, 16, v46")
    a(f"v_mul_f32 v46, {LOG2E}, v46\nv_exp_f32 v46, v46\ns_nop 0")
    bf16_round(a, 46, 46, 47)
    a(f"v_mul_f32 v47, v46, v44\nv_mul_f32 v48, v46, v45")
    a(f"v_mul_f32 v47, {LOG2E}, v47\nv_exp_f32 v47, v47\nv_mul_f32 v48, {INV2PI}, v48\nv_rndne_f32 v49, v48\nv_sub_f32 v48, v48, v49")
    a("v_cos_f32 v49, v48\nv_sin_f32 v50, v48\ns_nop 0\nv_mul_f32 v52, v47, v49\nv_mul_f32 v53, v47, v50")
    a("v_mul_f32 v49, v44, v44\nv_fma_f32 v49, v45, v45, v49\nv_rcp_f32 v49, v49\nv_add_f32 v50, -1.0, v52")
    a("v_mul_f32 v54, v50, v44\nv_fma_f32 v54, v53, v45, v54\nv_mul_f32 v55, v53, v44\nv_fma_f32 v55, -v50, v45, v55")
    a("v_add_f32 v49, v49, v49\nv_mul_f32 v54, v54, v49\nv_mul_f32 v55, v55, v49")
    a("v_lshlrev_b32 v2, 4, v2\nv_cmp_gt_u32 vcc, 1280, v2\ns_and_saveexec_b64 s[78:79], vcc")
    a(f"ds_write_b128 v2, v[52:55] offset:{PARAM}")
    a("s_mov_b64 exec, s[78:79]")
    bar(V, 3, " lgkmcnt(0)")
    a("v_mov_b32 v4, 0\nv_mov_b32 v5, 0\ns_mov_b32 s4, 0xffff0000")
    for i in range(4):
        a(f"v_lshlrev_b32 v6, 16, v{40+i}\nv_and_b32 v7, s4, v{40+i}")
        for r in range(2):
            x = 32 + 4*r + i
            a(f"v_lshlrev_b32 v8, 16, v{x}\nv_and_b32 v9, s4, v{x}\nv_mul_f32 v8, v8, v6\nv_mul_f32 v9, v9, v7")
            a(f"v_cvt_pk_bf16_f32 v8, v8, v9\nv_lshlrev_b32 v9, 16, v8\nv_and_b32 v8, s4, v8\nv_add_f32 v{4+r}, v{4+r}, v9\nv_add_f32 v{4+r}, v{4+r}, v8")
        if i == 1: bar(V, 4); a("s_mov_b32 s4, 0xffff0000")
    bar(V, 5)
    for sh in [1, 2, 4, 8]:
        a(f"s_nop 1\nv_add_f32_dpp v4, v4, v4 row_shr:{sh} row_mask:0xf bank_mask:0xf bound_ctrl:0\nv_add_f32_dpp v5, v5, v5 row_shr:{sh} row_mask:0xf bank_mask:0xf bound_ctrl:0")
    a("s_nop 1")
    for r in range(2):
        a(f"v_readlane_b32 s{76+20*r}, v{4+r}, 15\nv_readlane_b32 s{77+20*r}, v{4+r}, 31\nv_readlane_b32 s{78+20*r}, v{4+r}, 47")
    a("s_nop 1")
    for j in range(3):
        a(f"v_add_f32 v4, s{76+j}, v4\nv_add_f32 v5, s{96+j}, v5")
    a("s_nop 0\nv_readlane_b32 s4, v4, 63\nv_readlane_b32 s5, v5, 63\nv_cmp_eq_u32 vcc, 1, v0\ns_nop 0\nv_mov_b32 v4, s4\nv_mov_b32 v5, s5\nv_cndmask_b32 v4, v4, v5, vcc")
    bf16_round(a, 4, 4, 5)
    a(f"v_mul_f32 v4, {NLOG2E}, v4\nv_exp_f32 v4, v4\ns_nop 0\nv_add_f32 v4, 1.0, v4\nv_rcp_f32 v4, v4\ns_nop 0")
    bf16_round(a, 4, 4, 5)
    a(f"s_lshl_b32 s4, s15, 2\ns_add_u32 s4, s4, {G_OFF}\nv_lshlrev_b32 v5, 2, v0\ns_mov_b64 exec, 3")
    V.op("buffer_store_dword v4, v5, s[64:67], s4 offen sc1", 'G'); a("s_mov_b64 exec, -1")
    bar(V, 6); bar(V, 7)
    V.wait('G')
    def b_setup():
        p2_ids(a)
        srd(a, 52, sWd, 1835008); srd(a, 56, sCre, 524288); srd(a, 60, sCim, 524288)
        a("s_lshl_b32 s4, s3, 14\ns_lshl_b32 s5, s85, 7\ns_add_u32 s89, s4, s5\ns_lshl_b32 s5, s85, 16\ns_add_u32 s90, s4, s5\ns_lshl_b32 s91, s3, 11")
    def loadB(V, p):
        s = ORD[p]
        for i in range(1 if OPT['halfB'] else 2):
            a(f"s_add_u32 m0, s91, {page(Bp[p]) + i*1024}")
            if s < 28:
                a(f"s_add_u32 s4, s89, {s*65536 + i*8192}")
                V.op(f"buffer_load_dwordx4 v15, s[52:55], s4 offen lds", ('B', p))
            else:
                t = s - 28
                a(f"s_add_u32 s4, s90, {(t >> 1)*128 + i*8192}")
                V.op(f"buffer_load_dwordx4 v{28+i}, s[{56 + 4*(t & 1)}:{59 + 4*(t & 1)}], s4 offen lds", ('B', p))
    def poll(which, pre_issued=False):
        lp = a.lab(); ld = a.lab(); lc = a.lab()
        a("s_mov_b32 s88, 0x8000")
        if pre_issued: a(f"s_branch {lc}")
        a.label(lp)
        a(f"buffer_load_dword v8, v9, s[64:67], s86 offen offset:{which*256} sc1\ns_waitcnt vmcnt(0)")
        a.label(lc)
        a(f"v_cmp_ne_u32 vcc, s72, v8\ns_cmp_eq_u64 vcc, 0\ns_cbranch_scc1 {ld}")
        a(f"s_sub_u32 s88, s88, 1\ns_cmp_lg_u32 s88, 0\ns_cbranch_scc1 {lp}")
        a.label(ld)
    KH, KB = OPT['KH'], OPT['KB']
    def pollissue(V, which): V.op(f"buffer_load_dword v8, v9, s[64:67], s86 offen offset:{which*256} sc1", 'P')
    def tail(V, role):
        b_setup()
        if role == 2:
            a(f"s_lshr_b32 s4, s84, 1\ns_lshl_b32 s4, s4, 10\ns_add_u32 s86, s4, {FLG_OFF}\nv_lshlrev_b32 v9, 2, v0")
        for p in Biss['b12']: loadB(V, p)
        bar(V, 13, " lgkmcnt(0)")
        for p in Biss['b13']: loadB(V, p)
        bar(V, 14)
        if role == 2: pollissue(V, 0)
        for p in Biss['b14']: loadB(V, p)
        for k in range(22):
            V.wait(('B', 2*k), ('B', 2*k+1))
            if role == 2:
                for (kk_, wh) in ((-1, 0), (KH, 1), (KB, 2)):
                    if k == kk_ + 1:
                        V.wait('P'); poll(wh, pre_issued=True)
                        if wh == 0: stamp(a, 7)
            if OPT['fine']: stamp(a, 32+k)
            a("s_barrier")
            if role == 2 and k in (KH, KB): pollissue(V, 1 if k == KH else 2)
            if k == 0:
                for p in Biss['Z']: loadB(V, p)
            for p in Biss[k]: loadB(V, p)
        a("s_barrier")
        stamp_flush(a)
        a("s_endpgm")
    L2 = a.lab(); L3 = a.lab(); LM = a.lab()
    a(f"s_cmp_eq_u32 s3, 2\ns_cbranch_scc1 {L2}\ns_and_b32 s4, s3, s12\ns_cmp_eq_u32 s3, 3\ns_cselect_b32 s4, s4, 0\ns_cmp_eq_u32 s4, 1\ns_cbranch_scc1 {L3}")
    V0 = V
    V = V0.copy()
    for s in range(8, 13): bar(V, s)
    tail(V, 0)
    a.label(L2)
    V = V0.copy(); combine(a, V, bar, 8, 16, 16, 3, AGE_RE, AGE_IM, 10, PARAM); tail(V, 2)
    a.label(L3)
    V = V0.copy(); combine(a, V, bar, 9, 8, 64, 4, AGM_RE, AGM_IM, 11, PARAM + 256); tail(V, 3)

def combine(a, V, bar, sb, nseg, nch, lg, are, aim, sch, pofs):
    ex = f"s_mov_b64 exec, {(1 << nch) - 1}" if nch < 64 else "s_nop 0"
    a(f"s_add_u32 s96, s48, {AGG_OFF}\ns_addc_u32 s97, s49, 0\ns_mov_b32 s98, {AGG_SZ}\ns_mov_b32 s99, 0x20000")
    a(f"v_lshlrev_b32 v1, 4, v0\nds_read_b64 v[2:3], v1 offset:{pofs}\ns_waitcnt lgkmcnt(0)")
    for i in range(7):
        a("v_mul_f32 v8, v3, v3\nv_mul_f32 v9, v2, v3\nv_fma_f32 v2, v2, v2, -v8\nv_add_f32 v3, v9, v9")
        if i == lg - 1: a("v_mov_b32 v6, v2\nv_mov_b32 v7, v3")
    a(f"s_lshl_b32 s4, s{sch}, 4\ns_lshl_b32 s5, s6, 13\ns_add_u32 s4, s4, s5\nv_add_u32 v17, s4, v1")
    a(f"v_lshlrev_b32 v1, 2, v0\nv_add_u32 v1, {EXT}, v1\nv_mov_b32 v4, 0")
    bar(V, 8)
    stamp(a, 3)
    AR, AI = 32, 48
    a(ex)
    a(f"ds_read_b32 v5, v4 offset:{NONCE}")
    for sg in range(nseg):
        a(f"ds_read_b32 v{AR+sg}, v1 offset:{are - EXT + sg*nch*4}\nds_read_b32 v{AI+sg}, v1 offset:{aim - EXT + sg*nch*4}")
    def step(pr, pi, dr, di, mr, mi, ar, ai):
        a(f"v_fma_f32 v{dr}, v{pr}, v{mr}, v{ar}\nv_fma_f32 v{di}, v{pi}, v{mr}, v{ai}\nv_fma_f32 v{dr}, -v{pi}, v{mi}, v{dr}\nv_fma_f32 v{di}, v{pr}, v{mi}, v{di}")
    a("s_waitcnt lgkmcnt(0)\nv_mov_b32 v125, v5\nv_mov_b32 v127, v5\nv_readfirstlane_b32 s72, v5")
    cur = (AR, AI)
    for sg in range(1, nseg):
        dst = (124, 126) if (nseg - 1 - sg) % 2 == 0 else (20, 21)
        step(cur[0], cur[1], dst[0], dst[1], 6, 7, AR+sg, AI+sg); cur = dst
    V.op("buffer_store_dwordx4 v[124:127], v17, s[96:99], 0 offen sc1", 'Q')
    a("s_mov_b64 exec, -1")
    stamp(a, 4)
    for s in range(9, OPT['SP'] + 1): bar(V, s)
    E = 60
    def loads(first):
        for d in range(1, 16):
            a(f"v_subrev_u32 v{24+(d&3)}, {d*8192}, v17")
            ins = f"buffer_load_dwordx4 {vr(E+4*d,4)}, v{24+(d&3)}, s[96:99], 0 offen sc1"
            if first: V.op(ins, 'R')
            else: a(ins)
    a(ex)
    loads(True)
    a("s_mov_b64 exec, -1")
    for s in range(OPT['SP'] + 1, OPT['LS'] - 1): bar(V, s)
    a(ex)
    lp = a.lab(); ld = a.lab(); lc = a.lab()
    a("s_mov_b32 s83, 0x8000")
    V.wait('R')
    a(f"s_branch {lc}")
    a.label(lp)
    loads(False)
    a("s_waitcnt vmcnt(0)")
    a.label(lc)
    a("s_mov_b64 s[94:95], 0")
    for d in range(1, 16):
        a(f"s_cmp_ge_u32 s6, {d}\ns_cselect_b32 s4, s72, 0\nv_cmp_ne_u32 vcc, s4, v{E+4*d+1}\ns_or_b64 s[94:95], s[94:95], vcc\nv_cmp_ne_u32 vcc, s4, v{E+4*d+3}\ns_or_b64 s[94:95], s[94:95], vcc")
    a(f"s_cmp_eq_u64 s[94:95], 0\ns_cbranch_scc1 {ld}")
    a(f"s_sub_u32 s83, s83, 1\ns_cmp_lg_u32 s83, 0\ns_cbranch_scc1 {lp}")
    a.label(ld)
    stamp(a, 5)
    cur = (E+60, E+62)
    for d in range(14, 0, -1):
        dst = (20, 21) if d & 1 else (22, 23)
        step(cur[0], cur[1], dst[0], dst[1], 2, 3, E+4*d, E+4*d+2); cur = dst
    for sg in range(nseg):
        a(f"ds_write_b32 v1, v{cur[0]} offset:{are - EXT + sg*nch*4}\nds_write_b32 v1, v{cur[1]} offset:{aim - EXT + sg*nch*4}")
        if sg < nseg - 1:
            dst = (22, 23) if cur == (20, 21) else (20, 21)
            step(cur[0], cur[1], dst[0], dst[1], 6, 7, AR+sg, AI+sg); cur = dst
    a("s_mov_b64 exec, -1")
    stamp(a, 6)
    if OPT['LS'] == 13: bar(V, 12, " lgkmcnt(0)")

def kernel(a, name):
    a(f".p2align 8\n.globl {name}\n.type {name},@function")
    a.label(name)
    l_end = a.lab(); l_c = a.lab(); l_s = a.lab(); l_p2 = a.lab()
    a("s_getpc_b64 s[90:91]")
    a(f"s_cmp_ge_u32 s2, 256\ns_cbranch_scc1 {l_end}")
    a("s_load_dwordx16 s[16:31], s[0:1], 0\ns_load_dwordx16 s[32:47], s[0:1], 64\ns_load_dwordx2 s[48:49], s[0:1], 128")
    a("v_lshrrev_b32 v1, 6, v0\nv_and_b32 v0, 63, v0\nv_readfirstlane_b32 s3, v1")
    a("s_and_b32 s4, s2, 7\ns_lshr_b32 s5, s2, 3")
    a("s_and_b32 s6, s4, 1\ns_lshr_b32 s7, s5, 2\ns_lshl_b32 s7, s7, 1\ns_add_u32 s6, s6, s7")
    a("s_and_b32 s7, s5, 3\ns_lshr_b32 s8, s4, 1")
    a("s_mul_i32 s9, s8, 448\ns_lshl_b32 s4, s7, 7\ns_add_u32 s9, s9, s4")
    a("s_lshl_b32 s11, s8, 7\ns_lshl_b32 s4, s7, 4\ns_add_u32 s10, s11, s4\ns_add_u32 s11, s11, 64")
    a("s_cmp_eq_u32 s7, 3\ns_cselect_b32 s12, 1, 0\ns_lshl_b32 s13, s8, 2\ns_add_u32 s13, s13, s7")
    if STAMP: a("s_mov_b32 s93, s3")
    a(f"s_cmp_lt_u32 s3, 4\ns_cbranch_scc1 {l_c}")
    a("s_sub_u32 s3, s3, 4")
    loader_pre(a)
    if STAMP: a("s_waitcnt lgkmcnt(0)")
    stamp(a, 0)
    loader(a)
    a.label(l_c)
    a("s_waitcnt lgkmcnt(0)")
    stamp(a, 0)
    p1_consumer_prologue(a, "L_code_end")
    a(f"s_cmp_eq_u32 s12, 1\ns_cbranch_scc1 {l_s}")
    global passB_fillers
    orig = passB_fillers
    def withnonce(M):
        F = orig(M); F[7] = [nonce_finish(a)] + F[7]; return F
    passB_fillers = withnonce
    p1_consumer(a, False)
    a(f"s_branch {l_p2}")
    a.label(l_s)
    p1_consumer(a, True)
    a.label(l_p2)
    p2_consumer(a)
    a.label(l_end)
    a("s_endpgm")
    a.label("L_code_end")
    a("s_endpgm")

def desc(name, nv=256):
    return f""".p2align 6
.amdhsa_kernel {name}
  .amdhsa_next_free_vgpr {nv}
  .amdhsa_next_free_sgpr 102
  .amdhsa_accum_offset {nv}
  .amdhsa_group_segment_fixed_size 0
  .amdhsa_kernarg_size 136
  .amdhsa_user_sgpr_count 2
  .amdhsa_user_sgpr_kernarg_segment_ptr 1
  .amdhsa_system_sgpr_workgroup_id_x 1
.end_amdhsa_kernel
"""

def main(out):
    a = Asm()
    n1 = NAME + "_kernel"
    kernel(a, n1)
    txt = HDR
    txt += f"; @launch grid=(256,1,1) block=(512,1,1) lds={LDS1}\n"
    txt += '.amdgcn_target "amdgcn-amd-amdhsa--gfx950"\n.text\n' + a.text()
    txt += '.section .rodata,"a"\n' + desc(n1)
    open(out, "w").write(txt)

if __name__ == "__main__":
    args = sys.argv[1:]
    if "-tot" in args: STAMP = 2; args.remove("-tot")
    if "-stamp" in args: STAMP = True; args.remove("-stamp")
    for x in list(args):
        if "=" in x:
            k, v = x.split("="); assert k in OPT, k; OPT[k] = int(v); args.remove(x)
    if "-sched" in args:
        print(p2_schedule()); print(ORD)
        for M in (False, True): print({k: len(v) for k, v in passB_fillers(M).items()})
        sys.exit()
    main(args[0] if args else f"cdna_kernels/{NAME}.s")
```

```python
import sys

NAME = "gated_mix__ssm_conv_s5__glu_gated_glu__prompt"
HDR = open("cdna_kernels/%s.s.ref" % NAME).read().split("; Override launch")[0]

G_OFF = 0xB00000
AGG_OFF = 0xB10000
AGG_SZ = 16 * 512 * 16
FLG_OFF = 0xB30000
WS_USED = 0xB40000
LOG2E = 0x3fb8aa3b
NLOG2E = 0xbfb8aa3b
INV2PI = 0x3e22f983
OPT = dict(sc1_a=1, touch1=1, touch2=1, cpf=1, per2=2, KH=3, KB=8, prio=3, fine=0, t1s=1, SP=11, capM=72, LS=14, ts=2566, halfB=0, tw=2, gs=0, per1=2, be=0, l2t=0, BLA=7, noF=0, la=0)

class Asm:
    def __init__(s): s.l = []; s.uid = 0
    def __call__(s, t):
        for x in t.strip("\n").split("\n"): s.l.append("    " + x.strip())
    def label(s, n): s.l.append(n + ":")
    def lab(s, p="L"):
        s.uid += 1; return f"{p}_{s.uid}"
    def text(s): return "\n".join(s.l) + "\n"

def vr(b, n): return f"v[{b}:{b+n-1}]" if n > 1 else f"v{b}"
def R(b, n): return list(range(b, b+n))
def srd(a, d, lo, size):
    a(f"s_mov_b32 s{d}, s{lo}\ns_mov_b32 s{d+1}, s{lo+1}\ns_mov_b32 s{d+2}, {size}\ns_mov_b32 s{d+3}, 0x20000")

sX, sLre, sLim, sBre, sBim, sCre, sCim, sLdt = 16, 18, 20, 22, 24, 26, 28, 30
sDsk, sBx, sWg, sWu, sWd, sGw, sOut, sDbg, sWs = 32, 34, 36, 38, 40, 42, 44, 46, 48

STAMP = False
TS_OFF = 0xB40000
def stamp(a, idx):
    if not STAMP or (STAMP == 2 and idx not in (0, 13)): return
    a(f"s_memrealtime s[100:101]\ns_waitcnt lgkmcnt(0)\nv_writelane_b32 v31, s100, {idx}")
def cstamp(a, idx):
    if not STAMP or STAMP == 2: return
    a(f"s_memtime s[100:101]\ns_waitcnt lgkmcnt(0)\nv_writelane_b32 v31, s100, {idx}")
def stamp_flush(a):
    if not STAMP: return
    srd(a, 96, sWs, 0xC00000)
    a(f"s_lshl_b32 s94, s2, 3\ns_add_u32 s94, s94, s93\ns_lshl_b32 s94, s94, 8\ns_add_u32 s94, s94, {TS_OFF}")
    a("s_mov_b64 exec, -1\nv_lshlrev_b32 v30, 2, v0\nbuffer_store_dword v31, v30, s[96:99], s94 offen")

def bf16_round(a, d, s, t):
    a(f"v_cvt_pk_bf16_f32 v{t}, v{s}, v{s}\nv_lshlrev_b32 v{d}, 16, v{t}")

class Sched:
    def __init__(s, a): s.a = a; s.n = 0; s.prod = {}; s.done = -1
    def read(s, ins, regs):
        s.a(ins)
        for r in regs: s.prod[r] = s.n
        s.n += 1
    def need(s, regs):
        k = max([s.prod.get(r, -1) for r in regs] + [-1])
        if k > s.done:
            s.a(f"s_waitcnt lgkmcnt({min(s.n - 1 - k, 15)})")
            s.done = k if s.n - 1 - k <= 15 else s.n - 16
    def all(s):
        if s.done < s.n - 1: s.a("s_waitcnt lgkmcnt(0)")
        s.done = s.n - 1
    def item(s, it):
        if isinstance(it, str): s.a(it)
        elif it[0] == 'lds': s.read(it[1], it[2])
        else: s.need(it[1]); s.a(it[2])

class VM:
    def __init__(s, a): s.a = a; s.ops = []; s.done = -1
    def op(s, ins, tag):
        if len(s.ops) - 1 - s.done >= 62:
            s.a("s_waitcnt vmcnt(56)"); s.done = len(s.ops) - 1 - 56
        s.a(ins); s.ops.append(tag)
    def wait(s, *tags, extra=""):
        k = max([i for i, t in enumerate(s.ops) if t in tags] + [-1])
        if k > s.done:
            n = min(len(s.ops) - 1 - k, 63)
            s.a(f"s_waitcnt vmcnt({n}){extra}")
            s.done = len(s.ops) - 1 - n
        elif extra: s.a("s_waitcnt" + extra)
    def copy(s):
        v = VM(s.a); v.ops = list(s.ops); v.done = s.done; return v

PARAM = 0; NONCE = 2048; XR = 4096; BLK = XR + 98304; EXT = XR + 147456
AGE_RE = EXT; AGE_IM = EXT + 1024; AGM_RE = EXT + 2048; AGM_IM = EXT + 8192; TSE = EXT + 4096
LDS1 = 163840
def page(p): return XR + p*8192
SPAGES = [8, 9]
KS = list(range(8)) + [5, 6, 7, 0, 1, 2, 3, 4]
XH = [0,0,0,1,1,1,1,1, 1,1,1,0,0,0,1,1]
XI = [0,1,2,0,1,2,0,1, 2,0,1,0,1,2,2,0]
XL = [1]*8 + [0,0,0,0,0,0,1,1]
ORD = [7*g + 2*j for g in range(4) for j in range(3)] + list(range(28, 44))
ORD += [s for s in range(28) if s not in ORD]
assert sorted(ORD) == list(range(44))
NA_, NH_ = 12, 28

def p2_schedule():
    Bp = {}; Biss = {}
    nb = 0
    def take(key, pages):
        nonlocal nb
        Biss.setdefault(key, [])
        for p in pages:
            if nb <= 43: Bp[nb] = p; Biss[key].append(nb); nb += 1
    take('b12', [0, 1, 2, 3]); take('b13', [4, 5, 13, 16]); take('b14', [10, 11, 14, 17]); take('Z', [6, 7, 12, 15])
    for k in range(22):
        fr = []
        if k == 1: fr += SPAGES
        if k >= 2: fr += [Bp[2*k-4], Bp[2*k-3]]
        take(k, fr)
    assert nb == 44
    return Bp, Biss

vXn = 16; vWa = 20; vXe = 24; vEa = 28; vWt = 30; vXp = 12
ACA = 32; ACB = 96; ACE = 160; FR = [176, 192]; FE = 208
def acc(base, w, m): return base + (w * 2 + m) * 16
def ace(comp, m): return ACE + (comp * 2 + m) * 4

def reads_main(kind, step, kk, st):
    b = FR[st]; slot = step % 3; xi = XI[step]
    xs, vx = (4096, vXn) if kind == 'G' else (1024, vXp)
    def xr(m): return [(f"ds_read_b128 {vr(b+4*m,4)}, v{vx+kk} offset:{XR + xi*16384 + m*xs}", R(b+4*m, 4))]
    def wr(w):
        d = b + 8 + 4*w
        if kind == 'G':
            off = w*24576 + slot*8192 + kk*2048
            return [(f"ds_read_b64_tr_b16 {vr(d,2)}, v{vWt} offset:{off}", R(d, 2)),
                    (f"ds_read_b64_tr_b16 {vr(d+2,2)}, v{vWt} offset:{off+512}", R(d+2, 2))]
        return [(f"ds_read_b128 {vr(d,4)}, v{vWa+kk} offset:{w*24576 + slot*8192}", R(d, 4))]
    return xr(0) + wr(0) + xr(1) + wr(1)

def reads_ext(step, k32):
    r = []; slot = step % 3; xi = XI[step]
    for m in range(2): r.append((f"ds_read_b128 {vr(FE+4*m,4)}, v{vXe+2*m+k32} offset:{XR + xi*16384}", R(FE+4*m, 4)))
    for cp in range(2): r.append((f"ds_read_b128 {vr(FE+8+4*cp,4)}, v{vEa+k32} offset:{slot*4096+cp*2048}", R(FE+8+4*cp, 4)))
    return r

def mfma_main(kind, base, st, first):
    r = []; b = FR[st]
    for w in range(2):
        for m in range(2):
            d = vr(acc(base, w, m), 16); X = vr(b+4*m, 4); W = vr(b+8+4*w, 4)
            c = "0" if first else d
            ins = f"v_mfma_f32_32x32x16_bf16 {d}, {W}, {X}, {c}" if kind == 'G' else f"v_mfma_f32_32x32x16_bf16 {d}, {X}, {W}, {c}"
            r.append((ins, R(b+4*m, 4) + R(b+8+4*w, 4)))
    return r

def mfma_ext(first):
    r = []
    for cp in range(2):
        for m in range(2):
            d = vr(ace(cp, m), 4)
            r.append((f"v_mfma_f32_16x16x32_bf16 {d}, {vr(FE+4*m,4)}, {vr(FE+8+4*cp,4)}, {'0' if first else d}", R(FE+4*m, 4) + R(FE+8+4*cp, 4)))
    return r

def cmul_pk(Rr, I, C, t1, t2):
    return [f"v_pk_mul_f32 {vr(t1,2)}, {vr(Rr,2)}, {vr(C,2)} op_sel:[0,0] op_sel_hi:[1,0]",
            f"v_pk_mul_f32 {vr(t2,2)}, {vr(Rr,2)}, {vr(C,2)} op_sel:[0,1] op_sel_hi:[1,1] neg_lo:[0,1] neg_hi:[0,1]",
            f"v_pk_fma_f32 {vr(Rr,2)}, {vr(I,2)}, {vr(C,2)}, {vr(t1,2)} op_sel:[0,1,0] op_sel_hi:[1,1,1] neg_lo:[0,1,0] neg_hi:[0,1,0]",
            f"v_pk_fma_f32 {vr(I,2)}, {vr(I,2)}, {vr(C,2)}, {vr(t2,2)} op_sel:[0,0,0] op_sel_hi:[1,0,1] neg_lo:[0,1,0] neg_hi:[0,1,0]"]
def cmul_s(Rr, I, cr, ci, t1, t2):
    return [f"v_mul_f32 v{t1}, v{Rr}, v{cr}", f"v_mul_f32 v{t2}, v{Rr}, v{ci}",
            f"v_fma_f32 v{Rr}, -v{I}, v{ci}, v{t1}", f"v_fma_f32 v{I}, -v{I}, v{cr}, -v{t2}"]
def flag_item(which):
    return f"v_mov_b32 v1, s15\nv_mov_b32 v2, 0\ns_mov_b64 exec, 1\nbuffer_store_dword v1, v2, s[64:67], s81 offen offset:{which*256} sc1\ns_mov_b64 exec, -1"
def merge(l1, l2):
    o = []; i = j = 0
    while i < len(l1) or j < len(l2):
        if j >= len(l2) or (i < len(l1) and i * len(l2) <= j * len(l1)): o.append(l1[i]); i += 1
        else: o.append(l2[j]); j += 1
    return o

def cmul2(Rr, I, C, t):
    o = []
    for par in range(2): o += cmul_s(Rr+par, I+par, C, C+1, t+2*par, t+2*par+1)
    return [o[0], o[4], o[1], o[5], o[2], o[6], o[3], o[7]]
def step2(dr, di, pr, pi, L, Rr, I, conj):
    o = []
    n1, n2 = ("", "-") if conj else ("-", "")
    for par in range(2): o += [f"v_fma_f32 v{dr+par}, v{pr+par}, v{L}, v{Rr+par}", f"v_fma_f32 v{di+par}, v{pi+par}, v{L}, v{I+par}"]
    for par in range(2): o += [f"v_fma_f32 v{dr+par}, {n1}v{pi+par}, v{L+1}, v{dr+par}", f"v_fma_f32 v{di+par}, {n2}v{pr+par}, v{L+1}, v{di+par}"]
    return o
def stores_last(l):
    st = [x for x in l if 'buffer_store' in (x if isinstance(x, str) else x[-1] if x[0] == 'need' else '')]
    return [x for x in l if x not in st] + st
def glu_epi(base, sbase, E0, P0, morder=(0, 1)):
    o = []; k = 0
    for m in morder:
        for half in range(2):
            E = E0 + (k & 1) * 8; P = P0 + (k & 1) * 4; k += 1
            gb, ub = acc(base, 0, m) + 8*half, acc(base, 1, m) + 8*half
            t = []
            for i in range(8): t.append(f"v_mul_f32 v{E+i}, s50, v{gb+i}")
            for i in range(8): t.append(f"v_exp_f32 v{E+i}, v{E+i}")
            for i in range(8): t.append(f"v_add_f32 v{E+i}, 1.0, v{E+i}")
            for i in range(8): t.append(f"v_rcp_f32 v{E+i}, v{E+i}")
            for i in range(8): t.append(f"v_mul_f32 v{E+i}, v{E+i}, v{ub+i}")
            for i in range(0, 8, 2): t.append(f"v_cvt_pk_bf16_f32 v{P+i//2}, v{E+i}, v{E+i+1}")
            t.append(f"s_add_u32 s5, s{sbase}, {(m*176 + half)*1024}\nbuffer_store_dwordx4 {vr(P,4)}, v6, s[64:67], s5 offen sc1")
            o.append(t)
    return o

PE = 224; PM = 228
def passB_fillers(M):
    F = {s: [] for s in range(8, 17)}
    lr, li = PE, PE+1
    LS = OPT['LS']
    f = F[7] = []
    f += [f"v_and_b32 v1, 15, v0", "v_lshlrev_b32 v1, 4, v1", ('lds', f"ds_read_b128 {vr(PE,4)}, v1 offset:{PARAM}", R(PE, 4))]
    if M: f += ["v_and_b32 v2, 31, v0", "v_lshlrev_b32 v2, 4, v2", "s_and_b32 s4, s3, 1\ns_lshl_b32 s4, s4, 9\nv_add_u32 v2, s4, v2",
                ('lds', f"ds_read_b128 {vr(PM,4)}, v2 offset:{PARAM + 256}", R(PM, 4))]
    f += [f"s_lshl_b32 s4, s3, 8\ns_add_u32 s4, s4, {EXT}\nv_lshlrev_b32 v5, 2, v0", "v_add_u32 v5, s4, v5"]
    if M: f += ["v_lshrrev_b32 v3, 5, v0", "v_lshlrev_b32 v3, 9, v3", "v_lshrrev_b32 v4, 2, v2", "v_add_u32 v3, v3, v4",
                f"s_lshr_b32 s4, s3, 1\ns_lshl_b32 s4, s4, 10\ns_add_u32 s4, s4, {EXT}\nv_add_u32 v3, s4, v3"]
    l1 = []; l2 = []
    if M:
        S = [216, 218]; T = [220, 222]; L = vr(PM, 2)
        for pos in range(1, 16):
            m, rr = pos >> 3, (pos & 7) * 2
            Rr = vr(acc(ACA, 0, m) + rr, 2); I = vr(acc(ACA, 1, m) + rr, 2)
            if pos == 1: pr, pi = vr(acc(ACA, 0, 0), 2), vr(acc(ACA, 1, 0), 2)
            else:
                src = S if (pos & 1) else T
                pr, pi = vr(src[0], 2), vr(src[1], 2)
            dst = T if (pos & 1) else S
            dr, di = vr(dst[0], 2), vr(dst[1], 2)
            l1.append(f"v_pk_fma_f32 {dr}, {pr}, {L}, {Rr} op_sel:[0,0,0] op_sel_hi:[1,0,1]")
            l1.append(f"v_pk_fma_f32 {di}, {pi}, {L}, {I} op_sel:[0,0,0] op_sel_hi:[1,0,1]")
            l1.append(f"v_pk_fma_f32 {dr}, {pi}, {L}, {dr} op_sel:[0,1,0] op_sel_hi:[1,1,1] neg_lo:[0,1,0] neg_hi:[0,1,0]")
            l1.append(f"v_pk_fma_f32 {di}, {pr}, {L}, {di} op_sel:[0,1,0] op_sel_hi:[1,1,1]")
        for par in range(2):
            l1.append(('lds', f"ds_write_b32 v3, v{T[0]+par} offset:{AGM_RE - EXT + par*256}", []))
            l1.append(('lds', f"ds_write_b32 v3, v{T[1]+par} offset:{AGM_IM - EXT + par*256}", []))
    S = [208, 209]; T = [210, 211]
    for pos in range(1, 8):
        Rr = ace(0, pos >> 2) + (pos & 3); I = ace(1, pos >> 2) + (pos & 3)
        if pos == 1: pr, pi = ace(0, 0), ace(1, 0)
        else: pr, pi = (S if (pos & 1) else T)
        dr, di = (T if (pos & 1) else S)
        l2 += [f"v_fma_f32 v{dr}, v{pr}, v{lr}, v{Rr}", f"v_fma_f32 v{di}, v{pi}, v{lr}, v{I}",
               f"v_fma_f32 v{dr}, -v{pi}, v{li}, v{dr}", f"v_fma_f32 v{di}, v{pr}, v{li}, v{di}"]
    l2 += [('lds', f"ds_write_b32 v5, v{T[0]} offset:{AGE_RE - EXT}", []), ('lds', f"ds_write_b32 v5, v{T[1]} offset:{AGE_IM - EXT}", [])]
    if M: F['ser'] = ["s_nop 15", "s_nop 7"] + merge(l1, l2) + ["s_nop 3"]
    else: F['ser'] = []; F[8] += l2
    pre_ = ["s_waitcnt vmcnt(0)", "v_mov_b32 v1, 0", ('lds', f"ds_read_b32 v1, v1 offset:{NONCE}", [1])]
    rest = [('need', [1], "v_readfirstlane_b32 s15, v1")]
    for m in range(2):
        for i in range(4): rest += cmul_s(ace(0, m)+i, ace(1, m)+i, PE+2, PE+3, 212 + (i & 1)*2, 213 + (i & 1)*2)
    rest += [f"s_lshl_b32 s4, s3, 10\ns_add_u32 s4, s4, {TSE}\nv_and_b32 v7, 15, v0", "v_lshlrev_b32 v7, 6, v7", "v_lshrrev_b32 v8, 4, v0", "v_lshl_add_u32 v7, v8, 4, v7", "v_add_u32 v7, s4, v7",
            "v_lshrrev_b32 v9, 5, v0", "v_lshlrev_b32 v9, 3, v9", "v_bfe_u32 v10, v0, 2, 2", "v_add_u32 v9, v9, v10",
            "v_bfe_u32 v10, v0, 4, 1", "v_lshlrev_b32 v10, 5, v10", "v_and_b32 v11, 3, v0", "v_lshl_add_u32 v10, v11, 3, v10",
            "v_lshl_add_u32 v8, v9, 6, v10", "v_add_u32 v8, s4, v8"]
    if M:
        rest += [f"s_mov_b32 s4, {page(SPAGES[0])}\ns_cmp_ge_u32 s3, 2\ns_cselect_b32 s4, {page(SPAGES[1])}, s4\ns_and_b32 s5, s3, 1\ns_lshl_b32 s5, s5, 12\ns_add_u32 s4, s4, s5\nv_and_b32 v11, 1, v0",
                "v_bfe_u32 v4, v0, 2, 1", "v_lshl_or_b32 v11, v4, 1, v11", "v_bfe_u32 v4, v0, 1, 1", "v_lshl_or_b32 v11, v4, 2, v11",
                "v_lshrrev_b32 v4, 5, v0", "v_lshlrev_b32 v4, 2, v4", "v_xor_b32 v11, v11, v4", "v_lshlrev_b32 v11, 4, v11",
                "v_and_b32 v4, 31, v0", "v_lshl_add_u32 v12, v4, 7, v11", "v_add_u32 v12, s4, v12"]
        rest += [f"v_xor_b32 v{12+i}, {i*16}, v12" for i in range(1, 4)]
        rest += ["v_bfe_u32 v11, v0, 2, 1", "v_bfe_u32 v4, v0, 3, 1", "v_lshl_or_b32 v11, v4, 2, v11", "v_lshlrev_b32 v11, 4, v11", "v_xor_b32 v11, v11, v10",
                "v_lshl_add_u32 v20, v9, 7, v11", "v_add_u32 v20, s4, v20", "v_xor_b32 v21, 32, v20", "v_add_u32 v21, 512, v21",
                "v_xor_b32 v22, 64, v20", "v_xor_b32 v23, 64, v21"]
        mid = list(pre_)
        for m in range(2):
            for rr in range(0, 16, 2):
                mid += cmul2(acc(ACA, 0, m)+rr, acc(ACA, 1, m)+rr, PM+2, 232 + ((rr >> 1) & 3) * 4)
        mid = mid[:3] + rest[:1] + ['s_nop 0', flag_item(0)] + mid[3:] + rest[1:] if OPT['gs'] == 2 else mid + rest + [flag_item(0)]
        st = list(range(8, LS))
        n = (len(mid) + len(st) - 1) // len(st)
        for i, s in enumerate(st): F[s] += mid[i*n:(i+1)*n]
    else:
        g = glu_epi(ACA, 14, 232, 248)
        if OPT['gs'] == 2:
            F[8] += ["s_waitcnt vmcnt(0)"] + g[0][:30]; F[9] += pre_[1:] + g[0][30:] + g[1] + g[2][:10]; F[10] += g[2][10:] + g[3]
            F[9] = stores_last(F[9])
            F[11] += rest[:1] + ["s_waitcnt vmcnt(0)\n" + flag_item(0)] + rest[1:25]; F[12] += rest[25:]
        elif OPT['gs'] == 0:
            F[9] += pre_ + g[0] + g[1][:20]; F[10] += g[1][20:] + g[2][:40]
            F[11] += g[2][40:] + g[3]
            F[9] = stores_last(F[9]); F[10] = stores_last(F[10])
            F[12] += rest + ["s_waitcnt vmcnt(0)\n" + flag_item(0)]
        else:
            F[9] += pre_ + g[0]; F[10] += g[1]; F[11] += g[2]; F[12] += rest; GL = g[3]
    IE = 208; IM = [216, 218]
    late = [('lds', f"ds_read_b32 v{IE}, v5 offset:{AGE_RE - EXT}", [IE]), ('lds', f"ds_read_b32 v{IE+1}, v5 offset:{AGE_IM - EXT}", [IE+1])]
    if M:
        for par in range(2):
            late += [('lds', f"ds_read_b32 v{IM[0]+par}, v3 offset:{AGM_RE - EXT + par*256}", [IM[0]+par]), ('lds', f"ds_read_b32 v{IM[1]+par}, v3 offset:{AGM_IM - EXT + par*256}", [IM[1]+par])]
    c = cmul_s(IE, IE+1, PE+2, PE+3, 212, 213); c[0] = ('need', [IE, IE+1], c[0]); late += c
    if M:
        c = cmul2(IM[0], IM[1], PM+2, 220); c[0] = ('need', R(216, 4), c[0]); late += c
    l1 = []; l2 = []
    for pos in range(8):
        Rr = ace(0, pos >> 2) + (pos & 3); I = ace(1, pos >> 2) + (pos & 3)
        if pos == 0: pr, pi = IE, IE+1
        else: pr, pi = ace(0, (pos-1) >> 2) + ((pos-1) & 3), ace(1, (pos-1) >> 2) + ((pos-1) & 3)
        l2 += [f"v_fma_f32 v{Rr}, v{pr}, v{lr}, v{Rr}", f"v_fma_f32 v{I}, v{pi}, v{lr}, v{I}",
               f"v_fma_f32 v{Rr}, v{pi}, v{li}, v{Rr}", f"v_fma_f32 v{I}, -v{pr}, v{li}, v{I}"]
    for cp in range(2):
        for d in range(4):
            b = ace(cp, d >> 1) + (d & 1)*2
            l2.append(f"v_cvt_pk_bf16_f32 v{232+4*cp+d}, v{b}, v{b+1}")
    for cp in range(2):
        l2 += [('lds', f"ds_write_b128 v7, {vr(232+4*cp,4)}", []), ('lds', f"ds_read_b64_tr_b16 {vr(240+4*cp,2)}, v8", R(240+4*cp, 2)),
               ('lds', f"ds_read_b64_tr_b16 {vr(242+4*cp,2)}, v8 offset:256", R(242+4*cp, 2))]
    l2 += ["s_nop 0"] * 6
    l2 += [('need', R(240, 4), f"buffer_store_dwordx4 {vr(240,4)}, v6, s[64:67], s82 offen sc1"), ('need', R(244, 4), f"buffer_store_dwordx4 {vr(244,4)}, v6, s[64:67], s83 offen sc1")]
    if M:
        for pos in range(16):
            m, rr = pos >> 3, (pos & 7) * 2
            if pos == 0: pr, pi = IM
            else:
                pm, prr = (pos-1) >> 3, ((pos-1) & 7) * 2
                pr, pi = acc(ACA, 0, pm)+prr, acc(ACA, 1, pm)+prr
            Rr, I = acc(ACA, 0, m) + rr, acc(ACA, 1, m) + rr
            l1 += step2(Rr, I, pr, pi, PM, Rr, I, True)
    late += merge(l1, [x for x in l2 if x != "s_nop 0"] if M else l2)
    if M:
        for comp in range(2):
            PB = 216 if comp == 0 else 232
            k = 0
            for par in range(2):
                for m in range(2):
                    b = acc(ACA, comp, m); P = PB + 4*k
                    for aa in range(4): late.append(f"v_cvt_pk_bf16_f32 v{P+aa}, v{b+4*aa+par}, v{b+4*aa+2+par}")
                    late.append(('lds', f"ds_write_b128 v{12+2*par+m}, {vr(P,4)}", []))
                    k += 1
            k = 0
            for mt in range(2):
                for u in range(2):
                    d = acc(ACA, comp, 0) + 4*k
                    late.append(('lds', f"ds_read_b64_tr_b16 {vr(d,2)}, v{20+2*mt} offset:{u*2048}", R(d, 2)))
                    late.append(('lds', f"ds_read_b64_tr_b16 {vr(d+2,2)}, v{21+2*mt} offset:{u*2048}", R(d+2, 2)))
                    k += 1
        for comp in range(2):
            k = 0
            for mt in range(2):
                for u in range(2):
                    d = acc(ACA, comp, 0) + 4*k
                    late.append(('need', R(d, 4), f"s_add_u32 s5, s80, {(mt*176 + 4*comp + u)*1024}\nbuffer_store_dwordx4 {vr(d,4)}, v6, s[64:67], s5 offen sc1"))
                    k += 1
    st = list(range(LS, 16))
    if M:
        n = OPT['capM']
        for i, s in enumerate(st): F[s] += late[i*n:(i+1)*n]
        F[16] += late[len(st)*n:]
        F[LS] = F[LS];
        for s in st: F[s] = stores_last(F[s])
    elif OPT['gs'] in (0, 2):
        F[LS] += late
    else:
        F[13] += late; F[14] += GL; F[15] += ["s_waitcnt vmcnt(0)\n" + flag_item(0)]
    return F

def p1_consumer(a, M):
    S = Sched(a)
    kindA = 'S' if M else 'G'
    F = passB_fillers(M)
    stamp(a, 1)
    a("s_barrier")
    stamp(a, 2); cstamp(a, 56)
    for x in reads_main(kindA, 0, 0, 0): S.read(*x)
    for s in range(16):
        slot = s % 3
        kind = kindA if s < 8 else 'G'
        base = ACA if s < 8 else ACB
        for kk in range(4):
            st = kk & 1
            rd = []
            if kk == 3:
                if s < 15:
                    S.all()
                    if OPT['fine']: stamp(a, 16 + s)
                    a("s_barrier")
                    if XH[s+1] != XH[s]:
                        op = "v_add_u32" if XH[s+1] else "v_subrev_u32"
                        for r_ in (list(range(12, 20)) + list(range(24, 28)) if s < 8 else range(16, 20)): a(f"{op} v{r_}, 49152, v{r_}")
                    rd = reads_main(kindA if s + 1 < 8 else 'G', s+1, 0, 0)
            else:
                rd = reads_main(kind, s, kk+1, st ^ 1)
            if s < 8 and kk in (0, 2): rd = rd + reads_ext(s, kk >> 1)
            mf = mfma_main(kind, base, st, (s in (0, 8)) and kk == 0)
            if s < 8 and kk in (1, 3): mf = mf[:2] + mfma_ext(s == 0 and kk == 1) + mf[2:]
            fs = s + 1 if kk == 3 else s
            fl = []
            if fs >= 7 and not (kk == 3 and s in (6, 7)) and not OPT['noF']:
                q = F[fs]
                nblk = {7: 3, 8: 3, 16: 1}.get(fs, 4)
                bi = kk if fs in (7, 8) else (0 if kk == 3 else kk + 1)
                if fs == 16: fl = q[:16]; F[16] = q[16:]
                else:
                    n = (len(q) + nblk - 1) // nblk
                    fl = q[bi*n:(bi+1)*n]
            rd = list(rd); fl = list(fl)
            nf = (len(fl) + len(mf) - 1) // len(mf) if fl else 0
            for i, (ins, regs) in enumerate(mf):
                S.need(regs); a(ins)
                for _ in range(OPT['per1']):
                    if rd: S.read(*rd.pop(0))
                if s == 8 and kk == 0 and i < 2: continue
                for _ in range(nf + (1 if s == 8 and kk == 0 else 0) * nf):
                    if fl: S.item(fl.pop(0))
            for x in rd: S.read(*x)
            for x in fl: S.item(x)
            if kk == 3 and s == OPT['tw'] and not OPT['ts']: touches(a, 2)
            if kk == 3 and OPT['ts']:
                for sub, st_ in enumerate([int(c) for c in str(OPT['ts'])]):
                    if s == st_: touch_sub(a, sub)
            if kk == 3 and s == 7:
                for x in F['ser']: S.item(x)
        if s == 3: stamp(a, 3); cstamp(a, 57)
        if s == 7: stamp(a, 4); cstamp(a, 58)
    stamp(a, 5); cstamp(a, 61)
    if not OPT['noF']:
        for x in F[16]: S.item(x)
    S.all()
    stamp(a, 8)

def touches(a, part):
    l1 = a.lab(); l2 = a.lab()
    lo, hi = {0: (1, 8), 1: (1, 4), 2: (4, 8)}[part]
    a(f"s_cmp_lg_u32 s3, 1\ns_cbranch_scc1 {l1}")
    srd(a, 52, sX, 2097152); srd(a, 56, sWg, 1835008); srd(a, 60, sWu, 1835008)
    a(f"v_and_b32 v1, 7, v0\nv_min_u32 v1, {hi-lo-1}, v1\nv_lshlrev_b32 v1, 7, v1\nv_lshrrev_b32 v2, 3, v0\nv_lshl_add_u32 v1, v2, 10, v1\ns_lshl_b32 s4, s2, 13\ns_add_u32 s4, s4, {lo*128}")
    a("buffer_load_dword v8, v1, s[52:55], s4 offen")
    r0 = 0 if part == 0 else 64*lo
    nl = (64*hi - r0) * 28 // 256
    a(f"v_min_u32 v1, {nl-1}, v0\nv_lshlrev_b32 v1, 7, v1\ns_mul_i32 s4, s2, {nl*128}\ns_add_u32 s4, s4, {r0*3584}")
    a("buffer_load_dword v8, v1, s[56:59], s4 offen\nbuffer_load_dword v8, v1, s[60:63], s4 offen")
    if part == 2:
        a(f"v_min_u32 v1, 6, v0\nv_lshlrev_b32 v1, 7, v1\ns_mul_i32 s4, s2, {7*128}")
        a("buffer_load_dword v8, v1, s[56:59], s4 offen\nbuffer_load_dword v8, v1, s[60:63], s4 offen")
    a.label(l1)
    a(f"s_cmp_lg_u32 s3, 2\ns_cbranch_scc1 {l2}")
    if part in (0, 1):
        srd(a, 52, sBre, 524288); srd(a, 56, sBim, 524288)
        a("v_and_b32 v1, 15, v0\nv_lshlrev_b32 v1, 7, v1\ns_lshl_b32 s4, s2, 11\nbuffer_load_dword v8, v1, s[52:55], s4 offen\nbuffer_load_dword v8, v1, s[56:59], s4 offen")
    if part in (0, 2):
        srd(a, 52, sWd, 1835008); srd(a, 56, sCre, 524288); srd(a, 60, sCim, 524288)
        a("v_and_b32 v1, 15, v0\nv_lshlrev_b32 v1, 7, v1\ns_lshl_b32 s4, s2, 11\nbuffer_load_dword v8, v1, s[56:59], s4 offen\nbuffer_load_dword v8, v1, s[60:63], s4 offen")
        a(f"v_min_u32 v1, 55, v0\nv_lshlrev_b32 v1, 7, v1\ns_mul_i32 s4, s2, {56*128}\nbuffer_load_dword v8, v1, s[52:55], s4 offen")
    a.label(l2)

def touch_sub(a, sub):
    l = a.lab()
    a(f"s_cmp_lg_u32 s3, {1 + (sub >> 1)}\ns_cbranch_scc1 {l}")
    if sub == 0:
        srd(a, 52, sX, 2097152); srd(a, 56, sWg, 1835008)
        a(f"v_and_b32 v1, 7, v0\nv_min_u32 v1, 3, v1\nv_lshlrev_b32 v1, 7, v1\nv_lshrrev_b32 v2, 3, v0\nv_lshl_add_u32 v1, v2, 10, v1\ns_lshl_b32 s4, s2, 13\ns_add_u32 s4, s4, 512")
        a("buffer_load_dword v8, v1, s[52:55], s4 offen")
        a(f"v_min_u32 v1, 27, v0\nv_lshlrev_b32 v1, 7, v1\ns_mul_i32 s4, s2, {28*128}\ns_add_u32 s4, s4, {256*3584}\nbuffer_load_dword v8, v1, s[56:59], s4 offen")
        srd(a, 60, sWu, 1835008)
        a("buffer_load_dword v8, v1, s[60:63], s4 offen")
    elif sub == 1:
        srd(a, 56, sWg, 1835008); srd(a, 60, sWu, 1835008)
        a(f"v_min_u32 v1, 6, v0\nv_lshlrev_b32 v1, 7, v1\ns_mul_i32 s4, s2, {7*128}")
        a("buffer_load_dword v8, v1, s[56:59], s4 offen\nbuffer_load_dword v8, v1, s[60:63], s4 offen")
    elif sub == 2:
        srd(a, 52, sWd, 1835008)
        a(f"v_min_u32 v1, 55, v0\nv_lshlrev_b32 v1, 7, v1\ns_mul_i32 s4, s2, {56*128}\nbuffer_load_dword v8, v1, s[52:55], s4 offen")
    else:
        srd(a, 56, sCre, 524288); srd(a, 60, sCim, 524288)
        a("v_and_b32 v1, 15, v0\nv_lshlrev_b32 v1, 7, v1\ns_lshl_b32 s4, s2, 11\nbuffer_load_dword v8, v1, s[56:59], s4 offen\nbuffer_load_dword v8, v1, s[60:63], s4 offen")
    a.label(l)

def p1_consumer_prologue(a, code_end):
    srd(a, 64, sWs, WS_USED)
    l_np = a.lab(); l_nn = a.lab(); l_n2 = a.lab(); l_n1 = a.lab()
    a(f"s_cmp_lg_u32 s3, {3 if OPT['cpf'] else 77}\ns_cbranch_scc1 {l_np}")
    a(f"s_mov_b32 s4, {code_end} - {NAME}_kernel - 8\nv_lshlrev_b32 v1, 7, v0")
    a("s_lshr_b32 s5, s2, 3\ns_and_b32 s5, s5, 7\ns_lshl_b32 s5, s5, 13\nv_add_u32 v2, s5, v1\nv_min_u32 v2, s4, v2\nglobal_load_dword v8, v2, s[90:91]")
    a.label(l_np)
    a(f"s_cmp_lg_u32 s3, 0\ns_cbranch_scc1 {l_nn}")
    srd(a, 60, sDbg, 256)
    a("s_memrealtime s[14:15]\nv_mov_b32 v9, 0\nv_mov_b32 v11, 0\ns_waitcnt lgkmcnt(0)\ns_or_b32 s14, s14, 1")
    a("v_mov_b32 v10, s14\ns_mov_b64 exec, 1")
    a("buffer_atomic_cmpswap v[10:11], v9, s[60:63], 0 offen sc0\ns_mov_b64 exec, -1")
    a.label(l_nn)
    touches(a, 0 if OPT['tw'] < 0 else 1)
    a("v_bfe_u32 v1, v0, 2, 2\nv_and_b32 v2, 3, v0\nv_lshl_add_u32 v3, v1, 3, v2")
    a("v_and_b32 v4, 2, v0\nv_bfe_u32 v5, v0, 3, 1\nv_lshl_or_b32 v4, v5, 2, v4\nv_lshrrev_b32 v5, 4, v0\nv_xor_b32 v4, v4, v5")
    a(f"v_lshlrev_b32 v4, 4, v4\nv_lshl_add_u32 v{vXe}, v3, 7, v4\ns_lshl_b32 s4, s3, 12\nv_add_u32 v{vXe}, s4, v{vXe}")
    a(f"v_xor_b32 v{vXe+1}, 64, v{vXe}\nv_xor_b32 v{vXe+2}, 16, v{vXe}\nv_add_u32 v{vXe+2}, 512, v{vXe+2}\nv_xor_b32 v{vXe+3}, 64, v{vXe+2}")
    a("v_and_b32 v3, 15, v0\nv_lshrrev_b32 v4, 1, v3\nv_xor_b32 v4, v4, v5\nv_lshlrev_b32 v4, 4, v4")
    a(f"v_lshl_add_u32 v{vEa}, v3, 7, v4\nv_add_u32 v{vEa}, {EXT}, v{vEa}\nv_xor_b32 v{vEa+1}, 64, v{vEa}")
    a(f"s_lshr_b32 s4, s3, 1\ns_lshl_b32 s4, s4, 13\ns_and_b32 s51, s3, 1")
    for perm, vx in ((0, vXn), (1, vXp)):
        if not perm: a("v_and_b32 v1, 31, v0")
        else:
            a("v_bfe_u32 v1, v0, 2, 1\nv_lshlrev_b32 v1, 5, v1\nv_and_b32 v2, 1, v0\nv_lshl_or_b32 v1, v2, 4, v1")
            a("v_bfe_u32 v2, v0, 3, 2\nv_lshl_or_b32 v1, v2, 1, v1\nv_bfe_u32 v2, v0, 1, 1\nv_or_b32 v1, v1, v2")
        a("v_bfe_u32 v2, v1, 2, 1\nv_and_b32 v3, 2, v1\nv_or_b32 v2, v2, v3\nv_bfe_u32 v3, v1, 4, 1\nv_lshl_or_b32 v2, v3, 2, v2")
        a(f"v_lshrrev_b32 v3, 5, v0\nv_xor_b32 v2, v2, v3\nv_lshlrev_b32 v2, 4, v2\nv_lshl_add_u32 v{vx}, v1, 7, v2\nv_add_u32 v{vx}, s4, v{vx}")
        for kk in range(1, 4): a(f"v_xor_b32 v{vx+kk}, {kk*32}, v{vx}")
    a("v_lshrrev_b32 v1, 5, v0\nv_lshlrev_b32 v1, 3, v1\nv_bfe_u32 v2, v0, 2, 2\nv_add_u32 v1, v1, v2")
    a("v_bfe_u32 v2, v0, 4, 1\nv_lshlrev_b32 v2, 5, v2\nv_and_b32 v3, 3, v0\nv_lshl_add_u32 v2, v3, 3, v2")
    a("v_bfe_u32 v3, v0, 3, 1\nv_lshlrev_b32 v3, 6, v3\nv_xor_b32 v2, v2, v3")
    a(f"s_lshl_b32 s5, s51, 6\nv_xor_b32 v2, s5, v2\nv_lshl_add_u32 v{vWt}, v1, 7, v2\nv_add_u32 v{vWt}, {BLK}, v{vWt}")
    a(f"s_lshl_b32 s5, s51, 12\ns_add_u32 s5, s5, {BLK}")
    a("v_and_b32 v1, 31, v0\nv_bfe_u32 v2, v0, 1, 3\nv_lshrrev_b32 v3, 5, v0\nv_xor_b32 v2, v2, v3\nv_lshlrev_b32 v2, 4, v2")
    a(f"v_lshl_add_u32 v{vWa}, v1, 7, v2\nv_add_u32 v{vWa}, s5, v{vWa}")
    for kk in range(1, 4): a(f"v_xor_b32 v{vWa+kk}, {kk*32}, v{vWa}")
    a("v_lshlrev_b32 v6, 4, v0")
    a(f"s_lshl_b32 s81, s6, 10\ns_lshl_b32 s4, s13, 4\ns_add_u32 s81, s81, s4\ns_lshl_b32 s4, s3, 2\ns_add_u32 s81, s81, s4\ns_add_u32 s81, s81, {FLG_OFF}")
    a("s_lshr_b32 s4, s3, 1\ns_lshl_b32 s4, s4, 1\ns_lshl_b32 s5, s6, 2\ns_add_u32 s4, s4, s5\ns_mul_i32 s79, s4, 176")
    a("s_lshl_b32 s5, s51, 1\ns_add_u32 s4, s79, s5\ns_lshr_b32 s5, s9, 4\ns_add_u32 s4, s4, s5\ns_lshl_b32 s78, s4, 10")
    a("s_xor_b32 s5, s12, 1\ns_lshl_b32 s5, s5, 12\ns_add_u32 s77, s78, s5")
    a("s_lshl_b32 s5, s8, 4\ns_add_u32 s4, s79, s5\ns_add_u32 s4, s4, 120\ns_lshl_b32 s5, s51, 1\ns_add_u32 s4, s4, s5\ns_lshl_b32 s80, s4, 10")
    a("s_lshl_b32 s4, s6, 2\ns_add_u32 s4, s4, s3\ns_mul_i32 s4, s4, 176\ns_lshl_b32 s5, s8, 4\ns_add_u32 s4, s4, s5\ns_add_u32 s4, s4, s7\ns_add_u32 s4, s4, 112\ns_lshl_b32 s82, s4, 10\ns_add_u32 s83, s82, 4096")
    a(f"s_mov_b32 s50, {NLOG2E}\ns_mov_b32 s51, {NLOG2E}")

def nonce_finish(a):
    l = a.lab()
    return (f"s_cmp_lg_u32 s3, 0\ns_cbranch_scc1 {l}\ns_waitcnt vmcnt(0)\nv_mov_b32 v9, s14\nv_cmp_eq_u32 vcc, 0, v10\ns_mov_b64 exec, 1\nv_mov_b32 v11, 0\n"
            f"v_cndmask_b32 v10, v10, v9, vcc\nds_write_b32 v11, v10 offset:{NONCE}\ns_waitcnt lgkmcnt(0)\ns_mov_b64 exec, -1\n{l}:\ns_mov_b32 s14, s78")

def p2_ids(a):
    a("s_and_b32 s4, s2, 7\ns_lshr_b32 s5, s2, 3\ns_lshl_b32 s84, s4, 2\ns_lshr_b32 s4, s5, 3\ns_add_u32 s84, s84, s4\ns_and_b32 s85, s5, 7")

def p2_consumer(a):
    Bp, Biss = p2_schedule()
    p2_ids(a)
    a("s_and_b32 s8, s3, 1\ns_lshr_b32 s9, s3, 1")
    srd(a, 52, sX, 2097152); srd(a, 56, sDsk, 1024); srd(a, 60, sOut, 4194304)
    XV = 96; GV = 112; DV = 128; OM = 132
    a("s_lshl_b32 s10, s84, 6\ns_lshl_b32 s4, s9, 5\ns_add_u32 s10, s10, s4")
    a("s_lshl_b32 s11, s85, 6\ns_lshl_b32 s4, s8, 5\ns_add_u32 s11, s11, s4")
    a("v_and_b32 v1, 31, v0\nv_add_u32 v1, s11, v1\nv_lshrrev_b32 v2, 5, v0\nv_lshlrev_b32 v2, 2, v2\nv_add_u32 v2, s10, v2")
    a("v_lshlrev_b32 v3, 1, v1\nv_lshl_add_u32 v4, v2, 10, v3")
    a("v_lshlrev_b32 v5, 2, v1\nv_lshl_add_u32 v5, v2, 11, v5")
    a(f"v_lshlrev_b32 v10, 2, v2\nv_add_u32 v10, {G_OFF}, v10")
    a("s_lshl_b32 s4, s84, 1\ns_add_u32 s4, s4, s9\ns_mul_i32 s4, s4, 176\ns_lshl_b32 s5, s8, 1\ns_add_u32 s4, s4, s5\ns_lshl_b32 s80, s4, 10")
    V = VM(a)
    V.ops = ['H'] * 10
    ld = []
    for i in range(16):
        row = 8*(i >> 2) + (i & 3)
        ld.append((f"s_mov_b32 s4, {row*1024}", f"buffer_load_ushort v{XV+i}, v4, s[52:55], s4 offen"))
    for q in range(4): ld.append((None, f"buffer_load_dwordx4 {vr(GV+4*q,4)}, v10, s[64:67], 0 offen offset:{q*32} sc1"))
    ld.append((None, f"buffer_load_ushort v{DV}, v3, s[56:59], 0 offen"))
    vBw, vBc = 12, 18
    a("v_lshrrev_b32 v7, 5, v0\nv_lshlrev_b32 v7, 2, v7\nv_bfe_u32 v8, v0, 2, 2\nv_add_u32 v7, v7, v8")
    a("v_bfe_u32 v8, v0, 4, 1\nv_lshlrev_b32 v8, 5, v8\nv_and_b32 v9, 3, v0\nv_lshl_add_u32 v8, v9, 3, v8\nv_bfe_u32 v9, v0, 3, 1\nv_lshlrev_b32 v9, 6, v9\nv_xor_b32 v8, v8, v9")
    a(f"s_lshl_b32 s4, s8, 12\nv_lshl_add_u32 v{vBw}, v7, 7, v8\nv_add_u32 v{vBw}, s4, v{vBw}\nv_xor_b32 v{vBw+1}, 64, v{vBw}")
    a("v_and_b32 v7, 31, v0\nv_bfe_u32 v8, v0, 1, 3\nv_lshrrev_b32 v9, 5, v0\nv_xor_b32 v8, v8, v9\ns_lshl_b32 s4, s8, 2\nv_xor_b32 v8, s4, v8\nv_lshlrev_b32 v8, 4, v8")
    a(f"v_lshl_add_u32 v{vBc}, v7, 7, v8\nv_xor_b32 v{vBc+1}, 32, v{vBc}")
    W = 57344
    for t in range(1, 3):
        for e in range(2):
            a(f"v_add_u32 v{vBw+2*t+e}, {t*W}, v{vBw+e}\nv_add_u32 v{vBc+2*t+e}, {t*W}, v{vBc+e}")
    AB, AY = 32, 64
    def F(p): return 176 + (p & 3) * 16
    AREGS = [240, 244, 248, 252, 160, 164, 168, 172, 24, 148, 152, 156]
    NAR = 12
    def areg(p, e): return AREGS[(2*p + e) % NAR]
    SC = " sc1" if OPT['sc1_a'] else ""
    def loadA(p):
        for e in range(2):
            a(f"s_add_u32 s4, s80, {ORD[p]*4096 + e*1024}")
            V.op(f"buffer_load_dwordx4 {vr(areg(p,e),4)}, v6, s[64:67], s4 offen{SC}", ('A', p, e))
    def win(addr): t = min((addr - XR) // W, 2); return t, addr - t*W
    def isy(p): return NA_ <= p < NH_
    def reads(p):
        tb, ob = win(page(Bp[p]))
        r = []; f = F(p)
        for e in range(2):
            for nt in range(2):
                d = f + (e*2+nt)*4
                if not isy(p):
                    r.append((f"ds_read_b64_tr_b16 {vr(d,2)}, v{vBw+2*tb+nt} offset:{ob + e*2048}", R(d, 2)))
                    r.append((f"ds_read_b64_tr_b16 {vr(d+2,2)}, v{vBw+2*tb+nt} offset:{ob + e*2048 + 1024}", R(d+2, 2)))
                else:
                    r.append((f"ds_read_b128 {vr(d,4)}, v{vBc+2*tb+e} offset:{ob + nt*4096}", R(d, 4)))
        return r
    pre = [f"v_lshlrev_b32 v{DV}, 16, v{DV}", "s_mov_b32 s12, 0xffff0000"]
    for i in range(0, 16, 2):
        for e in range(2):
            pre += [f"v_lshlrev_b32 v{XV+i+e}, 16, v{XV+i+e}", f"v_mul_f32 v{XV+i+e}, v{XV+i+e}, v{DV}", f"v_sub_f32 v{OM+i+e}, 1.0, v{GV+i+e}"]
        pre += [f"v_cvt_pk_bf16_f32 v{DV+1}, v{XV+i}, v{XV+i+1}", f"v_cvt_pk_bf16_f32 v{DV+2}, v{OM+i}, v{OM+i+1}",
                f"v_lshlrev_b32 v{XV+i}, 16, v{DV+1}", f"v_and_b32 v{XV+i+1}, s12, v{DV+1}",
                f"v_lshlrev_b32 v{OM+i}, 16, v{DV+2}", f"v_and_b32 v{OM+i+1}, s12, v{DV+2}"]
    epiB = glu_epi(ACB, 77, 64, 80, (1, 0))
    S = Sched(a)
    na = 0
    KH, KB = OPT['KH'], OPT['KB']
    def allowed(p, k): return (p < NA_) or (p < NH_ and k > KH) or k > KB
    for k in range(23):
        if k == 0: stamp(a, 6)
        if k < 22: a("s_barrier")
        if k == 0: stamp(a, 9); cstamp(a, 59)
        if k < 22 and (OPT['fine'] or k in (5, 12, 19)): stamp(a, 32+k)
        if k == 14: stamp(a, 10)
        rd = reads(2*k) + reads(2*k+1) if k < 22 else []
        if k == 0:
            while na < 4: loadA(na); na += 1
            for x in rd: S.read(*x)
            for x in epiB[0] + epiB[1]:
                a(x)
                if 'buffer_store' in x: V.ops.append('E')
            V.wait('H'); a(flag_item(1)); V.ops.append('F')
            while na < NAR // 2: loadA(na); na += 1
            eb = epiB[2] + epiB[3]
        else:
            rd = list(rd)
            for p in (2*k-2, 2*k-1):
                f = F(p)
                for e in range(2):
                    V.wait(('A', p, e))
                    for nt in range(2):
                        d = vr((AY if isy(p) else AB) + 16*nt, 16)
                        c = "0" if (p in (0, NA_) and e == 0) else d
                        S.need(R(f+(e*2+nt)*4, 4))
                        a(f"v_mfma_f32_32x32x16_bf16 {d}, {vr(areg(p,e),4)}, {vr(f+(e*2+nt)*4,4)}, {c}")
                        for _ in range(OPT['per2']):
                            if rd: S.read(*rd.pop(0))
                        for _ in range(4):
                            if eb:
                                x = eb.pop(0); a(x)
                                if 'buffer_store' in x: V.ops.append('E')
                while na <= 43 and na < p + 1 + NAR // 2 and allowed(na, k): loadA(na); na += 1
            for x in rd: S.read(*x)
        if k == 4:
            assert not eb
            V.wait('E'); a(flag_item(2)); V.ops.append('F')
        if 5 <= k < 5 + 7:
            for (p_, ins) in ld[(k-5)*3:(k-5)*3+3]:
                if p_: a(p_)
                V.op(ins, 'L')
        if k == 14: V.wait('L')
        if 14 <= k < 21:
            n = (len(pre) + 6) // 7
            for x in pre[(k-14)*n:(k-13)*n]: a(x)
    assert na == 44
    stamp(a, 11); cstamp(a, 60)
    used = {Bp[40], Bp[41], Bp[42], Bp[43]}
    xp = [page(p) for p in range(18) if p not in used][:4]
    a(f"s_mov_b32 s4, {xp[0]}\ns_mov_b32 s5, {xp[1]}\ns_cmp_eq_u32 s9, 1\ns_cselect_b32 s4, {xp[2]}, s4\ns_cselect_b32 s5, {xp[3]}, s5")
    a("s_cmp_eq_u32 s8, 1\ns_cselect_b32 s10, s5, s4\ns_cselect_b32 s11, s4, s5")
    a("v_lshlrev_b32 v7, 4, v0\nv_add_u32 v8, s10, v7\nv_add_u32 v9, s11, v7")
    lk1 = a.lab(); lj = a.lab()
    a(f"s_nop 4\ns_cbranch_scc1 {lk1}")
    RB, RY = 176, 192
    for kh in range(2):
        if kh == 1: a.label(lk1)
        sn = kh ^ 1
        for q in range(4):
            a(f"ds_write_b128 v8, {vr(AB+16*sn+4*q,4)} offset:{q*1024}\nds_write_b128 v8, {vr(AY+16*sn+4*q,4)} offset:{4096+q*1024}")
        for i in range(0, 16, 2): a(f"v_pk_add_f32 {vr(AY+16*kh+i,2)}, {vr(AY+16*kh+i,2)}, {vr(XV+i,2)}")
        a("s_waitcnt lgkmcnt(0)\ns_barrier")
        for q in range(4):
            a(f"ds_read_b128 {vr(RB+4*q,4)}, v9 offset:{q*1024}\nds_read_b128 {vr(RY+4*q,4)}, v9 offset:{4096+q*1024}")
        for q in range(4):
            a(f"s_waitcnt lgkmcnt({6-2*q})")
            for i in range(4*q, 4*q+4, 2):
                a(f"v_pk_add_f32 {vr(RB+i,2)}, {vr(RB+i,2)}, {vr(AB+16*kh+i,2)}\nv_pk_add_f32 {vr(RY+i,2)}, {vr(RY+i,2)}, {vr(AY+16*kh+i,2)}")
        if kh == 0: a(f"s_branch {lj}")
    a.label(lj)
    for i in range(0, 16, 2):
        T = 224 + (i & 6)
        a(f"v_cvt_pk_bf16_f32 v{T}, v{RB+i}, v{RB+i+1}\nv_pk_mul_f32 {vr(RY+i,2)}, {vr(RY+i,2)}, {vr(GV+i,2)}")
        a(f"v_lshlrev_b32 v{RB+i}, 16, v{T}\nv_and_b32 v{RB+i+1}, s12, v{T}")
        a(f"v_pk_mul_f32 {vr(RB+i,2)}, {vr(RB+i,2)}, {vr(OM+i,2)}\nv_cvt_pk_bf16_f32 v{T}, v{RB+i}, v{RB+i+1}")
        a(f"v_lshlrev_b32 v{RB+i}, 16, v{T}\nv_and_b32 v{RB+i+1}, s12, v{T}")
        a(f"v_pk_add_f32 {vr(RY+i,2)}, {vr(RY+i,2)}, {vr(RB+i,2)}")
        for e in range(2):
            row = 8*((i+e) >> 2) + ((i+e) & 3)
            a(f"s_mov_b32 s4, {row*2048}\nbuffer_store_dword v{RY+i+e}, v5, s[60:63], s4 offen")
    stamp(a, 12)
    if STAMP: a("s_waitcnt vmcnt(0)")
    stamp(a, 13)
    stamp_flush(a)
    a("s_endpgm")

def loader_pre(a):
    if OPT['prio']: a(f"s_setprio {OPT['prio']}")
    a("v_lshrrev_b32 v1, 3, v0\nv_and_b32 v2, 7, v0")
    a("v_lshrrev_b32 v3, 5, v0\nv_and_b32 v4, 2, v1\nv_or_b32 v3, v3, v4\nv_xor_b32 v3, v3, v2\nv_lshlrev_b32 v3, 4, v3\nv_lshl_add_u32 v10, v1, 10, v3\nv_xor_b32 v11, 64, v10")
    a("v_bfe_u32 v3, v0, 4, 1\nv_lshlrev_b32 v3, 2, v3\nv_xor_b32 v3, v3, v2\nv_lshlrev_b32 v3, 4, v3\ns_movk_i32 s4, 3584\nv_mad_u32_u24 v16, v1, s4, v3\nv_lshl_add_u32 v15, v1, 10, v3")
    a("v_lshrrev_b32 v4, 4, v0\nv_xor_b32 v3, v4, v2\nv_lshlrev_b32 v3, 4, v3\nv_lshl_add_u32 v28, v1, 10, v3\nv_xor_b32 v29, 64, v28")
    a("s_cmp_eq_u32 s12, 1\ns_cselect_b64 vcc, -1, 0\nv_cndmask_b32 v12, v16, v28, vcc\nv_cndmask_b32 v13, v16, v29, vcc")
    a("s_and_b32 s14, s3, 1")
    a("s_mul_i32 s4, s14, 114688\ns_lshl_b32 s5, s9, 1\ns_add_u32 s70, s4, s5\ns_lshl_b32 s4, s14, 5\ns_add_u32 s4, s4, s11\ns_lshl_b32 s5, s4, 10")
    a("s_cmp_eq_u32 s12, 1\ns_cselect_b32 s80, s5, s70\ns_mov_b32 s81, 143360\ns_movk_i32 s82, 28672\ns_cselect_b32 s81, -24448, s81\ns_cselect_b32 s82, 8192, s82")
    a("s_mov_b32 s4, 1835008\ns_cselect_b32 s58, 524288, s4\ns_mov_b32 s59, 0x20000")
    a("s_cselect_b32 s4, 0, 128\ns_add_u32 s70, s70, s4")
    a("s_lshl_b32 s4, s14, 2\nv_or_b32 v4, s4, v4\nv_xor_b32 v4, v4, v2\nv_lshlrev_b32 v4, 4, v4\nv_lshl_add_u32 v14, v1, 10, v4")
    a("s_lshl_b32 s4, s14, 3\ns_add_u32 s4, s4, s10\ns_lshl_b32 s85, s4, 10")
    a("s_lshl_b32 s4, s6, 7\ns_lshl_b32 s5, s3, 5\ns_add_u32 s4, s4, s5\ns_lshl_b32 s86, s4, 10")
    a(f"s_lshl_b32 s87, s3, 12\ns_lshr_b32 s4, s3, 1\ns_mul_i32 s88, s4, 24576\ns_lshl_b32 s4, s14, 12\ns_add_u32 s88, s88, s4\ns_add_u32 s88, s88, {BLK}\ns_lshl_b32 s89, s3, 10\ns_add_u32 s89, s89, {EXT}")
    a("s_mov_b32 s54, 2097152\ns_mov_b32 s55, 0x20000\ns_mov_b32 s62, 524288\ns_mov_b32 s63, 0x20000")

def loader(a):
    Bp, Biss = p2_schedule()
    V = VM(a)
    a("s_waitcnt lgkmcnt(0)")
    a("s_mov_b64 s[52:53], s[16:17]")
    a("s_cmp_ge_u32 s3, 2\ns_cselect_b64 s[72:73], s[38:39], s[36:37]\ns_cselect_b64 s[60:61], s[24:25], s[22:23]")
    a("s_cmp_eq_u32 s12, 1\ns_cselect_b64 s[56:57], s[60:61], s[72:73]\ns_mov_b64 s[90:91], s[72:73]")
    def issue(V, s):
        slot = s % 3
        if s == 8:
            a("s_mov_b64 s[56:57], s[90:91]\ns_mov_b32 s58, 1835008\ns_add_u32 s80, s70, 1146880\ns_mov_b32 s81, 143360\ns_movk_i32 s82, 28672\nv_mov_b32 v12, v16\nv_mov_b32 v13, v16")
        if s == 11: a("s_sub_u32 s80, s80, 1835008")
        for i in range(4 if XL[s] else 0):
            a(f"s_add_u32 m0, s87, {XR + XH[s]*49152 + XI[s]*16384 + i*1024}\ns_add_u32 s4, s86, {i*8192 + KS[s]*128}")
            V.op(f"buffer_load_dwordx4 v{10 + (i >> 1)}, s[52:55], s4 offen lds", ('S', s))
        for i in range(4):
            a(f"s_add_u32 m0, s88, {slot*8192 + i*1024}\ns_nop 0")
            V.op(f"buffer_load_dwordx4 v{12 + (i & 1)}, s[56:59], s80 offen lds", ('S', s))
            a("s_add_u32 s80, s80, s82" if i < 3 else "s_add_u32 s80, s80, s81")
        if s < 8:
            a(f"s_add_u32 m0, s89, {slot*4096}\ns_add_u32 s4, s85, {s*128}")
            V.op("buffer_load_dwordx4 v14, s[60:63], s4 offen lds", ('S', s))
    def bar(V, s, extra="", defer=False):
        V.wait(('S', s+1), extra=extra)
        if OPT['fine']: stamp(a, 16 + s)
        a("s_barrier")
        if defer: return lambda: issue(V, s + 3)
        if s + 3 <= 15: issue(V, s + 3)
        r = s - OPT['l2t']
        if OPT['l2t'] and 0 <= r <= 2:
            if r < 2:
                srd(a, 76, sWd, 1835008)
                a(f"s_lshr_b32 s4, s2, 3\ns_mul_i32 s4, s4, 57344\ns_lshl_b32 s5, s3, 13\ns_add_u32 s4, s4, s5\ns_add_u32 s4, s4, {r*32768}\nv_lshlrev_b32 v18, 7, v0")
                if r == 1: a("s_cmp_eq_u32 s3, 3\ns_cselect_b32 s78, 0, s78")
            else:
                a("s_cmp_ge_u32 s3, 2\ns_cselect_b64 s[76:77], s[28:29], s[26:27]\ns_mov_b32 s78, 524288\ns_mov_b32 s79, 0x20000")
                a("s_lshr_b32 s4, s2, 3\ns_lshl_b32 s4, s4, 14\ns_and_b32 s5, s3, 1\ns_lshl_b32 s5, s5, 13\ns_add_u32 s4, s4, s5")
            V.op("buffer_load_dword v19, v18, s[76:79], s4 offen", 'T')
    issue(V, 0); stamp(a, 14); issue(V, 1)
    V.wait(('S', 0)); stamp(a, 2); a("s_barrier")
    issue(V, 2)
    srd(a, 64, sWs, WS_USED)
    srd(a, 92 if not STAMP else 92, sGw, 1024) if False else None
    srd(a, 72, sLre, 1024); srd(a, 76, sLim, 1024); srd(a, 96, sLdt, 1024)
    a("s_mov_b64 s[68:69], s[42:43]\ns_mov_b32 s71, 0x20000\ns_mov_b32 s92, s70\ns_movk_i32 s70, 1024")
    a("s_lshl_b32 s4, s6, 7\ns_lshl_b32 s5, s13, 3\ns_add_u32 s4, s4, s5\ns_lshl_b32 s5, s3, 1\ns_add_u32 s15, s4, s5\ns_lshl_b32 s14, s15, 10")
    a("v_lshlrev_b32 v1, 4, v0")
    a("s_and_b32 s4, s3, 1\ns_lshl_b32 s4, s4, 6\nv_add_u32 v2, s4, v0\nv_add_u32 v3, s10, v2\ns_sub_u32 s5, s11, 16\nv_add_u32 v4, s5, v2")
    a("v_cmp_gt_u32 vcc, 16, v2\ns_nop 1\nv_cndmask_b32 v3, v4, v3, vcc\nv_lshlrev_b32 v3, 1, v3")
    bar(V, 0)
    V.op("buffer_load_dwordx4 v[32:35], v1, s[52:55], s14 offen", 'X'); V.op("buffer_load_dwordx4 v[36:39], v1, s[52:55], s14 offen offset:1024", 'X')
    V.op("buffer_load_dwordx4 v[40:43], v1, s[68:71], 0 offen", 'X')
    V.op("buffer_load_ushort v44, v3, s[72:75], 0 offen", 'X'); V.op("buffer_load_ushort v45, v3, s[76:79], 0 offen", 'X'); V.op("buffer_load_ushort v46, v3, s[96:99], 0 offen", 'X')
    a("s_mov_b32 s70, s92")
    bar(V, 1); bar(V, 2)
    V.wait('X')
    a("v_lshlrev_b32 v44, 16, v44\nv_lshlrev_b32 v45, 16, v45\nv_lshlrev_b32 v46, 16, v46")
    a(f"v_mul_f32 v46, {LOG2E}, v46\nv_exp_f32 v46, v46\ns_nop 0")
    bf16_round(a, 46, 46, 47)
    a(f"v_mul_f32 v47, v46, v44\nv_mul_f32 v48, v46, v45")
    a(f"v_mul_f32 v47, {LOG2E}, v47\nv_exp_f32 v47, v47\nv_mul_f32 v48, {INV2PI}, v48\nv_rndne_f32 v49, v48\nv_sub_f32 v48, v48, v49")
    a("v_cos_f32 v49, v48\nv_sin_f32 v50, v48\ns_nop 0\nv_mul_f32 v52, v47, v49\nv_mul_f32 v53, v47, v50")
    a("v_mul_f32 v49, v44, v44\nv_fma_f32 v49, v45, v45, v49\nv_rcp_f32 v49, v49\nv_add_f32 v50, -1.0, v52")
    a("v_mul_f32 v54, v50, v44\nv_fma_f32 v54, v53, v45, v54\nv_mul_f32 v55, v53, v44\nv_fma_f32 v55, -v50, v45, v55")
    a("v_add_f32 v49, v49, v49\nv_mul_f32 v54, v54, v49\nv_mul_f32 v55, v55, v49")
    a("v_lshlrev_b32 v2, 4, v2\nv_cmp_gt_u32 vcc, 1280, v2\ns_and_saveexec_b64 s[78:79], vcc")
    a(f"ds_write_b128 v2, v[52:55] offset:{PARAM}")
    a("s_mov_b64 exec, s[78:79]")
    bar(V, 3, " lgkmcnt(0)")
    a("v_mov_b32 v4, 0\nv_mov_b32 v5, 0\ns_mov_b32 s4, 0xffff0000")
    for i in range(4):
        a(f"v_lshlrev_b32 v6, 16, v{40+i}\nv_and_b32 v7, s4, v{40+i}")
        for r in range(2):
            x = 32 + 4*r + i
            a(f"v_lshlrev_b32 v8, 16, v{x}\nv_and_b32 v9, s4, v{x}\nv_mul_f32 v8, v8, v6\nv_mul_f32 v9, v9, v7")
            a(f"v_cvt_pk_bf16_f32 v8, v8, v9\nv_lshlrev_b32 v9, 16, v8\nv_and_b32 v8, s4, v8\nv_add_f32 v{4+r}, v{4+r}, v9\nv_add_f32 v{4+r}, v{4+r}, v8")
        if i == 1: bar(V, 4); a("s_mov_b32 s4, 0xffff0000")
    bar(V, 5)
    for sh in [1, 2, 4, 8]:
        a(f"s_nop 1\nv_add_f32_dpp v4, v4, v4 row_shr:{sh} row_mask:0xf bank_mask:0xf bound_ctrl:0\nv_add_f32_dpp v5, v5, v5 row_shr:{sh} row_mask:0xf bank_mask:0xf bound_ctrl:0")
    a("s_nop 1")
    for r in range(2):
        a(f"v_readlane_b32 s{76+20*r}, v{4+r}, 15\nv_readlane_b32 s{77+20*r}, v{4+r}, 31\nv_readlane_b32 s{78+20*r}, v{4+r}, 47")
    a("s_nop 1")
    for j in range(3):
        a(f"v_add_f32 v4, s{76+j}, v4\nv_add_f32 v5, s{96+j}, v5")
    a("s_nop 0\nv_readlane_b32 s4, v4, 63\nv_readlane_b32 s5, v5, 63\nv_cmp_eq_u32 vcc, 1, v0\ns_nop 0\nv_mov_b32 v4, s4\nv_mov_b32 v5, s5\nv_cndmask_b32 v4, v4, v5, vcc")
    bf16_round(a, 4, 4, 5)
    a(f"v_mul_f32 v4, {NLOG2E}, v4\nv_exp_f32 v4, v4\ns_nop 0\nv_add_f32 v4, 1.0, v4\nv_rcp_f32 v4, v4\ns_nop 0")
    bf16_round(a, 4, 4, 5)
    a(f"s_lshl_b32 s4, s15, 2\ns_add_u32 s4, s4, {G_OFF}\nv_lshlrev_b32 v5, 2, v0\ns_mov_b64 exec, 3")
    V.op("buffer_store_dword v4, v5, s[64:67], s4 offen sc1", 'G'); a("s_mov_b64 exec, -1")
    bar(V, 6); bar(V, 7)
    V.wait('G')
    def b_setup():
        p2_ids(a)
        srd(a, 52, sWd, 1835008); srd(a, 56, sCre, 524288); srd(a, 60, sCim, 524288)
        a("s_lshl_b32 s4, s3, 14\ns_lshl_b32 s5, s85, 7\ns_add_u32 s89, s4, s5\ns_lshl_b32 s5, s85, 16\ns_add_u32 s90, s4, s5\ns_lshl_b32 s91, s3, 11")
    def loadB(V, p):
        s = ORD[p]
        for i in range(1 if OPT['halfB'] else 2):
            a(f"s_add_u32 m0, s91, {page(Bp[p]) + i*1024}")
            if s < 28:
                a(f"s_add_u32 s4, s89, {s*65536 + i*8192}")
                V.op(f"buffer_load_dwordx4 v15, s[52:55], s4 offen lds", ('B', p))
            else:
                t = s - 28
                a(f"s_add_u32 s4, s90, {(t >> 1)*128 + i*8192}")
                V.op(f"buffer_load_dwordx4 v{28+i}, s[{56 + 4*(t & 1)}:{59 + 4*(t & 1)}], s4 offen lds", ('B', p))
    def poll(which, pre_issued=False):
        lp = a.lab(); ld = a.lab(); lc = a.lab()
        a("s_mov_b32 s88, 0x8000")
        if pre_issued: a(f"s_branch {lc}")
        a.label(lp)
        a(f"buffer_load_dword v8, v9, s[64:67], s86 offen offset:{which*256} sc1\ns_waitcnt vmcnt(0)")
        a.label(lc)
        a(f"v_cmp_ne_u32 vcc, s72, v8\ns_cmp_eq_u64 vcc, 0\ns_cbranch_scc1 {ld}")
        a(f"s_sub_u32 s88, s88, 1\ns_cmp_lg_u32 s88, 0\ns_cbranch_scc1 {lp}")
        a.label(ld)
    KH, KB = OPT['KH'], OPT['KB']
    def pollissue(V, which): V.op(f"buffer_load_dword v8, v9, s[64:67], s86 offen offset:{which*256} sc1", 'P')
    def tail(V, role, inpart=None):
        b_setup()
        if role == 2:
            a(f"s_lshr_b32 s4, s84, 1\ns_lshl_b32 s4, s4, 10\ns_add_u32 s86, s4, {FLG_OFF}\nv_lshlrev_b32 v9, 2, v0")
        for p in Biss['b12']: loadB(V, p)
        bar(V, 13, " lgkmcnt(0)")
        if inpart: inpart()
        for p in Biss['b13']: loadB(V, p)
        bar(V, 14, " lgkmcnt(0)")
        if role == 2: pollissue(V, 0)
        for p in Biss['b14']: loadB(V, p)
        for k in range(22):
            V.wait(('B', 2*k), ('B', 2*k+1))
            if role == 2:
                for (kk_, wh) in ((-1, 0), (KH, 1), (KB, 2)):
                    if k == kk_ + 1:
                        V.wait('P'); poll(wh, pre_issued=True)
                        if wh == 0: stamp(a, 7)
            if OPT['fine']: stamp(a, 32+k)
            a("s_barrier")
            if role == 2 and k in (KH, KB): pollissue(V, 1 if k == KH else 2)
            if k == 0:
                for p in Biss['Z']: loadB(V, p)
            for p in Biss[k]: loadB(V, p)
        a("s_barrier")
        stamp_flush(a)
        a("s_endpgm")
    L2 = a.lab(); L3 = a.lab(); LM = a.lab()
    a(f"s_cmp_eq_u32 s3, 2\ns_cbranch_scc1 {L2}\ns_and_b32 s4, s3, s12\ns_cmp_eq_u32 s3, 3\ns_cselect_b32 s4, s4, 0\ns_cmp_eq_u32 s4, 1\ns_cbranch_scc1 {L3}")
    V0 = V
    V = V0.copy()
    for s in range(8, 13): bar(V, s)
    tail(V, 0)
    a.label(L2)
    V = V0.copy(); ip = combine(a, V, bar, 8, 16, 16, 3, AGE_RE, AGE_IM, 10, PARAM); tail(V, 2, ip)
    a.label(L3)
    V = V0.copy(); ip = combine(a, V, bar, 9, 8, 64, 4, AGM_RE, AGM_IM, 11, PARAM + 256); tail(V, 3, ip)

def combine(a, V, bar, sb, nseg, nch, lg, are, aim, sch, pofs):
    ex = f"s_mov_b64 exec, {(1 << nch) - 1}" if nch < 64 else "s_nop 0"
    AR, AI, E, WP, MU, EX = 32, 48, 60, 128, 160, 192
    def cm(dr, di, ar, ai, br, bi):
        a(f"v_mul_f32 v{dr}, v{ar}, v{br}\nv_mul_f32 v{di}, v{ar}, v{bi}\nv_fma_f32 v{dr}, -v{ai}, v{bi}, v{dr}\nv_fma_f32 v{di}, v{ai}, v{br}, v{di}")
    a(f"s_add_u32 s96, s48, {AGG_OFF}\ns_addc_u32 s97, s49, 0\ns_mov_b32 s98, {AGG_SZ}\ns_mov_b32 s99, 0x20000")
    a(f"v_lshlrev_b32 v1, 4, v0\nv_mov_b32 v4, 0\nds_read_b64 v[2:3], v1 offset:{pofs}\nds_read_b32 v5, v4 offset:{NONCE}\ns_waitcnt lgkmcnt(0)\nv_readfirstlane_b32 s72, v5")
    for i in range(7):
        a("v_mul_f32 v8, v3, v3\nv_mul_f32 v9, v2, v3\nv_fma_f32 v2, v2, v2, -v8\nv_add_f32 v3, v9, v9")
        if i == lg - 1: a(f"v_mov_b32 v{MU+2}, v2\nv_mov_b32 v{MU+3}, v3")
    a(f"s_lshl_b32 s4, s{sch}, 4\ns_lshl_b32 s5, s6, 13\ns_add_u32 s4, s4, s5\nv_add_u32 v17, s4, v1")
    a(f"v_lshlrev_b32 v1, 2, v0\nv_add_u32 v1, {EXT}, v1\nv_mov_b32 v125, v5\nv_mov_b32 v127, v5")
    for d in range(1, 16): a(f"s_cmp_ge_u32 s6, {d}\ns_cselect_b32 s4, s72, 0\nv_mov_b32 v{EX+d}, s4")
    bar(V, 8)
    stamp(a, 3)
    a(ex)
    for sg in range(nseg):
        a(f"ds_read_b32 v{AR+sg}, v1 offset:{are - EXT + sg*nch*4}\nds_read_b32 v{AI+sg}, v1 offset:{aim - EXT + sg*nch*4}")
    a("s_waitcnt lgkmcnt(0)")
    for sg in range(1, nseg):
        dr, di = (124, 126) if sg == nseg - 1 else (AR+sg, AI+sg)
        a(f"v_fma_f32 v{dr}, v{AR+sg-1}, v{MU+2}, v{AR+sg}\nv_fma_f32 v{di}, v{AI+sg-1}, v{MU+2}, v{AI+sg}")
        a(f"v_fma_f32 v{dr}, -v{AI+sg-1}, v{MU+3}, v{dr}\nv_fma_f32 v{di}, v{AR+sg-1}, v{MU+3}, v{di}")
    V.op("buffer_store_dwordx4 v[124:127], v17, s[96:99], 0 offen sc1", 'Q')
    a("s_mov_b64 exec, -1")
    stamp(a, 4)
    bar(V, 9)
    for d in range(2, 16):
        if d == 2: a(f"v_mov_b32 v{WP+4}, v2\nv_mov_b32 v{WP+5}, v3")
        else: cm(WP+2*d, WP+2*d+1, WP+2*(d-1), WP+2*(d-1)+1, 2, 3)
        a(f"s_cmp_ge_u32 s6, {d}\ns_cselect_b64 vcc, -1, 0\nv_cndmask_b32 v{WP+2*d}, 0, v{WP+2*d}, vcc\nv_cndmask_b32 v{WP+2*d+1}, 0, v{WP+2*d+1}, vcc")
    bar(V, 10)
    for sg in range(2, nseg): cm(MU+2*sg, MU+2*sg+1, MU+2*(sg-1), MU+2*(sg-1)+1, MU+2, MU+3)
    def loads(first):
        for d in range(1, 16):
            a(f"v_subrev_u32 v{24+(d&3)}, {d*8192}, v17")
            ins = f"buffer_load_dwordx4 {vr(E+4*d,4)}, v{24+(d&3)}, s[96:99], 0 offen sc1"
            if first: V.op(ins, 'R')
            else: a(ins)
    late = bar(V, 11, defer=True)
    a(ex); loads(True); a("s_mov_b64 exec, -1")
    late()
    late = bar(V, 12, defer=True)
    a(ex)
    lp = a.lab(); ld = a.lab(); lc = a.lab()
    a("s_mov_b32 s83, 0x8000")
    V.wait('R')
    a(f"s_branch {lc}")
    a.label(lp)
    loads(False)
    a("s_waitcnt vmcnt(0)")
    a.label(lc)
    a("v_mov_b32 v20, 0")
    for d in range(1, 16):
        a(f"v_xor_b32 v{21+(d&1)*2}, v{E+4*d+1}, v{EX+d}\nv_xor_b32 v{22+(d&1)*2}, v{E+4*d+3}, v{EX+d}\nv_or3_b32 v20, v20, v{21+(d&1)*2}, v{22+(d&1)*2}")
    a(f"v_cmp_ne_u32 vcc, 0, v20\ns_cmp_eq_u64 vcc, 0\ns_cbranch_scc1 {ld}")
    a(f"s_sub_u32 s83, s83, 1\ns_cmp_lg_u32 s83, 0\ns_cbranch_scc1 {lp}")
    a.label(ld)
    stamp(a, 5)
    a(f"v_mov_b32 v20, v{E+4}\nv_mov_b32 v21, v{E+6}\nv_mov_b32 v22, 0\nv_mov_b32 v23, 0")
    for d in range(2, 16):
        r, i_ = (20, 21) if d & 1 else (22, 23)
        a(f"v_fma_f32 v{r}, v{E+4*d}, v{WP+2*d}, v{r}\nv_fma_f32 v{i_}, v{E+4*d+2}, v{WP+2*d}, v{i_}")
        a(f"v_fma_f32 v{r}, -v{E+4*d+2}, v{WP+2*d+1}, v{r}\nv_fma_f32 v{i_}, v{E+4*d}, v{WP+2*d+1}, v{i_}")
    a("v_add_f32 v20, v20, v22\nv_add_f32 v21, v21, v23")
    def inpart():
        a(ex)
        a(f"ds_write_b32 v1, v20 offset:{are - EXT}\nds_write_b32 v1, v21 offset:{aim - EXT}")
        for sg in range(1, nseg):
            p, q = AR+sg-1, AI+sg-1
            a(f"v_fma_f32 v{p}, v20, v{MU+2*sg}, v{p}\nv_fma_f32 v{q}, v21, v{MU+2*sg}, v{q}")
            a(f"v_fma_f32 v{p}, -v21, v{MU+2*sg+1}, v{p}\nv_fma_f32 v{q}, v20, v{MU+2*sg+1}, v{q}")
            a(f"ds_write_b32 v1, v{p} offset:{are - EXT + sg*nch*4}\nds_write_b32 v1, v{q} offset:{aim - EXT + sg*nch*4}")
        a("s_mov_b64 exec, -1")
        stamp(a, 6)
    if OPT['LS'] == 14:
        inpart(); late(); return None
    a("s_mov_b64 exec, -1")
    late()
    return inpart

def kernel(a, name):
    a(f".p2align 8\n.globl {name}\n.type {name},@function")
    a.label(name)
    l_end = a.lab(); l_c = a.lab(); l_s = a.lab(); l_p2 = a.lab()
    a("s_getpc_b64 s[90:91]")
    a(f"s_cmp_ge_u32 s2, 256\ns_cbranch_scc1 {l_end}")
    a("s_load_dwordx16 s[16:31], s[0:1], 0\ns_load_dwordx16 s[32:47], s[0:1], 64\ns_load_dwordx2 s[48:49], s[0:1], 128")
    a("v_lshrrev_b32 v1, 6, v0\nv_and_b32 v0, 63, v0\nv_readfirstlane_b32 s3, v1")
    a("s_and_b32 s4, s2, 7\ns_lshr_b32 s5, s2, 3")
    a("s_and_b32 s6, s4, 1\ns_lshr_b32 s7, s5, 2\ns_lshl_b32 s7, s7, 1\ns_add_u32 s6, s6, s7")
    a("s_and_b32 s7, s5, 3\ns_lshr_b32 s8, s4, 1")
    a("s_mul_i32 s9, s8, 448\ns_lshl_b32 s4, s7, 7\ns_add_u32 s9, s9, s4")
    a("s_lshl_b32 s11, s8, 7\ns_lshl_b32 s4, s7, 4\ns_add_u32 s10, s11, s4\ns_add_u32 s11, s11, 64")
    a("s_cmp_eq_u32 s7, 3\ns_cselect_b32 s12, 1, 0\ns_lshl_b32 s13, s8, 2\ns_add_u32 s13, s13, s7")
    if STAMP: a("s_mov_b32 s93, s3")
    a(f"s_cmp_lt_u32 s3, 4\ns_cbranch_scc1 {l_c}")
    a("s_sub_u32 s3, s3, 4")
    loader_pre(a)
    if STAMP: a("s_waitcnt lgkmcnt(0)")
    stamp(a, 0)
    loader(a)
    a.label(l_c)
    a("s_waitcnt lgkmcnt(0)")
    stamp(a, 0)
    p1_consumer_prologue(a, "L_code_end")
    a(f"s_cmp_eq_u32 s12, 1\ns_cbranch_scc1 {l_s}")
    global passB_fillers
    orig = passB_fillers
    def withnonce(M):
        F = orig(M); F[7] = [nonce_finish(a)] + F[7]; return F
    passB_fillers = withnonce
    p1_consumer(a, False)
    a(f"s_branch {l_p2}")
    a.label(l_s)
    p1_consumer(a, True)
    a.label(l_p2)
    p2_consumer(a)
    a.label(l_end)
    a("s_endpgm")
    a.label("L_code_end")
    a("s_endpgm")

def desc(name, nv=256):
    return f""".p2align 6
.amdhsa_kernel {name}
  .amdhsa_next_free_vgpr {nv}
  .amdhsa_next_free_sgpr 102
  .amdhsa_accum_offset {nv}
  .amdhsa_group_segment_fixed_size 0
  .amdhsa_kernarg_size 136
  .amdhsa_user_sgpr_count 2
  .amdhsa_user_sgpr_kernarg_segment_ptr 1
  .amdhsa_system_sgpr_workgroup_id_x 1
.end_amdhsa_kernel
"""

def main(out):
    a = Asm()
    n1 = NAME + "_kernel"
    kernel(a, n1)
    txt = HDR
    txt += f"; @launch grid=(256,1,1) block=(512,1,1) lds={LDS1}\n"
    txt += '.amdgcn_target "amdgcn-amd-amdhsa--gfx950"\n.text\n' + a.text()
    txt += '.section .rodata,"a"\n' + desc(n1)
    open(out, "w").write(txt)

if __name__ == "__main__":
    args = sys.argv[1:]
    if "-tot" in args: STAMP = 2; args.remove("-tot")
    if "-stamp" in args: STAMP = True; args.remove("-stamp")
    for x in list(args):
        if "=" in x:
            k, v = x.split("="); assert k in OPT, k; OPT[k] = int(v); args.remove(x)
    if "-sched" in args:
        print(p2_schedule()); print(ORD)
        for M in (False, True): print({k: len(v) for k, v in passB_fillers(M).items()})
        sys.exit()
    main(args[0] if args else f"cdna_kernels/{NAME}.s")
```

```python
import sys

NAME = "gated_mix__ssm_conv_s5__glu_gated_glu__prompt"
HDR = open("cdna_kernels/%s.s.ref" % NAME).read().split("; Override launch")[0]

G_OFF = 0xB00000
AGG_OFF = 0xB10000
AGG_SZ = 16 * 512 * 16
FLG_OFF = 0xB30000
WS_USED = 0xB40000
LOG2E = 0x3fb8aa3b
NLOG2E = 0xbfb8aa3b
INV2PI = 0x3e22f983
OPT = dict(sc1_a=1, touch1=1, touch2=1, cpf=1, per2=2, KH=3, KB=8, prio=3, fine=0, t1s=1, SP=11, capM=72, LS=14, ts=2566, halfB=0, tw=2, gs=0, per1=2, be=0, l2t=0, BLA=7, noF=0, la=0)

class Asm:
    def __init__(s): s.l = []; s.uid = 0
    def __call__(s, t):
        for x in t.strip("\n").split("\n"): s.l.append("    " + x.strip())
    def label(s, n): s.l.append(n + ":")
    def lab(s, p="L"):
        s.uid += 1; return f"{p}_{s.uid}"
    def text(s): return "\n".join(s.l) + "\n"

def vr(b, n): return f"v[{b}:{b+n-1}]" if n > 1 else f"v{b}"
def R(b, n): return list(range(b, b+n))
def srd(a, d, lo, size):
    a(f"s_mov_b32 s{d}, s{lo}\ns_mov_b32 s{d+1}, s{lo+1}\ns_mov_b32 s{d+2}, {size}\ns_mov_b32 s{d+3}, 0x20000")

sX, sLre, sLim, sBre, sBim, sCre, sCim, sLdt = 16, 18, 20, 22, 24, 26, 28, 30
sDsk, sBx, sWg, sWu, sWd, sGw, sOut, sDbg, sWs = 32, 34, 36, 38, 40, 42, 44, 46, 48

STAMP = False
TS_OFF = 0xB40000
def stamp(a, idx):
    if not STAMP or (STAMP == 2 and idx not in (0, 13)): return
    a(f"s_memrealtime s[100:101]\ns_waitcnt lgkmcnt(0)\nv_writelane_b32 v31, s100, {idx}")
def cstamp(a, idx):
    if not STAMP or STAMP == 2: return
    a(f"s_memtime s[100:101]\ns_waitcnt lgkmcnt(0)\nv_writelane_b32 v31, s100, {idx}")
def stamp_flush(a):
    if not STAMP: return
    srd(a, 96, sWs, 0xC00000)
    a(f"s_lshl_b32 s94, s2, 3\ns_add_u32 s94, s94, s93\ns_lshl_b32 s94, s94, 8\ns_add_u32 s94, s94, {TS_OFF}")
    a("s_mov_b64 exec, -1\nv_lshlrev_b32 v30, 2, v0\nbuffer_store_dword v31, v30, s[96:99], s94 offen")

def bf16_round(a, d, s, t):
    a(f"v_cvt_pk_bf16_f32 v{t}, v{s}, v{s}\nv_lshlrev_b32 v{d}, 16, v{t}")

class Sched:
    def __init__(s, a): s.a = a; s.n = 0; s.prod = {}; s.done = -1
    def read(s, ins, regs):
        s.a(ins)
        for r in regs: s.prod[r] = s.n
        s.n += 1
    def need(s, regs):
        k = max([s.prod.get(r, -1) for r in regs] + [-1])
        if k > s.done:
            s.a(f"s_waitcnt lgkmcnt({min(s.n - 1 - k, 15)})")
            s.done = k if s.n - 1 - k <= 15 else s.n - 16
    def all(s):
        if s.done < s.n - 1: s.a("s_waitcnt lgkmcnt(0)")
        s.done = s.n - 1
    def item(s, it):
        if isinstance(it, str): s.a(it)
        elif it[0] == 'lds': s.read(it[1], it[2])
        else: s.need(it[1]); s.a(it[2])

class VM:
    def __init__(s, a): s.a = a; s.ops = []; s.done = -1
    def op(s, ins, tag):
        if len(s.ops) - 1 - s.done >= 62:
            s.a("s_waitcnt vmcnt(56)"); s.done = len(s.ops) - 1 - 56
        s.a(ins); s.ops.append(tag)
    def wait(s, *tags, extra=""):
        k = max([i for i, t in enumerate(s.ops) if t in tags] + [-1])
        if k > s.done:
            n = min(len(s.ops) - 1 - k, 63)
            s.a(f"s_waitcnt vmcnt({n}){extra}")
            s.done = len(s.ops) - 1 - n
        elif extra: s.a("s_waitcnt" + extra)
    def copy(s):
        v = VM(s.a); v.ops = list(s.ops); v.done = s.done; return v

PARAM = 0; NONCE = 2048; XR = 4096; BLK = XR + 98304; EXT = XR + 147456
AGE_RE = EXT; AGE_IM = EXT + 1024; AGM_RE = EXT + 2048; AGM_IM = EXT + 8192; TSE = EXT + 4096
LDS1 = 163840
def page(p): return XR + p*8192
SPAGES = [8, 9]
KS = list(range(8)) + [5, 6, 7, 0, 1, 2, 3, 4]
XH = [0,0,0,1,1,1,1,1, 1,1,1,0,0,0,1,1]
XI = [0,1,2,0,1,2,0,1, 2,0,1,0,1,2,2,0]
XL = [1]*8 + [0,0,0,0,0,0,1,1]
ORD = [7*g + 2*j for g in range(4) for j in range(3)] + list(range(28, 44))
ORD += [s for s in range(28) if s not in ORD]
assert sorted(ORD) == list(range(44))
NA_, NH_ = 12, 28

def p2_schedule():
    Bp = {}; Biss = {}
    nb = 0
    def take(key, pages):
        nonlocal nb
        Biss.setdefault(key, [])
        for p in pages:
            if nb <= 43: Bp[nb] = p; Biss[key].append(nb); nb += 1
    take('b12', [0, 1, 2, 3]); take('b13', [4, 5, 13, 16]); take('b14', [10, 11, 14, 17]); take('Z', [6, 7, 12, 15])
    for k in range(22):
        fr = []
        if k == 1: fr += SPAGES
        if k >= 2: fr += [Bp[2*k-4], Bp[2*k-3]]
        take(k, fr)
    assert nb == 44
    return Bp, Biss

vXn = 16; vWa = 20; vXe = 24; vEa = 28; vWt = 30; vXp = 12
ACA = 32; ACB = 96; ACE = 160; FR = [176, 192]; FE = 208
def acc(base, w, m): return base + (w * 2 + m) * 16
def ace(comp, m): return ACE + (comp * 2 + m) * 4

def reads_main(kind, step, kk, st):
    b = FR[st]; slot = step % 3; xi = XI[step]
    xs, vx = (4096, vXn) if kind == 'G' else (1024, vXp)
    def xr(m): return [(f"ds_read_b128 {vr(b+4*m,4)}, v{vx+kk} offset:{XR + xi*16384 + m*xs}", R(b+4*m, 4))]
    def wr(w):
        d = b + 8 + 4*w
        if kind == 'G':
            off = w*24576 + slot*8192 + kk*2048
            return [(f"ds_read_b64_tr_b16 {vr(d,2)}, v{vWt} offset:{off}", R(d, 2)),
                    (f"ds_read_b64_tr_b16 {vr(d+2,2)}, v{vWt} offset:{off+512}", R(d+2, 2))]
        return [(f"ds_read_b128 {vr(d,4)}, v{vWa+kk} offset:{w*24576 + slot*8192}", R(d, 4))]
    return xr(0) + wr(0) + xr(1) + wr(1)

def reads_ext(step, k32):
    r = []; slot = step % 3; xi = XI[step]
    for m in range(2): r.append((f"ds_read_b128 {vr(FE+4*m,4)}, v{vXe+2*m+k32} offset:{XR + xi*16384}", R(FE+4*m, 4)))
    for cp in range(2): r.append((f"ds_read_b128 {vr(FE+8+4*cp,4)}, v{vEa+k32} offset:{slot*4096+cp*2048}", R(FE+8+4*cp, 4)))
    return r

def mfma_main(kind, base, st, first):
    r = []; b = FR[st]
    for w in range(2):
        for m in range(2):
            d = vr(acc(base, w, m), 16); X = vr(b+4*m, 4); W = vr(b+8+4*w, 4)
            c = "0" if first else d
            ins = f"v_mfma_f32_32x32x16_bf16 {d}, {W}, {X}, {c}" if kind == 'G' else f"v_mfma_f32_32x32x16_bf16 {d}, {X}, {W}, {c}"
            r.append((ins, R(b+4*m, 4) + R(b+8+4*w, 4)))
    return r

def mfma_ext(first):
    r = []
    for cp in range(2):
        for m in range(2):
            d = vr(ace(cp, m), 4)
            r.append((f"v_mfma_f32_16x16x32_bf16 {d}, {vr(FE+4*m,4)}, {vr(FE+8+4*cp,4)}, {'0' if first else d}", R(FE+4*m, 4) + R(FE+8+4*cp, 4)))
    return r

def cmul_pk(Rr, I, C, t1, t2):
    return [f"v_pk_mul_f32 {vr(t1,2)}, {vr(Rr,2)}, {vr(C,2)} op_sel:[0,0] op_sel_hi:[1,0]",
            f"v_pk_mul_f32 {vr(t2,2)}, {vr(Rr,2)}, {vr(C,2)} op_sel:[0,1] op_sel_hi:[1,1] neg_lo:[0,1] neg_hi:[0,1]",
            f"v_pk_fma_f32 {vr(Rr,2)}, {vr(I,2)}, {vr(C,2)}, {vr(t1,2)} op_sel:[0,1,0] op_sel_hi:[1,1,1] neg_lo:[0,1,0] neg_hi:[0,1,0]",
            f"v_pk_fma_f32 {vr(I,2)}, {vr(I,2)}, {vr(C,2)}, {vr(t2,2)} op_sel:[0,0,0] op_sel_hi:[1,0,1] neg_lo:[0,1,0] neg_hi:[0,1,0]"]
def cmul_s(Rr, I, cr, ci, t1, t2):
    return [f"v_mul_f32 v{t1}, v{Rr}, v{cr}", f"v_mul_f32 v{t2}, v{Rr}, v{ci}",
            f"v_fma_f32 v{Rr}, -v{I}, v{ci}, v{t1}", f"v_fma_f32 v{I}, -v{I}, v{cr}, -v{t2}"]
def flag_item(which):
    return f"v_mov_b32 v1, s15\nv_mov_b32 v2, 0\ns_mov_b64 exec, 1\nbuffer_store_dword v1, v2, s[64:67], s81 offen offset:{which*256} sc1\ns_mov_b64 exec, -1"
def merge(l1, l2):
    o = []; i = j = 0
    while i < len(l1) or j < len(l2):
        if j >= len(l2) or (i < len(l1) and i * len(l2) <= j * len(l1)): o.append(l1[i]); i += 1
        else: o.append(l2[j]); j += 1
    return o

def cmul2(Rr, I, C, t):
    o = []
    for par in range(2): o += cmul_s(Rr+par, I+par, C, C+1, t+2*par, t+2*par+1)
    return [o[0], o[4], o[1], o[5], o[2], o[6], o[3], o[7]]
def step2(dr, di, pr, pi, L, Rr, I, conj):
    o = []
    n1, n2 = ("", "-") if conj else ("-", "")
    for par in range(2): o += [f"v_fma_f32 v{dr+par}, v{pr+par}, v{L}, v{Rr+par}", f"v_fma_f32 v{di+par}, v{pi+par}, v{L}, v{I+par}"]
    for par in range(2): o += [f"v_fma_f32 v{dr+par}, {n1}v{pi+par}, v{L+1}, v{dr+par}", f"v_fma_f32 v{di+par}, {n2}v{pr+par}, v{L+1}, v{di+par}"]
    return o
def stores_last(l):
    st = [x for x in l if 'buffer_store' in (x if isinstance(x, str) else x[-1] if x[0] == 'need' else '')]
    return [x for x in l if x not in st] + st
def glu_epi(base, sbase, E0, P0, morder=(0, 1)):
    o = []; k = 0
    for m in morder:
        for half in range(2):
            E = E0 + (k & 1) * 8; P = P0 + (k & 1) * 4; k += 1
            gb, ub = acc(base, 0, m) + 8*half, acc(base, 1, m) + 8*half
            t = []
            for i in range(8): t.append(f"v_mul_f32 v{E+i}, s50, v{gb+i}")
            for i in range(8): t.append(f"v_exp_f32 v{E+i}, v{E+i}")
            for i in range(8): t.append(f"v_add_f32 v{E+i}, 1.0, v{E+i}")
            for i in range(8): t.append(f"v_rcp_f32 v{E+i}, v{E+i}")
            for i in range(8): t.append(f"v_mul_f32 v{E+i}, v{E+i}, v{ub+i}")
            for i in range(0, 8, 2): t.append(f"v_cvt_pk_bf16_f32 v{P+i//2}, v{E+i}, v{E+i+1}")
            t.append(f"s_add_u32 s5, s{sbase}, {(m*176 + half)*1024}\nbuffer_store_dwordx4 {vr(P,4)}, v6, s[64:67], s5 offen sc1")
            o.append(t)
    return o

PE = 224; PM = 228
def passB_fillers(M):
    F = {s: [] for s in range(8, 17)}
    lr, li = PE, PE+1
    LS = OPT['LS']
    f = F[7] = []
    f += [f"v_and_b32 v1, 15, v0", "v_lshlrev_b32 v1, 4, v1", ('lds', f"ds_read_b128 {vr(PE,4)}, v1 offset:{PARAM}", R(PE, 4))]
    if M: f += ["v_and_b32 v2, 31, v0", "v_lshlrev_b32 v2, 4, v2", "s_and_b32 s4, s3, 1\ns_lshl_b32 s4, s4, 9\nv_add_u32 v2, s4, v2",
                ('lds', f"ds_read_b128 {vr(PM,4)}, v2 offset:{PARAM + 256}", R(PM, 4))]
    f += [f"s_lshl_b32 s4, s3, 8\ns_add_u32 s4, s4, {EXT}\nv_lshlrev_b32 v5, 2, v0", "v_add_u32 v5, s4, v5"]
    if M: f += ["v_lshrrev_b32 v3, 5, v0", "v_lshlrev_b32 v3, 9, v3", "v_lshrrev_b32 v4, 2, v2", "v_add_u32 v3, v3, v4",
                f"s_lshr_b32 s4, s3, 1\ns_lshl_b32 s4, s4, 10\ns_add_u32 s4, s4, {EXT}\nv_add_u32 v3, s4, v3"]
    l1 = []; l2 = []
    if M:
        S = [216, 218]; T = [220, 222]; L = vr(PM, 2)
        for pos in range(1, 16):
            m, rr = pos >> 3, (pos & 7) * 2
            Rr = vr(acc(ACA, 0, m) + rr, 2); I = vr(acc(ACA, 1, m) + rr, 2)
            if pos == 1: pr, pi = vr(acc(ACA, 0, 0), 2), vr(acc(ACA, 1, 0), 2)
            else:
                src = S if (pos & 1) else T
                pr, pi = vr(src[0], 2), vr(src[1], 2)
            dst = T if (pos & 1) else S
            dr, di = vr(dst[0], 2), vr(dst[1], 2)
            l1.append(f"v_pk_fma_f32 {dr}, {pr}, {L}, {Rr} op_sel:[0,0,0] op_sel_hi:[1,0,1]")
            l1.append(f"v_pk_fma_f32 {di}, {pi}, {L}, {I} op_sel:[0,0,0] op_sel_hi:[1,0,1]")
            l1.append(f"v_pk_fma_f32 {dr}, {pi}, {L}, {dr} op_sel:[0,1,0] op_sel_hi:[1,1,1] neg_lo:[0,1,0] neg_hi:[0,1,0]")
            l1.append(f"v_pk_fma_f32 {di}, {pr}, {L}, {di} op_sel:[0,1,0] op_sel_hi:[1,1,1]")
        for par in range(2):
            l1.append(('lds', f"ds_write_b32 v3, v{T[0]+par} offset:{AGM_RE - EXT + par*256}", []))
            l1.append(('lds', f"ds_write_b32 v3, v{T[1]+par} offset:{AGM_IM - EXT + par*256}", []))
    S = [208, 209]; T = [210, 211]
    for pos in range(1, 8):
        Rr = ace(0, pos >> 2) + (pos & 3); I = ace(1, pos >> 2) + (pos & 3)
        if pos == 1: pr, pi = ace(0, 0), ace(1, 0)
        else: pr, pi = (S if (pos & 1) else T)
        dr, di = (T if (pos & 1) else S)
        l2 += [f"v_fma_f32 v{dr}, v{pr}, v{lr}, v{Rr}", f"v_fma_f32 v{di}, v{pi}, v{lr}, v{I}",
               f"v_fma_f32 v{dr}, -v{pi}, v{li}, v{dr}", f"v_fma_f32 v{di}, v{pr}, v{li}, v{di}"]
    l2 += [('lds', f"ds_write_b32 v5, v{T[0]} offset:{AGE_RE - EXT}", []), ('lds', f"ds_write_b32 v5, v{T[1]} offset:{AGE_IM - EXT}", [])]
    if M: F['ser'] = ["s_nop 15", "s_nop 7"] + merge(l1, l2) + ["s_nop 3"]
    else: F['ser'] = []; F[8] += l2
    pre_ = ["s_waitcnt vmcnt(0)", "v_mov_b32 v1, 0", ('lds', f"ds_read_b32 v1, v1 offset:{NONCE}", [1])]
    rest = [('need', [1], "v_readfirstlane_b32 s15, v1")]
    for m in range(2):
        for i in range(4): rest += cmul_s(ace(0, m)+i, ace(1, m)+i, PE+2, PE+3, 212 + (i & 1)*2, 213 + (i & 1)*2)
    rest += [f"s_lshl_b32 s4, s3, 10\ns_add_u32 s4, s4, {TSE}\nv_and_b32 v7, 15, v0", "v_lshlrev_b32 v7, 6, v7", "v_lshrrev_b32 v8, 4, v0", "v_lshl_add_u32 v7, v8, 4, v7", "v_add_u32 v7, s4, v7",
            "v_lshrrev_b32 v9, 5, v0", "v_lshlrev_b32 v9, 3, v9", "v_bfe_u32 v10, v0, 2, 2", "v_add_u32 v9, v9, v10",
            "v_bfe_u32 v10, v0, 4, 1", "v_lshlrev_b32 v10, 5, v10", "v_and_b32 v11, 3, v0", "v_lshl_add_u32 v10, v11, 3, v10",
            "v_lshl_add_u32 v8, v9, 6, v10", "v_add_u32 v8, s4, v8"]
    if M:
        rest += [f"s_mov_b32 s4, {page(SPAGES[0])}\ns_cmp_ge_u32 s3, 2\ns_cselect_b32 s4, {page(SPAGES[1])}, s4\ns_and_b32 s5, s3, 1\ns_lshl_b32 s5, s5, 12\ns_add_u32 s4, s4, s5\nv_and_b32 v11, 1, v0",
                "v_bfe_u32 v4, v0, 2, 1", "v_lshl_or_b32 v11, v4, 1, v11", "v_bfe_u32 v4, v0, 1, 1", "v_lshl_or_b32 v11, v4, 2, v11",
                "v_lshrrev_b32 v4, 5, v0", "v_lshlrev_b32 v4, 2, v4", "v_xor_b32 v11, v11, v4", "v_lshlrev_b32 v11, 4, v11",
                "v_and_b32 v4, 31, v0", "v_lshl_add_u32 v12, v4, 7, v11", "v_add_u32 v12, s4, v12"]
        rest += [f"v_xor_b32 v{12+i}, {i*16}, v12" for i in range(1, 4)]
        rest += ["v_bfe_u32 v11, v0, 2, 1", "v_bfe_u32 v4, v0, 3, 1", "v_lshl_or_b32 v11, v4, 2, v11", "v_lshlrev_b32 v11, 4, v11", "v_xor_b32 v11, v11, v10",
                "v_lshl_add_u32 v20, v9, 7, v11", "v_add_u32 v20, s4, v20", "v_xor_b32 v21, 32, v20", "v_add_u32 v21, 512, v21",
                "v_xor_b32 v22, 64, v20", "v_xor_b32 v23, 64, v21"]
        mid = list(pre_)
        for m in range(2):
            for rr in range(0, 16, 2):
                mid += cmul2(acc(ACA, 0, m)+rr, acc(ACA, 1, m)+rr, PM+2, 232 + ((rr >> 1) & 3) * 4)
        mid = mid[:3] + rest[:1] + ['s_nop 0', flag_item(0)] + mid[3:] + rest[1:] if OPT['gs'] == 2 else mid + rest + [flag_item(0)]
        st = list(range(8, LS))
        n = (len(mid) + len(st) - 1) // len(st)
        for i, s in enumerate(st): F[s] += mid[i*n:(i+1)*n]
    else:
        g = glu_epi(ACA, 14, 232, 248)
        if OPT['gs'] == 2:
            F[8] += ["s_waitcnt vmcnt(0)"] + g[0][:30]; F[9] += pre_[1:] + g[0][30:] + g[1] + g[2][:10]; F[10] += g[2][10:] + g[3]
            F[9] = stores_last(F[9])
            F[11] += rest[:1] + ["s_waitcnt vmcnt(0)\n" + flag_item(0)] + rest[1:25]; F[12] += rest[25:]
        elif OPT['gs'] == 0:
            F[9] += pre_ + g[0] + g[1][:20]; F[10] += g[1][20:] + g[2][:40]
            F[11] += g[2][40:] + g[3]
            F[9] = stores_last(F[9]); F[10] = stores_last(F[10])
            F[12] += rest + ["s_waitcnt vmcnt(0)\n" + flag_item(0)]
        else:
            F[9] += pre_ + g[0]; F[10] += g[1]; F[11] += g[2]; F[12] += rest; GL = g[3]
    IE = 208; IM = [216, 218]
    late = [('lds', f"ds_read_b32 v{IE}, v5 offset:{AGE_RE - EXT}", [IE]), ('lds', f"ds_read_b32 v{IE+1}, v5 offset:{AGE_IM - EXT}", [IE+1])]
    if M:
        for par in range(2):
            late += [('lds', f"ds_read_b32 v{IM[0]+par}, v3 offset:{AGM_RE - EXT + par*256}", [IM[0]+par]), ('lds', f"ds_read_b32 v{IM[1]+par}, v3 offset:{AGM_IM - EXT + par*256}", [IM[1]+par])]
    c = cmul_s(IE, IE+1, PE+2, PE+3, 212, 213); c[0] = ('need', [IE, IE+1], c[0]); late += c
    if M:
        c = cmul2(IM[0], IM[1], PM+2, 220); c[0] = ('need', R(216, 4), c[0]); late += c
    l1 = []; l2 = []
    for pos in range(8):
        Rr = ace(0, pos >> 2) + (pos & 3); I = ace(1, pos >> 2) + (pos & 3)
        if pos == 0: pr, pi = IE, IE+1
        else: pr, pi = ace(0, (pos-1) >> 2) + ((pos-1) & 3), ace(1, (pos-1) >> 2) + ((pos-1) & 3)
        l2 += [f"v_fma_f32 v{Rr}, v{pr}, v{lr}, v{Rr}", f"v_fma_f32 v{I}, v{pi}, v{lr}, v{I}",
               f"v_fma_f32 v{Rr}, v{pi}, v{li}, v{Rr}", f"v_fma_f32 v{I}, -v{pr}, v{li}, v{I}"]
    for cp in range(2):
        for d in range(4):
            b = ace(cp, d >> 1) + (d & 1)*2
            l2.append(f"v_cvt_pk_bf16_f32 v{232+4*cp+d}, v{b}, v{b+1}")
    for cp in range(2):
        l2 += [('lds', f"ds_write_b128 v7, {vr(232+4*cp,4)}", []), ('lds', f"ds_read_b64_tr_b16 {vr(240+4*cp,2)}, v8", R(240+4*cp, 2)),
               ('lds', f"ds_read_b64_tr_b16 {vr(242+4*cp,2)}, v8 offset:256", R(242+4*cp, 2))]
    l2 += ["s_nop 0"] * 6
    l2 += [('need', R(240, 4), f"buffer_store_dwordx4 {vr(240,4)}, v6, s[64:67], s82 offen sc1"), ('need', R(244, 4), f"buffer_store_dwordx4 {vr(244,4)}, v6, s[64:67], s83 offen sc1")]
    if M:
        for pos in range(16):
            m, rr = pos >> 3, (pos & 7) * 2
            if pos == 0: pr, pi = IM
            else:
                pm, prr = (pos-1) >> 3, ((pos-1) & 7) * 2
                pr, pi = acc(ACA, 0, pm)+prr, acc(ACA, 1, pm)+prr
            Rr, I = acc(ACA, 0, m) + rr, acc(ACA, 1, m) + rr
            l1 += step2(Rr, I, pr, pi, PM, Rr, I, True)
    late += merge(l1, [x for x in l2 if x != "s_nop 0"] if M else l2)
    if M:
        for comp in range(2):
            PB = 216 if comp == 0 else 232
            k = 0
            for par in range(2):
                for m in range(2):
                    b = acc(ACA, comp, m); P = PB + 4*k
                    for aa in range(4): late.append(f"v_cvt_pk_bf16_f32 v{P+aa}, v{b+4*aa+par}, v{b+4*aa+2+par}")
                    late.append(('lds', f"ds_write_b128 v{12+2*par+m}, {vr(P,4)}", []))
                    k += 1
            k = 0
            for mt in range(2):
                for u in range(2):
                    d = acc(ACA, comp, 0) + 4*k
                    late.append(('lds', f"ds_read_b64_tr_b16 {vr(d,2)}, v{20+2*mt} offset:{u*2048}", R(d, 2)))
                    late.append(('lds', f"ds_read_b64_tr_b16 {vr(d+2,2)}, v{21+2*mt} offset:{u*2048}", R(d+2, 2)))
                    k += 1
        for comp in range(2):
            k = 0
            for mt in range(2):
                for u in range(2):
                    d = acc(ACA, comp, 0) + 4*k
                    late.append(('need', R(d, 4), f"s_add_u32 s5, s80, {(mt*176 + 4*comp + u)*1024}\nbuffer_store_dwordx4 {vr(d,4)}, v6, s[64:67], s5 offen sc1"))
                    k += 1
    st = list(range(LS, 16))
    if M:
        n = OPT['capM']
        for i, s in enumerate(st): F[s] += late[i*n:(i+1)*n]
        F[16] += late[len(st)*n:]
        F[LS] = F[LS];
        for s in st: F[s] = stores_last(F[s])
    elif OPT['gs'] in (0, 2):
        F[LS] += late
    else:
        F[13] += late; F[14] += GL; F[15] += ["s_waitcnt vmcnt(0)\n" + flag_item(0)]
    return F

def p1_consumer(a, M):
    S = Sched(a)
    kindA = 'S' if M else 'G'
    F = passB_fillers(M)
    stamp(a, 1)
    a("s_barrier")
    stamp(a, 2); cstamp(a, 56)
    for x in reads_main(kindA, 0, 0, 0): S.read(*x)
    for s in range(16):
        slot = s % 3
        kind = kindA if s < 8 else 'G'
        base = ACA if s < 8 else ACB
        for kk in range(4):
            st = kk & 1
            rd = []
            if kk == 3:
                if s < 15:
                    S.all()
                    if OPT['fine']: stamp(a, 16 + s)
                    a("s_barrier")
                    if XH[s+1] != XH[s]:
                        op = "v_add_u32" if XH[s+1] else "v_subrev_u32"
                        for r_ in (list(range(12, 20)) + list(range(24, 28)) if s < 8 else range(16, 20)): a(f"{op} v{r_}, 49152, v{r_}")
                    rd = reads_main(kindA if s + 1 < 8 else 'G', s+1, 0, 0)
            else:
                rd = reads_main(kind, s, kk+1, st ^ 1)
            if s < 8 and kk in (0, 2): rd = rd + reads_ext(s, kk >> 1)
            mf = mfma_main(kind, base, st, (s in (0, 8)) and kk == 0)
            if s < 8 and kk in (1, 3): mf = mf[:2] + mfma_ext(s == 0 and kk == 1) + mf[2:]
            fs = s + 1 if kk == 3 else s
            fl = []
            if fs >= 7 and not (kk == 3 and s in (6, 7)) and not OPT['noF']:
                q = F[fs]
                nblk = {7: 3, 8: 3, 16: 1}.get(fs, 4)
                bi = kk if fs in (7, 8) else (0 if kk == 3 else kk + 1)
                if fs == 16: fl = q[:16]; F[16] = q[16:]
                else:
                    n = (len(q) + nblk - 1) // nblk
                    fl = q[bi*n:(bi+1)*n]
            rd = list(rd); fl = list(fl)
            nf = (len(fl) + len(mf) - 1) // len(mf) if fl else 0
            for i, (ins, regs) in enumerate(mf):
                S.need(regs); a(ins)
                for _ in range(OPT['per1']):
                    if rd: S.read(*rd.pop(0))
                if s == 8 and kk == 0 and i < 2: continue
                for _ in range(nf + (1 if s == 8 and kk == 0 else 0) * nf):
                    if fl: S.item(fl.pop(0))
            for x in rd: S.read(*x)
            for x in fl: S.item(x)
            if kk == 3 and s == OPT['tw'] and not OPT['ts']: touches(a, 2)
            if kk == 3 and OPT['ts']:
                for sub, st_ in enumerate([int(c) for c in str(OPT['ts'])]):
                    if s == st_: touch_sub(a, sub)
            if kk == 3 and s == 7:
                for x in F['ser']: S.item(x)
        if s == 3: stamp(a, 3); cstamp(a, 57)
        if s == 7: stamp(a, 4); cstamp(a, 58)
    stamp(a, 5); cstamp(a, 61)
    if not OPT['noF']:
        for x in F[16]: S.item(x)
    S.all()
    stamp(a, 8)

def touches(a, part):
    l1 = a.lab(); l2 = a.lab()
    lo, hi = {0: (1, 8), 1: (1, 4), 2: (4, 8)}[part]
    a(f"s_cmp_lg_u32 s3, 1\ns_cbranch_scc1 {l1}")
    srd(a, 52, sX, 2097152); srd(a, 56, sWg, 1835008); srd(a, 60, sWu, 1835008)
    a(f"v_and_b32 v1, 7, v0\nv_min_u32 v1, {hi-lo-1}, v1\nv_lshlrev_b32 v1, 7, v1\nv_lshrrev_b32 v2, 3, v0\nv_lshl_add_u32 v1, v2, 10, v1\ns_lshl_b32 s4, s2, 13\ns_add_u32 s4, s4, {lo*128}")
    a("buffer_load_dword v8, v1, s[52:55], s4 offen")
    r0 = 0 if part == 0 else 64*lo
    nl = (64*hi - r0) * 28 // 256
    a(f"v_min_u32 v1, {nl-1}, v0\nv_lshlrev_b32 v1, 7, v1\ns_mul_i32 s4, s2, {nl*128}\ns_add_u32 s4, s4, {r0*3584}")
    a("buffer_load_dword v8, v1, s[56:59], s4 offen\nbuffer_load_dword v8, v1, s[60:63], s4 offen")
    if part == 2:
        a(f"v_min_u32 v1, 6, v0\nv_lshlrev_b32 v1, 7, v1\ns_mul_i32 s4, s2, {7*128}")
        a("buffer_load_dword v8, v1, s[56:59], s4 offen\nbuffer_load_dword v8, v1, s[60:63], s4 offen")
    a.label(l1)
    a(f"s_cmp_lg_u32 s3, 2\ns_cbranch_scc1 {l2}")
    if part in (0, 1):
        srd(a, 52, sBre, 524288); srd(a, 56, sBim, 524288)
        a("v_and_b32 v1, 15, v0\nv_lshlrev_b32 v1, 7, v1\ns_lshl_b32 s4, s2, 11\nbuffer_load_dword v8, v1, s[52:55], s4 offen\nbuffer_load_dword v8, v1, s[56:59], s4 offen")
    if part in (0, 2):
        srd(a, 52, sWd, 1835008); srd(a, 56, sCre, 524288); srd(a, 60, sCim, 524288)
        a("v_and_b32 v1, 15, v0\nv_lshlrev_b32 v1, 7, v1\ns_lshl_b32 s4, s2, 11\nbuffer_load_dword v8, v1, s[56:59], s4 offen\nbuffer_load_dword v8, v1, s[60:63], s4 offen")
        a(f"v_min_u32 v1, 55, v0\nv_lshlrev_b32 v1, 7, v1\ns_mul_i32 s4, s2, {56*128}\nbuffer_load_dword v8, v1, s[52:55], s4 offen")
    a.label(l2)

def touch_sub(a, sub):
    l = a.lab()
    a(f"s_cmp_lg_u32 s3, {1 + (sub >> 1)}\ns_cbranch_scc1 {l}")
    if sub == 0:
        srd(a, 52, sX, 2097152); srd(a, 56, sWg, 1835008)
        a(f"v_and_b32 v1, 7, v0\nv_min_u32 v1, 3, v1\nv_lshlrev_b32 v1, 7, v1\nv_lshrrev_b32 v2, 3, v0\nv_lshl_add_u32 v1, v2, 10, v1\ns_lshl_b32 s4, s2, 13\ns_add_u32 s4, s4, 512")
        a("buffer_load_dword v8, v1, s[52:55], s4 offen")
        a(f"v_min_u32 v1, 27, v0\nv_lshlrev_b32 v1, 7, v1\ns_mul_i32 s4, s2, {28*128}\ns_add_u32 s4, s4, {256*3584}\nbuffer_load_dword v8, v1, s[56:59], s4 offen")
        srd(a, 60, sWu, 1835008)
        a("buffer_load_dword v8, v1, s[60:63], s4 offen")
    elif sub == 1:
        srd(a, 56, sWg, 1835008); srd(a, 60, sWu, 1835008)
        a(f"v_min_u32 v1, 6, v0\nv_lshlrev_b32 v1, 7, v1\ns_mul_i32 s4, s2, {7*128}")
        a("buffer_load_dword v8, v1, s[56:59], s4 offen\nbuffer_load_dword v8, v1, s[60:63], s4 offen")
    elif sub == 2:
        srd(a, 52, sWd, 1835008)
        a(f"v_min_u32 v1, 55, v0\nv_lshlrev_b32 v1, 7, v1\ns_mul_i32 s4, s2, {56*128}\nbuffer_load_dword v8, v1, s[52:55], s4 offen")
    else:
        srd(a, 56, sCre, 524288); srd(a, 60, sCim, 524288)
        a("v_and_b32 v1, 15, v0\nv_lshlrev_b32 v1, 7, v1\ns_lshl_b32 s4, s2, 11\nbuffer_load_dword v8, v1, s[56:59], s4 offen\nbuffer_load_dword v8, v1, s[60:63], s4 offen")
    a.label(l)

def p1_consumer_prologue(a, code_end):
    srd(a, 64, sWs, WS_USED)
    l_np = a.lab(); l_nn = a.lab(); l_n2 = a.lab(); l_n1 = a.lab()
    a(f"s_cmp_lg_u32 s3, 0\ns_cbranch_scc1 {l_nn}")
    srd(a, 60, sDbg, 256)
    a("s_memrealtime s[14:15]\nv_mov_b32 v9, 0\nv_mov_b32 v11, 0\ns_waitcnt lgkmcnt(0)\ns_or_b32 s14, s14, 1")
    a("v_mov_b32 v10, s14\ns_mov_b64 exec, 1")
    a("buffer_atomic_cmpswap v[10:11], v9, s[60:63], 0 offen sc0\ns_mov_b64 exec, -1")
    a.label(l_nn)
    touches(a, 0 if OPT['tw'] < 0 else 1)
    a("v_bfe_u32 v1, v0, 2, 2\nv_and_b32 v2, 3, v0\nv_lshl_add_u32 v3, v1, 3, v2")
    a("v_and_b32 v4, 2, v0\nv_bfe_u32 v5, v0, 3, 1\nv_lshl_or_b32 v4, v5, 2, v4\nv_lshrrev_b32 v5, 4, v0\nv_xor_b32 v4, v4, v5")
    a(f"v_lshlrev_b32 v4, 4, v4\nv_lshl_add_u32 v{vXe}, v3, 7, v4\ns_lshl_b32 s4, s3, 12\nv_add_u32 v{vXe}, s4, v{vXe}")
    a(f"v_xor_b32 v{vXe+1}, 64, v{vXe}\nv_xor_b32 v{vXe+2}, 16, v{vXe}\nv_add_u32 v{vXe+2}, 512, v{vXe+2}\nv_xor_b32 v{vXe+3}, 64, v{vXe+2}")
    a("v_and_b32 v3, 15, v0\nv_lshrrev_b32 v4, 1, v3\nv_xor_b32 v4, v4, v5\nv_lshlrev_b32 v4, 4, v4")
    a(f"v_lshl_add_u32 v{vEa}, v3, 7, v4\nv_add_u32 v{vEa}, {EXT}, v{vEa}\nv_xor_b32 v{vEa+1}, 64, v{vEa}")
    a(f"s_lshr_b32 s4, s3, 1\ns_lshl_b32 s4, s4, 13\ns_and_b32 s51, s3, 1")
    for perm, vx in ((0, vXn), (1, vXp)):
        if not perm: a("v_and_b32 v1, 31, v0")
        else:
            a("v_bfe_u32 v1, v0, 2, 1\nv_lshlrev_b32 v1, 5, v1\nv_and_b32 v2, 1, v0\nv_lshl_or_b32 v1, v2, 4, v1")
            a("v_bfe_u32 v2, v0, 3, 2\nv_lshl_or_b32 v1, v2, 1, v1\nv_bfe_u32 v2, v0, 1, 1\nv_or_b32 v1, v1, v2")
        a("v_bfe_u32 v2, v1, 2, 1\nv_and_b32 v3, 2, v1\nv_or_b32 v2, v2, v3\nv_bfe_u32 v3, v1, 4, 1\nv_lshl_or_b32 v2, v3, 2, v2")
        a(f"v_lshrrev_b32 v3, 5, v0\nv_xor_b32 v2, v2, v3\nv_lshlrev_b32 v2, 4, v2\nv_lshl_add_u32 v{vx}, v1, 7, v2\nv_add_u32 v{vx}, s4, v{vx}")
        for kk in range(1, 4): a(f"v_xor_b32 v{vx+kk}, {kk*32}, v{vx}")
    a("v_lshrrev_b32 v1, 5, v0\nv_lshlrev_b32 v1, 3, v1\nv_bfe_u32 v2, v0, 2, 2\nv_add_u32 v1, v1, v2")
    a("v_bfe_u32 v2, v0, 4, 1\nv_lshlrev_b32 v2, 5, v2\nv_and_b32 v3, 3, v0\nv_lshl_add_u32 v2, v3, 3, v2")
    a("v_bfe_u32 v3, v0, 3, 1\nv_lshlrev_b32 v3, 6, v3\nv_xor_b32 v2, v2, v3")
    a(f"s_lshl_b32 s5, s51, 6\nv_xor_b32 v2, s5, v2\nv_lshl_add_u32 v{vWt}, v1, 7, v2\nv_add_u32 v{vWt}, {BLK}, v{vWt}")
    a(f"s_lshl_b32 s5, s51, 12\ns_add_u32 s5, s5, {BLK}")
    a("v_and_b32 v1, 31, v0\nv_bfe_u32 v2, v0, 1, 3\nv_lshrrev_b32 v3, 5, v0\nv_xor_b32 v2, v2, v3\nv_lshlrev_b32 v2, 4, v2")
    a(f"v_lshl_add_u32 v{vWa}, v1, 7, v2\nv_add_u32 v{vWa}, s5, v{vWa}")
    for kk in range(1, 4): a(f"v_xor_b32 v{vWa+kk}, {kk*32}, v{vWa}")
    a("v_lshlrev_b32 v6, 4, v0")
    a(f"s_lshl_b32 s81, s6, 10\ns_lshl_b32 s4, s13, 4\ns_add_u32 s81, s81, s4\ns_lshl_b32 s4, s3, 2\ns_add_u32 s81, s81, s4\ns_add_u32 s81, s81, {FLG_OFF}")
    a("s_lshr_b32 s4, s3, 1\ns_lshl_b32 s4, s4, 1\ns_lshl_b32 s5, s6, 2\ns_add_u32 s4, s4, s5\ns_mul_i32 s79, s4, 176")
    a("s_lshl_b32 s5, s51, 1\ns_add_u32 s4, s79, s5\ns_lshr_b32 s5, s9, 4\ns_add_u32 s4, s4, s5\ns_lshl_b32 s78, s4, 10")
    a("s_xor_b32 s5, s12, 1\ns_lshl_b32 s5, s5, 12\ns_add_u32 s77, s78, s5")
    a("s_lshl_b32 s5, s8, 4\ns_add_u32 s4, s79, s5\ns_add_u32 s4, s4, 120\ns_lshl_b32 s5, s51, 1\ns_add_u32 s4, s4, s5\ns_lshl_b32 s80, s4, 10")
    a("s_lshl_b32 s4, s6, 2\ns_add_u32 s4, s4, s3\ns_mul_i32 s4, s4, 176\ns_lshl_b32 s5, s8, 4\ns_add_u32 s4, s4, s5\ns_add_u32 s4, s4, s7\ns_add_u32 s4, s4, 112\ns_lshl_b32 s82, s4, 10\ns_add_u32 s83, s82, 4096")
    a(f"s_mov_b32 s50, {NLOG2E}\ns_mov_b32 s51, {NLOG2E}")

def nonce_finish(a):
    l = a.lab()
    return (f"s_cmp_lg_u32 s3, 0\ns_cbranch_scc1 {l}\ns_waitcnt vmcnt(0)\nv_mov_b32 v9, s14\nv_cmp_eq_u32 vcc, 0, v10\ns_mov_b64 exec, 1\nv_mov_b32 v11, 0\n"
            f"v_cndmask_b32 v10, v10, v9, vcc\nds_write_b32 v11, v10 offset:{NONCE}\ns_waitcnt lgkmcnt(0)\ns_mov_b64 exec, -1\n{l}:\ns_mov_b32 s14, s78")

def p2_ids(a):
    a("s_and_b32 s4, s2, 7\ns_lshr_b32 s5, s2, 3\ns_lshl_b32 s84, s4, 2\ns_lshr_b32 s4, s5, 3\ns_add_u32 s84, s84, s4\ns_and_b32 s85, s5, 7")

def p2_consumer(a):
    Bp, Biss = p2_schedule()
    p2_ids(a)
    a("s_and_b32 s8, s3, 1\ns_lshr_b32 s9, s3, 1")
    srd(a, 52, sX, 2097152); srd(a, 56, sDsk, 1024); srd(a, 60, sOut, 4194304)
    XV = 96; GV = 112; DV = 128; OM = 132
    a("s_lshl_b32 s10, s84, 6\ns_lshl_b32 s4, s9, 5\ns_add_u32 s10, s10, s4")
    a("s_lshl_b32 s11, s85, 6\ns_lshl_b32 s4, s8, 5\ns_add_u32 s11, s11, s4")
    a("v_and_b32 v1, 31, v0\nv_add_u32 v1, s11, v1\nv_lshrrev_b32 v2, 5, v0\nv_lshlrev_b32 v2, 2, v2\nv_add_u32 v2, s10, v2")
    a("v_lshlrev_b32 v3, 1, v1\nv_lshl_add_u32 v4, v2, 10, v3")
    a("v_lshlrev_b32 v5, 2, v1\nv_lshl_add_u32 v5, v2, 11, v5")
    a(f"v_lshlrev_b32 v10, 2, v2\nv_add_u32 v10, {G_OFF}, v10")
    a("s_lshl_b32 s4, s84, 1\ns_add_u32 s4, s4, s9\ns_mul_i32 s4, s4, 176\ns_lshl_b32 s5, s8, 1\ns_add_u32 s4, s4, s5\ns_lshl_b32 s80, s4, 10")
    V = VM(a)
    V.ops = ['H'] * 10
    ld = []
    for i in range(16):
        row = 8*(i >> 2) + (i & 3)
        ld.append((f"s_mov_b32 s4, {row*1024}", f"buffer_load_ushort v{XV+i}, v4, s[52:55], s4 offen"))
    for q in range(4): ld.append((None, f"buffer_load_dwordx4 {vr(GV+4*q,4)}, v10, s[64:67], 0 offen offset:{q*32} sc1"))
    ld.append((None, f"buffer_load_ushort v{DV}, v3, s[56:59], 0 offen"))
    vBw, vBc = 12, 18
    a("v_lshrrev_b32 v7, 5, v0\nv_lshlrev_b32 v7, 2, v7\nv_bfe_u32 v8, v0, 2, 2\nv_add_u32 v7, v7, v8")
    a("v_bfe_u32 v8, v0, 4, 1\nv_lshlrev_b32 v8, 5, v8\nv_and_b32 v9, 3, v0\nv_lshl_add_u32 v8, v9, 3, v8\nv_bfe_u32 v9, v0, 3, 1\nv_lshlrev_b32 v9, 6, v9\nv_xor_b32 v8, v8, v9")
    a(f"s_lshl_b32 s4, s8, 12\nv_lshl_add_u32 v{vBw}, v7, 7, v8\nv_add_u32 v{vBw}, s4, v{vBw}\nv_xor_b32 v{vBw+1}, 64, v{vBw}")
    a("v_and_b32 v7, 31, v0\nv_bfe_u32 v8, v0, 1, 3\nv_lshrrev_b32 v9, 5, v0\nv_xor_b32 v8, v8, v9\ns_lshl_b32 s4, s8, 2\nv_xor_b32 v8, s4, v8\nv_lshlrev_b32 v8, 4, v8")
    a(f"v_lshl_add_u32 v{vBc}, v7, 7, v8\nv_xor_b32 v{vBc+1}, 32, v{vBc}")
    W = 57344
    for t in range(1, 3):
        for e in range(2):
            a(f"v_add_u32 v{vBw+2*t+e}, {t*W}, v{vBw+e}\nv_add_u32 v{vBc+2*t+e}, {t*W}, v{vBc+e}")
    AB, AY = 32, 64
    def F(p): return 176 + (p & 3) * 16
    AREGS = [240, 244, 248, 252, 160, 164, 168, 172, 24, 148, 152, 156]
    NAR = 12
    def areg(p, e): return AREGS[(2*p + e) % NAR]
    SC = " sc1" if OPT['sc1_a'] else ""
    def loadA(p):
        for e in range(2):
            a(f"s_add_u32 s4, s80, {ORD[p]*4096 + e*1024}")
            V.op(f"buffer_load_dwordx4 {vr(areg(p,e),4)}, v6, s[64:67], s4 offen{SC}", ('A', p, e))
    def win(addr): t = min((addr - XR) // W, 2); return t, addr - t*W
    def isy(p): return NA_ <= p < NH_
    def reads(p):
        tb, ob = win(page(Bp[p]))
        r = []; f = F(p)
        for e in range(2):
            for nt in range(2):
                d = f + (e*2+nt)*4
                if not isy(p):
                    r.append((f"ds_read_b64_tr_b16 {vr(d,2)}, v{vBw+2*tb+nt} offset:{ob + e*2048}", R(d, 2)))
                    r.append((f"ds_read_b64_tr_b16 {vr(d+2,2)}, v{vBw+2*tb+nt} offset:{ob + e*2048 + 1024}", R(d+2, 2)))
                else:
                    r.append((f"ds_read_b128 {vr(d,4)}, v{vBc+2*tb+e} offset:{ob + nt*4096}", R(d, 4)))
        return r
    pre = [f"v_lshlrev_b32 v{DV}, 16, v{DV}", "s_mov_b32 s12, 0xffff0000"]
    for i in range(0, 16, 2):
        for e in range(2):
            pre += [f"v_lshlrev_b32 v{XV+i+e}, 16, v{XV+i+e}", f"v_mul_f32 v{XV+i+e}, v{XV+i+e}, v{DV}", f"v_sub_f32 v{OM+i+e}, 1.0, v{GV+i+e}"]
        pre += [f"v_cvt_pk_bf16_f32 v{DV+1}, v{XV+i}, v{XV+i+1}", f"v_cvt_pk_bf16_f32 v{DV+2}, v{OM+i}, v{OM+i+1}",
                f"v_lshlrev_b32 v{XV+i}, 16, v{DV+1}", f"v_and_b32 v{XV+i+1}, s12, v{DV+1}",
                f"v_lshlrev_b32 v{OM+i}, 16, v{DV+2}", f"v_and_b32 v{OM+i+1}, s12, v{DV+2}"]
    epiB = glu_epi(ACB, 77, 64, 80, (1, 0))
    S = Sched(a)
    na = 0
    KH, KB = OPT['KH'], OPT['KB']
    def allowed(p, k): return (p < NA_) or (p < NH_ and k > KH) or k > KB
    for k in range(23):
        if k == 0: stamp(a, 6)
        if k < 22: a("s_barrier")
        if k == 0: stamp(a, 9); cstamp(a, 59)
        if k < 22 and (OPT['fine'] or k in (5, 12, 19)): stamp(a, 32+k)
        if k == 14: stamp(a, 10)
        rd = reads(2*k) + reads(2*k+1) if k < 22 else []
        if k == 0:
            while na < 4: loadA(na); na += 1
            for x in rd: S.read(*x)
            for x in epiB[0] + epiB[1]:
                a(x)
                if 'buffer_store' in x: V.ops.append('E')
            V.wait('H'); a(flag_item(1)); V.ops.append('F')
            while na < NAR // 2: loadA(na); na += 1
            eb = epiB[2] + epiB[3]
        else:
            rd = list(rd)
            for p in (2*k-2, 2*k-1):
                f = F(p)
                for e in range(2):
                    V.wait(('A', p, e))
                    for nt in range(2):
                        d = vr((AY if isy(p) else AB) + 16*nt, 16)
                        c = "0" if (p in (0, NA_) and e == 0) else d
                        S.need(R(f+(e*2+nt)*4, 4))
                        a(f"v_mfma_f32_32x32x16_bf16 {d}, {vr(areg(p,e),4)}, {vr(f+(e*2+nt)*4,4)}, {c}")
                        for _ in range(OPT['per2']):
                            if rd: S.read(*rd.pop(0))
                        for _ in range(4):
                            if eb:
                                x = eb.pop(0); a(x)
                                if 'buffer_store' in x: V.ops.append('E')
                while na <= 43 and na < p + 1 + NAR // 2 and allowed(na, k): loadA(na); na += 1
            for x in rd: S.read(*x)
        if k == 4:
            assert not eb
            V.wait('E'); a(flag_item(2)); V.ops.append('F')
        if 5 <= k < 5 + 7:
            for (p_, ins) in ld[(k-5)*3:(k-5)*3+3]:
                if p_: a(p_)
                V.op(ins, 'L')
        if k == 14: V.wait('L')
        if 14 <= k < 21:
            n = (len(pre) + 6) // 7
            for x in pre[(k-14)*n:(k-13)*n]: a(x)
    assert na == 44
    stamp(a, 11); cstamp(a, 60)
    used = {Bp[40], Bp[41], Bp[42], Bp[43]}
    xp = [page(p) for p in range(18) if p not in used][:4]
    a(f"s_mov_b32 s4, {xp[0]}\ns_mov_b32 s5, {xp[1]}\ns_cmp_eq_u32 s9, 1\ns_cselect_b32 s4, {xp[2]}, s4\ns_cselect_b32 s5, {xp[3]}, s5")
    a("s_cmp_eq_u32 s8, 1\ns_cselect_b32 s10, s5, s4\ns_cselect_b32 s11, s4, s5")
    a("v_lshlrev_b32 v7, 4, v0\nv_add_u32 v8, s10, v7\nv_add_u32 v9, s11, v7")
    lk1 = a.lab(); lj = a.lab()
    a(f"s_nop 4\ns_cbranch_scc1 {lk1}")
    RB, RY = 176, 192
    for kh in range(2):
        if kh == 1: a.label(lk1)
        sn = kh ^ 1
        for q in range(4):
            a(f"ds_write_b128 v8, {vr(AB+16*sn+4*q,4)} offset:{q*1024}\nds_write_b128 v8, {vr(AY+16*sn+4*q,4)} offset:{4096+q*1024}")
        for i in range(0, 16, 2): a(f"v_pk_add_f32 {vr(AY+16*kh+i,2)}, {vr(AY+16*kh+i,2)}, {vr(XV+i,2)}")
        a("s_waitcnt lgkmcnt(0)\ns_barrier")
        for q in range(4):
            a(f"ds_read_b128 {vr(RB+4*q,4)}, v9 offset:{q*1024}\nds_read_b128 {vr(RY+4*q,4)}, v9 offset:{4096+q*1024}")
        for q in range(4):
            a(f"s_waitcnt lgkmcnt({6-2*q})")
            for i in range(4*q, 4*q+4, 2):
                a(f"v_pk_add_f32 {vr(RB+i,2)}, {vr(RB+i,2)}, {vr(AB+16*kh+i,2)}\nv_pk_add_f32 {vr(RY+i,2)}, {vr(RY+i,2)}, {vr(AY+16*kh+i,2)}")
        if kh == 0: a(f"s_branch {lj}")
    a.label(lj)
    for i in range(0, 16, 2):
        T = 224 + (i & 6)
        a(f"v_cvt_pk_bf16_f32 v{T}, v{RB+i}, v{RB+i+1}\nv_pk_mul_f32 {vr(RY+i,2)}, {vr(RY+i,2)}, {vr(GV+i,2)}")
        a(f"v_lshlrev_b32 v{RB+i}, 16, v{T}\nv_and_b32 v{RB+i+1}, s12, v{T}")
        a(f"v_pk_mul_f32 {vr(RB+i,2)}, {vr(RB+i,2)}, {vr(OM+i,2)}\nv_cvt_pk_bf16_f32 v{T}, v{RB+i}, v{RB+i+1}")
        a(f"v_lshlrev_b32 v{RB+i}, 16, v{T}\nv_and_b32 v{RB+i+1}, s12, v{T}")
        a(f"v_pk_add_f32 {vr(RY+i,2)}, {vr(RY+i,2)}, {vr(RB+i,2)}")
        for e in range(2):
            row = 8*((i+e) >> 2) + ((i+e) & 3)
            a(f"s_mov_b32 s4, {row*2048}\nbuffer_store_dword v{RY+i+e}, v5, s[60:63], s4 offen sc1")
    stamp(a, 12)
    if STAMP: a("s_waitcnt vmcnt(0)")
    stamp(a, 13)
    stamp_flush(a)
    a("s_endpgm")

def loader_pre(a):
    if OPT['prio']: a(f"s_setprio {OPT['prio']}")
    a("v_lshrrev_b32 v1, 3, v0\nv_and_b32 v2, 7, v0")
    a("v_lshrrev_b32 v3, 5, v0\nv_and_b32 v4, 2, v1\nv_or_b32 v3, v3, v4\nv_xor_b32 v3, v3, v2\nv_lshlrev_b32 v3, 4, v3\nv_lshl_add_u32 v10, v1, 10, v3\nv_xor_b32 v11, 64, v10")
    a("v_bfe_u32 v3, v0, 4, 1\nv_lshlrev_b32 v3, 2, v3\nv_xor_b32 v3, v3, v2\nv_lshlrev_b32 v3, 4, v3\ns_movk_i32 s4, 3584\nv_mad_u32_u24 v16, v1, s4, v3\nv_lshl_add_u32 v15, v1, 10, v3")
    a("v_lshrrev_b32 v4, 4, v0\nv_xor_b32 v3, v4, v2\nv_lshlrev_b32 v3, 4, v3\nv_lshl_add_u32 v28, v1, 10, v3\nv_xor_b32 v29, 64, v28")
    a("s_cmp_eq_u32 s12, 1\ns_cselect_b64 vcc, -1, 0\nv_cndmask_b32 v12, v16, v28, vcc\nv_cndmask_b32 v13, v16, v29, vcc")
    a("s_and_b32 s14, s3, 1")
    a("s_mul_i32 s4, s14, 114688\ns_lshl_b32 s5, s9, 1\ns_add_u32 s70, s4, s5\ns_lshl_b32 s4, s14, 5\ns_add_u32 s4, s4, s11\ns_lshl_b32 s5, s4, 10")
    a("s_cmp_eq_u32 s12, 1\ns_cselect_b32 s80, s5, s70\ns_mov_b32 s81, 143360\ns_movk_i32 s82, 28672\ns_cselect_b32 s81, -24448, s81\ns_cselect_b32 s82, 8192, s82")
    a("s_mov_b32 s4, 1835008\ns_cselect_b32 s58, 524288, s4\ns_mov_b32 s59, 0x20000")
    a("s_cselect_b32 s4, 0, 128\ns_add_u32 s70, s70, s4")
    a("s_lshl_b32 s4, s14, 2\nv_or_b32 v4, s4, v4\nv_xor_b32 v4, v4, v2\nv_lshlrev_b32 v4, 4, v4\nv_lshl_add_u32 v14, v1, 10, v4")
    a("s_lshl_b32 s4, s14, 3\ns_add_u32 s4, s4, s10\ns_lshl_b32 s85, s4, 10")
    a("s_lshl_b32 s4, s6, 7\ns_lshl_b32 s5, s3, 5\ns_add_u32 s4, s4, s5\ns_lshl_b32 s86, s4, 10")
    a(f"s_lshl_b32 s87, s3, 12\ns_lshr_b32 s4, s3, 1\ns_mul_i32 s88, s4, 24576\ns_lshl_b32 s4, s14, 12\ns_add_u32 s88, s88, s4\ns_add_u32 s88, s88, {BLK}\ns_lshl_b32 s89, s3, 10\ns_add_u32 s89, s89, {EXT}")
    a("s_mov_b32 s54, 2097152\ns_mov_b32 s55, 0x20000\ns_mov_b32 s62, 524288\ns_mov_b32 s63, 0x20000")

def loader(a):
    Bp, Biss = p2_schedule()
    V = VM(a)
    a("s_waitcnt lgkmcnt(0)")
    a("s_mov_b64 s[52:53], s[16:17]")
    a("s_cmp_ge_u32 s3, 2\ns_cselect_b64 s[72:73], s[38:39], s[36:37]\ns_cselect_b64 s[60:61], s[24:25], s[22:23]")
    a("s_cmp_eq_u32 s12, 1\ns_cselect_b64 s[56:57], s[60:61], s[72:73]\ns_mov_b64 s[90:91], s[72:73]")
    def issue(V, s):
        slot = s % 3
        if s == 8:
            a("s_mov_b64 s[56:57], s[90:91]\ns_mov_b32 s58, 1835008\ns_add_u32 s80, s70, 1146880\ns_mov_b32 s81, 143360\ns_movk_i32 s82, 28672\nv_mov_b32 v12, v16\nv_mov_b32 v13, v16")
        if s == 11: a("s_sub_u32 s80, s80, 1835008")
        for i in range(4 if XL[s] else 0):
            a(f"s_add_u32 m0, s87, {XR + XH[s]*49152 + XI[s]*16384 + i*1024}\ns_add_u32 s4, s86, {i*8192 + KS[s]*128}")
            V.op(f"buffer_load_dwordx4 v{10 + (i >> 1)}, s[52:55], s4 offen lds", ('S', s))
        for i in range(4):
            a(f"s_add_u32 m0, s88, {slot*8192 + i*1024}\ns_nop 0")
            V.op(f"buffer_load_dwordx4 v{12 + (i & 1)}, s[56:59], s80 offen lds", ('S', s))
            a("s_add_u32 s80, s80, s82" if i < 3 else "s_add_u32 s80, s80, s81")
        if s < 8:
            a(f"s_add_u32 m0, s89, {slot*4096}\ns_add_u32 s4, s85, {s*128}")
            V.op("buffer_load_dwordx4 v14, s[60:63], s4 offen lds", ('S', s))
    def bar(V, s, extra="", defer=False):
        V.wait(('S', s+1), extra=extra)
        if OPT['fine']: stamp(a, 16 + s)
        a("s_barrier")
        if defer: return lambda: issue(V, s + 3)
        if s + 3 <= 15: issue(V, s + 3)
        r = s - OPT['l2t']
        if OPT['l2t'] and 0 <= r <= 2:
            if r < 2:
                srd(a, 76, sWd, 1835008)
                a(f"s_lshr_b32 s4, s2, 3\ns_mul_i32 s4, s4, 57344\ns_lshl_b32 s5, s3, 13\ns_add_u32 s4, s4, s5\ns_add_u32 s4, s4, {r*32768}\nv_lshlrev_b32 v18, 7, v0")
                if r == 1: a("s_cmp_eq_u32 s3, 3\ns_cselect_b32 s78, 0, s78")
            else:
                a("s_cmp_ge_u32 s3, 2\ns_cselect_b64 s[76:77], s[28:29], s[26:27]\ns_mov_b32 s78, 524288\ns_mov_b32 s79, 0x20000")
                a("s_lshr_b32 s4, s2, 3\ns_lshl_b32 s4, s4, 14\ns_and_b32 s5, s3, 1\ns_lshl_b32 s5, s5, 13\ns_add_u32 s4, s4, s5")
            V.op("buffer_load_dword v19, v18, s[76:79], s4 offen", 'T')
    issue(V, 0); stamp(a, 14); issue(V, 1)
    V.wait(('S', 0)); stamp(a, 2); a("s_barrier")
    issue(V, 2)
    srd(a, 64, sWs, WS_USED)
    srd(a, 92 if not STAMP else 92, sGw, 1024) if False else None
    srd(a, 72, sLre, 1024); srd(a, 76, sLim, 1024); srd(a, 96, sLdt, 1024)
    a("s_mov_b64 s[68:69], s[42:43]\ns_mov_b32 s71, 0x20000\ns_mov_b32 s92, s70\ns_movk_i32 s70, 1024")
    a("s_lshl_b32 s4, s6, 7\ns_lshl_b32 s5, s13, 3\ns_add_u32 s4, s4, s5\ns_lshl_b32 s5, s3, 1\ns_add_u32 s15, s4, s5\ns_lshl_b32 s14, s15, 10")
    a("v_lshlrev_b32 v1, 4, v0")
    a("s_and_b32 s4, s3, 1\ns_lshl_b32 s4, s4, 6\nv_add_u32 v2, s4, v0\nv_add_u32 v3, s10, v2\ns_sub_u32 s5, s11, 16\nv_add_u32 v4, s5, v2")
    a("v_cmp_gt_u32 vcc, 16, v2\ns_nop 1\nv_cndmask_b32 v3, v4, v3, vcc\nv_lshlrev_b32 v3, 1, v3")
    bar(V, 0)
    V.op("buffer_load_dwordx4 v[32:35], v1, s[52:55], s14 offen", 'X'); V.op("buffer_load_dwordx4 v[36:39], v1, s[52:55], s14 offen offset:1024", 'X')
    V.op("buffer_load_dwordx4 v[40:43], v1, s[68:71], 0 offen", 'X')
    V.op("buffer_load_ushort v44, v3, s[72:75], 0 offen", 'X'); V.op("buffer_load_ushort v45, v3, s[76:79], 0 offen", 'X'); V.op("buffer_load_ushort v46, v3, s[96:99], 0 offen", 'X')
    a("s_mov_b32 s70, s92")
    bar(V, 1); bar(V, 2)
    V.wait('X')
    a("v_lshlrev_b32 v44, 16, v44\nv_lshlrev_b32 v45, 16, v45\nv_lshlrev_b32 v46, 16, v46")
    a(f"v_mul_f32 v46, {LOG2E}, v46\nv_exp_f32 v46, v46\ns_nop 0")
    bf16_round(a, 46, 46, 47)
    a(f"v_mul_f32 v47, v46, v44\nv_mul_f32 v48, v46, v45")
    a(f"v_mul_f32 v47, {LOG2E}, v47\nv_exp_f32 v47, v47\nv_mul_f32 v48, {INV2PI}, v48\nv_rndne_f32 v49, v48\nv_sub_f32 v48, v48, v49")
    a("v_cos_f32 v49, v48\nv_sin_f32 v50, v48\ns_nop 0\nv_mul_f32 v52, v47, v49\nv_mul_f32 v53, v47, v50")
    a("v_mul_f32 v49, v44, v44\nv_fma_f32 v49, v45, v45, v49\nv_rcp_f32 v49, v49\nv_add_f32 v50, -1.0, v52")
    a("v_mul_f32 v54, v50, v44\nv_fma_f32 v54, v53, v45, v54\nv_mul_f32 v55, v53, v44\nv_fma_f32 v55, -v50, v45, v55")
    a("v_add_f32 v49, v49, v49\nv_mul_f32 v54, v54, v49\nv_mul_f32 v55, v55, v49")
    a("v_lshlrev_b32 v2, 4, v2\nv_cmp_gt_u32 vcc, 1280, v2\ns_and_saveexec_b64 s[78:79], vcc")
    a(f"ds_write_b128 v2, v[52:55] offset:{PARAM}")
    a("s_mov_b64 exec, s[78:79]")
    bar(V, 3, " lgkmcnt(0)")
    a("v_mov_b32 v4, 0\nv_mov_b32 v5, 0\ns_mov_b32 s4, 0xffff0000")
    for i in range(4):
        a(f"v_lshlrev_b32 v6, 16, v{40+i}\nv_and_b32 v7, s4, v{40+i}")
        for r in range(2):
            x = 32 + 4*r + i
            a(f"v_lshlrev_b32 v8, 16, v{x}\nv_and_b32 v9, s4, v{x}\nv_mul_f32 v8, v8, v6\nv_mul_f32 v9, v9, v7")
            a(f"v_cvt_pk_bf16_f32 v8, v8, v9\nv_lshlrev_b32 v9, 16, v8\nv_and_b32 v8, s4, v8\nv_add_f32 v{4+r}, v{4+r}, v9\nv_add_f32 v{4+r}, v{4+r}, v8")
        if i == 1: bar(V, 4); a("s_mov_b32 s4, 0xffff0000")
    bar(V, 5)
    for sh in [1, 2, 4, 8]:
        a(f"s_nop 1\nv_add_f32_dpp v4, v4, v4 row_shr:{sh} row_mask:0xf bank_mask:0xf bound_ctrl:0\nv_add_f32_dpp v5, v5, v5 row_shr:{sh} row_mask:0xf bank_mask:0xf bound_ctrl:0")
    a("s_nop 1")
    for r in range(2):
        a(f"v_readlane_b32 s{76+20*r}, v{4+r}, 15\nv_readlane_b32 s{77+20*r}, v{4+r}, 31\nv_readlane_b32 s{78+20*r}, v{4+r}, 47")
    a("s_nop 1")
    for j in range(3):
        a(f"v_add_f32 v4, s{76+j}, v4\nv_add_f32 v5, s{96+j}, v5")
    a("s_nop 0\nv_readlane_b32 s4, v4, 63\nv_readlane_b32 s5, v5, 63\nv_cmp_eq_u32 vcc, 1, v0\ns_nop 0\nv_mov_b32 v4, s4\nv_mov_b32 v5, s5\nv_cndmask_b32 v4, v4, v5, vcc")
    bf16_round(a, 4, 4, 5)
    a(f"v_mul_f32 v4, {NLOG2E}, v4\nv_exp_f32 v4, v4\ns_nop 0\nv_add_f32 v4, 1.0, v4\nv_rcp_f32 v4, v4\ns_nop 0")
    bf16_round(a, 4, 4, 5)
    a(f"s_lshl_b32 s4, s15, 2\ns_add_u32 s4, s4, {G_OFF}\nv_lshlrev_b32 v5, 2, v0\ns_mov_b64 exec, 3")
    V.op("buffer_store_dword v4, v5, s[64:67], s4 offen sc1", 'G'); a("s_mov_b64 exec, -1")
    bar(V, 6); bar(V, 7)
    V.wait('G')
    def b_setup():
        p2_ids(a)
        srd(a, 52, sWd, 1835008); srd(a, 56, sCre, 524288); srd(a, 60, sCim, 524288)
        a("s_lshl_b32 s4, s3, 14\ns_lshl_b32 s5, s85, 7\ns_add_u32 s89, s4, s5\ns_lshl_b32 s5, s85, 16\ns_add_u32 s90, s4, s5\ns_lshl_b32 s91, s3, 11")
    def loadB(V, p):
        s = ORD[p]
        for i in range(1 if OPT['halfB'] else 2):
            a(f"s_add_u32 m0, s91, {page(Bp[p]) + i*1024}")
            if s < 28:
                a(f"s_add_u32 s4, s89, {s*65536 + i*8192}")
                V.op(f"buffer_load_dwordx4 v15, s[52:55], s4 offen lds", ('B', p))
            else:
                t = s - 28
                a(f"s_add_u32 s4, s90, {(t >> 1)*128 + i*8192}")
                V.op(f"buffer_load_dwordx4 v{28+i}, s[{56 + 4*(t & 1)}:{59 + 4*(t & 1)}], s4 offen lds", ('B', p))
    def poll(which, pre_issued=False):
        lp = a.lab(); ld = a.lab(); lc = a.lab()
        a("s_mov_b32 s88, 0x8000")
        if pre_issued: a(f"s_branch {lc}")
        a.label(lp)
        a(f"buffer_load_dword v8, v9, s[64:67], s86 offen offset:{which*256} sc1\ns_waitcnt vmcnt(0)")
        a.label(lc)
        a(f"v_cmp_ne_u32 vcc, s72, v8\ns_cmp_eq_u64 vcc, 0\ns_cbranch_scc1 {ld}")
        a(f"s_sub_u32 s88, s88, 1\ns_cmp_lg_u32 s88, 0\ns_cbranch_scc1 {lp}")
        a.label(ld)
    KH, KB = OPT['KH'], OPT['KB']
    def pollissue(V, which): V.op(f"buffer_load_dword v8, v9, s[64:67], s86 offen offset:{which*256} sc1", 'P')
    def tail(V, role):
        b_setup()
        if role == 2:
            a(f"s_lshr_b32 s4, s84, 1\ns_lshl_b32 s4, s4, 10\ns_add_u32 s86, s4, {FLG_OFF}\nv_lshlrev_b32 v9, 2, v0")
        for p in Biss['b12']: loadB(V, p)
        bar(V, 13, " lgkmcnt(0)")
        for p in Biss['b13']: loadB(V, p)
        bar(V, 14)
        if role == 2: pollissue(V, 0)
        for p in Biss['b14']: loadB(V, p)
        for k in range(22):
            V.wait(('B', 2*k), ('B', 2*k+1))
            if role == 2:
                for (kk_, wh) in ((-1, 0), (KH, 1), (KB, 2)):
                    if k == kk_ + 1:
                        V.wait('P'); poll(wh, pre_issued=True)
                        if wh == 0: stamp(a, 7)
            if OPT['fine']: stamp(a, 32+k)
            a("s_barrier")
            if role == 2 and k in (KH, KB): pollissue(V, 1 if k == KH else 2)
            if k == 0:
                for p in Biss['Z']: loadB(V, p)
            for p in Biss[k]: loadB(V, p)
        a("s_barrier")
        stamp_flush(a)
        a("s_endpgm")
    L2 = a.lab(); L3 = a.lab(); LM = a.lab()
    a(f"s_cmp_eq_u32 s3, 2\ns_cbranch_scc1 {L2}\ns_and_b32 s4, s3, s12\ns_cmp_eq_u32 s3, 3\ns_cselect_b32 s4, s4, 0\ns_cmp_eq_u32 s4, 1\ns_cbranch_scc1 {L3}")
    V0 = V
    V = V0.copy()
    for s in range(8, 13): bar(V, s)
    tail(V, 0)
    a.label(L2)
    V = V0.copy(); combine(a, V, bar, 8, 16, 16, 3, AGE_RE, AGE_IM, 10, PARAM); tail(V, 2)
    a.label(L3)
    V = V0.copy(); combine(a, V, bar, 9, 8, 64, 4, AGM_RE, AGM_IM, 11, PARAM + 256); tail(V, 3)

def combine(a, V, bar, sb, nseg, nch, lg, are, aim, sch, pofs):
    ex = f"s_mov_b64 exec, {(1 << nch) - 1}" if nch < 64 else "s_nop 0"
    AR, AI, E, WP, MU, EX = 32, 48, 60, 128, 160, 192
    def cm(dr, di, ar, ai, br, bi):
        a(f"v_mul_f32 v{dr}, v{ar}, v{br}\nv_mul_f32 v{di}, v{ar}, v{bi}\nv_fma_f32 v{dr}, -v{ai}, v{bi}, v{dr}\nv_fma_f32 v{di}, v{ai}, v{br}, v{di}")
    a(f"s_add_u32 s96, s48, {AGG_OFF}\ns_addc_u32 s97, s49, 0\ns_mov_b32 s98, {AGG_SZ}\ns_mov_b32 s99, 0x20000")
    a(f"v_lshlrev_b32 v1, 4, v0\nv_mov_b32 v4, 0\nds_read_b64 v[2:3], v1 offset:{pofs}\nds_read_b32 v5, v4 offset:{NONCE}\ns_waitcnt lgkmcnt(0)\nv_readfirstlane_b32 s72, v5")
    for i in range(7):
        a("v_mul_f32 v8, v3, v3\nv_mul_f32 v9, v2, v3\nv_fma_f32 v2, v2, v2, -v8\nv_add_f32 v3, v9, v9")
        if i == lg - 1: a(f"v_mov_b32 v{MU+2}, v2\nv_mov_b32 v{MU+3}, v3")
    a(f"s_lshl_b32 s4, s{sch}, 4\ns_lshl_b32 s5, s6, 13\ns_add_u32 s4, s4, s5\nv_add_u32 v17, s4, v1")
    a(f"v_lshlrev_b32 v1, 2, v0\nv_add_u32 v1, {EXT}, v1\nv_mov_b32 v125, v5\nv_mov_b32 v127, v5")
    for d in range(1, 16): a(f"s_cmp_ge_u32 s6, {d}\ns_cselect_b32 s4, s72, 0\nv_mov_b32 v{EX+d}, s4")
    bar(V, 8)
    stamp(a, 3)
    a(ex)
    for sg in range(nseg):
        a(f"ds_read_b32 v{AR+sg}, v1 offset:{are - EXT + sg*nch*4}\nds_read_b32 v{AI+sg}, v1 offset:{aim - EXT + sg*nch*4}")
    a("s_waitcnt lgkmcnt(0)")
    for sg in range(1, nseg):
        dr, di = (124, 126) if sg == nseg - 1 else (AR+sg, AI+sg)
        a(f"v_fma_f32 v{dr}, v{AR+sg-1}, v{MU+2}, v{AR+sg}\nv_fma_f32 v{di}, v{AI+sg-1}, v{MU+2}, v{AI+sg}")
        a(f"v_fma_f32 v{dr}, -v{AI+sg-1}, v{MU+3}, v{dr}\nv_fma_f32 v{di}, v{AR+sg-1}, v{MU+3}, v{di}")
    V.op("buffer_store_dwordx4 v[124:127], v17, s[96:99], 0 offen sc1", 'Q')
    a("s_mov_b64 exec, -1")
    stamp(a, 4)
    bar(V, 9)
    for d in range(2, 16):
        if d == 2: a(f"v_mov_b32 v{WP+4}, v2\nv_mov_b32 v{WP+5}, v3")
        else: cm(WP+2*d, WP+2*d+1, WP+2*(d-1), WP+2*(d-1)+1, 2, 3)
        a(f"s_cmp_ge_u32 s6, {d}\ns_cselect_b64 vcc, -1, 0\nv_cndmask_b32 v{WP+2*d}, 0, v{WP+2*d}, vcc\nv_cndmask_b32 v{WP+2*d+1}, 0, v{WP+2*d+1}, vcc")
    bar(V, 10)
    for sg in range(2, nseg): cm(MU+2*sg, MU+2*sg+1, MU+2*(sg-1), MU+2*(sg-1)+1, MU+2, MU+3)
    def loads(first):
        for d in range(1, 16):
            a(f"v_subrev_u32 v{24+(d&3)}, {d*8192}, v17")
            ins = f"buffer_load_dwordx4 {vr(E+4*d,4)}, v{24+(d&3)}, s[96:99], 0 offen sc1"
            if first: V.op(ins, 'R')
            else: a(ins)
    late = bar(V, 11, defer=True)
    a(ex); loads(True); a("s_mov_b64 exec, -1")
    late()
    late = bar(V, 12, defer=True)
    a(ex)
    lp = a.lab(); ld = a.lab(); lc = a.lab()
    a("s_mov_b32 s83, 0x8000")
    V.wait('R')
    a(f"s_branch {lc}")
    a.label(lp)
    loads(False)
    a("s_waitcnt vmcnt(0)")
    a.label(lc)
    a("v_mov_b32 v20, 0")
    for d in range(1, 16):
        a(f"v_xor_b32 v{21+(d&1)*2}, v{E+4*d+1}, v{EX+d}\nv_xor_b32 v{22+(d&1)*2}, v{E+4*d+3}, v{EX+d}\nv_or3_b32 v20, v20, v{21+(d&1)*2}, v{22+(d&1)*2}")
    a(f"v_cmp_ne_u32 vcc, 0, v20\ns_cmp_eq_u64 vcc, 0\ns_cbranch_scc1 {ld}")
    a(f"s_sub_u32 s83, s83, 1\ns_cmp_lg_u32 s83, 0\ns_cbranch_scc1 {lp}")
    a.label(ld)
    stamp(a, 5)
    a(f"v_mov_b32 v20, v{E+4}\nv_mov_b32 v21, v{E+6}\nv_mov_b32 v22, 0\nv_mov_b32 v23, 0")
    for d in range(2, 16):
        r, i_ = (20, 21) if d & 1 else (22, 23)
        a(f"v_fma_f32 v{r}, v{E+4*d}, v{WP+2*d}, v{r}\nv_fma_f32 v{i_}, v{E+4*d+2}, v{WP+2*d}, v{i_}")
        a(f"v_fma_f32 v{r}, -v{E+4*d+2}, v{WP+2*d+1}, v{r}\nv_fma_f32 v{i_}, v{E+4*d}, v{WP+2*d+1}, v{i_}")
    a("v_add_f32 v20, v20, v22\nv_add_f32 v21, v21, v23")
    a(f"ds_write_b32 v1, v20 offset:{are - EXT}\nds_write_b32 v1, v21 offset:{aim - EXT}")
    for sg in range(1, nseg):
        p, q = AR+sg-1, AI+sg-1
        a(f"v_fma_f32 v{p}, v20, v{MU+2*sg}, v{p}\nv_fma_f32 v{q}, v21, v{MU+2*sg}, v{q}")
        a(f"v_fma_f32 v{p}, -v21, v{MU+2*sg+1}, v{p}\nv_fma_f32 v{q}, v20, v{MU+2*sg+1}, v{q}")
        a(f"ds_write_b32 v1, v{p} offset:{are - EXT + sg*nch*4}\nds_write_b32 v1, v{q} offset:{aim - EXT + sg*nch*4}")
    a("s_mov_b64 exec, -1")
    stamp(a, 6)
    late()

def kernel(a, name):
    a(f".p2align 8\n.globl {name}\n.type {name},@function")
    a.label(name)
    l_end = a.lab(); l_c = a.lab(); l_s = a.lab(); l_p2 = a.lab()
    a("s_getpc_b64 s[90:91]")
    a(f"s_cmp_ge_u32 s2, 256\ns_cbranch_scc1 {l_end}")
    a("s_load_dwordx16 s[16:31], s[0:1], 0\ns_load_dwordx16 s[32:47], s[0:1], 64\ns_load_dwordx2 s[48:49], s[0:1], 128")
    a("v_lshrrev_b32 v1, 6, v0\nv_and_b32 v0, 63, v0\nv_readfirstlane_b32 s3, v1")
    a("s_and_b32 s4, s2, 7\ns_lshr_b32 s5, s2, 3")
    a("s_and_b32 s6, s4, 1\ns_lshr_b32 s7, s5, 2\ns_lshl_b32 s7, s7, 1\ns_add_u32 s6, s6, s7")
    a("s_and_b32 s7, s5, 3\ns_lshr_b32 s8, s4, 1")
    a("s_mul_i32 s9, s8, 448\ns_lshl_b32 s4, s7, 7\ns_add_u32 s9, s9, s4")
    a("s_lshl_b32 s11, s8, 7\ns_lshl_b32 s4, s7, 4\ns_add_u32 s10, s11, s4\ns_add_u32 s11, s11, 64")
    a("s_cmp_eq_u32 s7, 3\ns_cselect_b32 s12, 1, 0\ns_lshl_b32 s13, s8, 2\ns_add_u32 s13, s13, s7")
    if STAMP: a("s_mov_b32 s93, s3")
    a(f"s_cmp_lt_u32 s3, 4\ns_cbranch_scc1 {l_c}")
    a("s_sub_u32 s3, s3, 4")
    loader_pre(a)
    if STAMP: a("s_waitcnt lgkmcnt(0)")
    stamp(a, 0)
    loader(a)
    a.label(l_c)
    if OPT['cpf'] == 1:
        l_np = a.lab()
        a(f"s_cmp_lg_u32 s3, 3\ns_cbranch_scc1 {l_np}")
        a(f"s_mov_b32 s4, L_code_end - {NAME}_kernel - 8\nv_lshlrev_b32 v1, 7, v0")
        a("s_lshr_b32 s5, s2, 3\ns_and_b32 s5, s5, 7\ns_lshl_b32 s5, s5, 13\nv_add_u32 v2, s5, v1\nv_min_u32 v2, s4, v2\nglobal_load_dword v8, v2, s[90:91]")
        a.label(l_np)
    elif OPT['cpf'] == 2:
        a(f"s_mov_b32 s4, L_code_end - {NAME}_kernel - 8\nv_lshlrev_b32 v1, 7, v0")
        a("s_lshr_b32 s5, s2, 3\ns_and_b32 s5, s5, 1\ns_lshl_b32 s14, s3, 1\ns_add_u32 s5, s5, s14\ns_lshl_b32 s5, s5, 13\nv_add_u32 v2, s5, v1\nv_min_u32 v2, s4, v2\nglobal_load_dword v8, v2, s[90:91]")
    a("s_waitcnt lgkmcnt(0)")
    stamp(a, 0)
    p1_consumer_prologue(a, "L_code_end")
    a(f"s_cmp_eq_u32 s12, 1\ns_cbranch_scc1 {l_s}")
    global passB_fillers
    orig = passB_fillers
    def withnonce(M):
        F = orig(M); F[7] = [nonce_finish(a)] + F[7]; return F
    passB_fillers = withnonce
    p1_consumer(a, False)
    a(f"s_branch {l_p2}")
    a.label(l_s)
    p1_consumer(a, True)
    a.label(l_p2)
    p2_consumer(a)
    a.label(l_end)
    a("s_endpgm")
    a.label("L_code_end")
    a("s_endpgm")

def desc(name, nv=256):
    return f""".p2align 6
.amdhsa_kernel {name}
  .amdhsa_next_free_vgpr {nv}
  .amdhsa_next_free_sgpr 102
  .amdhsa_accum_offset {nv}
  .amdhsa_group_segment_fixed_size 0
  .amdhsa_kernarg_size 136
  .amdhsa_user_sgpr_count 2
  .amdhsa_user_sgpr_kernarg_segment_ptr 1
  .amdhsa_system_sgpr_workgroup_id_x 1
.end_amdhsa_kernel
"""

def main(out):
    a = Asm()
    n1 = NAME + "_kernel"
    kernel(a, n1)
    txt = HDR
    txt += f"; @launch grid=(256,1,1) block=(512,1,1) lds={LDS1}\n"
    txt += '.amdgcn_target "amdgcn-amd-amdhsa--gfx950"\n.text\n' + a.text()
    txt += '.section .rodata,"a"\n' + desc(n1)
    open(out, "w").write(txt)

if __name__ == "__main__":
    args = sys.argv[1:]
    if "-tot" in args: STAMP = 2; args.remove("-tot")
    if "-stamp" in args: STAMP = True; args.remove("-stamp")
    for x in list(args):
        if "=" in x:
            k, v = x.split("="); assert k in OPT, k; OPT[k] = int(v); args.remove(x)
    if "-sched" in args:
        print(p2_schedule()); print(ORD)
        for M in (False, True): print({k: len(v) for k, v in passB_fillers(M).items()})
        sys.exit()
    main(args[0] if args else f"cdna_kernels/{NAME}.s")
```

```python
import sys

NAME = "gated_mix__ssm_conv_s5__glu_gated_glu__prompt"
HDR = open("cdna_kernels/%s.s.ref" % NAME).read().split("; Override launch")[0]

G_OFF = 0xB00000
AGG_OFF = 0xB10000
AGG_SZ = 16 * 512 * 16
FLG_OFF = 0xB30000
WS_USED = 0xB40000
LOG2E = 0x3fb8aa3b
NLOG2E = 0xbfb8aa3b
INV2PI = 0x3e22f983
OPT = dict(sc1_a=1, touch1=1, touch2=1, cpf=1, per2=2, KH=3, KB=8, prio=3, fine=0, t1s=1, SP=11, capM=72, LS=14, ts=2566, halfB=0, tw=2, gs=0, per1=2, be=0, l2t=0, BLA=7, noF=0, la=0)

class Asm:
    def __init__(s): s.l = []; s.uid = 0
    def __call__(s, t):
        for x in t.strip("\n").split("\n"): s.l.append("    " + x.strip())
    def label(s, n): s.l.append(n + ":")
    def lab(s, p="L"):
        s.uid += 1; return f"{p}_{s.uid}"
    def text(s): return "\n".join(s.l) + "\n"

def vr(b, n): return f"v[{b}:{b+n-1}]" if n > 1 else f"v{b}"
def R(b, n): return list(range(b, b+n))
def srd(a, d, lo, size):
    a(f"s_mov_b32 s{d}, s{lo}\ns_mov_b32 s{d+1}, s{lo+1}\ns_mov_b32 s{d+2}, {size}\ns_mov_b32 s{d+3}, 0x20000")

sX, sLre, sLim, sBre, sBim, sCre, sCim, sLdt = 16, 18, 20, 22, 24, 26, 28, 30
sDsk, sBx, sWg, sWu, sWd, sGw, sOut, sDbg, sWs = 32, 34, 36, 38, 40, 42, 44, 46, 48

STAMP = False
TS_OFF = 0xB40000
def stamp(a, idx):
    if not STAMP or (STAMP == 2 and idx not in (0, 13)): return
    a(f"s_memrealtime s[100:101]\ns_waitcnt lgkmcnt(0)\nv_writelane_b32 v31, s100, {idx}")
def cstamp(a, idx):
    if not STAMP or STAMP == 2: return
    a(f"s_memtime s[100:101]\ns_waitcnt lgkmcnt(0)\nv_writelane_b32 v31, s100, {idx}")
def stamp_flush(a):
    if not STAMP: return
    srd(a, 96, sWs, 0xC00000)
    a(f"s_lshl_b32 s94, s2, 3\ns_add_u32 s94, s94, s93\ns_lshl_b32 s94, s94, 8\ns_add_u32 s94, s94, {TS_OFF}")
    a("s_mov_b64 exec, -1\nv_lshlrev_b32 v30, 2, v0\nbuffer_store_dword v31, v30, s[96:99], s94 offen")

def bf16_round(a, d, s, t):
    a(f"v_cvt_pk_bf16_f32 v{t}, v{s}, v{s}\nv_lshlrev_b32 v{d}, 16, v{t}")

class Sched:
    def __init__(s, a): s.a = a; s.n = 0; s.prod = {}; s.done = -1
    def read(s, ins, regs):
        s.a(ins)
        for r in regs: s.prod[r] = s.n
        s.n += 1
    def need(s, regs):
        k = max([s.prod.get(r, -1) for r in regs] + [-1])
        if k > s.done:
            s.a(f"s_waitcnt lgkmcnt({min(s.n - 1 - k, 15)})")
            s.done = k if s.n - 1 - k <= 15 else s.n - 16
    def all(s):
        if s.done < s.n - 1: s.a("s_waitcnt lgkmcnt(0)")
        s.done = s.n - 1
    def item(s, it):
        if isinstance(it, str): s.a(it)
        elif it[0] == 'lds': s.read(it[1], it[2])
        else: s.need(it[1]); s.a(it[2])

class VM:
    def __init__(s, a): s.a = a; s.ops = []; s.done = -1
    def op(s, ins, tag):
        if len(s.ops) - 1 - s.done >= 62:
            s.a("s_waitcnt vmcnt(56)"); s.done = len(s.ops) - 1 - 56
        s.a(ins); s.ops.append(tag)
    def wait(s, *tags, extra=""):
        k = max([i for i, t in enumerate(s.ops) if t in tags] + [-1])
        if k > s.done:
            n = min(len(s.ops) - 1 - k, 63)
            s.a(f"s_waitcnt vmcnt({n}){extra}")
            s.done = len(s.ops) - 1 - n
        elif extra: s.a("s_waitcnt" + extra)
    def copy(s):
        v = VM(s.a); v.ops = list(s.ops); v.done = s.done; return v

PARAM = 0; NONCE = 2048; XR = 4096; BLK = XR + 98304; EXT = XR + 147456
AGE_RE = EXT; AGE_IM = EXT + 1024; AGM_RE = EXT + 2048; AGM_IM = EXT + 8192; TSE = EXT + 4096
LDS1 = 163840
def page(p): return XR + p*8192
SPAGES = [8, 9]
KS = list(range(8)) + [5, 6, 7, 0, 1, 2, 3, 4]
XH = [0,0,0,1,1,1,1,1, 1,1,1,0,0,0,1,1]
XI = [0,1,2,0,1,2,0,1, 2,0,1,0,1,2,2,0]
XL = [1]*8 + [0,0,0,0,0,0,1,1]
ORD = [7*g + 2*j for g in range(4) for j in range(3)] + list(range(28, 44))
ORD += [s for s in range(28) if s not in ORD]
assert sorted(ORD) == list(range(44))
NA_, NH_ = 12, 28

def p2_schedule():
    Bp = {}; Biss = {}
    nb = 0
    def take(key, pages):
        nonlocal nb
        Biss.setdefault(key, [])
        for p in pages:
            if nb <= 43: Bp[nb] = p; Biss[key].append(nb); nb += 1
    take('b12', [0, 1, 2, 3]); take('b13', [4, 5, 13, 16]); take('b14', [10, 11, 14, 17]); take('Z', [6, 7, 12, 15])
    for k in range(22):
        fr = []
        if k == 1: fr += SPAGES
        if k >= 2: fr += [Bp[2*k-4], Bp[2*k-3]]
        take(k, fr)
    assert nb == 44
    return Bp, Biss

vXn = 16; vWa = 20; vXe = 24; vEa = 28; vWt = 30; vXp = 12
ACA = 32; ACB = 96; ACE = 160; FR = [176, 192]; FE = 208
def acc(base, w, m): return base + (w * 2 + m) * 16
def ace(comp, m): return ACE + (comp * 2 + m) * 4

def reads_main(kind, step, kk, st):
    b = FR[st]; slot = step % 3; xi = XI[step]
    xs, vx = (4096, vXn) if kind == 'G' else (1024, vXp)
    def xr(m): return [(f"ds_read_b128 {vr(b+4*m,4)}, v{vx+kk} offset:{XR + xi*16384 + m*xs}", R(b+4*m, 4))]
    def wr(w):
        d = b + 8 + 4*w
        if kind == 'G':
            off = w*24576 + slot*8192 + kk*2048
            return [(f"ds_read_b64_tr_b16 {vr(d,2)}, v{vWt} offset:{off}", R(d, 2)),
                    (f"ds_read_b64_tr_b16 {vr(d+2,2)}, v{vWt} offset:{off+512}", R(d+2, 2))]
        return [(f"ds_read_b128 {vr(d,4)}, v{vWa+kk} offset:{w*24576 + slot*8192}", R(d, 4))]
    return xr(0) + wr(0) + xr(1) + wr(1)

def reads_ext(step, k32):
    r = []; slot = step % 3; xi = XI[step]
    for m in range(2): r.append((f"ds_read_b128 {vr(FE+4*m,4)}, v{vXe+2*m+k32} offset:{XR + xi*16384}", R(FE+4*m, 4)))
    for cp in range(2): r.append((f"ds_read_b128 {vr(FE+8+4*cp,4)}, v{vEa+k32} offset:{slot*4096+cp*2048}", R(FE+8+4*cp, 4)))
    return r

def mfma_main(kind, base, st, first):
    r = []; b = FR[st]
    for w in range(2):
        for m in range(2):
            d = vr(acc(base, w, m), 16); X = vr(b+4*m, 4); W = vr(b+8+4*w, 4)
            c = "0" if first else d
            ins = f"v_mfma_f32_32x32x16_bf16 {d}, {W}, {X}, {c}" if kind == 'G' else f"v_mfma_f32_32x32x16_bf16 {d}, {X}, {W}, {c}"
            r.append((ins, R(b+4*m, 4) + R(b+8+4*w, 4)))
    return r

def mfma_ext(first):
    r = []
    for cp in range(2):
        for m in range(2):
            d = vr(ace(cp, m), 4)
            r.append((f"v_mfma_f32_16x16x32_bf16 {d}, {vr(FE+4*m,4)}, {vr(FE+8+4*cp,4)}, {'0' if first else d}", R(FE+4*m, 4) + R(FE+8+4*cp, 4)))
    return r

def cmul_pk(Rr, I, C, t1, t2):
    return [f"v_pk_mul_f32 {vr(t1,2)}, {vr(Rr,2)}, {vr(C,2)} op_sel:[0,0] op_sel_hi:[1,0]",
            f"v_pk_mul_f32 {vr(t2,2)}, {vr(Rr,2)}, {vr(C,2)} op_sel:[0,1] op_sel_hi:[1,1] neg_lo:[0,1] neg_hi:[0,1]",
            f"v_pk_fma_f32 {vr(Rr,2)}, {vr(I,2)}, {vr(C,2)}, {vr(t1,2)} op_sel:[0,1,0] op_sel_hi:[1,1,1] neg_lo:[0,1,0] neg_hi:[0,1,0]",
            f"v_pk_fma_f32 {vr(I,2)}, {vr(I,2)}, {vr(C,2)}, {vr(t2,2)} op_sel:[0,0,0] op_sel_hi:[1,0,1] neg_lo:[0,1,0] neg_hi:[0,1,0]"]
def cmul_s(Rr, I, cr, ci, t1, t2):
    return [f"v_mul_f32 v{t1}, v{Rr}, v{cr}", f"v_mul_f32 v{t2}, v{Rr}, v{ci}",
            f"v_fma_f32 v{Rr}, -v{I}, v{ci}, v{t1}", f"v_fma_f32 v{I}, -v{I}, v{cr}, -v{t2}"]
def flag_item(which):
    return f"v_mov_b32 v1, s15\nv_mov_b32 v2, 0\ns_mov_b64 exec, 1\nbuffer_store_dword v1, v2, s[64:67], s81 offen offset:{which*256} sc1\ns_mov_b64 exec, -1"
def merge(l1, l2):
    o = []; i = j = 0
    while i < len(l1) or j < len(l2):
        if j >= len(l2) or (i < len(l1) and i * len(l2) <= j * len(l1)): o.append(l1[i]); i += 1
        else: o.append(l2[j]); j += 1
    return o

def cmul2(Rr, I, C, t):
    o = []
    for par in range(2): o += cmul_s(Rr+par, I+par, C, C+1, t+2*par, t+2*par+1)
    return [o[0], o[4], o[1], o[5], o[2], o[6], o[3], o[7]]
def step2(dr, di, pr, pi, L, Rr, I, conj):
    o = []
    n1, n2 = ("", "-") if conj else ("-", "")
    for par in range(2): o += [f"v_fma_f32 v{dr+par}, v{pr+par}, v{L}, v{Rr+par}", f"v_fma_f32 v{di+par}, v{pi+par}, v{L}, v{I+par}"]
    for par in range(2): o += [f"v_fma_f32 v{dr+par}, {n1}v{pi+par}, v{L+1}, v{dr+par}", f"v_fma_f32 v{di+par}, {n2}v{pr+par}, v{L+1}, v{di+par}"]
    return o
def stores_last(l):
    st = [x for x in l if 'buffer_store' in (x if isinstance(x, str) else x[-1] if x[0] == 'need' else '')]
    return [x for x in l if x not in st] + st
def glu_epi(base, sbase, E0, P0, morder=(0, 1)):
    o = []; k = 0
    for m in morder:
        for half in range(2):
            E = E0 + (k & 1) * 8; P = P0 + (k & 1) * 4; k += 1
            gb, ub = acc(base, 0, m) + 8*half, acc(base, 1, m) + 8*half
            t = []
            for i in range(8): t.append(f"v_mul_f32 v{E+i}, s50, v{gb+i}")
            for i in range(8): t.append(f"v_exp_f32 v{E+i}, v{E+i}")
            for i in range(8): t.append(f"v_add_f32 v{E+i}, 1.0, v{E+i}")
            for i in range(8): t.append(f"v_rcp_f32 v{E+i}, v{E+i}")
            for i in range(8): t.append(f"v_mul_f32 v{E+i}, v{E+i}, v{ub+i}")
            for i in range(0, 8, 2): t.append(f"v_cvt_pk_bf16_f32 v{P+i//2}, v{E+i}, v{E+i+1}")
            t.append(f"s_add_u32 s5, s{sbase}, {(m*176 + half)*1024}\nbuffer_store_dwordx4 {vr(P,4)}, v6, s[64:67], s5 offen sc1")
            o.append(t)
    return o

PE = 224; PM = 228
def passB_fillers(M):
    F = {s: [] for s in range(8, 17)}
    lr, li = PE, PE+1
    LS = OPT['LS']
    f = F[7] = []
    f += [f"v_and_b32 v1, 15, v0", "v_lshlrev_b32 v1, 4, v1", ('lds', f"ds_read_b128 {vr(PE,4)}, v1 offset:{PARAM}", R(PE, 4))]
    if M: f += ["v_and_b32 v2, 31, v0", "v_lshlrev_b32 v2, 4, v2", "s_and_b32 s4, s3, 1\ns_lshl_b32 s4, s4, 9\nv_add_u32 v2, s4, v2",
                ('lds', f"ds_read_b128 {vr(PM,4)}, v2 offset:{PARAM + 256}", R(PM, 4))]
    f += [f"s_lshl_b32 s4, s3, 8\ns_add_u32 s4, s4, {EXT}\nv_lshlrev_b32 v5, 2, v0", "v_add_u32 v5, s4, v5"]
    if M: f += ["v_lshrrev_b32 v3, 5, v0", "v_lshlrev_b32 v3, 9, v3", "v_lshrrev_b32 v4, 2, v2", "v_add_u32 v3, v3, v4",
                f"s_lshr_b32 s4, s3, 1\ns_lshl_b32 s4, s4, 10\ns_add_u32 s4, s4, {EXT}\nv_add_u32 v3, s4, v3"]
    l1 = []; l2 = []
    if M:
        S = [216, 218]; T = [220, 222]; L = vr(PM, 2)
        for pos in range(1, 16):
            m, rr = pos >> 3, (pos & 7) * 2
            Rr = vr(acc(ACA, 0, m) + rr, 2); I = vr(acc(ACA, 1, m) + rr, 2)
            if pos == 1: pr, pi = vr(acc(ACA, 0, 0), 2), vr(acc(ACA, 1, 0), 2)
            else:
                src = S if (pos & 1) else T
                pr, pi = vr(src[0], 2), vr(src[1], 2)
            dst = T if (pos & 1) else S
            dr, di = vr(dst[0], 2), vr(dst[1], 2)
            l1.append(f"v_pk_fma_f32 {dr}, {pr}, {L}, {Rr} op_sel:[0,0,0] op_sel_hi:[1,0,1]")
            l1.append(f"v_pk_fma_f32 {di}, {pi}, {L}, {I} op_sel:[0,0,0] op_sel_hi:[1,0,1]")
            l1.append(f"v_pk_fma_f32 {dr}, {pi}, {L}, {dr} op_sel:[0,1,0] op_sel_hi:[1,1,1] neg_lo:[0,1,0] neg_hi:[0,1,0]")
            l1.append(f"v_pk_fma_f32 {di}, {pr}, {L}, {di} op_sel:[0,1,0] op_sel_hi:[1,1,1]")
        for par in range(2):
            l1.append(('lds', f"ds_write_b32 v3, v{T[0]+par} offset:{AGM_RE - EXT + par*256}", []))
            l1.append(('lds', f"ds_write_b32 v3, v{T[1]+par} offset:{AGM_IM - EXT + par*256}", []))
    S = [208, 209]; T = [210, 211]
    for pos in range(1, 8):
        Rr = ace(0, pos >> 2) + (pos & 3); I = ace(1, pos >> 2) + (pos & 3)
        if pos == 1: pr, pi = ace(0, 0), ace(1, 0)
        else: pr, pi = (S if (pos & 1) else T)
        dr, di = (T if (pos & 1) else S)
        l2 += [f"v_fma_f32 v{dr}, v{pr}, v{lr}, v{Rr}", f"v_fma_f32 v{di}, v{pi}, v{lr}, v{I}",
               f"v_fma_f32 v{dr}, -v{pi}, v{li}, v{dr}", f"v_fma_f32 v{di}, v{pr}, v{li}, v{di}"]
    l2 += [('lds', f"ds_write_b32 v5, v{T[0]} offset:{AGE_RE - EXT}", []), ('lds', f"ds_write_b32 v5, v{T[1]} offset:{AGE_IM - EXT}", [])]
    if M: F['ser'] = ["s_nop 15", "s_nop 7"] + merge(l1, l2) + ["s_nop 3"]
    else: F['ser'] = []; F[8] += l2
    pre_ = ["s_waitcnt vmcnt(0)", "v_mov_b32 v1, 0", ('lds', f"ds_read_b32 v1, v1 offset:{NONCE}", [1])]
    rest = [('need', [1], "v_readfirstlane_b32 s15, v1")]
    for m in range(2):
        for i in range(4): rest += cmul_s(ace(0, m)+i, ace(1, m)+i, PE+2, PE+3, 212 + (i & 1)*2, 213 + (i & 1)*2)
    rest += [f"s_lshl_b32 s4, s3, 10\ns_add_u32 s4, s4, {TSE}\nv_and_b32 v7, 15, v0", "v_lshlrev_b32 v7, 6, v7", "v_lshrrev_b32 v8, 4, v0", "v_lshl_add_u32 v7, v8, 4, v7", "v_add_u32 v7, s4, v7",
            "v_lshrrev_b32 v9, 5, v0", "v_lshlrev_b32 v9, 3, v9", "v_bfe_u32 v10, v0, 2, 2", "v_add_u32 v9, v9, v10",
            "v_bfe_u32 v10, v0, 4, 1", "v_lshlrev_b32 v10, 5, v10", "v_and_b32 v11, 3, v0", "v_lshl_add_u32 v10, v11, 3, v10",
            "v_lshl_add_u32 v8, v9, 6, v10", "v_add_u32 v8, s4, v8"]
    if M:
        rest += [f"s_mov_b32 s4, {page(SPAGES[0])}\ns_cmp_ge_u32 s3, 2\ns_cselect_b32 s4, {page(SPAGES[1])}, s4\ns_and_b32 s5, s3, 1\ns_lshl_b32 s5, s5, 12\ns_add_u32 s4, s4, s5\nv_and_b32 v11, 1, v0",
                "v_bfe_u32 v4, v0, 2, 1", "v_lshl_or_b32 v11, v4, 1, v11", "v_bfe_u32 v4, v0, 1, 1", "v_lshl_or_b32 v11, v4, 2, v11",
                "v_lshrrev_b32 v4, 5, v0", "v_lshlrev_b32 v4, 2, v4", "v_xor_b32 v11, v11, v4", "v_lshlrev_b32 v11, 4, v11",
                "v_and_b32 v4, 31, v0", "v_lshl_add_u32 v12, v4, 7, v11", "v_add_u32 v12, s4, v12"]
        rest += [f"v_xor_b32 v{12+i}, {i*16}, v12" for i in range(1, 4)]
        rest += ["v_bfe_u32 v11, v0, 2, 1", "v_bfe_u32 v4, v0, 3, 1", "v_lshl_or_b32 v11, v4, 2, v11", "v_lshlrev_b32 v11, 4, v11", "v_xor_b32 v11, v11, v10",
                "v_lshl_add_u32 v20, v9, 7, v11", "v_add_u32 v20, s4, v20", "v_xor_b32 v21, 32, v20", "v_add_u32 v21, 512, v21",
                "v_xor_b32 v22, 64, v20", "v_xor_b32 v23, 64, v21"]
        mid = list(pre_)
        for m in range(2):
            for rr in range(0, 16, 2):
                mid += cmul2(acc(ACA, 0, m)+rr, acc(ACA, 1, m)+rr, PM+2, 232 + ((rr >> 1) & 3) * 4)
        mid = mid[:3] + rest[:1] + ['s_nop 0', flag_item(0)] + mid[3:] + rest[1:] if OPT['gs'] == 2 else mid + rest + [flag_item(0)]
        st = list(range(8, LS))
        n = (len(mid) + len(st) - 1) // len(st)
        for i, s in enumerate(st): F[s] += mid[i*n:(i+1)*n]
    else:
        g = glu_epi(ACA, 14, 232, 248)
        if OPT['gs'] == 2:
            F[8] += ["s_waitcnt vmcnt(0)"] + g[0][:30]; F[9] += pre_[1:] + g[0][30:] + g[1] + g[2][:10]; F[10] += g[2][10:] + g[3]
            F[9] = stores_last(F[9])
            F[11] += rest[:1] + ["s_waitcnt vmcnt(0)\n" + flag_item(0)] + rest[1:25]; F[12] += rest[25:]
        elif OPT['gs'] == 0:
            F[9] += pre_ + g[0] + g[1][:20]; F[10] += g[1][20:] + g[2][:40]
            F[11] += g[2][40:] + g[3]
            F[9] = stores_last(F[9]); F[10] = stores_last(F[10])
            F[12] += rest + ["s_waitcnt vmcnt(0)\n" + flag_item(0)]
        else:
            F[9] += pre_ + g[0]; F[10] += g[1]; F[11] += g[2]; F[12] += rest; GL = g[3]
    IE = 208; IM = [216, 218]
    late = [('lds', f"ds_read_b32 v{IE}, v5 offset:{AGE_RE - EXT}", [IE]), ('lds', f"ds_read_b32 v{IE+1}, v5 offset:{AGE_IM - EXT}", [IE+1])]
    if M:
        for par in range(2):
            late += [('lds', f"ds_read_b32 v{IM[0]+par}, v3 offset:{AGM_RE - EXT + par*256}", [IM[0]+par]), ('lds', f"ds_read_b32 v{IM[1]+par}, v3 offset:{AGM_IM - EXT + par*256}", [IM[1]+par])]
    c = cmul_s(IE, IE+1, PE+2, PE+3, 212, 213); c[0] = ('need', [IE, IE+1], c[0]); late += c
    if M:
        c = cmul2(IM[0], IM[1], PM+2, 220); c[0] = ('need', R(216, 4), c[0]); late += c
    l1 = []; l2 = []
    for pos in range(8):
        Rr = ace(0, pos >> 2) + (pos & 3); I = ace(1, pos >> 2) + (pos & 3)
        if pos == 0: pr, pi = IE, IE+1
        else: pr, pi = ace(0, (pos-1) >> 2) + ((pos-1) & 3), ace(1, (pos-1) >> 2) + ((pos-1) & 3)
        l2 += [f"v_fma_f32 v{Rr}, v{pr}, v{lr}, v{Rr}", f"v_fma_f32 v{I}, v{pi}, v{lr}, v{I}",
               f"v_fma_f32 v{Rr}, v{pi}, v{li}, v{Rr}", f"v_fma_f32 v{I}, -v{pr}, v{li}, v{I}"]
    for cp in range(2):
        for d in range(4):
            b = ace(cp, d >> 1) + (d & 1)*2
            l2.append(f"v_cvt_pk_bf16_f32 v{232+4*cp+d}, v{b}, v{b+1}")
    for cp in range(2):
        l2 += [('lds', f"ds_write_b128 v7, {vr(232+4*cp,4)}", []), ('lds', f"ds_read_b64_tr_b16 {vr(240+4*cp,2)}, v8", R(240+4*cp, 2)),
               ('lds', f"ds_read_b64_tr_b16 {vr(242+4*cp,2)}, v8 offset:256", R(242+4*cp, 2))]
    l2 += ["s_nop 0"] * 6
    l2 += [('need', R(240, 4), f"buffer_store_dwordx4 {vr(240,4)}, v6, s[64:67], s82 offen sc1"), ('need', R(244, 4), f"buffer_store_dwordx4 {vr(244,4)}, v6, s[64:67], s83 offen sc1")]
    if M:
        for pos in range(16):
            m, rr = pos >> 3, (pos & 7) * 2
            if pos == 0: pr, pi = IM
            else:
                pm, prr = (pos-1) >> 3, ((pos-1) & 7) * 2
                pr, pi = acc(ACA, 0, pm)+prr, acc(ACA, 1, pm)+prr
            Rr, I = acc(ACA, 0, m) + rr, acc(ACA, 1, m) + rr
            l1 += step2(Rr, I, pr, pi, PM, Rr, I, True)
    late += merge(l1, [x for x in l2 if x != "s_nop 0"] if M else l2)
    if M:
        for comp in range(2):
            PB = 216 if comp == 0 else 232
            k = 0
            for par in range(2):
                for m in range(2):
                    b = acc(ACA, comp, m); P = PB + 4*k
                    for aa in range(4): late.append(f"v_cvt_pk_bf16_f32 v{P+aa}, v{b+4*aa+par}, v{b+4*aa+2+par}")
                    late.append(('lds', f"ds_write_b128 v{12+2*par+m}, {vr(P,4)}", []))
                    k += 1
            k = 0
            for mt in range(2):
                for u in range(2):
                    d = acc(ACA, comp, 0) + 4*k
                    late.append(('lds', f"ds_read_b64_tr_b16 {vr(d,2)}, v{20+2*mt} offset:{u*2048}", R(d, 2)))
                    late.append(('lds', f"ds_read_b64_tr_b16 {vr(d+2,2)}, v{21+2*mt} offset:{u*2048}", R(d+2, 2)))
                    k += 1
        for comp in range(2):
            k = 0
            for mt in range(2):
                for u in range(2):
                    d = acc(ACA, comp, 0) + 4*k
                    late.append(('need', R(d, 4), f"s_add_u32 s5, s80, {(mt*176 + 4*comp + u)*1024}\nbuffer_store_dwordx4 {vr(d,4)}, v6, s[64:67], s5 offen sc1"))
                    k += 1
    st = list(range(LS, 16))
    if M:
        n = OPT['capM']
        for i, s in enumerate(st): F[s] += late[i*n:(i+1)*n]
        F[16] += late[len(st)*n:]
        F[LS] = F[LS];
        for s in st: F[s] = stores_last(F[s])
    elif OPT['gs'] in (0, 2):
        F[LS] += late
    else:
        F[13] += late; F[14] += GL; F[15] += ["s_waitcnt vmcnt(0)\n" + flag_item(0)]
    return F

def p1_consumer(a, M):
    S = Sched(a)
    kindA = 'S' if M else 'G'
    F = passB_fillers(M)
    stamp(a, 1)
    a("s_barrier")
    stamp(a, 2); cstamp(a, 56)
    for x in reads_main(kindA, 0, 0, 0): S.read(*x)
    for s in range(16):
        slot = s % 3
        kind = kindA if s < 8 else 'G'
        base = ACA if s < 8 else ACB
        for kk in range(4):
            st = kk & 1
            rd = []
            if kk == 3:
                if s < 15:
                    S.all()
                    if OPT['fine']: stamp(a, 16 + s)
                    a("s_barrier")
                    if XH[s+1] != XH[s]:
                        op = "v_add_u32" if XH[s+1] else "v_subrev_u32"
                        for r_ in (list(range(12, 20)) + list(range(24, 28)) if s < 8 else range(16, 20)): a(f"{op} v{r_}, 49152, v{r_}")
                    rd = reads_main(kindA if s + 1 < 8 else 'G', s+1, 0, 0)
            else:
                rd = reads_main(kind, s, kk+1, st ^ 1)
            if s < 8 and kk in (0, 2): rd = rd + reads_ext(s, kk >> 1)
            mf = mfma_main(kind, base, st, (s in (0, 8)) and kk == 0)
            if s < 8 and kk in (1, 3): mf = mf[:2] + mfma_ext(s == 0 and kk == 1) + mf[2:]
            fs = s + 1 if kk == 3 else s
            fl = []
            if fs >= 7 and not (kk == 3 and s in (6, 7)) and not OPT['noF']:
                q = F[fs]
                nblk = {7: 3, 8: 3, 16: 1}.get(fs, 4)
                bi = kk if fs in (7, 8) else (0 if kk == 3 else kk + 1)
                if fs == 16: fl = q[:16]; F[16] = q[16:]
                else:
                    n = (len(q) + nblk - 1) // nblk
                    fl = q[bi*n:(bi+1)*n]
            rd = list(rd); fl = list(fl)
            nf = (len(fl) + len(mf) - 1) // len(mf) if fl else 0
            for i, (ins, regs) in enumerate(mf):
                S.need(regs); a(ins)
                for _ in range(OPT['per1']):
                    if rd: S.read(*rd.pop(0))
                if s == 8 and kk == 0 and i < 2: continue
                for _ in range(nf + (1 if s == 8 and kk == 0 else 0) * nf):
                    if fl: S.item(fl.pop(0))
            for x in rd: S.read(*x)
            for x in fl: S.item(x)
            if kk == 3 and s == OPT['tw'] and not OPT['ts']: touches(a, 2)
            if kk == 3 and OPT['ts']:
                for sub, st_ in enumerate([int(c) for c in str(OPT['ts'])]):
                    if s == st_: touch_sub(a, sub)
            if kk == 3 and s == 7:
                for x in F['ser']: S.item(x)
        if s == 3: stamp(a, 3); cstamp(a, 57)
        if s == 7: stamp(a, 4); cstamp(a, 58)
    stamp(a, 5); cstamp(a, 61)
    if not OPT['noF']:
        for x in F[16]: S.item(x)
    S.all()
    stamp(a, 8)

def touches(a, part):
    l1 = a.lab(); l2 = a.lab()
    lo, hi = {0: (1, 8), 1: (1, 4), 2: (4, 8)}[part]
    a(f"s_cmp_lg_u32 s3, 1\ns_cbranch_scc1 {l1}")
    srd(a, 52, sX, 2097152); srd(a, 56, sWg, 1835008); srd(a, 60, sWu, 1835008)
    a(f"v_and_b32 v1, 7, v0\nv_min_u32 v1, {hi-lo-1}, v1\nv_lshlrev_b32 v1, 7, v1\nv_lshrrev_b32 v2, 3, v0\nv_lshl_add_u32 v1, v2, 10, v1\ns_lshl_b32 s4, s2, 13\ns_add_u32 s4, s4, {lo*128}")
    a("buffer_load_dword v8, v1, s[52:55], s4 offen")
    r0 = 0 if part == 0 else 64*lo
    nl = (64*hi - r0) * 28 // 256
    a(f"v_min_u32 v1, {nl-1}, v0\nv_lshlrev_b32 v1, 7, v1\ns_mul_i32 s4, s2, {nl*128}\ns_add_u32 s4, s4, {r0*3584}")
    a("buffer_load_dword v8, v1, s[56:59], s4 offen\nbuffer_load_dword v8, v1, s[60:63], s4 offen")
    if part == 2:
        a(f"v_min_u32 v1, 6, v0\nv_lshlrev_b32 v1, 7, v1\ns_mul_i32 s4, s2, {7*128}")
        a("buffer_load_dword v8, v1, s[56:59], s4 offen\nbuffer_load_dword v8, v1, s[60:63], s4 offen")
    a.label(l1)
    a(f"s_cmp_lg_u32 s3, 2\ns_cbranch_scc1 {l2}")
    if part in (0, 1):
        srd(a, 52, sBre, 524288); srd(a, 56, sBim, 524288)
        a("v_and_b32 v1, 15, v0\nv_lshlrev_b32 v1, 7, v1\ns_lshl_b32 s4, s2, 11\nbuffer_load_dword v8, v1, s[52:55], s4 offen\nbuffer_load_dword v8, v1, s[56:59], s4 offen")
    if part in (0, 2):
        srd(a, 52, sWd, 1835008); srd(a, 56, sCre, 524288); srd(a, 60, sCim, 524288)
        a("v_and_b32 v1, 15, v0\nv_lshlrev_b32 v1, 7, v1\ns_lshl_b32 s4, s2, 11\nbuffer_load_dword v8, v1, s[56:59], s4 offen\nbuffer_load_dword v8, v1, s[60:63], s4 offen")
        a(f"v_min_u32 v1, 55, v0\nv_lshlrev_b32 v1, 7, v1\ns_mul_i32 s4, s2, {56*128}\nbuffer_load_dword v8, v1, s[52:55], s4 offen")
    a.label(l2)

def touch_sub(a, sub):
    l = a.lab()
    a(f"s_cmp_lg_u32 s3, {1 + (sub >> 1)}\ns_cbranch_scc1 {l}")
    if sub == 0:
        srd(a, 52, sX, 2097152); srd(a, 56, sWg, 1835008)
        a(f"v_and_b32 v1, 7, v0\nv_min_u32 v1, 3, v1\nv_lshlrev_b32 v1, 7, v1\nv_lshrrev_b32 v2, 3, v0\nv_lshl_add_u32 v1, v2, 10, v1\ns_lshl_b32 s4, s2, 13\ns_add_u32 s4, s4, 512")
        a("buffer_load_dword v8, v1, s[52:55], s4 offen")
        a(f"v_min_u32 v1, 27, v0\nv_lshlrev_b32 v1, 7, v1\ns_mul_i32 s4, s2, {28*128}\ns_add_u32 s4, s4, {256*3584}\nbuffer_load_dword v8, v1, s[56:59], s4 offen")
        srd(a, 60, sWu, 1835008)
        a("buffer_load_dword v8, v1, s[60:63], s4 offen")
    elif sub == 1:
        srd(a, 56, sWg, 1835008); srd(a, 60, sWu, 1835008)
        a(f"v_min_u32 v1, 6, v0\nv_lshlrev_b32 v1, 7, v1\ns_mul_i32 s4, s2, {7*128}")
        a("buffer_load_dword v8, v1, s[56:59], s4 offen\nbuffer_load_dword v8, v1, s[60:63], s4 offen")
    elif sub == 2:
        srd(a, 52, sWd, 1835008)
        a(f"v_min_u32 v1, 55, v0\nv_lshlrev_b32 v1, 7, v1\ns_mul_i32 s4, s2, {56*128}\nbuffer_load_dword v8, v1, s[52:55], s4 offen")
    else:
        srd(a, 56, sCre, 524288); srd(a, 60, sCim, 524288)
        a("v_and_b32 v1, 15, v0\nv_lshlrev_b32 v1, 7, v1\ns_lshl_b32 s4, s2, 11\nbuffer_load_dword v8, v1, s[56:59], s4 offen\nbuffer_load_dword v8, v1, s[60:63], s4 offen")
    a.label(l)

def p1_consumer_prologue(a, code_end):
    srd(a, 64, sWs, WS_USED)
    l_np = a.lab(); l_nn = a.lab(); l_n2 = a.lab(); l_n1 = a.lab()
    a(f"s_cmp_lg_u32 s3, 0\ns_cbranch_scc1 {l_nn}")
    srd(a, 60, sDbg, 256)
    a("s_memrealtime s[14:15]\nv_mov_b32 v9, 0\nv_mov_b32 v11, 0\ns_waitcnt lgkmcnt(0)\ns_or_b32 s14, s14, 1")
    a("v_mov_b32 v10, s14\ns_mov_b64 exec, 1")
    a("buffer_atomic_cmpswap v[10:11], v9, s[60:63], 0 offen sc0\ns_mov_b64 exec, -1")
    a.label(l_nn)
    touches(a, 0 if OPT['tw'] < 0 else 1)
    a("v_bfe_u32 v1, v0, 2, 2\nv_and_b32 v2, 3, v0\nv_lshl_add_u32 v3, v1, 3, v2")
    a("v_and_b32 v4, 2, v0\nv_bfe_u32 v5, v0, 3, 1\nv_lshl_or_b32 v4, v5, 2, v4\nv_lshrrev_b32 v5, 4, v0\nv_xor_b32 v4, v4, v5")
    a(f"v_lshlrev_b32 v4, 4, v4\nv_lshl_add_u32 v{vXe}, v3, 7, v4\ns_lshl_b32 s4, s3, 12\nv_add_u32 v{vXe}, s4, v{vXe}")
    a(f"v_xor_b32 v{vXe+1}, 64, v{vXe}\nv_xor_b32 v{vXe+2}, 16, v{vXe}\nv_add_u32 v{vXe+2}, 512, v{vXe+2}\nv_xor_b32 v{vXe+3}, 64, v{vXe+2}")
    a("v_and_b32 v3, 15, v0\nv_lshrrev_b32 v4, 1, v3\nv_xor_b32 v4, v4, v5\nv_lshlrev_b32 v4, 4, v4")
    a(f"v_lshl_add_u32 v{vEa}, v3, 7, v4\nv_add_u32 v{vEa}, {EXT}, v{vEa}\nv_xor_b32 v{vEa+1}, 64, v{vEa}")
    a(f"s_lshr_b32 s4, s3, 1\ns_lshl_b32 s4, s4, 13\ns_and_b32 s51, s3, 1")
    for perm, vx in ((0, vXn), (1, vXp)):
        if not perm: a("v_and_b32 v1, 31, v0")
        else:
            a("v_bfe_u32 v1, v0, 2, 1\nv_lshlrev_b32 v1, 5, v1\nv_and_b32 v2, 1, v0\nv_lshl_or_b32 v1, v2, 4, v1")
            a("v_bfe_u32 v2, v0, 3, 2\nv_lshl_or_b32 v1, v2, 1, v1\nv_bfe_u32 v2, v0, 1, 1\nv_or_b32 v1, v1, v2")
        a("v_bfe_u32 v2, v1, 2, 1\nv_and_b32 v3, 2, v1\nv_or_b32 v2, v2, v3\nv_bfe_u32 v3, v1, 4, 1\nv_lshl_or_b32 v2, v3, 2, v2")
        a(f"v_lshrrev_b32 v3, 5, v0\nv_xor_b32 v2, v2, v3\nv_lshlrev_b32 v2, 4, v2\nv_lshl_add_u32 v{vx}, v1, 7, v2\nv_add_u32 v{vx}, s4, v{vx}")
        for kk in range(1, 4): a(f"v_xor_b32 v{vx+kk}, {kk*32}, v{vx}")
    a("v_lshrrev_b32 v1, 5, v0\nv_lshlrev_b32 v1, 3, v1\nv_bfe_u32 v2, v0, 2, 2\nv_add_u32 v1, v1, v2")
    a("v_bfe_u32 v2, v0, 4, 1\nv_lshlrev_b32 v2, 5, v2\nv_and_b32 v3, 3, v0\nv_lshl_add_u32 v2, v3, 3, v2")
    a("v_bfe_u32 v3, v0, 3, 1\nv_lshlrev_b32 v3, 6, v3\nv_xor_b32 v2, v2, v3")
    a(f"s_lshl_b32 s5, s51, 6\nv_xor_b32 v2, s5, v2\nv_lshl_add_u32 v{vWt}, v1, 7, v2\nv_add_u32 v{vWt}, {BLK}, v{vWt}")
    a(f"s_lshl_b32 s5, s51, 12\ns_add_u32 s5, s5, {BLK}")
    a("v_and_b32 v1, 31, v0\nv_bfe_u32 v2, v0, 1, 3\nv_lshrrev_b32 v3, 5, v0\nv_xor_b32 v2, v2, v3\nv_lshlrev_b32 v2, 4, v2")
    a(f"v_lshl_add_u32 v{vWa}, v1, 7, v2\nv_add_u32 v{vWa}, s5, v{vWa}")
    for kk in range(1, 4): a(f"v_xor_b32 v{vWa+kk}, {kk*32}, v{vWa}")
    a("v_lshlrev_b32 v6, 4, v0")
    a(f"s_lshl_b32 s81, s6, 10\ns_lshl_b32 s4, s13, 4\ns_add_u32 s81, s81, s4\ns_lshl_b32 s4, s3, 2\ns_add_u32 s81, s81, s4\ns_add_u32 s81, s81, {FLG_OFF}")
    a("s_lshr_b32 s4, s3, 1\ns_lshl_b32 s4, s4, 1\ns_lshl_b32 s5, s6, 2\ns_add_u32 s4, s4, s5\ns_mul_i32 s79, s4, 176")
    a("s_lshl_b32 s5, s51, 1\ns_add_u32 s4, s79, s5\ns_lshr_b32 s5, s9, 4\ns_add_u32 s4, s4, s5\ns_lshl_b32 s78, s4, 10")
    a("s_xor_b32 s5, s12, 1\ns_lshl_b32 s5, s5, 12\ns_add_u32 s77, s78, s5")
    a("s_lshl_b32 s5, s8, 4\ns_add_u32 s4, s79, s5\ns_add_u32 s4, s4, 120\ns_lshl_b32 s5, s51, 1\ns_add_u32 s4, s4, s5\ns_lshl_b32 s80, s4, 10")
    a("s_lshl_b32 s4, s6, 2\ns_add_u32 s4, s4, s3\ns_mul_i32 s4, s4, 176\ns_lshl_b32 s5, s8, 4\ns_add_u32 s4, s4, s5\ns_add_u32 s4, s4, s7\ns_add_u32 s4, s4, 112\ns_lshl_b32 s82, s4, 10\ns_add_u32 s83, s82, 4096")
    a(f"s_mov_b32 s50, {NLOG2E}\ns_mov_b32 s51, {NLOG2E}")

def nonce_finish(a):
    l = a.lab()
    return (f"s_cmp_lg_u32 s3, 0\ns_cbranch_scc1 {l}\ns_waitcnt vmcnt(0)\nv_mov_b32 v9, s14\nv_cmp_eq_u32 vcc, 0, v10\ns_mov_b64 exec, 1\nv_mov_b32 v11, 0\n"
            f"v_cndmask_b32 v10, v10, v9, vcc\nds_write_b32 v11, v10 offset:{NONCE}\ns_waitcnt lgkmcnt(0)\ns_mov_b64 exec, -1\n{l}:\ns_mov_b32 s14, s78")

def p2_ids(a):
    a("s_and_b32 s4, s2, 7\ns_lshr_b32 s5, s2, 3\ns_lshl_b32 s84, s4, 2\ns_lshr_b32 s4, s5, 3\ns_add_u32 s84, s84, s4\ns_and_b32 s85, s5, 7")

def p2_consumer(a):
    Bp, Biss = p2_schedule()
    p2_ids(a)
    a("s_and_b32 s8, s3, 1\ns_lshr_b32 s9, s3, 1")
    srd(a, 52, sX, 2097152); srd(a, 56, sDsk, 1024); srd(a, 60, sOut, 4194304)
    XV = 96; GV = 112; DV = 128; OM = 132
    a("s_lshl_b32 s10, s84, 6\ns_lshl_b32 s4, s9, 5\ns_add_u32 s10, s10, s4")
    a("s_lshl_b32 s11, s85, 6\ns_lshl_b32 s4, s8, 5\ns_add_u32 s11, s11, s4")
    a("v_and_b32 v1, 31, v0\nv_add_u32 v1, s11, v1\nv_lshrrev_b32 v2, 5, v0\nv_lshlrev_b32 v2, 2, v2\nv_add_u32 v2, s10, v2")
    a("v_lshlrev_b32 v3, 1, v1\nv_lshl_add_u32 v4, v2, 10, v3")
    a("v_lshlrev_b32 v5, 2, v1\nv_lshl_add_u32 v5, v2, 11, v5")
    a(f"v_lshlrev_b32 v10, 2, v2\nv_add_u32 v10, {G_OFF}, v10")
    a("s_lshl_b32 s4, s84, 1\ns_add_u32 s4, s4, s9\ns_mul_i32 s4, s4, 176\ns_lshl_b32 s5, s8, 1\ns_add_u32 s4, s4, s5\ns_lshl_b32 s80, s4, 10")
    V = VM(a)
    V.ops = ['H'] * 10
    ld = []
    for i in range(16):
        row = 8*(i >> 2) + (i & 3)
        ld.append((f"s_mov_b32 s4, {row*1024}", f"buffer_load_ushort v{XV+i}, v4, s[52:55], s4 offen"))
    for q in range(4): ld.append((None, f"buffer_load_dwordx4 {vr(GV+4*q,4)}, v10, s[64:67], 0 offen offset:{q*32} sc1"))
    ld.append((None, f"buffer_load_ushort v{DV}, v3, s[56:59], 0 offen"))
    vBw, vBc = 12, 18
    a("v_lshrrev_b32 v7, 5, v0\nv_lshlrev_b32 v7, 2, v7\nv_bfe_u32 v8, v0, 2, 2\nv_add_u32 v7, v7, v8")
    a("v_bfe_u32 v8, v0, 4, 1\nv_lshlrev_b32 v8, 5, v8\nv_and_b32 v9, 3, v0\nv_lshl_add_u32 v8, v9, 3, v8\nv_bfe_u32 v9, v0, 3, 1\nv_lshlrev_b32 v9, 6, v9\nv_xor_b32 v8, v8, v9")
    a(f"s_lshl_b32 s4, s8, 12\nv_lshl_add_u32 v{vBw}, v7, 7, v8\nv_add_u32 v{vBw}, s4, v{vBw}\nv_xor_b32 v{vBw+1}, 64, v{vBw}")
    a("v_and_b32 v7, 31, v0\nv_bfe_u32 v8, v0, 1, 3\nv_lshrrev_b32 v9, 5, v0\nv_xor_b32 v8, v8, v9\ns_lshl_b32 s4, s8, 2\nv_xor_b32 v8, s4, v8\nv_lshlrev_b32 v8, 4, v8")
    a(f"v_lshl_add_u32 v{vBc}, v7, 7, v8\nv_xor_b32 v{vBc+1}, 32, v{vBc}")
    W = 57344
    for t in range(1, 3):
        for e in range(2):
            a(f"v_add_u32 v{vBw+2*t+e}, {t*W}, v{vBw+e}\nv_add_u32 v{vBc+2*t+e}, {t*W}, v{vBc+e}")
    AB, AY = 32, 64
    def F(p): return 176 + (p & 3) * 16
    AREGS = [240, 244, 248, 252, 160, 164, 168, 172, 24, 148, 152, 156]
    NAR = 12
    def areg(p, e): return AREGS[(2*p + e) % NAR]
    SC = " sc1" if OPT['sc1_a'] else ""
    def loadA(p):
        for e in range(2):
            a(f"s_add_u32 s4, s80, {ORD[p]*4096 + e*1024}")
            V.op(f"buffer_load_dwordx4 {vr(areg(p,e),4)}, v6, s[64:67], s4 offen{SC}", ('A', p, e))
    def win(addr): t = min((addr - XR) // W, 2); return t, addr - t*W
    def isy(p): return NA_ <= p < NH_
    def reads(p):
        tb, ob = win(page(Bp[p]))
        r = []; f = F(p)
        for e in range(2):
            for nt in range(2):
                d = f + (e*2+nt)*4
                if not isy(p):
                    r.append((f"ds_read_b64_tr_b16 {vr(d,2)}, v{vBw+2*tb+nt} offset:{ob + e*2048}", R(d, 2)))
                    r.append((f"ds_read_b64_tr_b16 {vr(d+2,2)}, v{vBw+2*tb+nt} offset:{ob + e*2048 + 1024}", R(d+2, 2)))
                else:
                    r.append((f"ds_read_b128 {vr(d,4)}, v{vBc+2*tb+e} offset:{ob + nt*4096}", R(d, 4)))
        return r
    pre = [f"v_lshlrev_b32 v{DV}, 16, v{DV}", "s_mov_b32 s12, 0xffff0000"]
    for i in range(0, 16, 2):
        for e in range(2):
            pre += [f"v_lshlrev_b32 v{XV+i+e}, 16, v{XV+i+e}", f"v_mul_f32 v{XV+i+e}, v{XV+i+e}, v{DV}", f"v_sub_f32 v{OM+i+e}, 1.0, v{GV+i+e}"]
        pre += [f"v_cvt_pk_bf16_f32 v{DV+1}, v{XV+i}, v{XV+i+1}", f"v_cvt_pk_bf16_f32 v{DV+2}, v{OM+i}, v{OM+i+1}",
                f"v_lshlrev_b32 v{XV+i}, 16, v{DV+1}", f"v_and_b32 v{XV+i+1}, s12, v{DV+1}",
                f"v_lshlrev_b32 v{OM+i}, 16, v{DV+2}", f"v_and_b32 v{OM+i+1}, s12, v{DV+2}"]
    epiB = glu_epi(ACB, 77, 64, 80, (1, 0))
    S = Sched(a)
    na = 0
    KH, KB = OPT['KH'], OPT['KB']
    def allowed(p, k): return (p < NA_) or (p < NH_ and k > KH) or k > KB
    for k in range(23):
        if k == 0: stamp(a, 6)
        if k < 22: a("s_barrier")
        if k == 0: stamp(a, 9); cstamp(a, 59)
        if k < 22 and (OPT['fine'] or k in (5, 12, 19)): stamp(a, 32+k)
        if k == 14: stamp(a, 10)
        rd = reads(2*k) + reads(2*k+1) if k < 22 else []
        if k == 0:
            while na < 4: loadA(na); na += 1
            for x in rd: S.read(*x)
            for x in epiB[0] + epiB[1]:
                a(x)
                if 'buffer_store' in x: V.ops.append('E')
            V.wait('H'); a(flag_item(1)); V.ops.append('F')
            while na < NAR // 2: loadA(na); na += 1
            eb = epiB[2] + epiB[3]
        else:
            rd = list(rd)
            for p in (2*k-2, 2*k-1):
                f = F(p)
                for e in range(2):
                    V.wait(('A', p, e))
                    for nt in range(2):
                        d = vr((AY if isy(p) else AB) + 16*nt, 16)
                        c = "0" if (p in (0, NA_) and e == 0) else d
                        S.need(R(f+(e*2+nt)*4, 4))
                        a(f"v_mfma_f32_32x32x16_bf16 {d}, {vr(areg(p,e),4)}, {vr(f+(e*2+nt)*4,4)}, {c}")
                        for _ in range(OPT['per2']):
                            if rd: S.read(*rd.pop(0))
                        for _ in range(4):
                            if eb:
                                x = eb.pop(0); a(x)
                                if 'buffer_store' in x: V.ops.append('E')
                while na <= 43 and na < p + 1 + NAR // 2 and allowed(na, k): loadA(na); na += 1
            for x in rd: S.read(*x)
        if k == 4:
            assert not eb
            V.wait('E'); a(flag_item(2)); V.ops.append('F')
        if 5 <= k < 5 + 7:
            for (p_, ins) in ld[(k-5)*3:(k-5)*3+3]:
                if p_: a(p_)
                V.op(ins, 'L')
        if k == 14: V.wait('L')
        if 14 <= k < 21:
            n = (len(pre) + 6) // 7
            for x in pre[(k-14)*n:(k-13)*n]: a(x)
    assert na == 44
    stamp(a, 11); cstamp(a, 60)
    used = {Bp[40], Bp[41], Bp[42], Bp[43]}
    xp = [page(p) for p in range(18) if p not in used][:4]
    a(f"s_mov_b32 s4, {xp[0]}\ns_mov_b32 s5, {xp[1]}\ns_cmp_eq_u32 s9, 1\ns_cselect_b32 s4, {xp[2]}, s4\ns_cselect_b32 s5, {xp[3]}, s5")
    a("s_cmp_eq_u32 s8, 1\ns_cselect_b32 s10, s5, s4\ns_cselect_b32 s11, s4, s5")
    a("v_lshlrev_b32 v7, 4, v0\nv_add_u32 v8, s10, v7\nv_add_u32 v9, s11, v7")
    lk1 = a.lab(); lj = a.lab()
    a(f"s_nop 4\ns_cbranch_scc1 {lk1}")
    RB, RY = 176, 192
    for kh in range(2):
        if kh == 1: a.label(lk1)
        sn = kh ^ 1
        for q in range(4):
            a(f"ds_write_b128 v8, {vr(AB+16*sn+4*q,4)} offset:{q*1024}\nds_write_b128 v8, {vr(AY+16*sn+4*q,4)} offset:{4096+q*1024}")
        for i in range(0, 16, 2): a(f"v_pk_add_f32 {vr(AY+16*kh+i,2)}, {vr(AY+16*kh+i,2)}, {vr(XV+i,2)}")
        a("s_waitcnt lgkmcnt(0)\ns_barrier")
        for q in range(4):
            a(f"ds_read_b128 {vr(RB+4*q,4)}, v9 offset:{q*1024}\nds_read_b128 {vr(RY+4*q,4)}, v9 offset:{4096+q*1024}")
        for q in range(4):
            a(f"s_waitcnt lgkmcnt({6-2*q})")
            for i in range(4*q, 4*q+4, 2):
                a(f"v_pk_add_f32 {vr(RB+i,2)}, {vr(RB+i,2)}, {vr(AB+16*kh+i,2)}\nv_pk_add_f32 {vr(RY+i,2)}, {vr(RY+i,2)}, {vr(AY+16*kh+i,2)}")
        if kh == 0: a(f"s_branch {lj}")
    a.label(lj)
    for i in range(0, 16, 2):
        T = 224 + (i & 6)
        a(f"v_cvt_pk_bf16_f32 v{T}, v{RB+i}, v{RB+i+1}\nv_pk_mul_f32 {vr(RY+i,2)}, {vr(RY+i,2)}, {vr(GV+i,2)}")
        a(f"v_lshlrev_b32 v{RB+i}, 16, v{T}\nv_and_b32 v{RB+i+1}, s12, v{T}")
        a(f"v_pk_mul_f32 {vr(RB+i,2)}, {vr(RB+i,2)}, {vr(OM+i,2)}\nv_cvt_pk_bf16_f32 v{T}, v{RB+i}, v{RB+i+1}")
        a(f"v_lshlrev_b32 v{RB+i}, 16, v{T}\nv_and_b32 v{RB+i+1}, s12, v{T}")
        a(f"v_pk_add_f32 {vr(RY+i,2)}, {vr(RY+i,2)}, {vr(RB+i,2)}")
        for e in range(2):
            row = 8*((i+e) >> 2) + ((i+e) & 3)
            a(f"s_mov_b32 s4, {row*2048}\nbuffer_store_dword v{RY+i+e}, v5, s[60:63], s4 offen sc1")
    stamp(a, 12)
    if STAMP: a("s_waitcnt vmcnt(0)")
    stamp(a, 13)
    stamp_flush(a)
    a("s_endpgm")

def loader_pre(a):
    if OPT['prio']: a(f"s_setprio {OPT['prio']}")
    a("v_lshrrev_b32 v1, 3, v0\nv_and_b32 v2, 7, v0")
    a("v_lshrrev_b32 v3, 5, v0\nv_and_b32 v4, 2, v1\nv_or_b32 v3, v3, v4\nv_xor_b32 v3, v3, v2\nv_lshlrev_b32 v3, 4, v3\nv_lshl_add_u32 v10, v1, 10, v3\nv_xor_b32 v11, 64, v10")
    a("v_bfe_u32 v3, v0, 4, 1\nv_lshlrev_b32 v3, 2, v3\nv_xor_b32 v3, v3, v2\nv_lshlrev_b32 v3, 4, v3\ns_movk_i32 s4, 3584\nv_mad_u32_u24 v16, v1, s4, v3\nv_lshl_add_u32 v15, v1, 10, v3")
    a("v_lshrrev_b32 v4, 4, v0\nv_xor_b32 v3, v4, v2\nv_lshlrev_b32 v3, 4, v3\nv_lshl_add_u32 v28, v1, 10, v3\nv_xor_b32 v29, 64, v28")
    a("s_cmp_eq_u32 s12, 1\ns_cselect_b64 vcc, -1, 0\nv_cndmask_b32 v12, v16, v28, vcc\nv_cndmask_b32 v13, v16, v29, vcc")
    a("s_and_b32 s14, s3, 1")
    a("s_mul_i32 s4, s14, 114688\ns_lshl_b32 s5, s9, 1\ns_add_u32 s70, s4, s5\ns_lshl_b32 s4, s14, 5\ns_add_u32 s4, s4, s11\ns_lshl_b32 s5, s4, 10")
    a("s_cmp_eq_u32 s12, 1\ns_cselect_b32 s80, s5, s70\ns_mov_b32 s81, 143360\ns_movk_i32 s82, 28672\ns_cselect_b32 s81, -24448, s81\ns_cselect_b32 s82, 8192, s82")
    a("s_mov_b32 s4, 1835008\ns_cselect_b32 s58, 524288, s4\ns_mov_b32 s59, 0x20000")
    a("s_cselect_b32 s4, 0, 128\ns_add_u32 s70, s70, s4")
    a("s_lshl_b32 s4, s14, 2\nv_or_b32 v4, s4, v4\nv_xor_b32 v4, v4, v2\nv_lshlrev_b32 v4, 4, v4\nv_lshl_add_u32 v14, v1, 10, v4")
    a("s_lshl_b32 s4, s14, 3\ns_add_u32 s4, s4, s10\ns_lshl_b32 s85, s4, 10")
    a("s_lshl_b32 s4, s6, 7\ns_lshl_b32 s5, s3, 5\ns_add_u32 s4, s4, s5\ns_lshl_b32 s86, s4, 10")
    a(f"s_lshl_b32 s87, s3, 12\ns_lshr_b32 s4, s3, 1\ns_mul_i32 s88, s4, 24576\ns_lshl_b32 s4, s14, 12\ns_add_u32 s88, s88, s4\ns_add_u32 s88, s88, {BLK}\ns_lshl_b32 s89, s3, 10\ns_add_u32 s89, s89, {EXT}")
    a("s_mov_b32 s54, 2097152\ns_mov_b32 s55, 0x20000\ns_mov_b32 s62, 524288\ns_mov_b32 s63, 0x20000")

def loader(a):
    Bp, Biss = p2_schedule()
    V = VM(a)
    a("s_waitcnt lgkmcnt(0)")
    a("s_mov_b64 s[52:53], s[16:17]")
    a("s_cmp_ge_u32 s3, 2\ns_cselect_b64 s[72:73], s[38:39], s[36:37]\ns_cselect_b64 s[60:61], s[24:25], s[22:23]")
    a("s_cmp_eq_u32 s12, 1\ns_cselect_b64 s[56:57], s[60:61], s[72:73]\ns_mov_b64 s[90:91], s[72:73]")
    def issue(V, s):
        slot = s % 3
        if s == 8:
            a("s_mov_b64 s[56:57], s[90:91]\ns_mov_b32 s58, 1835008\ns_add_u32 s80, s70, 1146880\ns_mov_b32 s81, 143360\ns_movk_i32 s82, 28672\nv_mov_b32 v12, v16\nv_mov_b32 v13, v16")
        if s == 11: a("s_sub_u32 s80, s80, 1835008")
        for i in range(4 if XL[s] else 0):
            a(f"s_add_u32 m0, s87, {XR + XH[s]*49152 + XI[s]*16384 + i*1024}\ns_add_u32 s4, s86, {i*8192 + KS[s]*128}")
            V.op(f"buffer_load_dwordx4 v{10 + (i >> 1)}, s[52:55], s4 offen lds", ('S', s))
        for i in range(4):
            a(f"s_add_u32 m0, s88, {slot*8192 + i*1024}\ns_nop 0")
            V.op(f"buffer_load_dwordx4 v{12 + (i & 1)}, s[56:59], s80 offen lds", ('S', s))
            a("s_add_u32 s80, s80, s82" if i < 3 else "s_add_u32 s80, s80, s81")
        if s < 8:
            a(f"s_add_u32 m0, s89, {slot*4096}\ns_add_u32 s4, s85, {s*128}")
            V.op("buffer_load_dwordx4 v14, s[60:63], s4 offen lds", ('S', s))
    def bar(V, s, extra="", defer=False):
        V.wait(('S', s+1), extra=extra)
        if OPT['fine']: stamp(a, 16 + s)
        a("s_barrier")
        if defer: return lambda: issue(V, s + 3)
        if s + 3 <= 15: issue(V, s + 3)
        r = s - OPT['l2t']
        if OPT['l2t'] and 0 <= r <= 2:
            if r < 2:
                srd(a, 76, sWd, 1835008)
                a(f"s_lshr_b32 s4, s2, 3\ns_mul_i32 s4, s4, 57344\ns_lshl_b32 s5, s3, 13\ns_add_u32 s4, s4, s5\ns_add_u32 s4, s4, {r*32768}\nv_lshlrev_b32 v18, 7, v0")
                if r == 1: a("s_cmp_eq_u32 s3, 3\ns_cselect_b32 s78, 0, s78")
            else:
                a("s_cmp_ge_u32 s3, 2\ns_cselect_b64 s[76:77], s[28:29], s[26:27]\ns_mov_b32 s78, 524288\ns_mov_b32 s79, 0x20000")
                a("s_lshr_b32 s4, s2, 3\ns_lshl_b32 s4, s4, 14\ns_and_b32 s5, s3, 1\ns_lshl_b32 s5, s5, 13\ns_add_u32 s4, s4, s5")
            V.op("buffer_load_dword v19, v18, s[76:79], s4 offen", 'T')
    issue(V, 0); stamp(a, 14); issue(V, 1)
    V.wait(('S', 0)); stamp(a, 2); a("s_barrier")
    issue(V, 2)
    srd(a, 64, sWs, WS_USED)
    srd(a, 92 if not STAMP else 92, sGw, 1024) if False else None
    srd(a, 72, sLre, 1024); srd(a, 76, sLim, 1024); srd(a, 96, sLdt, 1024)
    a("s_mov_b64 s[68:69], s[42:43]\ns_mov_b32 s71, 0x20000\ns_mov_b32 s92, s70\ns_movk_i32 s70, 1024")
    a("s_lshl_b32 s4, s6, 7\ns_lshl_b32 s5, s13, 3\ns_add_u32 s4, s4, s5\ns_lshl_b32 s5, s3, 1\ns_add_u32 s15, s4, s5\ns_lshl_b32 s14, s15, 10")
    a("v_lshlrev_b32 v1, 4, v0")
    a("s_and_b32 s4, s3, 1\ns_lshl_b32 s4, s4, 6\nv_add_u32 v2, s4, v0\nv_add_u32 v3, s10, v2\ns_sub_u32 s5, s11, 16\nv_add_u32 v4, s5, v2")
    a("v_cmp_gt_u32 vcc, 16, v2\ns_nop 1\nv_cndmask_b32 v3, v4, v3, vcc\nv_lshlrev_b32 v3, 1, v3")
    bar(V, 0)
    V.op("buffer_load_dwordx4 v[32:35], v1, s[52:55], s14 offen", 'X'); V.op("buffer_load_dwordx4 v[36:39], v1, s[52:55], s14 offen offset:1024", 'X')
    V.op("buffer_load_dwordx4 v[40:43], v1, s[68:71], 0 offen", 'X')
    V.op("buffer_load_ushort v44, v3, s[72:75], 0 offen", 'X'); V.op("buffer_load_ushort v45, v3, s[76:79], 0 offen", 'X'); V.op("buffer_load_ushort v46, v3, s[96:99], 0 offen", 'X')
    a("s_mov_b32 s70, s92")
    bar(V, 1); bar(V, 2)
    V.wait('X')
    a("v_lshlrev_b32 v44, 16, v44\nv_lshlrev_b32 v45, 16, v45\nv_lshlrev_b32 v46, 16, v46")
    a(f"v_mul_f32 v46, {LOG2E}, v46\nv_exp_f32 v46, v46\ns_nop 0")
    bf16_round(a, 46, 46, 47)
    a(f"v_mul_f32 v47, v46, v44\nv_mul_f32 v48, v46, v45")
    a(f"v_mul_f32 v47, {LOG2E}, v47\nv_exp_f32 v47, v47\nv_mul_f32 v48, {INV2PI}, v48\nv_rndne_f32 v49, v48\nv_sub_f32 v48, v48, v49")
    a("v_cos_f32 v49, v48\nv_sin_f32 v50, v48\ns_nop 0\nv_mul_f32 v52, v47, v49\nv_mul_f32 v53, v47, v50")
    a("v_mul_f32 v49, v44, v44\nv_fma_f32 v49, v45, v45, v49\nv_rcp_f32 v49, v49\nv_add_f32 v50, -1.0, v52")
    a("v_mul_f32 v54, v50, v44\nv_fma_f32 v54, v53, v45, v54\nv_mul_f32 v55, v53, v44\nv_fma_f32 v55, -v50, v45, v55")
    a("v_add_f32 v49, v49, v49\nv_mul_f32 v54, v54, v49\nv_mul_f32 v55, v55, v49")
    a("v_lshlrev_b32 v2, 4, v2\nv_cmp_gt_u32 vcc, 1280, v2\ns_and_saveexec_b64 s[78:79], vcc")
    a(f"ds_write_b128 v2, v[52:55] offset:{PARAM}")
    a("s_mov_b64 exec, s[78:79]")
    bar(V, 3, " lgkmcnt(0)")
    a("v_mov_b32 v4, 0\nv_mov_b32 v5, 0\ns_mov_b32 s4, 0xffff0000")
    for i in range(4):
        a(f"v_lshlrev_b32 v6, 16, v{40+i}\nv_and_b32 v7, s4, v{40+i}")
        for r in range(2):
            x = 32 + 4*r + i
            a(f"v_lshlrev_b32 v8, 16, v{x}\nv_and_b32 v9, s4, v{x}\nv_mul_f32 v8, v8, v6\nv_mul_f32 v9, v9, v7")
            a(f"v_cvt_pk_bf16_f32 v8, v8, v9\nv_lshlrev_b32 v9, 16, v8\nv_and_b32 v8, s4, v8\nv_add_f32 v{4+r}, v{4+r}, v9\nv_add_f32 v{4+r}, v{4+r}, v8")
        if i == 1: bar(V, 4); a("s_mov_b32 s4, 0xffff0000")
    bar(V, 5)
    for sh in [1, 2, 4, 8]:
        a(f"s_nop 1\nv_add_f32_dpp v4, v4, v4 row_shr:{sh} row_mask:0xf bank_mask:0xf bound_ctrl:0\nv_add_f32_dpp v5, v5, v5 row_shr:{sh} row_mask:0xf bank_mask:0xf bound_ctrl:0")
    a("s_nop 1")
    for r in range(2):
        a(f"v_readlane_b32 s{76+20*r}, v{4+r}, 15\nv_readlane_b32 s{77+20*r}, v{4+r}, 31\nv_readlane_b32 s{78+20*r}, v{4+r}, 47")
    a("s_nop 1")
    for j in range(3):
        a(f"v_add_f32 v4, s{76+j}, v4\nv_add_f32 v5, s{96+j}, v5")
    a("s_nop 0\nv_readlane_b32 s4, v4, 63\nv_readlane_b32 s5, v5, 63\nv_cmp_eq_u32 vcc, 1, v0\ns_nop 0\nv_mov_b32 v4, s4\nv_mov_b32 v5, s5\nv_cndmask_b32 v4, v4, v5, vcc")
    bf16_round(a, 4, 4, 5)
    a(f"v_mul_f32 v4, {NLOG2E}, v4\nv_exp_f32 v4, v4\ns_nop 0\nv_add_f32 v4, 1.0, v4\nv_rcp_f32 v4, v4\ns_nop 0")
    bf16_round(a, 4, 4, 5)
    a(f"s_lshl_b32 s4, s15, 2\ns_add_u32 s4, s4, {G_OFF}\nv_lshlrev_b32 v5, 2, v0\ns_mov_b64 exec, 3")
    V.op("buffer_store_dword v4, v5, s[64:67], s4 offen sc1", 'G'); a("s_mov_b64 exec, -1")
    bar(V, 6); bar(V, 7)
    V.wait('G')
    def b_setup():
        p2_ids(a)
        srd(a, 52, sWd, 1835008); srd(a, 56, sCre, 524288); srd(a, 60, sCim, 524288)
        a("s_lshl_b32 s4, s3, 14\ns_lshl_b32 s5, s85, 7\ns_add_u32 s89, s4, s5\ns_lshl_b32 s5, s85, 16\ns_add_u32 s90, s4, s5\ns_lshl_b32 s91, s3, 11")
    def loadB(V, p):
        s = ORD[p]
        for i in range(1 if OPT['halfB'] else 2):
            a(f"s_add_u32 m0, s91, {page(Bp[p]) + i*1024}")
            if s < 28:
                a(f"s_add_u32 s4, s89, {s*65536 + i*8192}")
                V.op(f"buffer_load_dwordx4 v15, s[52:55], s4 offen lds", ('B', p))
            else:
                t = s - 28
                a(f"s_add_u32 s4, s90, {(t >> 1)*128 + i*8192}")
                V.op(f"buffer_load_dwordx4 v{28+i}, s[{56 + 4*(t & 1)}:{59 + 4*(t & 1)}], s4 offen lds", ('B', p))
    def poll(which, pre_issued=False):
        lp = a.lab(); ld = a.lab(); lc = a.lab()
        a("s_mov_b32 s88, 0x8000")
        if pre_issued: a(f"s_branch {lc}")
        a.label(lp)
        a(f"buffer_load_dword v8, v9, s[64:67], s86 offen offset:{which*256} sc1\ns_waitcnt vmcnt(0)")
        a.label(lc)
        a(f"v_cmp_ne_u32 vcc, s72, v8\ns_cmp_eq_u64 vcc, 0\ns_cbranch_scc1 {ld}")
        a(f"s_sub_u32 s88, s88, 1\ns_cmp_lg_u32 s88, 0\ns_cbranch_scc1 {lp}")
        a.label(ld)
    KH, KB = OPT['KH'], OPT['KB']
    def pollissue(V, which): V.op(f"buffer_load_dword v8, v9, s[64:67], s86 offen offset:{which*256} sc1", 'P')
    def tail(V, role):
        b_setup()
        if role == 2:
            a(f"s_lshr_b32 s4, s84, 1\ns_lshl_b32 s4, s4, 10\ns_add_u32 s86, s4, {FLG_OFF}\nv_lshlrev_b32 v9, 2, v0")
        for p in Biss['b12']: loadB(V, p)
        bar(V, 13, " lgkmcnt(0)")
        for p in Biss['b13']: loadB(V, p)
        bar(V, 14)
        if role == 2: pollissue(V, 0)
        for p in Biss['b14']: loadB(V, p)
        for k in range(22):
            V.wait(('B', 2*k), ('B', 2*k+1))
            if role == 2:
                for (kk_, wh) in ((-1, 0), (KH, 1), (KB, 2)):
                    if k == kk_ + 1:
                        V.wait('P'); poll(wh, pre_issued=True)
                        if wh == 0: stamp(a, 7)
            if OPT['fine']: stamp(a, 32+k)
            a("s_barrier")
            if role == 2 and k in (KH, KB): pollissue(V, 1 if k == KH else 2)
            if k == 0:
                for p in Biss['Z']: loadB(V, p)
            for p in Biss[k]: loadB(V, p)
        a("s_barrier")
        stamp_flush(a)
        a("s_endpgm")
    L2 = a.lab(); L3 = a.lab(); LM = a.lab()
    a(f"s_cmp_eq_u32 s3, 2\ns_cbranch_scc1 {L2}\ns_and_b32 s4, s3, s12\ns_cmp_eq_u32 s3, 3\ns_cselect_b32 s4, s4, 0\ns_cmp_eq_u32 s4, 1\ns_cbranch_scc1 {L3}")
    V0 = V
    V = V0.copy()
    for s in range(8, 13): bar(V, s)
    tail(V, 0)
    a.label(L2)
    V = V0.copy(); combine(a, V, bar, 8, 16, 16, 3, AGE_RE, AGE_IM, 10, PARAM); tail(V, 2)
    a.label(L3)
    V = V0.copy(); combine(a, V, bar, 9, 8, 64, 4, AGM_RE, AGM_IM, 11, PARAM + 256); tail(V, 3)

def combine(a, V, bar, sb, nseg, nch, lg, are, aim, sch, pofs):
    ex = f"s_mov_b64 exec, {(1 << nch) - 1}" if nch < 64 else "s_nop 0"
    AR, AI, E, WP, MU, EX = 32, 48, 60, 128, 160, 192
    def cm(dr, di, ar, ai, br, bi):
        a(f"v_mul_f32 v{dr}, v{ar}, v{br}\nv_mul_f32 v{di}, v{ar}, v{bi}\nv_fma_f32 v{dr}, -v{ai}, v{bi}, v{dr}\nv_fma_f32 v{di}, v{ai}, v{br}, v{di}")
    a(f"s_add_u32 s96, s48, {AGG_OFF}\ns_addc_u32 s97, s49, 0\ns_mov_b32 s98, {AGG_SZ}\ns_mov_b32 s99, 0x20000")
    a(f"v_lshlrev_b32 v1, 4, v0\nv_mov_b32 v4, 0\nds_read_b64 v[2:3], v1 offset:{pofs}\nds_read_b32 v5, v4 offset:{NONCE}\ns_waitcnt lgkmcnt(0)\nv_readfirstlane_b32 s72, v5")
    for i in range(7):
        a("v_mul_f32 v8, v3, v3\nv_mul_f32 v9, v2, v3\nv_fma_f32 v2, v2, v2, -v8\nv_add_f32 v3, v9, v9")
        if i == lg - 1: a(f"v_mov_b32 v{MU+2}, v2\nv_mov_b32 v{MU+3}, v3")
    a(f"s_lshl_b32 s4, s{sch}, 4\ns_lshl_b32 s5, s6, 13\ns_add_u32 s4, s4, s5\nv_add_u32 v17, s4, v1")
    a(f"v_lshlrev_b32 v1, 2, v0\nv_add_u32 v1, {EXT}, v1\nv_mov_b32 v125, v5\nv_mov_b32 v127, v5")
    for d in range(1, 16): a(f"s_cmp_ge_u32 s6, {d}\ns_cselect_b32 s4, s72, 0\nv_mov_b32 v{EX+d}, s4")
    bar(V, 8)
    stamp(a, 3)
    a(ex)
    for sg in range(nseg):
        a(f"ds_read_b32 v{AR+sg}, v1 offset:{are - EXT + sg*nch*4}\nds_read_b32 v{AI+sg}, v1 offset:{aim - EXT + sg*nch*4}")
    a("s_waitcnt lgkmcnt(0)")
    for sg in range(1, nseg):
        dr, di = (124, 126) if sg == nseg - 1 else (AR+sg, AI+sg)
        a(f"v_fma_f32 v{dr}, v{AR+sg-1}, v{MU+2}, v{AR+sg}\nv_fma_f32 v{di}, v{AI+sg-1}, v{MU+2}, v{AI+sg}")
        a(f"v_fma_f32 v{dr}, -v{AI+sg-1}, v{MU+3}, v{dr}\nv_fma_f32 v{di}, v{AR+sg-1}, v{MU+3}, v{di}")
    V.op("buffer_store_dwordx4 v[124:127], v17, s[96:99], 0 offen sc1", 'Q')
    a("s_mov_b64 exec, -1")
    stamp(a, 4)
    bar(V, 9)
    for d in range(2, 16):
        if d == 2: a(f"v_mov_b32 v{WP+4}, v2\nv_mov_b32 v{WP+5}, v3")
        else: cm(WP+2*d, WP+2*d+1, WP+2*(d-1), WP+2*(d-1)+1, 2, 3)
        a(f"s_cmp_ge_u32 s6, {d}\ns_cselect_b64 vcc, -1, 0\nv_cndmask_b32 v{WP+2*d}, 0, v{WP+2*d}, vcc\nv_cndmask_b32 v{WP+2*d+1}, 0, v{WP+2*d+1}, vcc")
    bar(V, 10)
    for sg in range(2, nseg): cm(MU+2*sg, MU+2*sg+1, MU+2*(sg-1), MU+2*(sg-1)+1, MU+2, MU+3)
    def loads(first):
        for d in range(1, 16):
            a(f"v_subrev_u32 v{24+(d&3)}, {d*8192}, v17")
            ins = f"buffer_load_dwordx4 {vr(E+4*d,4)}, v{24+(d&3)}, s[96:99], 0 offen sc1"
            if first: V.op(ins, 'R')
            else: a(ins)
    late = bar(V, 11, defer=True)
    a(ex); loads(True); a("s_mov_b64 exec, -1")
    late()
    late = bar(V, 12, defer=True)
    a(ex)
    lp = a.lab(); ld = a.lab(); lc = a.lab()
    a("s_mov_b32 s83, 0x8000")
    V.wait('R')
    a(f"s_branch {lc}")
    a.label(lp)
    loads(False)
    a("s_waitcnt vmcnt(0)")
    a.label(lc)
    a("v_mov_b32 v20, 0")
    for d in range(1, 16):
        a(f"v_xor_b32 v{21+(d&1)*2}, v{E+4*d+1}, v{EX+d}\nv_xor_b32 v{22+(d&1)*2}, v{E+4*d+3}, v{EX+d}\nv_or3_b32 v20, v20, v{21+(d&1)*2}, v{22+(d&1)*2}")
    a(f"v_cmp_ne_u32 vcc, 0, v20\ns_cmp_eq_u64 vcc, 0\ns_cbranch_scc1 {ld}")
    a(f"s_sub_u32 s83, s83, 1\ns_cmp_lg_u32 s83, 0\ns_cbranch_scc1 {lp}")
    a.label(ld)
    stamp(a, 5)
    a(f"v_mov_b32 v20, v{E+4}\nv_mov_b32 v21, v{E+6}\nv_mov_b32 v22, 0\nv_mov_b32 v23, 0")
    for d in range(2, 16):
        r, i_ = (20, 21) if d & 1 else (22, 23)
        a(f"v_fma_f32 v{r}, v{E+4*d}, v{WP+2*d}, v{r}\nv_fma_f32 v{i_}, v{E+4*d+2}, v{WP+2*d}, v{i_}")
        a(f"v_fma_f32 v{r}, -v{E+4*d+2}, v{WP+2*d+1}, v{r}\nv_fma_f32 v{i_}, v{E+4*d}, v{WP+2*d+1}, v{i_}")
    a("v_add_f32 v20, v20, v22\nv_add_f32 v21, v21, v23")
    a(f"ds_write_b32 v1, v20 offset:{are - EXT}\nds_write_b32 v1, v21 offset:{aim - EXT}")
    for sg in range(1, nseg):
        p, q = AR+sg-1, AI+sg-1
        a(f"v_fma_f32 v{p}, v20, v{MU+2*sg}, v{p}\nv_fma_f32 v{q}, v21, v{MU+2*sg}, v{q}")
        a(f"v_fma_f32 v{p}, -v21, v{MU+2*sg+1}, v{p}\nv_fma_f32 v{q}, v20, v{MU+2*sg+1}, v{q}")
        a(f"ds_write_b32 v1, v{p} offset:{are - EXT + sg*nch*4}\nds_write_b32 v1, v{q} offset:{aim - EXT + sg*nch*4}")
    a("s_mov_b64 exec, -1")
    stamp(a, 6)
    late()

def kernel(a, name):
    a(f".p2align 8\n.globl {name}\n.type {name},@function")
    a.label(name)
    l_end = a.lab(); l_c = a.lab(); l_s = a.lab(); l_p2 = a.lab()
    a("s_getpc_b64 s[90:91]")
    a(f"s_cmp_ge_u32 s2, 256\ns_cbranch_scc1 {l_end}")
    a("s_load_dwordx16 s[16:31], s[0:1], 0\ns_load_dwordx16 s[32:47], s[0:1], 64\ns_load_dwordx2 s[48:49], s[0:1], 128")
    a("v_lshrrev_b32 v1, 6, v0\nv_and_b32 v0, 63, v0\nv_readfirstlane_b32 s3, v1")
    if OPT['cpf'] == 3:
        l_np = a.lab()
        a(f"s_cmp_lg_u32 s3, 3\ns_cbranch_scc1 {l_np}")
        a(f"s_mov_b32 s4, L_code_end - {NAME}_kernel - 8\nv_lshlrev_b32 v1, 7, v0")
        a("s_lshr_b32 s5, s2, 3\ns_and_b32 s5, s5, 7\ns_lshl_b32 s5, s5, 13\nv_add_u32 v2, s5, v1\nv_min_u32 v2, s4, v2\nglobal_load_dword v8, v2, s[90:91]")
        a.label(l_np)
    a("s_and_b32 s4, s2, 7\ns_lshr_b32 s5, s2, 3")
    a("s_and_b32 s6, s4, 1\ns_lshr_b32 s7, s5, 2\ns_lshl_b32 s7, s7, 1\ns_add_u32 s6, s6, s7")
    a("s_and_b32 s7, s5, 3\ns_lshr_b32 s8, s4, 1")
    a("s_mul_i32 s9, s8, 448\ns_lshl_b32 s4, s7, 7\ns_add_u32 s9, s9, s4")
    a("s_lshl_b32 s11, s8, 7\ns_lshl_b32 s4, s7, 4\ns_add_u32 s10, s11, s4\ns_add_u32 s11, s11, 64")
    a("s_cmp_eq_u32 s7, 3\ns_cselect_b32 s12, 1, 0\ns_lshl_b32 s13, s8, 2\ns_add_u32 s13, s13, s7")
    if STAMP: a("s_mov_b32 s93, s3")
    a(f"s_cmp_lt_u32 s3, 4\ns_cbranch_scc1 {l_c}")
    a("s_sub_u32 s3, s3, 4")
    loader_pre(a)
    if STAMP: a("s_waitcnt lgkmcnt(0)")
    stamp(a, 0)
    loader(a)
    a.label(l_c)
    if OPT['cpf'] == 1:
        l_np = a.lab()
        a(f"s_cmp_lg_u32 s3, 3\ns_cbranch_scc1 {l_np}")
        a(f"s_mov_b32 s4, L_code_end - {NAME}_kernel - 8\nv_lshlrev_b32 v1, 7, v0")
        a("s_lshr_b32 s5, s2, 3\ns_and_b32 s5, s5, 7\ns_lshl_b32 s5, s5, 13\nv_add_u32 v2, s5, v1\nv_min_u32 v2, s4, v2\nglobal_load_dword v8, v2, s[90:91]")
        a.label(l_np)
    elif OPT['cpf'] == 99:
        l_np = a.lab()
        a(f"s_cmp_lg_u32 s3, 3\ns_cbranch_scc1 {l_np}")
        a(f"s_mov_b32 s4, L_code_end - {NAME}_kernel - 8\nv_lshlrev_b32 v1, 7, v0")
        a("s_lshr_b32 s5, s2, 3\ns_and_b32 s5, s5, 7\ns_lshl_b32 s5, s5, 13\nv_add_u32 v2, s5, v1\nv_min_u32 v2, s4, v2\nglobal_load_dword v8, v2, s[90:91]")
        a.label(l_np)
    elif OPT['cpf'] == 2:
        a(f"s_mov_b32 s4, L_code_end - {NAME}_kernel - 8\nv_lshlrev_b32 v1, 7, v0")
        a("s_lshr_b32 s5, s2, 3\ns_and_b32 s5, s5, 1\ns_lshl_b32 s14, s3, 1\ns_add_u32 s5, s5, s14\ns_lshl_b32 s5, s5, 13\nv_add_u32 v2, s5, v1\nv_min_u32 v2, s4, v2\nglobal_load_dword v8, v2, s[90:91]")
    a("s_waitcnt lgkmcnt(0)")
    stamp(a, 0)
    p1_consumer_prologue(a, "L_code_end")
    a(f"s_cmp_eq_u32 s12, 1\ns_cbranch_scc1 {l_s}")
    global passB_fillers
    orig = passB_fillers
    def withnonce(M):
        F = orig(M); F[7] = [nonce_finish(a)] + F[7]; return F
    passB_fillers = withnonce
    p1_consumer(a, False)
    a(f"s_branch {l_p2}")
    a.label(l_s)
    p1_consumer(a, True)
    a.label(l_p2)
    p2_consumer(a)
    a.label(l_end)
    a("s_endpgm")
    a.label("L_code_end")
    a("s_endpgm")

def desc(name, nv=256):
    return f""".p2align 6
.amdhsa_kernel {name}
  .amdhsa_next_free_vgpr {nv}
  .amdhsa_next_free_sgpr 102
  .amdhsa_accum_offset {nv}
  .amdhsa_group_segment_fixed_size 0
  .amdhsa_kernarg_size 136
  .amdhsa_user_sgpr_count 2
  .amdhsa_user_sgpr_kernarg_segment_ptr 1
  .amdhsa_system_sgpr_workgroup_id_x 1
.end_amdhsa_kernel
"""

def main(out):
    a = Asm()
    n1 = NAME + "_kernel"
    kernel(a, n1)
    txt = HDR
    txt += f"; @launch grid=(256,1,1) block=(512,1,1) lds={LDS1}\n"
    txt += '.amdgcn_target "amdgcn-amd-amdhsa--gfx950"\n.text\n' + a.text()
    txt += '.section .rodata,"a"\n' + desc(n1)
    open(out, "w").write(txt)

if __name__ == "__main__":
    args = sys.argv[1:]
    if "-tot" in args: STAMP = 2; args.remove("-tot")
    if "-stamp" in args: STAMP = True; args.remove("-stamp")
    for x in list(args):
        if "=" in x:
            k, v = x.split("="); assert k in OPT, k; OPT[k] = int(v); args.remove(x)
    if "-sched" in args:
        print(p2_schedule()); print(ORD)
        for M in (False, True): print({k: len(v) for k, v in passB_fillers(M).items()})
        sys.exit()
    main(args[0] if args else f"cdna_kernels/{NAME}.s")
```
